```python
import torch

def _softmax(x, axis=-1):
    return torch.softmax(x, dim=axis)
def _gelu(x):
    return torch.nn.functional.gelu(x, approximate="tanh")
def _silu(x):
    return torch.nn.functional.silu(x)
def _sigmoid(x):
    return torch.sigmoid(x)
def _layernorm(x, axis=-1, eps=1e-5):
    m = x.mean(dim=axis, keepdim=True)
    v = x.var(dim=axis, keepdim=True, unbiased=False)
    return (x - m) / torch.sqrt(v + eps)
def _scatter_add(tgt, idx, src, axis=0):
    return tgt.clone().index_add_(axis, idx, src)
def _segment_sum(src, seg, n):
    out = torch.zeros((n,) + src.shape[1:], dtype=src.dtype)
    return out.index_add_(0, seg, src)
def _pad(x, pw):
    flat = tuple(v for pair in reversed(pw) for v in pair)
    return torch.nn.functional.pad(x, flat)

kernel_name = 'gated_mix__ssm_conv_h3__glu_gated_swiglu__prompt'

def setup_inputs():

    _w = (lambda a: (lambda t: t.to(torch.bfloat16) if t.is_floating_point() else t)(torch.as_tensor(a)))
    def _A_setup():
        B, S, D = 1, 2048, 640
        ks = 4
        return {
            "q": _w((lambda *s: torch.randn(*s, dtype=torch.bfloat16) * 0.05)(B, S, D)),
            "k": _w((lambda *s: torch.randn(*s, dtype=torch.bfloat16) * 0.2)(B, S, D)),
            "v": _w((lambda *s: torch.randn(*s, dtype=torch.bfloat16) * 0.2)(B, S, D)),
            "shift_k": _w((lambda *s: torch.randn(*s, dtype=torch.bfloat16) * 0.2)(D, ks) * 0.5),
            "ssm_k": _w((lambda *s: torch.randn(*s, dtype=torch.bfloat16) * 0.2)(D, S) * (1.0 / S ** 0.5)),
            "ssm_D": _w((lambda *s: torch.randn(*s, dtype=torch.bfloat16) * 0.2)(D)),
        }
    _A_in = _A_setup()

    def _B_setup():
        B, S, D, F = 1, 2048, 640, 1728
        return {
            "x": _w((lambda *s: torch.randn(*s, dtype=torch.bfloat16) * 0.05)(B, S, D)),
            "w1": _w((lambda *s: torch.randn(*s, dtype=torch.bfloat16) * 0.4)(D, F) * (2.0 / D) ** 0.5),
            "w3": _w((lambda *s: torch.randn(*s, dtype=torch.bfloat16) * 0.4)(D, F) * (2.0 / D) ** 0.5),
            "w2": _w((lambda *s: torch.randn(*s, dtype=torch.bfloat16) * 0.4)(F, D) * (2.0 / F) ** 0.5),
        }
    _B_in = _B_setup()

    return {
        "A_q": _A_in["q"],
        "A_k": _A_in["k"],
        "A_v": _A_in["v"],
        "A_shift_k": _A_in["shift_k"],
        "A_ssm_k": _A_in["ssm_k"],
        "A_ssm_D": _A_in["ssm_D"],
        "B_x": _B_in["x"],
        "B_w1": _B_in["w1"],
        "B_w3": _B_in["w3"],
        "B_w2": _B_in["w2"],
        "gate_w": _w((lambda *s: torch.randn(*s, dtype=torch.bfloat16) * 0.05)(640) * 16.0),
    }

def reference(A_q, A_k, A_v, A_shift_k, A_ssm_k, A_ssm_D, B_x, B_w1, B_w3, B_w2, gate_w):
    def _A_ref(q, k, v, shift_k, ssm_k, ssm_D):
        B, S, D = q.shape
        ks = shift_k.shape[-1]
        k_pad = _pad(k, ((0, 0), (ks - 1, 0), (0, 0)))
        k_shift = torch.zeros_like(k)
        for t in range(ks):
            k_shift = k_shift + k_pad[:, t:t + S, :] * shift_k[:, ks - 1 - t][None, None, :]
        kv = k_shift * v
        L = 2 * S
        kv_pad = _pad(kv, ((0, 0), (0, S), (0, 0)))
        kf_pad = _pad(ssm_k, ((0, 0), (0, S)))
        kv_f = (lambda x, axes=(-2,-1): torch.fft.rfft2(x.float(), dim=axes))(kv_pad[:, None, :, :], axes=(1, 2))
        kf_f = (lambda x, axes=(-2,-1): torch.fft.rfft2(x.float(), dim=axes))(kf_pad[:, None, :], axes=(1, 2))
        kf_f = (lambda x, *d: x.permute(*d))(kf_f, 1, 2, 0)
        y_f = kv_f * kf_f[None, :, :, :]
        y = (lambda x, s, axes=(-2,-1): torch.fft.irfft2(x, s=s, dim=axes).to(torch.bfloat16))(y_f, (1, L), axes=(1, 2))[:, 0, :S, :]
        y = y + kv * ssm_D[None, None, :]
        return q * y

    def _B_ref(x, w1, w3, w2):
        gate = torch.einsum("bsd,df->bsf", x, w1)
        up = torch.einsum("bsd,df->bsf", x, w3)
        h = _silu(gate) * up
        out = torch.einsum("bsf,fd->bsd", h, w2)
        return out

    x = A_q
    g = _sigmoid((x * gate_w).sum(-1, keepdims=True))
    a = _A_ref(x, A_k, A_v, A_shift_k, A_ssm_k, A_ssm_D)
    b = _B_ref(x, B_w1, B_w3, B_w2)
    return g * a + (1 - g) * b
```

```python
class Asm:
    def __init__(self):
        self.lines = []
        self.lbl = 0
    def __call__(self, s):
        for ln in s.strip('\n').split('\n'):
            self.lines.append('    ' + ln.strip())
    def label(self, name):
        self.lines.append(name + ':')
    def raw(self, s):
        self.lines.append(s)
    def comment(self, s):
        self.lines.append('    ; ' + s)
    def newlabel(self, p='L'):
        self.lbl += 1
        return '%s_%d' % (p, self.lbl)
    def text(self):
        return '\n'.join(self.lines) + '\n'

def v(i, n=1):
    return 'v%d' % i if n == 1 else 'v[%d:%d]' % (i, i + n - 1)
def s(i, n=1):
    return 's%d' % i if n == 1 else 's[%d:%d]' % (i, i + n - 1)

def srd(a, d, base, nbytes, add=None):
    if add is None:
        a('s_mov_b32 s%d, s%d' % (d, base))
        a('s_mov_b32 s%d, s%d' % (d + 1, base + 1))
    else:
        a('s_add_u32 s%d, s%d, %s' % (d, base, add if isinstance(add, str) else hex(add)))
        a('s_addc_u32 s%d, s%d, 0' % (d + 1, base + 1))
    if isinstance(nbytes, str):
        a('s_mov_b32 s%d, %s' % (d + 2, nbytes))
    else:
        a('s_mov_b32 s%d, %s' % (d + 2, hex(nbytes)))
    a('s_mov_b32 s%d, 0x00020000' % (d + 3))

def kernel_desc(name, vgpr, sgpr=102):
    acc = (vgpr + 3) // 4 * 4
    return '''.p2align 6
.amdhsa_kernel %s
  .amdhsa_next_free_vgpr %d
  .amdhsa_next_free_sgpr %d
  .amdhsa_accum_offset %d
  .amdhsa_group_segment_fixed_size 0
  .amdhsa_kernarg_size 112
  .amdhsa_user_sgpr_count 2
  .amdhsa_user_sgpr_kernarg_segment_ptr 1
  .amdhsa_system_sgpr_workgroup_id_x 1
.end_amdhsa_kernel
''' % (name, vgpr, sgpr, acc)
```

```python
import sys
from asmlib import *

NAME = 'gated_mix__ssm_conv_h3__glu_gated_swiglu__prompt'
WS_H = 0
WS_W2P = 0x800000
WS_UT = 0xC00000
WS_Z4 = 0x1000000
WS_G = 0x1400000
SZ_ACT = 2048 * 640 * 2
SZ_W = 640 * 1728 * 2
SZ_H = 2048 * 1728 * 2
P_Q, P_K, P_V, P_SK, P_SSMK, P_SSMD, P_BX, P_W1, P_W3, P_W2, P_GW, P_OUT, P_DBG, P_WS = [16 + 2 * i for i in range(14)]
NLOG2E = '0xbfb8aa3b'
ROT1 = True
ROT2 = True

def load_args(a):
    a('s_load_dwordx16 s[16:31], s[0:1], 0')
    a('s_load_dwordx8 s[32:39], s[0:1], 64')
    a('s_load_dwordx4 s[40:43], s[0:1], 96')

def wave_lane(a, sw):
    a('v_lshrrev_b32 v1, 6, v0')
    a('s_nop 0')
    a('v_readfirstlane_b32 s%d, v1' % sw)
    a('v_and_b32 v1, 63, v0')

def gemm1(a):
    RB, CB, W = 8, 9, 10
    SX, SW1, SW3, SH = 44, 48, 52, 56
    KS, OX, OW, LW, HO = 60, 61, 62, 63, 64
    a('s_mul_i32 s11, s%d, %d' % (RB, 256 * 1280))
    srd(a, SX, P_Q, 256 * 1280, 's11')
    a('s_lshl_b32 s11, s%d, 7' % CB)
    a('s_sub_u32 s12, %s, s11' % hex(SZ_W))
    srd(a, SW1, P_W1, 's12', 's11')
    srd(a, SW3, P_W3, 's12', 's11')
    srd(a, SH, P_WS, SZ_H, None if WS_H == 0 else WS_H)
    if ROT1:
        a('s_mul_i32 s11, s%d, 3' % RB)
        a('s_add_u32 s11, s11, s%d' % CB)
        a('s_mul_i32 s12, s11, 205')
        a('s_lshr_b32 s12, s12, 11')
        a('s_mul_i32 s12, s12, 10')
        a('s_sub_u32 s%d, s11, s12' % KS)
    else:
        a('s_mov_b32 s%d, 0' % KS)
    a('s_lshl_b32 s%d, s%d, 10' % (LW, W))
    a('v_lshrrev_b32 v13, 3, v1')
    a('s_lshl_b32 s11, s%d, 3' % W)
    a('v_add_u32 v13, s11, v13')
    a('v_bfe_u32 v14, v13, 1, 3')
    a('v_and_b32 v15, 7, v1')
    a('v_xor_b32 v14, v14, v15')
    a('v_lshlrev_b32 v14, 4, v14')
    a('v_mul_u32_u24 v2, 1280, v13')
    a('v_add_u32 v2, v2, v14')
    for i in range(1, 4):
        a('v_add_u32 v%d, %s, v2' % (2 + i, hex(i * 81920)))
    a('v_bfe_u32 v14, v13, 1, 1')
    a('v_lshlrev_b32 v14, 2, v14')
    a('v_xor_b32 v14, v14, v15')
    a('v_lshlrev_b32 v14, 4, v14')
    a('v_mul_u32_u24 v6, 3456, v13')
    a('v_add_u32 v6, v6, v14')

    def dma(st):
        a('s_lshl_b32 s%d, s%d, 7' % (OX, KS))
        a('s_mul_i32 s%d, s%d, %d' % (OW, KS, 64 * 3456))
        for i in range(4):
            a('s_add_u32 m0, s%d, %s' % (LW, hex(i * 24576 + st * 8192)))
            a('s_nop 0')
            a('buffer_load_dwordx4 v%d, %s, s%d offen lds' % (2 + i, s(SX, 4), OX))
        for m, S in ((0, SW1), (1, SW3)):
            a('s_add_u32 m0, s%d, %s' % (LW, hex(98304 + st * 16384 + m * 8192)))
            a('s_nop 0')
            a('buffer_load_dwordx4 v6, %s, s%d offen lds' % (s(S, 4), OW))
        a('s_add_u32 s%d, s%d, 1' % (KS, KS))
        a('s_cmp_eq_u32 s%d, 10' % KS)
        a('s_cselect_b32 s%d, 0, s%d' % (KS, KS))
    dma(0); dma(1); dma(2)
    a('s_lshr_b32 s11, s%d, 1' % W)
    a('s_and_b32 s12, s%d, 1' % W)
    a('s_mul_i32 s13, s11, 24576')
    a('v_and_b32 v13, 31, v1')
    a('v_lshrrev_b32 v14, 5, v1')
    a('v_bfe_u32 v15, v1, 1, 3')
    a('v_xor_b32 v15, v15, v14')
    a('v_lshlrev_b32 v12, 7, v13')
    a('v_add_u32 v12, s13, v12')
    for kk in range(4):
        a('v_xor_b32 v%d, %d, v15' % (7 + kk, 2 * kk))
        a('v_lshl_add_u32 v%d, v%d, 4, v12' % (7 + kk, 7 + kk))
    a('v_bfe_u32 v11, v1, 2, 2')
    a('v_lshl_add_u32 v11, v14, 3, v11')
    a('v_lshlrev_b32 v11, 7, v11')
    a('v_bfe_u32 v12, v1, 3, 1')
    a('v_xor_b32 v12, s12, v12')
    a('v_lshl_add_u32 v11, v12, 6, v11')
    a('v_bfe_u32 v12, v1, 4, 1')
    a('v_lshl_add_u32 v11, v12, 5, v11')
    a('v_and_b32 v12, 3, v1')
    a('v_lshl_add_u32 v11, v12, 3, v11')
    a('v_add_u32 v11, 0x18000, v11')
    a('v_bfe_u32 v12, v1, 4, 1')
    a('v_lshlrev_b32 v12, 10, v12')
    a('v_and_b32 v13, 15, v1')
    a('v_lshl_add_u32 v12, v13, 4, v12')
    a('v_lshl_add_u32 v12, v14, 8, v12')
    a('s_lshl_b32 s13, s%d, 2' % RB)
    a('s_add_u32 s13, s13, s11')
    a('s_mul_i32 s13, s13, 54')
    a('s_add_u32 s13, s13, s12')
    a('s_lshl_b32 s14, s%d, 1' % CB)
    a('s_add_u32 s13, s13, s14')
    a('s_lshl_b32 s%d, s13, 12' % HO)

    def reads(st, kk, b):
        B = 16 + 16 * b
        for nt in range(2):
            a('ds_read_b128 %s, v%d offset:%d' % (v(B + 4 * nt, 4), 7 + kk, st * 8192 + nt * 4096))
        for m in range(2):
            for h in range(2):
                a('ds_read_b64_tr_b16 %s, v11 offset:%d' % (v(B + 8 + 4 * m + 2 * h, 2), st * 16384 + m * 8192 + kk * 2048 + h * 512))
    def mfmas(b, first):
        B = 16 + 16 * b
        for m in range(2):
            for nt in range(2):
                acc = v(48 + (m * 2 + nt) * 16, 16)
                a('v_mfma_f32_32x32x16_bf16 %s, %s, %s, %s' % (acc, v(B + 8 + 4 * m, 4), v(B + 4 * nt, 4), '0' if first else acc))
    a('s_waitcnt vmcnt(12)')
    a('s_barrier')
    reads(0, 0, 0)
    for sidx in range(10):
        st = sidx % 3
        a.comment('k-step %d' % sidx)
        for kk in range(3):
            reads(st, kk + 1, (kk + 1) & 1)
            a('s_waitcnt lgkmcnt(6)')
            mfmas(kk & 1, sidx == 0 and kk == 0)
        if sidx < 9:
            a('s_waitcnt vmcnt(%d) lgkmcnt(0)' % (6 if sidx + 2 <= 9 else 0))
            a('s_barrier')
            reads((sidx + 1) % 3, 0, 0)
            if sidx + 3 <= 9:
                dma(st)
        else:
            a('s_waitcnt lgkmcnt(0)')
        mfmas(1, False)
    a('s_nop 15')
    for nt in range(2):
        G = 48 + nt * 16
        U = 48 + (2 + nt) * 16
        for i in range(16):
            a('v_mul_f32 v%d, %s, v%d' % (16 + i, NLOG2E, G + i))
        for i in range(16):
            a('v_exp_f32 v%d, v%d' % (16 + i, 16 + i))
            a('v_mul_f32 v%d, v%d, v%d' % (G + i, G + i, U + i))
        for i in range(16):
            a('v_add_f32 v%d, 1.0, v%d' % (16 + i, 16 + i))
        for i in range(16):
            a('v_rcp_f32 v%d, v%d' % (16 + i, 16 + i))
        a('s_nop 0')
        for i in range(16):
            a('v_mul_f32 v%d, v%d, v%d' % (G + i, G + i, 16 + i))
        for i in range(8):
            a('v_cvt_pk_bf16_f32 v%d, v%d, v%d' % (32 + 8 * nt + i, G + 2 * i, G + 2 * i + 1))
        for jp in range(2):
            a('buffer_store_dwordx4 %s, v12, %s, s%d offen offset:%d' % (v(32 + 8 * nt + 4 * jp, 4), s(SH, 4), HO, nt * 2048 + jp * 512))
    a('s_endpgm')

def prep(a):
    PID, W = 8, 10
    SK, SV, SSK, SUT, SQ, SGW, SG, SW2, SW2P = 44, 48, 52, 56, 60, 64, 68, 72, 76
    srd(a, SK, P_K, SZ_ACT)
    srd(a, SV, P_V, SZ_ACT)
    srd(a, SSK, P_SK, 640 * 8)
    srd(a, SUT, P_WS, SZ_ACT, WS_UT)
    srd(a, SQ, P_Q, SZ_ACT)
    srd(a, SGW, P_GW, 1280)
    srd(a, SG, P_WS, 8192, WS_G)
    srd(a, SW2, P_W2, SZ_W)
    srd(a, SW2P, P_WS, SZ_W, WS_W2P)
    a('s_mul_i32 s11, s%d, 205' % PID)
    a('s_lshr_b32 s11, s11, 11')
    a('s_mul_i32 s12, s11, 10')
    a('s_sub_u32 s12, s%d, s12' % PID)
    a('s_lshl_b32 s13, s11, 9')
    a('s_lshl_b32 s14, s%d, 6' % W)
    a('s_add_u32 s13, s13, s14')
    a('v_and_b32 v2, 0x38, v1')
    a('v_add_u32 v2, s13, v2')
    a('v_and_b32 v3, 7, v1')
    a('s_lshl_b32 s14, s12, 3')
    a('v_add_u32 v3, s14, v3')
    a('v_mul_u32_u24 v4, 1280, v2')
    a('v_lshl_add_u32 v4, v3, 4, v4')
    a('v_subrev_u32 v5, 3840, v4')
    a('v_lshlrev_b32 v6, 6, v3')
    a('s_movk_i32 s15, 5120')
    KR, VR, WR = 16, 60, 92
    for i in range(4):
        a('buffer_load_dwordx4 %s, v6, %s, 0 offen offset:%d' % (v(WR + 4 * i, 4), s(SSK, 4), 16 * i))
    for r in range(3):
        a('buffer_load_dwordx4 %s, v5, %s, 0 offen offset:%d' % (v(KR + 4 * r, 4), s(SK, 4), 1280 * r))
    for r in range(8):
        a('buffer_load_dwordx4 %s, v4, %s, %s offen offset:%d' % (v(KR + 12 + 4 * r, 4), s(SK, 4), '0' if r < 4 else 's15', 1280 * (r & 3)))
    for r in range(8):
        a('buffer_load_dwordx4 %s, v4, %s, %s offen offset:%d' % (v(VR + 4 * r, 4), s(SV, 4), '0' if r < 4 else 's15', 1280 * (r & 3)))
    a('s_lshl_b32 s80, s%d, 3' % PID)
    a('s_add_u32 s80, s80, s%d' % W)
    a('s_add_u32 s81, s80, 320')
    a('v_lshrrev_b32 v7, 3, v1')
    a('v_mul_u32_u24 v7, 1280, v7')
    a('v_and_b32 v8, 7, v1')
    a('v_lshl_add_u32 v7, v8, 4, v7')
    a('s_lshl_b32 s84, s%d, 13' % W)
    for ui in range(2):
        U = 80 + ui
        a('s_mul_i32 s82, s%d, 6554' % U)
        a('s_lshr_b32 s82, s82, 16')
        a('s_mul_i32 s83, s82, 10')
        a('s_sub_u32 s83, s%d, s83' % U)
        a('s_mul_i32 s82, s82, %d' % (32 * 1280))
        a('s_lshl_b32 s83, s83, 7')
        a('s_add_u32 s82, s82, s83')
        for i in range(4):
            a('s_add_u32 m0, s84, %d' % (ui * 4096 + i * 1024))
            a('s_nop 0')
            a('buffer_load_dwordx4 v7, %s, s82 offen lds' % s(SW2, 4))
            if i < 3:
                a('s_add_u32 s82, s82, %d' % (8 * 1280))
    QR, GWR = 108, 148
    a('s_lshl_b32 s85, s%d, 6' % PID)
    a('s_lshl_b32 s86, s%d, 3' % W)
    a('s_add_u32 s85, s85, s86')
    a('v_lshrrev_b32 v9, 4, v1')
    a('v_add_u32 v9, s85, v9')
    a('v_and_b32 v10, 15, v1')
    a('v_lshlrev_b32 v10, 4, v10')
    a('v_mul_u32_u24 v11, 1280, v9')
    a('v_add_u32 v11, v11, v10')
    for i in range(5):
        a('buffer_load_dwordx4 %s, v10, %s, 0 offen offset:%d' % (v(GWR + 4 * i, 4), s(SGW, 4), 256 * i))
    for h in range(2):
        for i in range(5):
            a('buffer_load_dwordx4 %s, v11, %s, %s offen offset:%d' % (v(QR + 20 * h + 4 * i, 4), s(SQ, 4), '0' if h == 0 else 's15', 256 * i))
    a('v_lshlrev_b32 v12, 15, v3')
    a('v_sub_u32 v13, 2040, v2')
    a('v_lshl_add_u32 v12, v13, 1, v12')
    a('s_mov_b32 s87, 0xffff0000')
    a('s_waitcnt vmcnt(23)')
    KU, VU, WU, AC, OUT = 168, 190, 206, 214, 232
    for dw in range(4):
        for r in range(11):
            a('v_lshlrev_b32 v%d, 16, v%d' % (KU + 2 * r, KR + 4 * r + dw))
            a('v_and_b32 v%d, s87, v%d' % (KU + 2 * r + 1, KR + 4 * r + dw))
        for r in range(8):
            a('v_lshlrev_b32 v%d, 16, v%d' % (VU + 2 * r, VR + 4 * r + dw))
            a('v_and_b32 v%d, s87, v%d' % (VU + 2 * r + 1, VR + 4 * r + dw))
        for ch in range(2):
            for t in range(4):
                src = WR + 4 * dw + 2 * ch + (t >> 1)
                if t & 1:
                    a('v_and_b32 v%d, s87, v%d' % (WU + 2 * t + ch, src))
                else:
                    a('v_lshlrev_b32 v%d, 16, v%d' % (WU + 2 * t + ch, src))
        for r in range(8):
            a('v_pk_mul_f32 %s, %s, %s' % (v(AC + 2 * r, 2), v(KU + 2 * r, 2), v(WU + 6, 2)))
        for t in (2, 1, 0):
            for r in range(8):
                a('v_pk_fma_f32 %s, %s, %s, %s' % (v(AC + 2 * r, 2), v(KU + 2 * (r + 3 - t), 2), v(WU + 2 * t, 2), v(AC + 2 * r, 2)))
        for r in range(8):
            a('v_pk_mul_f32 %s, %s, %s' % (v(AC + 2 * r, 2), v(AC + 2 * r, 2), v(VU + 2 * r, 2)))
        for ch in range(2):
            for i in range(4):
                a('v_cvt_pk_bf16_f32 v%d, v%d, v%d' % (OUT + 4 * ch + i, AC + 2 * (7 - 2 * i) + ch, AC + 2 * (6 - 2 * i) + ch))
        for ch in range(2):
            a('s_mov_b32 s88, %d' % ((2 * dw + ch) * 4096))
            a('buffer_store_dwordx4 %s, v12, %s, s88 offen' % (v(OUT + 4 * ch, 4), s(SUT, 4)))
        a('s_nop 1')
    a('v_lshrrev_b32 v13, 5, v1')
    a('v_bfe_u32 v14, v1, 2, 3')
    a('v_lshl_add_u32 v13, v13, 4, v14')
    a('v_lshlrev_b32 v13, 7, v13')
    a('v_and_b32 v14, 3, v1')
    a('v_lshl_add_u32 v13, v14, 3, v13')
    a('v_add_u32 v13, s84, v13')
    a('v_lshlrev_b32 v14, 4, v1')
    a('s_waitcnt vmcnt(23)')
    for ui in range(2):
        for tt in range(4):
            R = 16 + (ui * 4 + tt) * 4
            a('ds_read_b64_tr_b16 %s, v13 offset:%d' % (v(R, 2), ui * 4096 + tt * 32))
            a('ds_read_b64_tr_b16 %s, v13 offset:%d' % (v(R + 2, 2), ui * 4096 + tt * 32 + 1024))
    a('s_lshl_b32 s80, s80, 12')
    a('s_lshl_b32 s81, s81, 12')
    a('s_waitcnt lgkmcnt(0)')
    for ui in range(2):
        for tt in range(4):
            R = 16 + (ui * 4 + tt) * 4
            a('buffer_store_dwordx4 %s, v14, %s, s%d offen offset:%d' % (v(R, 4), s(SW2P, 4), 80 + ui, tt * 1024))
    a('s_waitcnt vmcnt(16)')
    for h in range(2):
        a('v_mov_b32 v%d, 0' % (60 + h))
    for i in range(20):
        for h in range(2):
            a('v_dot2c_f32_bf16 v%d, v%d, v%d' % (60 + h, QR + 20 * h + i, GWR + i))
    a('s_nop 3')
    for sh in (8, 4, 2, 1):
        for h in range(2):
            a('v_add_f32_dpp v%d, v%d, v%d row_ror:%d row_mask:0xf bank_mask:0xf' % (60 + h, 60 + h, 60 + h, sh))
        a('s_nop 1')
    for h in range(2):
        a('v_mul_f32 v%d, %s, v%d' % (60 + h, NLOG2E, 60 + h))
    for h in range(2):
        a('v_exp_f32 v%d, v%d' % (60 + h, 60 + h))
    a('s_nop 0')
    for h in range(2):
        a('v_add_f32 v%d, 1.0, v%d' % (60 + h, 60 + h))
    for h in range(2):
        a('v_rcp_f32 v%d, v%d' % (60 + h, 60 + h))
    a('v_lshlrev_b32 v9, 2, v9')
    for h in range(2):
        a('buffer_store_dword v%d, v9, %s, 0 offen offset:%d' % (60 + h, s(SG, 4), 16 * h))
    a('s_endpgm')

def k1(a, name):
    a.raw('.p2align 8')
    a.label(name)
    a('s_cmp_ge_u32 s2, 256')
    a('s_cbranch_scc1 K1_exit')
    load_args(a)
    wave_lane(a, 10)
    a('s_and_b32 s3, s2, 7')
    a('s_lshr_b32 s4, s2, 3')
    a('s_and_b32 s5, s3, 3')
    a('s_lshr_b32 s6, s3, 2')
    a('s_cmp_eq_u32 s5, 3')
    a('s_cselect_b32 s7, 24, 28')
    a('s_cmp_ge_u32 s4, s7')
    a('s_cbranch_scc1 K1_prep')
    a('s_lshl_b32 s8, s6, 2')
    a('s_and_b32 s9, s4, 3')
    a('s_add_u32 s8, s8, s9')
    a('s_mul_i32 s9, s5, 7')
    a('s_lshr_b32 s11, s4, 2')
    a('s_add_u32 s9, s9, s11')
    a('s_waitcnt lgkmcnt(0)')
    gemm1(a)
    a.label('K1_prep')
    a('s_mul_i32 s8, s6, 3')
    a('s_add_u32 s8, s8, s5')
    a('s_lshl_b32 s8, s8, 2')
    a('s_lshl_b32 s9, s6, 3')
    a('s_add_u32 s9, s9, 24')
    a('s_cmp_eq_u32 s5, 3')
    a('s_cselect_b32 s8, s9, s8')
    a('s_add_u32 s8, s8, s4')
    a('s_sub_u32 s8, s8, s7')
    a('s_waitcnt lgkmcnt(0)')
    prep(a)
    a.label('K1_exit')
    a('s_endpgm')

CW = 13824
C_HA, C_HB, C_U = 0, 4640, 9280
def conv(a):
    CG, W = 8, 10
    SH, SU, SZ = 44, 48, 52
    srd(a, SH, P_SSMK, SZ_ACT)
    srd(a, SU, P_WS, SZ_ACT, WS_UT)
    srd(a, SZ, P_WS, SZ_ACT, WS_Z4)
    a('s_lshl_b32 s11, s%d, 2' % CG)
    a('s_add_u32 s11, s11, s%d' % W)
    a('s_lshl_b32 s12, s11, 12')
    a('s_mul_i32 s13, s%d, %d' % (W, CW))
    a('s_lshr_b32 s14, s11, 1')
    a('s_lshl_b32 s14, s14, 2')
    a('s_load_dword s15, s[%d:%d], s14' % (P_SSMD, P_SSMD + 1))
    a('v_lshlrev_b32 v2, 4, v1')
    a('v_add_u32 v2, s12, v2')
    a('v_subrev_u32 v3, 2, v2')
    for i in range(4):
        for (dst, vo, S) in ((C_U, 2, SU), (C_HA + 512, 2, SH), (C_HB + 512, 3, SH)):
            a('s_add_u32 m0, s13, %d' % dst)
            a('s_nop 0')
            a('buffer_load_dwordx4 v%d, %s, 0 offen offset:%d lds' % (vo, s(S, 4), i * 1024))
    a('v_mov_b32 v4, 0')
    a('v_mov_b32 v5, 0')
    a('v_lshl_add_u32 v6, v1, 3, s13')
    a('ds_write_b64 v6, v[4:5] offset:%d' % C_HA)
    a('ds_write_b64 v6, v[4:5] offset:%d' % C_HB)
    a('v_lshl_add_u32 v6, v1, 2, s13')
    a('ds_write_b32 v6, v4 offset:%d' % (C_U + 4096))
    a('v_and_b32 v7, 1, v1')
    a('v_xor_b32 v7, 1, v7')
    a('v_mul_u32_u24 v7, %d, v7' % (C_HB - C_HA))
    a('v_bfe_u32 v8, v1, 1, 3')
    a('v_lshl_add_u32 v7, v8, 6, v7')
    a('v_lshrrev_b32 v8, 4, v1')
    a('v_lshl_add_u32 v7, v8, 4, v7')
    a('s_add_u32 s14, s13, %d' % (C_HA + 64))
    a('v_add_u32 v7, s14, v7')
    a('v_and_b32 v13, 15, v1')
    a('v_lshlrev_b32 v13, 2, v13')
    a('v_lshlrev_b32 v9, 4, v8')
    a('v_sub_u32 v9, v9, v13')
    a('s_add_u32 s14, s13, %d' % (C_U + 60))
    a('v_add_u32 v9, s14, v9')
    for i in range(1, 4):
        a('v_add_u32 v%d, %d, v9' % (9 + i, 1024 * i))
    a('v_lshl_add_u32 v15, v8, 7, v13')
    a('s_add_u32 s14, s13, %d' % (C_U + 444))
    a('v_sub_u32 v14, s14, v15')
    a('v_add_u32 v15, s13, v15')
    a('v_mov_b32 v6, s13')
    a('s_waitcnt vmcnt(0)')
    a('ds_read_b128 v[16:19], v6 offset:%d' % (C_HA + 512))
    a('s_waitcnt lgkmcnt(0)')
    a('v_alignbit_b32 v23, v19, v18, 16')
    a('v_alignbit_b32 v22, v18, v17, 16')
    a('v_alignbit_b32 v21, v17, v16, 16')
    a('v_lshlrev_b32 v20, 16, v16')
    a('ds_write_b128 v6, v[20:23] offset:%d' % (C_HB + 512))
    a('s_bitcmp1_b32 s11, 0')
    a('s_cselect_b32 s14, 0, 16')
    a('s_lshl_b32 s15, s15, s14')
    a('s_and_b32 s15, s15, 0xffff0000')
    ACC = 16
    GB = [48, 112]
    FB = [80, 144]
    def reads(j, b):
        for i in range(8):
            a('ds_read_b128 %s, v7 offset:%d' % (v(GB[b] + 4 * i, 4), 64 * j + 512 * i))
            rb = 7 - i
            o = (512 * (rb & 1) + 64 * j) // 4
            a('ds_read2_b32 %s, v%d offset0:%d offset1:%d' % (v(FB[b] + 4 * i, 2), 9 + (rb >> 1), o, o + 1))
            a('ds_read2_b32 %s, v%d offset0:%d offset1:%d' % (v(FB[b] + 4 * i + 2, 2), 9 + (rb >> 1), o + 2, o + 3))
    reads(0, 0)
    for j in range(8):
        b = j & 1
        a('s_waitcnt lgkmcnt(0)')
        nxt = []
        if j < 7:
            t = Asm(); a_save = a.lines; a.lines = t.lines; reads(j + 1, b ^ 1); a.lines = a_save
            nxt = t.lines
        ms = []
        for n in range(8):
            for aa in range(n + 1):
                acc = v(ACC + 4 * n, 4)
                first = (j == 0 and aa == 0)
                ms.append('    v_mfma_f32_16x16x32_bf16 %s, %s, %s, %s' % (acc, v(GB[b] + 4 * aa, 4), v(FB[b] + 4 * (n - aa), 4), '0' if first else acc))
        for i, m in enumerate(ms):
            a.lines.append(m)
            if i < len(nxt):
                a.lines.append(nxt[i])
    for n in range(8):
        for hh in range(2):
            a('ds_read_b32 v%d, v14 offset:%d' % (48 + 2 * n + hh, 512 * (7 - n) + 64 * (1 - hh)))
    a('s_mov_b32 s14, 0xffff0000')
    a('s_nop 7')
    a('s_waitcnt lgkmcnt(0)')
    for n in range(8):
        for hh in range(2):
            u = 48 + 2 * n + hh
            a('v_and_b32 v%d, s14, v%d' % (64 + 2 * n + hh, u))
            a('v_lshlrev_b32 v%d, 16, v%d' % (u, u))
            a('v_fmac_f32 v%d, s15, v%d' % (ACC + 4 * n + 2 * hh, 64 + 2 * n + hh))
            a('v_fmac_f32 v%d, s15, v%d' % (ACC + 4 * n + 2 * hh + 1, u))
            a('v_cvt_pk_bf16_f32 v%d, v%d, v%d' % (u, ACC + 4 * n + 2 * hh, ACC + 4 * n + 2 * hh + 1))
            a('ds_write_b32 v15, v%d offset:%d' % (u, C_HA + 512 * n + 64 * hh))
    a('v_bfe_u32 v2, v1, 2, 2')
    a('v_mul_u32_u24 v2, %d, v2' % CW)
    a('v_lshl_add_u32 v2, v8, 5, v2')
    a('v_and_b32 v3, 3, v1')
    a('v_lshl_add_u32 v2, v3, 3, v2')
    a('s_lshl_b32 s14, s%d, 10' % W)
    a('v_add_u32 v2, s14, v2')
    a('v_lshlrev_b32 v3, 3, v1')
    a('s_lshl_b32 s12, s%d, 14' % CG)
    a('s_lshl_b32 s14, s%d, 12' % W)
    a('s_add_u32 s12, s12, s14')
    a('s_waitcnt lgkmcnt(0)')
    a('s_barrier')
    for i in range(8):
        a('ds_read_b64_tr_b16 %s, v2 offset:%d' % (v(16 + 2 * i, 2), C_HA + 128 * i))
    for i in range(8):
        a('s_waitcnt lgkmcnt(%d)' % (7 - i))
        a('buffer_store_dwordx2 %s, v3, %s, s12 offen offset:%d' % (v(16 + 2 * i, 2), s(SZ, 4), 512 * i))
    a('s_endpgm')

def k2(a, name):
    a.raw('.p2align 8')
    a.label(name)
    a('s_cmp_ge_u32 s2, 160')
    a('s_cbranch_scc1 K2_exit')
    load_args(a)
    wave_lane(a, 10)
    a('s_mov_b32 s8, s2')
    a('s_waitcnt lgkmcnt(0)')
    conv(a)
    a.label('K2_exit')
    a('s_endpgm')

def gemm2(a, DEPTH=3):
    RB, CB, W = 8, 9, 10
    SH, SW, SQ, SZ, SG, SO = 44, 48, 52, 56, 60, 64
    KS, OH, OW = 68, 69, 70
    a('s_mul_i32 s11, s%d, %d' % (RB, 54 * 4096))
    if WS_H: a('s_add_u32 s11, s11, %s' % hex(WS_H))
    srd(a, SH, P_WS, 54 * 4096, 's11')
    a('s_mul_i32 s11, s%d, 5120' % CB)
    a('s_add_u32 s11, s11, %s' % hex(WS_W2P))
    srd(a, SW, P_WS, 53 * 40960 + 5120, 's11')
    srd(a, SQ, P_Q, SZ_ACT)
    srd(a, SZ, P_WS, SZ_ACT, WS_Z4)
    srd(a, SG, P_WS, 8192, WS_G)
    srd(a, SO, P_OUT, SZ_ACT)
    if ROT2:
        a('s_mul_i32 s11, s%d, 7' % RB)
        a('s_mul_i32 s12, s%d, 13' % CB)
        a('s_add_u32 s11, s11, s12')
        a('s_add_u32 s11, s11, s%d' % W)
        a('s_mul_i32 s12, s11, 1214')
        a('s_lshr_b32 s12, s12, 16')
        a('s_mul_i32 s12, s12, 54')
        a('s_sub_u32 s%d, s11, s12' % KS)
    else:
        a('s_mov_b32 s%d, s%d' % (KS, W))
    a('v_lshlrev_b32 v2, 4, v1')
    a('v_add_u32 v3, 4096, v2')
    for j in range(4):
        a('s_xor_b32 s11, s%d, %d' % (W, j))
        a('s_lshl_b32 s11, s11, 10')
        a('v_add_u32 v%d, s11, v2' % (4 + j))
    ACC = 32
    BUF = ACC + 80
    def issue(i):
        B = BUF + 36 * (i % DEPTH)
        if i == 13:
            a('s_cmp_ge_u32 s%d, 2' % W)
            a('s_cselect_b32 s%d, 60, s%d' % (KS, KS))
        a('s_lshl_b32 s%d, s%d, 12' % (OH, KS))
        a('s_mul_i32 s%d, s%d, 40960' % (OW, KS))
        for t in range(5):
            a('buffer_load_dwordx4 %s, v%d, %s, s%d offen offset:%d' % (v(B + 16 + 4 * t, 4), 2 if t < 4 else 3, s(SW, 4), OW, (t & 3) * 1024))
            if t < 4:
                a('buffer_load_dwordx4 %s, v%d, %s, s%d offen' % (v(B + 4 * t, 4), 4 + t, s(SH, 4), OH))
        a('s_add_u32 s%d, s%d, 4' % (KS, KS))
        a('s_cmp_ge_u32 s%d, 54' % KS)
        a('s_cselect_b32 s11, 54, 0')
        a('s_sub_u32 s%d, s%d, s11' % (KS, KS))
    for i in range(DEPTH - 1):
        issue(i)
    a('s_lshl_b32 s11, s%d, 6' % RB)
    a('s_lshl_b32 s12, s%d, 4' % W)
    a('s_add_u32 s11, s11, s12')
    a('v_and_b32 v8, 15, v1')
    a('v_add_u32 v8, s11, v8')
    a('v_lshrrev_b32 v9, 4, v1')
    a('v_mul_u32_u24 v10, 1280, v8')
    a('v_lshl_add_u32 v10, v9, 3, v10')
    a('s_mul_i32 s11, s%d, 160' % CB)
    a('v_add_u32 v10, s11, v10')
    a('v_lshlrev_b32 v11, 14, v9')
    a('v_lshl_add_u32 v11, v8, 3, v11')
    a('s_mul_i32 s11, s%d, %d' % (CB, 20 * 16384))
    a('v_add_u32 v11, s11, v11')
    a('v_lshlrev_b32 v8, 2, v8')
    NS = 14
    for i in range(NS):
        if i + DEPTH - 1 < NS:
            issue(i + DEPTH - 1)
            a('s_waitcnt vmcnt(%d)' % (9 * (DEPTH - 1)))
        else:
            if i == NS - DEPTH + 1:
                for mt in range(5):
                    a('buffer_load_dwordx2 %s, v10, %s, 0 offen offset:%d' % (v(12 + 2 * mt, 2), s(SQ, 4), 32 * mt))
                for mt in range(5):
                    a('s_mov_b32 s11, %s' % hex(65536 * mt))
                    a('buffer_load_dwordx2 %s, v11, %s, s11 offen' % (v(22 + 2 * mt, 2), s(SZ, 4)))
                a('buffer_load_dword v9, v8, %s, 0 offen' % s(SG, 4))
            a('s_waitcnt vmcnt(%d)' % (9 * (NS - 1 - i) + 11))
        B = BUF + 36 * (i % DEPTH)
        for mt in range(5):
            for j in range(4):
                acc = v(ACC + (j * 5 + mt) * 4, 4)
                a('v_mfma_f32_16x16x32_bf16 %s, %s, %s, %s' % (acc, v(B + 16 + 4 * mt, 4), v(B + 4 * j, 4), '0' if i == 0 else acc))
    for j in range(1, 4):
        a('s_xor_b32 s11, s%d, %d' % (W, j))
        a('s_mul_i32 s11, s11, 15360')
        a('v_add_u32 v%d, s11, v2' % (4 + j))
    a('s_mul_i32 s11, s%d, 15360' % W)
    a('v_add_u32 v4, s11, v2')
    a('s_nop 7')
    for j in range(1, 4):
        for mt in range(5):
            a('ds_write_b128 v%d, %s offset:%d' % (4 + j, v(ACC + (j * 5 + mt) * 4, 4), (j - 1) * 5120 + mt * 1024))
    a('s_waitcnt lgkmcnt(0)')
    a('s_barrier')
    for j in range(1, 4):
        for mt in range(5):
            a('ds_read_b128 %s, v4 offset:%d' % (v(ACC + (j * 5 + mt) * 4, 4), (j - 1) * 5120 + mt * 1024))
    a('s_mov_b32 s12, 0xffff0000')
    a('s_waitcnt vmcnt(0)')
    for mt in range(5):
        for h in range(2):
            q, z = 12 + 2 * mt + h, 22 + 2 * mt + h
            d = BUF + 4 * mt + 2 * h
            a('v_lshlrev_b32 v%d, 16, v%d' % (d, q))
            a('v_and_b32 v%d, s12, v%d' % (d + 1, q))
            a('v_lshlrev_b32 v%d, 16, v%d' % (q, z))
            a('v_and_b32 v%d, s12, v%d' % (z, z))
            a('v_mul_f32 v%d, v%d, v%d' % (d, d, q))
            a('v_mul_f32 v%d, v%d, v%d' % (d + 1, d + 1, z))
    for j in range(1, 4):
        a('s_waitcnt lgkmcnt(%d)' % (5 * (3 - j)))
        for i in range(20):
            a('v_add_f32 v%d, v%d, v%d' % (ACC + i, ACC + i, ACC + 20 * j + i))
    for i in range(20):
        a('v_sub_f32 v%d, v%d, v%d' % (BUF + i, BUF + i, ACC + i))
        a('v_fmac_f32 v%d, v9, v%d' % (ACC + i, BUF + i))
    for mt in range(5):
        a('v_cvt_pk_bf16_f32 v%d, v%d, v%d' % (12 + 2 * mt, ACC + 4 * mt, ACC + 4 * mt + 1))
        a('v_cvt_pk_bf16_f32 v%d, v%d, v%d' % (13 + 2 * mt, ACC + 4 * mt + 2, ACC + 4 * mt + 3))
        a('buffer_store_dwordx2 %s, v10, %s, 0 offen offset:%d' % (v(12 + 2 * mt, 2), s(SO, 4), 32 * mt))
    a('s_endpgm')

def k3(a, name):
    a.raw('.p2align 8')
    a.label(name)
    a('s_cmp_ge_u32 s2, 256')
    a('s_cbranch_scc1 K3_exit')
    load_args(a)
    wave_lane(a, 10)
    a('s_and_b32 s3, s2, 7')
    a('s_lshr_b32 s4, s2, 3')
    a('s_lshr_b32 s8, s3, 1')
    a('s_lshl_b32 s8, s8, 3')
    a('s_lshr_b32 s5, s4, 2')
    a('s_add_u32 s8, s8, s5')
    a('s_and_b32 s9, s3, 1')
    a('s_lshl_b32 s9, s9, 2')
    a('s_and_b32 s5, s4, 3')
    a('s_add_u32 s9, s9, s5')
    a('s_waitcnt lgkmcnt(0)')
    gemm2(a)
    a.label('K3_exit')
    a('s_endpgm')

def main(out):
    hdr = open('cdna_kernels/%s.s.ref' % NAME).read().split('\n')
    head = [l for l in hdr if l.startswith(';') and '@launch' not in l and 'Override' not in l and 'grid=ceil' not in l]
    a = Asm()
    for l in head: a.raw(l)
    a.raw('; @launch kernel=k1_kernel grid=(256,1,1) block=(512,1,1) lds=147456')
    a.raw('; @launch kernel=k2_kernel grid=(160,1,1) block=(256,1,1) lds=%d' % (4 * CW))
    a.raw('; @launch kernel=k3_kernel grid=(256,1,1) block=(256,1,1) lds=61440')
    a.raw('.amdgcn_target "amdgcn-amd-amdhsa--gfx950"')
    a.raw('.text')
    for nm, fn in (('k1_kernel', k1), ('k2_kernel', k2), ('k3_kernel', k3)):
        a.raw('.globl %s' % nm)
        a.raw('.type %s,@function' % nm)
        fn(a, nm)
    a.raw('.section .rodata,"a"')
    a.raw(kernel_desc('k1_kernel', 240))
    a.raw(kernel_desc('k2_kernel', 176))
    a.raw(kernel_desc('k3_kernel', 224))
    open(out, 'w').write(a.text())

if __name__ == '__main__':
    main(sys.argv[1] if len(sys.argv) > 1 else 'cdna_kernels/%s.s' % NAME)
```

```python
import sys
from asmlib import *

NAME = 'gated_mix__ssm_conv_h3__glu_gated_swiglu__prompt'
WS_H = 0
WS_W2P = 0x800000
WS_UT = 0xC00000
WS_Z4 = 0x1000000
WS_G = 0x1400000
SZ_ACT = 2048 * 640 * 2
SZ_W = 640 * 1728 * 2
SZ_H = 2048 * 1728 * 2
P_Q, P_K, P_V, P_SK, P_SSMK, P_SSMD, P_BX, P_W1, P_W3, P_W2, P_GW, P_OUT, P_DBG, P_WS = [16 + 2 * i for i in range(14)]
NLOG2E = '0xbfb8aa3b'
ROT1 = True
ROT2 = True

STAMP = False
CODEPF = False
WS_DBG = 0x2000000
def stamp(a, i):
    if STAMP:
        a('s_memtime s[%d:%d]' % (90 + 2 * i, 91 + 2 * i))
def stamp_begin(a):
    if STAMP:
        a('s_memrealtime s[88:89]')
        for i in range(6): a('s_mov_b64 s[%d:%d], 0' % (90 + 2 * i, 91 + 2 * i))
        a('s_memtime s[90:91]')
def stamp_end(a, kid):
    if STAMP:
        a('s_waitcnt vmcnt(0) lgkmcnt(0)')
        a('s_memtime s[100:101]')
        a('s_memrealtime s[86:87]')
        srd(a, 44, P_WS, 0x100000, WS_DBG + kid * 0x100000)
        a('s_lshl_b32 s3, s2, 3')
        a('s_add_u32 s3, s3, s10')
        a('s_lshl_b32 s3, s3, 5')
        a('s_waitcnt lgkmcnt(0)')
        a('v_mov_b32 v0, s88')
        a('v_mov_b32 v1, s86')
        for i in range(6): a('v_mov_b32 v%d, s%d' % (2 + i, 90 + 2 * i))
        a('v_mov_b32 v8, s3')
        a('buffer_store_dwordx4 v[0:3], v8, s[44:47], 0 offen')
        a('buffer_store_dwordx4 v[4:7], v8, s[44:47], 0 offen offset:16')

def load_args(a):
    stamp_begin(a)
    a('s_load_dwordx16 s[16:31], s[0:1], 0')
    a('s_load_dwordx8 s[32:39], s[0:1], 64')
    a('s_load_dwordx4 s[40:43], s[0:1], 96')

def wave_lane(a, sw):
    a('v_lshrrev_b32 v1, 6, v0')
    a('s_nop 0')
    a('v_readfirstlane_b32 s%d, v1' % sw)
    a('v_and_b32 v1, 63, v0')

def gemm1(a):
    RB, CB, W = 8, 9, 10
    SX, SW1, SW3, SH = 44, 48, 52, 56
    KS, OX, OW, LW, HO = 60, 61, 62, 63, 64
    a('s_mul_i32 s11, s%d, %d' % (RB, 256 * 1280))
    srd(a, SX, P_Q, 256 * 1280, 's11')
    a('s_lshl_b32 s11, s%d, 7' % CB)
    a('s_sub_u32 s12, %s, s11' % hex(SZ_W))
    srd(a, SW1, P_W1, 's12', 's11')
    srd(a, SW3, P_W3, 's12', 's11')
    srd(a, SH, P_WS, SZ_H, None if WS_H == 0 else WS_H)
    if ROT1:
        a('s_mul_i32 s11, s%d, 3' % RB)
        a('s_add_u32 s11, s11, s%d' % CB)
        a('s_mul_i32 s12, s11, 205')
        a('s_lshr_b32 s12, s12, 11')
        a('s_mul_i32 s12, s12, 10')
        a('s_sub_u32 s%d, s11, s12' % KS)
    else:
        a('s_mov_b32 s%d, 0' % KS)
    a('s_lshl_b32 s%d, s%d, 10' % (LW, W))
    a('v_lshrrev_b32 v13, 3, v1')
    a('s_lshl_b32 s11, s%d, 3' % W)
    a('v_add_u32 v13, s11, v13')
    a('v_bfe_u32 v14, v13, 1, 3')
    a('v_and_b32 v15, 7, v1')
    a('v_xor_b32 v14, v14, v15')
    a('v_lshlrev_b32 v14, 4, v14')
    a('v_mul_u32_u24 v2, 1280, v13')
    a('v_add_u32 v2, v2, v14')
    for i in range(1, 4):
        a('v_add_u32 v%d, %s, v2' % (2 + i, hex(i * 81920)))
    a('v_bfe_u32 v14, v13, 1, 1')
    a('v_lshlrev_b32 v14, 2, v14')
    a('v_xor_b32 v14, v14, v15')
    a('v_lshlrev_b32 v14, 4, v14')
    a('v_mul_u32_u24 v6, 3456, v13')
    a('v_add_u32 v6, v6, v14')

    def dma(st):
        a('s_lshl_b32 s%d, s%d, 7' % (OX, KS))
        a('s_mul_i32 s%d, s%d, %d' % (OW, KS, 64 * 3456))
        for i in range(4):
            a('s_add_u32 m0, s%d, %s' % (LW, hex(i * 24576 + st * 8192)))
            a('s_nop 0')
            a('buffer_load_dwordx4 v%d, %s, s%d offen lds' % (2 + i, s(SX, 4), OX))
        for m, S in ((0, SW1), (1, SW3)):
            a('s_add_u32 m0, s%d, %s' % (LW, hex(98304 + st * 16384 + m * 8192)))
            a('s_nop 0')
            a('buffer_load_dwordx4 v6, %s, s%d offen lds' % (s(S, 4), OW))
        a('s_add_u32 s%d, s%d, 1' % (KS, KS))
        a('s_cmp_eq_u32 s%d, 10' % KS)
        a('s_cselect_b32 s%d, 0, s%d' % (KS, KS))
    dma(0); dma(1); dma(2)
    a('s_lshr_b32 s11, s%d, 1' % W)
    a('s_and_b32 s12, s%d, 1' % W)
    a('s_mul_i32 s13, s11, 24576')
    a('v_and_b32 v13, 31, v1')
    a('v_lshrrev_b32 v14, 5, v1')
    a('v_bfe_u32 v15, v1, 1, 3')
    a('v_xor_b32 v15, v15, v14')
    a('v_lshlrev_b32 v12, 7, v13')
    a('v_add_u32 v12, s13, v12')
    for kk in range(4):
        a('v_xor_b32 v%d, %d, v15' % (7 + kk, 2 * kk))
        a('v_lshl_add_u32 v%d, v%d, 4, v12' % (7 + kk, 7 + kk))
    a('v_bfe_u32 v11, v1, 2, 2')
    a('v_lshl_add_u32 v11, v14, 3, v11')
    a('v_lshlrev_b32 v11, 7, v11')
    a('v_bfe_u32 v12, v1, 3, 1')
    a('v_xor_b32 v12, s12, v12')
    a('v_lshl_add_u32 v11, v12, 6, v11')
    a('v_bfe_u32 v12, v1, 4, 1')
    a('v_lshl_add_u32 v11, v12, 5, v11')
    a('v_and_b32 v12, 3, v1')
    a('v_lshl_add_u32 v11, v12, 3, v11')
    a('v_add_u32 v11, 0x18000, v11')
    a('v_bfe_u32 v12, v1, 4, 1')
    a('v_lshlrev_b32 v12, 10, v12')
    a('v_and_b32 v13, 15, v1')
    a('v_lshl_add_u32 v12, v13, 4, v12')
    a('v_lshl_add_u32 v12, v14, 8, v12')
    a('s_lshl_b32 s13, s%d, 2' % RB)
    a('s_add_u32 s13, s13, s11')
    a('s_mul_i32 s13, s13, 54')
    a('s_add_u32 s13, s13, s12')
    a('s_lshl_b32 s14, s%d, 1' % CB)
    a('s_add_u32 s13, s13, s14')
    a('s_lshl_b32 s%d, s13, 12' % HO)

    def reads(st, kk, b):
        B = 16 + 16 * b
        for nt in range(2):
            a('ds_read_b128 %s, v%d offset:%d' % (v(B + 4 * nt, 4), 7 + kk, st * 8192 + nt * 4096))
        for m in range(2):
            for h in range(2):
                a('ds_read_b64_tr_b16 %s, v11 offset:%d' % (v(B + 8 + 4 * m + 2 * h, 2), st * 16384 + m * 8192 + kk * 2048 + h * 512))
    def mfmas(b, first):
        B = 16 + 16 * b
        for m in range(2):
            for nt in range(2):
                acc = v(48 + (m * 2 + nt) * 16, 16)
                a('v_mfma_f32_32x32x16_bf16 %s, %s, %s, %s' % (acc, v(B + 8 + 4 * m, 4), v(B + 4 * nt, 4), '0' if first else acc))
    stamp(a, 1)
    a('s_waitcnt vmcnt(12)')
    a('s_barrier')
    stamp(a, 2)
    reads(0, 0, 0)
    for sidx in range(10):
        st = sidx % 3
        a.comment('k-step %d' % sidx)
        if sidx == 5: stamp(a, 3)
        for kk in range(3):
            reads(st, kk + 1, (kk + 1) & 1)
            a('s_waitcnt lgkmcnt(6)')
            mfmas(kk & 1, sidx == 0 and kk == 0)
        if sidx < 9:
            a('s_waitcnt vmcnt(%d) lgkmcnt(0)' % (6 if sidx + 2 <= 9 else 0))
            a('s_barrier')
            reads((sidx + 1) % 3, 0, 0)
            if sidx + 3 <= 9:
                dma(st)
        else:
            a('s_waitcnt lgkmcnt(0)')
        mfmas(1, False)
    stamp(a, 4)
    a('s_nop 15')
    for nt in range(2):
        G = 48 + nt * 16
        U = 48 + (2 + nt) * 16
        for i in range(16):
            a('v_mul_f32 v%d, %s, v%d' % (16 + i, NLOG2E, G + i))
        for i in range(16):
            a('v_exp_f32 v%d, v%d' % (16 + i, 16 + i))
            a('v_mul_f32 v%d, v%d, v%d' % (G + i, G + i, U + i))
        for i in range(16):
            a('v_add_f32 v%d, 1.0, v%d' % (16 + i, 16 + i))
        for i in range(16):
            a('v_rcp_f32 v%d, v%d' % (16 + i, 16 + i))
        a('s_nop 0')
        for i in range(16):
            a('v_mul_f32 v%d, v%d, v%d' % (G + i, G + i, 16 + i))
        for i in range(8):
            a('v_cvt_pk_bf16_f32 v%d, v%d, v%d' % (32 + 8 * nt + i, G + 2 * i, G + 2 * i + 1))
        for jp in range(2):
            a('buffer_store_dwordx4 %s, v12, %s, s%d offen offset:%d' % (v(32 + 8 * nt + 4 * jp, 4), s(SH, 4), HO, nt * 2048 + jp * 512))
    stamp_end(a, 0)
    a('s_endpgm')

def prep(a):
    PID, W = 8, 10
    SK, SV, SSK, SUT, SQ, SGW, SG, SW2, SW2P = 44, 48, 52, 56, 60, 64, 68, 72, 76
    srd(a, SK, P_K, SZ_ACT)
    srd(a, SV, P_V, SZ_ACT)
    srd(a, SSK, P_SK, 640 * 8)
    srd(a, SUT, P_WS, SZ_ACT, WS_UT)
    srd(a, SQ, P_Q, SZ_ACT)
    srd(a, SGW, P_GW, 1280)
    srd(a, SG, P_WS, 8192, WS_G)
    srd(a, SW2, P_W2, SZ_W)
    srd(a, SW2P, P_WS, SZ_W, WS_W2P)
    a('s_mul_i32 s11, s%d, 205' % PID)
    a('s_lshr_b32 s11, s11, 11')
    a('s_mul_i32 s12, s11, 10')
    a('s_sub_u32 s12, s%d, s12' % PID)
    a('s_lshl_b32 s13, s11, 9')
    a('s_lshl_b32 s14, s%d, 6' % W)
    a('s_add_u32 s13, s13, s14')
    a('v_and_b32 v2, 0x38, v1')
    a('v_add_u32 v2, s13, v2')
    a('v_and_b32 v3, 7, v1')
    a('s_lshl_b32 s14, s12, 3')
    a('v_add_u32 v3, s14, v3')
    a('v_mul_u32_u24 v4, 1280, v2')
    a('v_lshl_add_u32 v4, v3, 4, v4')
    a('v_subrev_u32 v5, 3840, v4')
    a('v_lshlrev_b32 v6, 6, v3')
    a('s_movk_i32 s15, 5120')
    KR, VR, WR = 16, 60, 92
    for i in range(4):
        a('buffer_load_dwordx4 %s, v6, %s, 0 offen offset:%d' % (v(WR + 4 * i, 4), s(SSK, 4), 16 * i))
    for r in range(3):
        a('buffer_load_dwordx4 %s, v5, %s, 0 offen offset:%d' % (v(KR + 4 * r, 4), s(SK, 4), 1280 * r))
    for r in range(8):
        a('buffer_load_dwordx4 %s, v4, %s, %s offen offset:%d' % (v(KR + 12 + 4 * r, 4), s(SK, 4), '0' if r < 4 else 's15', 1280 * (r & 3)))
    for r in range(8):
        a('buffer_load_dwordx4 %s, v4, %s, %s offen offset:%d' % (v(VR + 4 * r, 4), s(SV, 4), '0' if r < 4 else 's15', 1280 * (r & 3)))
    a('s_lshl_b32 s80, s%d, 3' % PID)
    a('s_add_u32 s80, s80, s%d' % W)
    a('s_add_u32 s81, s80, 320')
    a('v_lshrrev_b32 v7, 3, v1')
    a('v_mul_u32_u24 v7, 1280, v7')
    a('v_and_b32 v8, 7, v1')
    a('v_lshl_add_u32 v7, v8, 4, v7')
    a('s_lshl_b32 s84, s%d, 13' % W)
    for ui in range(2):
        U = 80 + ui
        a('s_mul_i32 s82, s%d, 6554' % U)
        a('s_lshr_b32 s82, s82, 16')
        a('s_mul_i32 s83, s82, 10')
        a('s_sub_u32 s83, s%d, s83' % U)
        a('s_mul_i32 s82, s82, %d' % (32 * 1280))
        a('s_lshl_b32 s83, s83, 7')
        a('s_add_u32 s82, s82, s83')
        for i in range(4):
            a('s_add_u32 m0, s84, %d' % (ui * 4096 + i * 1024))
            a('s_nop 0')
            a('buffer_load_dwordx4 v7, %s, s82 offen lds' % s(SW2, 4))
            if i < 3:
                a('s_add_u32 s82, s82, %d' % (8 * 1280))
    QR, GWR = 108, 148
    a('s_lshl_b32 s4, s%d, 6' % PID)
    a('s_lshl_b32 s5, s%d, 3' % W)
    a('s_add_u32 s4, s4, s5')
    a('v_lshrrev_b32 v9, 4, v1')
    a('v_add_u32 v9, s4, v9')
    a('v_and_b32 v10, 15, v1')
    a('v_lshlrev_b32 v10, 4, v10')
    a('v_mul_u32_u24 v11, 1280, v9')
    a('v_add_u32 v11, v11, v10')
    for i in range(5):
        a('buffer_load_dwordx4 %s, v10, %s, 0 offen offset:%d' % (v(GWR + 4 * i, 4), s(SGW, 4), 256 * i))
    for h in range(2):
        for i in range(5):
            a('buffer_load_dwordx4 %s, v11, %s, %s offen offset:%d' % (v(QR + 20 * h + 4 * i, 4), s(SQ, 4), '0' if h == 0 else 's15', 256 * i))
    a('v_lshlrev_b32 v12, 15, v3')
    a('v_sub_u32 v13, 2040, v2')
    a('v_lshl_add_u32 v12, v13, 1, v12')
    a('s_mov_b32 s6, 0xffff0000')
    stamp(a, 1)
    a('s_waitcnt vmcnt(23)')
    stamp(a, 2)
    KU, VU, WU, AC, OUT = 168, 190, 206, 214, 232
    for dw in range(4):
        for r in range(11):
            a('v_lshlrev_b32 v%d, 16, v%d' % (KU + 2 * r, KR + 4 * r + dw))
            a('v_and_b32 v%d, s6, v%d' % (KU + 2 * r + 1, KR + 4 * r + dw))
        for r in range(8):
            a('v_lshlrev_b32 v%d, 16, v%d' % (VU + 2 * r, VR + 4 * r + dw))
            a('v_and_b32 v%d, s6, v%d' % (VU + 2 * r + 1, VR + 4 * r + dw))
        for ch in range(2):
            for t in range(4):
                src = WR + 4 * dw + 2 * ch + (t >> 1)
                if t & 1:
                    a('v_and_b32 v%d, s6, v%d' % (WU + 2 * t + ch, src))
                else:
                    a('v_lshlrev_b32 v%d, 16, v%d' % (WU + 2 * t + ch, src))
        for r in range(8):
            a('v_pk_mul_f32 %s, %s, %s' % (v(AC + 2 * r, 2), v(KU + 2 * r, 2), v(WU + 6, 2)))
        for t in (2, 1, 0):
            for r in range(8):
                a('v_pk_fma_f32 %s, %s, %s, %s' % (v(AC + 2 * r, 2), v(KU + 2 * (r + 3 - t), 2), v(WU + 2 * t, 2), v(AC + 2 * r, 2)))
        for r in range(8):
            a('v_pk_mul_f32 %s, %s, %s' % (v(AC + 2 * r, 2), v(AC + 2 * r, 2), v(VU + 2 * r, 2)))
        for ch in range(2):
            for i in range(4):
                a('v_cvt_pk_bf16_f32 v%d, v%d, v%d' % (OUT + 4 * ch + i, AC + 2 * (7 - 2 * i) + ch, AC + 2 * (6 - 2 * i) + ch))
        for ch in range(2):
            a('s_mov_b32 s7, %d' % ((2 * dw + ch) * 4096))
            a('buffer_store_dwordx4 %s, v12, %s, s7 offen' % (v(OUT + 4 * ch, 4), s(SUT, 4)))
        a('s_nop 1')
    stamp(a, 3)
    a('v_lshrrev_b32 v13, 5, v1')
    a('v_bfe_u32 v14, v1, 2, 3')
    a('v_lshl_add_u32 v13, v13, 4, v14')
    a('v_lshlrev_b32 v13, 7, v13')
    a('v_and_b32 v14, 3, v1')
    a('v_lshl_add_u32 v13, v14, 3, v13')
    a('v_add_u32 v13, s84, v13')
    a('v_lshlrev_b32 v14, 4, v1')
    a('s_waitcnt vmcnt(23)')
    for ui in range(2):
        for tt in range(4):
            R = 16 + (ui * 4 + tt) * 4
            a('ds_read_b64_tr_b16 %s, v13 offset:%d' % (v(R, 2), ui * 4096 + tt * 32))
            a('ds_read_b64_tr_b16 %s, v13 offset:%d' % (v(R + 2, 2), ui * 4096 + tt * 32 + 1024))
    a('s_lshl_b32 s80, s80, 12')
    a('s_lshl_b32 s81, s81, 12')
    a('s_waitcnt lgkmcnt(0)')
    for ui in range(2):
        for tt in range(4):
            R = 16 + (ui * 4 + tt) * 4
            a('buffer_store_dwordx4 %s, v14, %s, s%d offen offset:%d' % (v(R, 4), s(SW2P, 4), 80 + ui, tt * 1024))
    stamp(a, 4)
    a('s_waitcnt vmcnt(16)')
    for h in range(2):
        a('v_mov_b32 v%d, 0' % (60 + h))
    for i in range(20):
        for h in range(2):
            a('v_dot2c_f32_bf16 v%d, v%d, v%d' % (60 + h, QR + 20 * h + i, GWR + i))
    a('s_nop 3')
    for sh in (8, 4, 2, 1):
        for h in range(2):
            a('v_add_f32_dpp v%d, v%d, v%d row_ror:%d row_mask:0xf bank_mask:0xf' % (60 + h, 60 + h, 60 + h, sh))
        a('s_nop 1')
    for h in range(2):
        a('v_mul_f32 v%d, %s, v%d' % (60 + h, NLOG2E, 60 + h))
    for h in range(2):
        a('v_exp_f32 v%d, v%d' % (60 + h, 60 + h))
    a('s_nop 0')
    for h in range(2):
        a('v_add_f32 v%d, 1.0, v%d' % (60 + h, 60 + h))
    for h in range(2):
        a('v_rcp_f32 v%d, v%d' % (60 + h, 60 + h))
    a('v_lshlrev_b32 v9, 2, v9')
    for h in range(2):
        a('buffer_store_dword v%d, v9, %s, 0 offen offset:%d' % (60 + h, s(SG, 4), 16 * h))
    stamp_end(a, 0)
    a('s_endpgm')

def k1(a, name):
    a.raw('.p2align 8')
    a.label(name)
    a('s_cmp_ge_u32 s2, 256')
    a('s_cbranch_scc1 K1_exit')
    load_args(a)
    if CODEPF:
        a('s_getpc_b64 s[4:5]')
        a.label('K1_pc')
        a('s_mov_b32 s6, CODE_END-K1_pc')
        a('s_mov_b32 s7, 0x00020000')
        a('v_lshlrev_b32 v1, 6, v0')
        a('buffer_load_dword v239, v1, s[4:7], 0 offen')
    wave_lane(a, 10)
    a('s_and_b32 s3, s2, 7')
    a('s_lshr_b32 s4, s2, 3')
    a('s_and_b32 s5, s3, 3')
    a('s_lshr_b32 s6, s3, 2')
    a('s_cmp_eq_u32 s5, 3')
    a('s_cselect_b32 s7, 24, 28')
    a('s_cmp_ge_u32 s4, s7')
    a('s_cbranch_scc1 K1_prep')
    a('s_lshl_b32 s8, s6, 2')
    a('s_and_b32 s9, s4, 3')
    a('s_add_u32 s8, s8, s9')
    a('s_mul_i32 s9, s5, 7')
    a('s_lshr_b32 s11, s4, 2')
    a('s_add_u32 s9, s9, s11')
    a('s_waitcnt lgkmcnt(0)')
    gemm1(a)
    a.label('K1_prep')
    a('s_mul_i32 s8, s6, 3')
    a('s_add_u32 s8, s8, s5')
    a('s_lshl_b32 s8, s8, 2')
    a('s_lshl_b32 s9, s6, 3')
    a('s_add_u32 s9, s9, 24')
    a('s_cmp_eq_u32 s5, 3')
    a('s_cselect_b32 s8, s9, s8')
    a('s_add_u32 s8, s8, s4')
    a('s_sub_u32 s8, s8, s7')
    a('s_waitcnt lgkmcnt(0)')
    prep(a)
    a.label('K1_exit')
    a('s_endpgm')

CW = 13824
C_HA, C_HB, C_U = 0, 4640, 9280
def conv(a):
    CG, W = 8, 10
    SH, SU, SZ = 44, 48, 52
    srd(a, SH, P_SSMK, SZ_ACT)
    srd(a, SU, P_WS, SZ_ACT, WS_UT)
    srd(a, SZ, P_WS, SZ_ACT, WS_Z4)
    a('s_lshl_b32 s11, s%d, 2' % CG)
    a('s_add_u32 s11, s11, s%d' % W)
    a('s_lshl_b32 s12, s11, 12')
    a('s_mul_i32 s13, s%d, %d' % (W, CW))
    a('s_lshr_b32 s14, s11, 1')
    a('s_lshl_b32 s14, s14, 2')
    a('s_load_dword s15, s[%d:%d], s14' % (P_SSMD, P_SSMD + 1))
    a('v_lshlrev_b32 v2, 4, v1')
    a('v_add_u32 v2, s12, v2')
    a('v_subrev_u32 v3, 2, v2')
    for i in range(4):
        for (dst, vo, S) in ((C_U, 2, SU), (C_HA + 512, 2, SH), (C_HB + 512, 3, SH)):
            a('s_add_u32 m0, s13, %d' % dst)
            a('s_nop 0')
            a('buffer_load_dwordx4 v%d, %s, 0 offen offset:%d lds' % (vo, s(S, 4), i * 1024))
    a('v_mov_b32 v4, 0')
    a('v_mov_b32 v5, 0')
    a('v_lshl_add_u32 v6, v1, 3, s13')
    a('ds_write_b64 v6, v[4:5] offset:%d' % C_HA)
    a('ds_write_b64 v6, v[4:5] offset:%d' % C_HB)
    a('v_lshl_add_u32 v6, v1, 2, s13')
    a('ds_write_b32 v6, v4 offset:%d' % (C_U + 4096))
    a('v_and_b32 v7, 1, v1')
    a('v_xor_b32 v7, 1, v7')
    a('v_mul_u32_u24 v7, %d, v7' % (C_HB - C_HA))
    a('v_bfe_u32 v8, v1, 1, 3')
    a('v_lshl_add_u32 v7, v8, 6, v7')
    a('v_lshrrev_b32 v8, 4, v1')
    a('v_lshl_add_u32 v7, v8, 4, v7')
    a('s_add_u32 s14, s13, %d' % (C_HA + 64))
    a('v_add_u32 v7, s14, v7')
    a('v_and_b32 v13, 15, v1')
    a('v_lshlrev_b32 v13, 2, v13')
    a('v_lshlrev_b32 v9, 4, v8')
    a('v_sub_u32 v9, v9, v13')
    a('s_add_u32 s14, s13, %d' % (C_U + 60))
    a('v_add_u32 v9, s14, v9')
    for i in range(1, 4):
        a('v_add_u32 v%d, %d, v9' % (9 + i, 1024 * i))
    a('v_lshl_add_u32 v15, v8, 7, v13')
    a('s_add_u32 s14, s13, %d' % (C_U + 444))
    a('v_sub_u32 v14, s14, v15')
    a('v_add_u32 v15, s13, v15')
    a('v_mov_b32 v6, s13')
    stamp(a, 1)
    a('s_waitcnt vmcnt(0)')
    stamp(a, 2)
    a('ds_read_b128 v[16:19], v6 offset:%d' % (C_HA + 512))
    a('s_waitcnt lgkmcnt(0)')
    a('v_alignbit_b32 v23, v19, v18, 16')
    a('v_alignbit_b32 v22, v18, v17, 16')
    a('v_alignbit_b32 v21, v17, v16, 16')
    a('v_lshlrev_b32 v20, 16, v16')
    a('ds_write_b128 v6, v[20:23] offset:%d' % (C_HB + 512))
    a('s_bitcmp1_b32 s11, 0')
    a('s_cselect_b32 s14, 0, 16')
    a('s_lshl_b32 s15, s15, s14')
    a('s_and_b32 s15, s15, 0xffff0000')
    ACC = 16
    GB = [48, 112]
    FB = [80, 144]
    def reads(j, b):
        for i in range(8):
            a('ds_read_b128 %s, v7 offset:%d' % (v(GB[b] + 4 * i, 4), 64 * j + 512 * i))
            rb = 7 - i
            o = (512 * (rb & 1) + 64 * j) // 4
            a('ds_read2_b32 %s, v%d offset0:%d offset1:%d' % (v(FB[b] + 4 * i, 2), 9 + (rb >> 1), o, o + 1))
            a('ds_read2_b32 %s, v%d offset0:%d offset1:%d' % (v(FB[b] + 4 * i + 2, 2), 9 + (rb >> 1), o + 2, o + 3))
    reads(0, 0)
    for j in range(8):
        b = j & 1
        a('s_waitcnt lgkmcnt(0)')
        nxt = []
        if j < 7:
            t = Asm(); a_save = a.lines; a.lines = t.lines; reads(j + 1, b ^ 1); a.lines = a_save
            nxt = t.lines
        ms = []
        for n in range(8):
            for aa in range(n + 1):
                acc = v(ACC + 4 * n, 4)
                first = (j == 0 and aa == 0)
                ms.append('    v_mfma_f32_16x16x32_bf16 %s, %s, %s, %s' % (acc, v(GB[b] + 4 * aa, 4), v(FB[b] + 4 * (n - aa), 4), '0' if first else acc))
        for i, m in enumerate(ms):
            a.lines.append(m)
            if i < len(nxt):
                a.lines.append(nxt[i])
    stamp(a, 3)
    for n in range(8):
        for hh in range(2):
            a('ds_read_b32 v%d, v14 offset:%d' % (48 + 2 * n + hh, 512 * (7 - n) + 64 * (1 - hh)))
    a('s_mov_b32 s14, 0xffff0000')
    a('s_nop 7')
    a('s_waitcnt lgkmcnt(0)')
    for n in range(8):
        for hh in range(2):
            u = 48 + 2 * n + hh
            a('v_and_b32 v%d, s14, v%d' % (64 + 2 * n + hh, u))
            a('v_lshlrev_b32 v%d, 16, v%d' % (u, u))
            a('v_fmac_f32 v%d, s15, v%d' % (ACC + 4 * n + 2 * hh, 64 + 2 * n + hh))
            a('v_fmac_f32 v%d, s15, v%d' % (ACC + 4 * n + 2 * hh + 1, u))
            a('v_cvt_pk_bf16_f32 v%d, v%d, v%d' % (u, ACC + 4 * n + 2 * hh, ACC + 4 * n + 2 * hh + 1))
            a('ds_write_b32 v15, v%d offset:%d' % (u, C_HA + 512 * n + 64 * hh))
    a('v_bfe_u32 v2, v1, 2, 2')
    a('v_mul_u32_u24 v2, %d, v2' % CW)
    a('v_lshl_add_u32 v2, v8, 5, v2')
    a('v_and_b32 v3, 3, v1')
    a('v_lshl_add_u32 v2, v3, 3, v2')
    a('s_lshl_b32 s14, s%d, 10' % W)
    a('v_add_u32 v2, s14, v2')
    a('v_lshlrev_b32 v3, 3, v1')
    a('s_lshl_b32 s12, s%d, 14' % CG)
    a('s_lshl_b32 s14, s%d, 12' % W)
    a('s_add_u32 s12, s12, s14')
    a('s_waitcnt lgkmcnt(0)')
    a('s_barrier')
    stamp(a, 4)
    for i in range(8):
        a('ds_read_b64_tr_b16 %s, v2 offset:%d' % (v(16 + 2 * i, 2), C_HA + 128 * i))
    for i in range(8):
        a('s_waitcnt lgkmcnt(%d)' % (7 - i))
        a('buffer_store_dwordx2 %s, v3, %s, s12 offen offset:%d' % (v(16 + 2 * i, 2), s(SZ, 4), 512 * i))
    stamp_end(a, 1)
    a('s_endpgm')

def k2(a, name):
    a.raw('.p2align 8')
    a.label(name)
    a('s_cmp_ge_u32 s2, 160')
    a('s_cbranch_scc1 K2_exit')
    load_args(a)
    wave_lane(a, 10)
    a('s_mov_b32 s8, s2')
    a('s_waitcnt lgkmcnt(0)')
    conv(a)
    a.label('K2_exit')
    a('s_endpgm')

def gemm2(a, DEPTH=3):
    RB, CB, W = 8, 9, 10
    SH, SW, SQ, SZ, SG, SO = 44, 48, 52, 56, 60, 64
    KS, OH, OW = 68, 69, 70
    a('s_mul_i32 s11, s%d, %d' % (RB, 54 * 4096))
    if WS_H: a('s_add_u32 s11, s11, %s' % hex(WS_H))
    srd(a, SH, P_WS, 54 * 4096, 's11')
    a('s_mul_i32 s11, s%d, 5120' % CB)
    a('s_add_u32 s11, s11, %s' % hex(WS_W2P))
    srd(a, SW, P_WS, 53 * 40960 + 5120, 's11')
    srd(a, SQ, P_Q, SZ_ACT)
    srd(a, SZ, P_WS, SZ_ACT, WS_Z4)
    srd(a, SG, P_WS, 8192, WS_G)
    srd(a, SO, P_OUT, SZ_ACT)
    if ROT2:
        a('s_mul_i32 s11, s%d, 7' % RB)
        a('s_mul_i32 s12, s%d, 13' % CB)
        a('s_add_u32 s11, s11, s12')
        a('s_add_u32 s11, s11, s%d' % W)
        a('s_mul_i32 s12, s11, 1214')
        a('s_lshr_b32 s12, s12, 16')
        a('s_mul_i32 s12, s12, 54')
        a('s_sub_u32 s%d, s11, s12' % KS)
    else:
        a('s_mov_b32 s%d, s%d' % (KS, W))
    a('v_lshlrev_b32 v2, 4, v1')
    a('v_add_u32 v3, 4096, v2')
    for j in range(4):
        a('s_xor_b32 s11, s%d, %d' % (W, j))
        a('s_lshl_b32 s11, s11, 10')
        a('v_add_u32 v%d, s11, v2' % (4 + j))
    ACC = 32
    BUF = ACC + 80
    def issue(i):
        B = BUF + 36 * (i % DEPTH)
        if i == 13:
            a('s_cmp_ge_u32 s%d, 2' % W)
            a('s_cselect_b32 s%d, 60, s%d' % (KS, KS))
        a('s_lshl_b32 s%d, s%d, 12' % (OH, KS))
        a('s_mul_i32 s%d, s%d, 40960' % (OW, KS))
        for t in range(5):
            a('buffer_load_dwordx4 %s, v%d, %s, s%d offen offset:%d' % (v(B + 16 + 4 * t, 4), 2 if t < 4 else 3, s(SW, 4), OW, (t & 3) * 1024))
            if t < 4:
                a('buffer_load_dwordx4 %s, v%d, %s, s%d offen' % (v(B + 4 * t, 4), 4 + t, s(SH, 4), OH))
        a('s_add_u32 s%d, s%d, 4' % (KS, KS))
        a('s_cmp_ge_u32 s%d, 54' % KS)
        a('s_cselect_b32 s11, 54, 0')
        a('s_sub_u32 s%d, s%d, s11' % (KS, KS))
    for i in range(DEPTH - 1):
        issue(i)
    a('s_lshl_b32 s11, s%d, 6' % RB)
    a('s_lshl_b32 s12, s%d, 4' % W)
    a('s_add_u32 s11, s11, s12')
    a('v_and_b32 v8, 15, v1')
    a('v_add_u32 v8, s11, v8')
    a('v_lshrrev_b32 v9, 4, v1')
    a('v_mul_u32_u24 v10, 1280, v8')
    a('v_lshl_add_u32 v10, v9, 3, v10')
    a('s_mul_i32 s11, s%d, 160' % CB)
    a('v_add_u32 v10, s11, v10')
    a('v_lshlrev_b32 v11, 14, v9')
    a('v_lshl_add_u32 v11, v8, 3, v11')
    a('s_mul_i32 s11, s%d, %d' % (CB, 20 * 16384))
    a('v_add_u32 v11, s11, v11')
    a('v_lshlrev_b32 v8, 2, v8')
    NS = 14
    for i in range(NS):
        if i + DEPTH - 1 < NS:
            issue(i + DEPTH - 1)
            a('s_waitcnt vmcnt(%d)' % (9 * (DEPTH - 1)))
        else:
            if i == NS - DEPTH + 1:
                for mt in range(5):
                    a('buffer_load_dwordx2 %s, v10, %s, 0 offen offset:%d' % (v(12 + 2 * mt, 2), s(SQ, 4), 32 * mt))
                for mt in range(5):
                    a('s_mov_b32 s11, %s' % hex(65536 * mt))
                    a('buffer_load_dwordx2 %s, v11, %s, s11 offen' % (v(22 + 2 * mt, 2), s(SZ, 4)))
                a('buffer_load_dword v9, v8, %s, 0 offen' % s(SG, 4))
            a('s_waitcnt vmcnt(%d)' % (9 * (NS - 1 - i) + 11))
        if i == 0: stamp(a, 1)
        if i == 7: stamp(a, 2)
        B = BUF + 36 * (i % DEPTH)
        for mt in range(5):
            for j in range(4):
                acc = v(ACC + (j * 5 + mt) * 4, 4)
                a('v_mfma_f32_16x16x32_bf16 %s, %s, %s, %s' % (acc, v(B + 16 + 4 * mt, 4), v(B + 4 * j, 4), '0' if i == 0 else acc))
    stamp(a, 3)
    for j in range(1, 4):
        a('s_xor_b32 s11, s%d, %d' % (W, j))
        a('s_mul_i32 s11, s11, 15360')
        a('v_add_u32 v%d, s11, v2' % (4 + j))
    a('s_mul_i32 s11, s%d, 15360' % W)
    a('v_add_u32 v4, s11, v2')
    a('s_nop 7')
    for j in range(1, 4):
        for mt in range(5):
            a('ds_write_b128 v%d, %s offset:%d' % (4 + j, v(ACC + (j * 5 + mt) * 4, 4), (j - 1) * 5120 + mt * 1024))
    a('s_waitcnt lgkmcnt(0)')
    a('s_barrier')
    stamp(a, 4)
    for j in range(1, 4):
        for mt in range(5):
            a('ds_read_b128 %s, v4 offset:%d' % (v(ACC + (j * 5 + mt) * 4, 4), (j - 1) * 5120 + mt * 1024))
    a('s_mov_b32 s12, 0xffff0000')
    a('s_waitcnt vmcnt(0)')
    for mt in range(5):
        for h in range(2):
            q, z = 12 + 2 * mt + h, 22 + 2 * mt + h
            d = BUF + 4 * mt + 2 * h
            a('v_lshlrev_b32 v%d, 16, v%d' % (d, q))
            a('v_and_b32 v%d, s12, v%d' % (d + 1, q))
            a('v_lshlrev_b32 v%d, 16, v%d' % (q, z))
            a('v_and_b32 v%d, s12, v%d' % (z, z))
            a('v_mul_f32 v%d, v%d, v%d' % (d, d, q))
            a('v_mul_f32 v%d, v%d, v%d' % (d + 1, d + 1, z))
    for j in range(1, 4):
        a('s_waitcnt lgkmcnt(%d)' % (5 * (3 - j)))
        for i in range(20):
            a('v_add_f32 v%d, v%d, v%d' % (ACC + i, ACC + i, ACC + 20 * j + i))
    for i in range(20):
        a('v_sub_f32 v%d, v%d, v%d' % (BUF + i, BUF + i, ACC + i))
        a('v_fmac_f32 v%d, v9, v%d' % (ACC + i, BUF + i))
    for mt in range(5):
        a('v_cvt_pk_bf16_f32 v%d, v%d, v%d' % (12 + 2 * mt, ACC + 4 * mt, ACC + 4 * mt + 1))
        a('v_cvt_pk_bf16_f32 v%d, v%d, v%d' % (13 + 2 * mt, ACC + 4 * mt + 2, ACC + 4 * mt + 3))
        a('buffer_store_dwordx2 %s, v10, %s, 0 offen offset:%d' % (v(12 + 2 * mt, 2), s(SO, 4), 32 * mt))
    stamp_end(a, 2)
    a('s_endpgm')

def k3(a, name):
    a.raw('.p2align 8')
    a.label(name)
    a('s_cmp_ge_u32 s2, 256')
    a('s_cbranch_scc1 K3_exit')
    load_args(a)
    wave_lane(a, 10)
    a('s_and_b32 s3, s2, 7')
    a('s_lshr_b32 s4, s2, 3')
    a('s_lshr_b32 s8, s3, 1')
    a('s_lshl_b32 s8, s8, 3')
    a('s_lshr_b32 s5, s4, 2')
    a('s_add_u32 s8, s8, s5')
    a('s_and_b32 s9, s3, 1')
    a('s_lshl_b32 s9, s9, 2')
    a('s_and_b32 s5, s4, 3')
    a('s_add_u32 s9, s9, s5')
    a('s_waitcnt lgkmcnt(0)')
    gemm2(a)
    a.label('K3_exit')
    a('s_endpgm')

def main(out):
    hdr = open('cdna_kernels/%s.s.ref' % NAME).read().split('\n')
    head = [l for l in hdr if l.startswith(';') and '@launch' not in l and 'Override' not in l and 'grid=ceil' not in l]
    a = Asm()
    for l in head: a.raw(l)
    a.raw('; @launch kernel=k1_kernel grid=(256,1,1) block=(512,1,1) lds=147456')
    a.raw('; @launch kernel=k2_kernel grid=(160,1,1) block=(256,1,1) lds=%d' % (4 * CW))
    a.raw('; @launch kernel=k3_kernel grid=(256,1,1) block=(256,1,1) lds=61440')
    a.raw('.amdgcn_target "amdgcn-amd-amdhsa--gfx950"')
    a.raw('.text')
    for nm, fn in (('k1_kernel', k1), ('k2_kernel', k2), ('k3_kernel', k3)):
        a.raw('.globl %s' % nm)
        a.raw('.type %s,@function' % nm)
        fn(a, nm)
    a.label('CODE_END')
    a.raw('.section .rodata,"a"')
    a.raw(kernel_desc('k1_kernel', 240))
    a.raw(kernel_desc('k2_kernel', 176))
    a.raw(kernel_desc('k3_kernel', 224))
    open(out, 'w').write(a.text())

if __name__ == '__main__':
    if '--codepf' in sys.argv:
        CODEPF = True
        sys.argv.remove('--codepf')
    if '--stamp' in sys.argv:
        STAMP = True
        sys.argv.remove('--stamp')
    main(sys.argv[1] if len(sys.argv) > 1 else 'cdna_kernels/%s.s' % NAME)
```

```python
import sys
from asmlib import *

NAME = 'gated_mix__ssm_conv_h3__glu_gated_swiglu__prompt'
WS_H = 0
WS_W2P = 0x800000
WS_UT = 0xC00000
WS_Z4 = 0x1000000
WS_G = 0x1400000
WS_F = 0x1500000
F_H, F_U, F_W, F_Z = 0, 0x4000, 0x4800, 0x5000
F_SIZE = 0x8000
S_NC = 14
SZ_ACT = 2048 * 640 * 2
SZ_W = 640 * 1728 * 2
SZ_H = 2048 * 1728 * 2
P_Q, P_K, P_V, P_SK, P_SSMK, P_SSMD, P_BX, P_W1, P_W3, P_W2, P_GW, P_OUT, P_DBG, P_WS = [16 + 2 * i for i in range(14)]
NLOG2E = '0xbfb8aa3b'
OPT = dict(rot1=1, rot2=1, stamp=0, prio=0, cprio=2, cflag=1)
LDS_TOTAL = 163840
LDS_CNT = LDS_TOTAL - 16
SLOT = [0, 98304, 49152]
LDS_W2S = 147456
LDS_GW = 159744
CONV_BASE = 98304
S_W = 10
SF = 12
S_F1, S_F2 = 5, 6
WS_DBG = 0x2000000
OOB = 0x10000

def stamp(a, i):
    if OPT['stamp']:
        a('s_memtime s[%d:%d]' % (80 + 2 * i, 81 + 2 * i))
def stamp_begin(a):
    if OPT['stamp']:
        a('s_memrealtime s[78:79]')
        for i in range(11): a('s_mov_b64 s[%d:%d], 0' % (80 + 2 * i, 81 + 2 * i))
        a('s_memtime s[80:81]')
def stamp_end(a):
    if OPT['stamp']:
        a('s_waitcnt vmcnt(0) lgkmcnt(0)')
        a('s_memtime s[100:101]')
        a('s_memrealtime s[76:77]')
        srd(a, 44, P_WS, 0x100000, WS_DBG)
        a('s_lshl_b32 s5, s2, 3')
        a('s_add_u32 s5, s5, s10')
        a('s_lshl_b32 s5, s5, 6')
        a('s_waitcnt lgkmcnt(0)')
        a('v_mov_b32 v0, s78')
        a('v_mov_b32 v1, s76')
        for i in range(11): a('v_mov_b32 v%d, s%d' % (2 + i, 80 + 2 * i))
        a('v_mov_b32 v16, s5')
        for i in range(4):
            a('buffer_store_dwordx4 v[%d:%d], v16, s[44:47], 0 offen offset:%d' % (4 * i, 4 * i + 3, 16 * i))

def capture(a, fn):
    save = a.lines; a.lines = []
    fn()
    out = a.lines; a.lines = save
    return out

NC = 's[0:1]'
def poll_check(a, loadline, vtmp, sc, sleep=2):
    L, D = a.newlabel('POLL'), a.newlabel('POLLD')
    a('s_mov_b32 s%d, 0x20000' % sc)
    a.label(L)
    a('v_cmp_eq_u64 vcc, %s, %s' % (NC, v(vtmp, 2)))
    a('s_cmp_eq_u64 vcc, -1')
    a('s_cbranch_scc1 %s' % D)
    a('s_sleep %d' % sleep)
    a(loadline)
    a('s_waitcnt vmcnt(0)')
    a('s_sub_u32 s%d, s%d, 1' % (sc, sc))
    a('s_cbranch_scc0 %s' % L)
    a.label(D)
def poll(a, loadline, vtmp, sc, sleep=2):
    a(loadline)
    a('s_waitcnt vmcnt(0)')
    poll_check(a, loadline, vtmp, sc, sleep)

GO_LOAD = 'buffer_load_dwordx2 v[250:251], v252, s[72:75], s11 offen sc1'
PF_LOAD = 'buffer_load_dwordx2 v[244:245], v248, s[%d:%d], 0 offen sc1' % (SF, SF + 3)

def set_flag(a, soff):
    a('s_mov_b64 exec, 1')
    a('buffer_store_dwordx2 v[250:251], v252, %s, s%d offen sc1' % (s(SF, 4), soff))
    a('s_mov_b64 exec, -1')

def nonce_publish(a):
    L = a.newlabel('NP')
    a('s_or_b32 s11, s2, s%d' % S_W)
    a('s_cmp_lg_u32 s11, 0')
    a('s_cbranch_scc1 %s' % L)
    a('s_or_b32 s74, s74, 1')
    a('v_mov_b32 v250, s74')
    a('v_mov_b32 v251, s75')
    a('v_lshlrev_b32 v249, 7, v1')
    a('s_mov_b64 exec, 3')
    a('global_store_dwordx2 v249, v[250:251], s[%d:%d] sc1' % (P_DBG, P_DBG + 1))
    a('s_mov_b64 exec, -1')
    a.label(L)
def go_off(a):
    a('s_and_b32 s11, s4, 1')
    a('s_lshl_b32 s11, s11, 7')
def go_issue(a):
    srd(a, 72, P_DBG, 256)
    go_off(a)
    a('s_cmp_eq_u32 s%d, 0' % S_W)
    a('s_cselect_b32 s11, s11, %s' % hex(OOB))
    a(GO_LOAD)
def go_check(a):
    L, R, D = a.newlabel('GOC'), a.newlabel('GOR'), a.newlabel('GOD')
    a('s_cmp_lg_u32 s%d, 0' % S_W)
    a('s_cbranch_scc1 %s' % L)
    go_off(a)
    a('s_mov_b32 s71, 0x20000')
    a.label(R)
    a('v_cmp_ne_u32 vcc, 0, v250')
    a('s_cbranch_vccnz %s' % D)
    a('s_sleep 4')
    a(GO_LOAD)
    a('s_waitcnt vmcnt(0)')
    a('s_sub_u32 s71, s71, 1')
    a('s_cbranch_scc0 %s' % R)
    a.label(D)
    a('ds_write_b64 v254, v[250:251] offset:8')
    a('s_waitcnt lgkmcnt(0)')
    a.label(L)
def go_fetch(a):
    a('ds_read_b64 v[250:251], v254 offset:8')
def go_sgpr(a):
    a('v_readfirstlane_b32 s0, v250')
    a('v_readfirstlane_b32 s1, v251')
def pf_check(a):
    D = a.newlabel('PFD')
    a('s_and_b32 s11, s%d, 3' % S_W)
    a('s_cmp_lg_u32 s11, 0')
    a('s_cbranch_scc1 %s' % D)
    poll_check(a, PF_LOAD, 244, 11, sleep=4)
    a.label(D)

def common_pre(a):
    a('v_mov_b32 v252, 0')
    a('v_mov_b32 v253, 1')
    a('s_mul_i32 s7, s3, 20')
    a('s_add_u32 s7, s7, s4')
    a('s_sub_u32 s7, s7, 12')
    a('s_lshr_b32 s11, s7, 4')
    a('s_lshl_b32 s11, s11, 7')
    a('s_add_u32 s11, s11, %s' % hex(F_U))
    a('s_cmp_eq_u32 s%d, 4' % S_W)
    a('s_cselect_b32 s11, s11, %s' % hex(OOB))
    a('s_cselect_b32 s65, 3, 35')
    a('s_and_b32 s66, s4, 7')
    a('s_mul_i32 s66, s66, 5')
    a('s_lshr_b32 s66, s66, 2')
    a('s_mul_i32 s66, s66, 144')
    a('s_add_u32 s66, s66, %s' % hex(F_W))
    a('s_cmp_eq_u32 s%d, 0' % S_W)
    a('s_cselect_b32 s11, s66, s11')
    a('v_min_u32 v248, s65, v1')
    a('v_lshl_add_u32 v248, v248, 3, s11')
    a('v_mov_b32 v254, %d' % LDS_CNT)
    a('ds_write_b32 v254, v252')
    a('ds_write_b32 v254, v252 offset:4')

def flag_srd(a):
    srd(a, SF, P_WS, F_SIZE, WS_F)

G1_FR, G1_ACC = 12, 44
G1S = dict(SX=44, SW1=48, SW3=52, SH=56, KS=60, OX=61, OW=62, LW=63, HO=64, T0=65, T1=66, T2=67, T3=68, U0=69, GO=70)

def gemm1_pre(a):
    RB, CB, W = 8, 9, S_W
    g = G1S
    KS, LW, HO, T0, T1, T2, T3 = g['KS'], g['LW'], g['HO'], g['T0'], g['T1'], g['T2'], g['T3']
    if OPT['rot1']:
        a('s_mul_i32 s%d, s%d, 3' % (T0, RB))
        a('s_add_u32 s%d, s%d, s%d' % (T0, T0, CB))
        a('s_mul_i32 s%d, s%d, 205' % (T1, T0))
        a('s_lshr_b32 s%d, s%d, 11' % (T1, T1))
        a('s_mul_i32 s%d, s%d, 10' % (T1, T1))
        a('s_sub_u32 s%d, s%d, s%d' % (KS, T0, T1))
    else:
        a('s_mov_b32 s%d, 0' % KS)
    a('s_lshl_b32 s%d, s%d, 10' % (LW, W))
    a('v_lshrrev_b32 v13, 3, v1')
    a('s_lshl_b32 s%d, s%d, 3' % (T0, W))
    a('v_add_u32 v13, s%d, v13' % T0)
    a('v_bfe_u32 v14, v13, 1, 3')
    a('v_and_b32 v15, 7, v1')
    a('v_xor_b32 v14, v14, v15')
    a('v_lshlrev_b32 v14, 4, v14')
    a('v_mul_u32_u24 v2, 1280, v13')
    a('v_add_u32 v2, v2, v14')
    for i in range(1, 4):
        a('v_add_u32 v%d, %s, v2' % (2 + i, hex(i * 81920)))
    a('v_bfe_u32 v14, v13, 1, 1')
    a('v_lshlrev_b32 v14, 2, v14')
    a('v_xor_b32 v14, v14, v15')
    a('v_lshlrev_b32 v14, 4, v14')
    a('v_mul_u32_u24 v6, 3456, v13')
    a('v_add_u32 v6, v6, v14')
    a('s_lshr_b32 s%d, s%d, 1' % (T0, W))
    a('s_and_b32 s%d, s%d, 1' % (T1, W))
    a('s_lshl_b32 s%d, s%d, 2' % (T2, RB))
    a('s_add_u32 s%d, s%d, s%d' % (T2, T2, T0))
    a('s_lshl_b32 s%d, s%d, 1' % (T3, CB))
    a('s_add_u32 s%d, s%d, s%d' % (T3, T3, T1))
    a('s_lshl_b32 s%d, s%d, 6' % (S_F1, T2))
    a('s_add_u32 s%d, s%d, s%d' % (S_F1, S_F1, T3))
    a('s_lshl_b32 s%d, s%d, 3' % (S_F1, S_F1))

def gemm1_post_addr(a):
    RB, CB, W = 8, 9, S_W
    g = G1S
    HO, T0, T1, T2, T3, GO = g['HO'], g['T0'], g['T1'], g['T2'], g['T3'], g['GO']
    a('s_mul_i32 s%d, s%d, 54' % (HO, T2))
    a('s_add_u32 s%d, s%d, s%d' % (HO, HO, T3))
    a('s_lshl_b32 s%d, s%d, 12' % (HO, HO))
    a('s_lshl_b32 s11, s%d, 13' % T0)
    a('v_and_b32 v13, 31, v1')
    a('v_lshrrev_b32 v14, 5, v1')
    a('v_bfe_u32 v15, v1, 1, 3')
    a('v_xor_b32 v15, v15, v14')
    a('v_lshlrev_b32 v12, 7, v13')
    a('v_add_u32 v12, s11, v12')
    for kk in range(4):
        a('v_xor_b32 v%d, %d, v15' % (7 + kk, 2 * kk))
        a('v_lshl_add_u32 v%d, v%d, 4, v12' % (7 + kk, 7 + kk))
    a('v_bfe_u32 v11, v1, 2, 2')
    a('v_lshl_add_u32 v11, v14, 3, v11')
    a('v_lshlrev_b32 v11, 7, v11')
    a('v_bfe_u32 v12, v1, 3, 1')
    a('v_xor_b32 v12, s%d, v12' % T1)
    a('v_lshl_add_u32 v11, v12, 6, v11')
    a('v_bfe_u32 v12, v1, 4, 1')
    a('v_lshl_add_u32 v11, v12, 5, v11')
    a('v_and_b32 v12, 3, v1')
    a('v_lshl_add_u32 v11, v12, 3, v11')
    a('v_add_u32 v11, 0x8000, v11')
    for i in range(5):
        a('v_add_u32 v%d, 0x18000, v%d' % (208 + i, 7 + i))
    a('v_bfe_u32 v12, v1, 4, 1')
    a('v_lshlrev_b32 v12, 10, v12')
    a('v_and_b32 v13, 15, v1')
    a('v_lshl_add_u32 v12, v13, 4, v12')
    a('v_lshl_add_u32 v213, v14, 8, v12')
    a('s_and_b32 s%d, s%d, 7' % (GO, T3))
    a('s_lshl_b32 s%d, s%d, 10' % (T1, GO))
    a('s_add_u32 s11, s11, s%d' % T1)
    a('v_add_u32 v214, s11, v237')
    a('v_add_u32 v215, 0x18000, v214')
    a('s_and_b32 s%d, s%d, 1' % (T1, GO))
    a('s_lshl_b32 s%d, s%d, 2' % (T1, T1))
    a('v_lshrrev_b32 v12, 4, v1')
    a('v_add_u32 v12, s%d, v12' % T1)
    a('v_and_b32 v13, 7, v1')
    a('v_xor_b32 v12, v12, v13')
    a('v_lshlrev_b32 v216, 4, v12')
    a('v_add_u32 v216, s71, v216')
    a('v_mov_b32 v217, 0')
    a('s_lshl_b32 s%d, s%d, 5' % (GO, GO))
    a('s_lshl_b32 s%d, s%d, 8' % (T1, T2))
    a('s_add_u32 s%d, s%d, s%d' % (GO, GO, T1))
    a('s_cmp_lt_u32 s%d, 8' % T3)
    a('s_cselect_b32 s%d, s%d, %s' % (GO, GO, hex(OOB)))
    a('v_lshrrev_b32 v12, 5, v1')
    a('v_bfe_u32 v13, v1, 2, 3')
    a('v_lshl_add_u32 v12, v12, 4, v13')
    a('v_lshlrev_b32 v12, 7, v12')
    a('v_and_b32 v13, 3, v1')
    a('v_lshl_add_u32 v12, v13, 3, v12')
    a('s_lshr_b32 s11, s%d, 2' % W)
    a('s_lshl_b32 s11, s11, 12')
    a('s_and_b32 s%d, s%d, 3' % (T1, W))
    a('s_lshl_b32 s%d, s%d, 5' % (T1, T1))
    a('s_add_u32 s11, s11, s%d' % T1)
    a('s_add_u32 s11, s11, %d' % LDS_W2S)
    a('v_add_u32 v236, s11, v12')

def g1_dma_ops(a, stage):
    g = G1S
    KS, OX, OW, LW = g['KS'], g['OX'], g['OW'], g['LW']
    base = SLOT[stage % 3]
    head = ['s_lshl_b32 s%d, s%d, 7' % (OX, KS), 's_mul_i32 s%d, s%d, %d' % (OW, KS, 64 * 3456),
            's_add_u32 s%d, s%d, 1' % (KS, KS), 's_cmp_eq_u32 s%d, 10' % KS, 's_cselect_b32 s%d, 0, s%d' % (KS, KS)]
    ops = []
    for m, S in ((0, g['SW1']), (1, g['SW3'])):
        ops.append(('s_add_u32 m0, s%d, %s' % (LW, hex(base + 32768 + m * 8192)),
                    'buffer_load_dwordx4 v6, %s, s%d offen lds' % (s(S, 4), OW)))
    for i in range(4):
        ops.append(('s_add_u32 m0, s%d, %s' % (LW, hex(base + i * 8192)),
                    'buffer_load_dwordx4 v%d, %s, s%d offen lds' % (2 + i, s(g['SX'], 4), OX)))
    ops[0] = ('\n'.join(head) + '\n' + ops[0][0], ops[0][1])
    return ops

def emit_ops(a, ops):
    for pre, ld in ops:
        if pre:
            a(pre); a('s_nop 0')
        a(ld)

def g1_reads(a, stage, kk, b):
    base = SLOT[stage % 3]
    hi = base >= 98304
    off = base - (98304 if hi else 0)
    B = G1_FR + 16 * b
    xa = (208 if hi else 7) + kk
    wa = 212 if hi else 11
    for nt in range(2):
        a('ds_read_b128 %s, v%d offset:%d' % (v(B + 4 * nt, 4), xa, off + nt * 4096))
    for m in range(2):
        for h in range(2):
            a('ds_read_b64_tr_b16 %s, v%d offset:%d' % (v(B + 8 + 4 * m + 2 * h, 2), wa, off + m * 8192 + kk * 2048 + h * 512))

def g1_mfmas(a, b, first, ops):
    B = G1_FR + 16 * b
    k = 0
    pos = {0: [], 1: [0], 2: [0, 2], 3: [0, 1, 2], 4: [0, 1, 2, 3]}[min(len(ops), 4)]
    i = 0
    for m in range(2):
        for nt in range(2):
            acc = v(G1_ACC + (m * 2 + nt) * 16, 16)
            if i in pos and ops[k][0]: a(ops[k][0])
            a('v_mfma_f32_32x32x16_bf16 %s, %s, %s, %s' % (acc, v(B + 8 + 4 * m, 4), v(B + 4 * nt, 4), '0' if first else acc))
            if i in pos:
                a(ops[k][1]); k += 1
            i += 1
    for pre, ld in ops[k:]:
        if pre:
            a(pre); a('s_nop 0')
        a(ld)

def g1_step(a, sidx, q, vmwait, after_barrier=None, extra=None, before_barrier=None):
    a.comment('k-step %d' % sidx)
    base = SLOT[sidx % 3]
    hi = base >= 98304
    for kk in range(3):
        g1_reads(a, sidx, kk + 1, (kk + 1) & 1)
        n = 6
        if kk == 0:
            a('ds_read_b128 v[220:223], v%d offset:%d' % (215 if hi else 214, base - (98304 if hi else 0)))
            a('ds_read_b128 v[224:227], v216 offset:%d' % (sidx * 128))
            n = 8
        if extra and kk in extra:
            n += extra[kk](a)
        a('s_waitcnt lgkmcnt(%d)' % n)
        g1_mfmas(a, kk & 1, sidx == 0 and kk == 0, q.get(kk, []))
        if kk == 1:
            for i in range(4):
                a('v_dot2c_f32_bf16 v217, v%d, v%d' % (220 + i, 224 + i))
    if vmwait is None:
        a('s_waitcnt lgkmcnt(0)')
    else:
        a('s_waitcnt vmcnt(%d) lgkmcnt(0)' % vmwait)
    if before_barrier: before_barrier(a)
    a('s_barrier')
    if sidx < 9:
        g1_reads(a, sidx + 1, 0, 0)
    if after_barrier: after_barrier(a)
    g1_mfmas(a, 1, False, q.get(3, []))

def gemm1_head(a):
    RB, CB, W = 8, 9, S_W
    g = G1S
    SX, SW1, SW3, SH, KS, T1, U0 = g['SX'], g['SW1'], g['SW3'], g['SH'], g['KS'], 72, g['U0']
    nonce_publish(a)
    a('s_mul_i32 s11, s%d, %d' % (RB, 256 * 1280))
    srd(a, SX, P_Q, 256 * 1280, 's11')
    a('s_lshl_b32 s11, s%d, 7' % CB)
    a('s_sub_u32 s%d, %s, s11' % (T1, hex(SZ_W)))
    srd(a, SW1, P_W1, 's%d' % T1, 's11')
    srd(a, SW3, P_W3, 's%d' % T1, 's11')
    a('s_lshl_b32 s71, s%d, 7' % KS)
    a('s_add_u32 s71, s71, %d' % LDS_GW)
    emit_ops(a, g1_dma_ops(a, 0))
    stamp(a, 1)
    a('v_lshlrev_b32 v237, 4, v1')
    L = a.newlabel('GW')
    a('s_cmp_ge_u32 s%d, 3' % W)
    a('s_cbranch_scc1 %s' % L)
    srd(a, SH, P_GW, 1280)
    a('v_add_u32 v12, s%d, v237' % g['LW'])
    a('v_subrev_u32 v13, 1280, v12')
    a('v_min_u32 v12, v12, v13')
    a('v_subrev_u32 v13, 1280, v12')
    a('v_min_u32 v12, v12, v13')
    a('s_add_u32 m0, s%d, %d' % (g['LW'], LDS_GW))
    a('s_nop 0')
    a('buffer_load_dwordx4 v12, %s, 0 offen lds' % s(SH, 4))
    a.label(L)
    srd(a, SH, P_W2, SZ_W)
    a('s_mul_i32 s76, s%d, 27' % RB)
    a('s_add_u32 s76, s76, s%d' % CB)
    a('s_mul_i32 s11, s76, 3641')
    a('s_lshr_b32 s11, s11, 16')
    a('s_mul_i32 s%d, s11, 18' % T1)
    a('s_sub_u32 s%d, s76, s%d' % (T1, T1))
    a('s_mul_i32 s%d, s%d, 30' % (U0, T1))
    a('s_add_u32 s%d, s%d, s11' % (U0, U0))
    a('s_lshr_b32 s11, s%d, 2' % W)
    a('s_mul_i32 s11, s11, 10')
    a('s_add_u32 s%d, s%d, s11' % (U0, U0))
    a('s_cmp_ge_u32 s76, 180')
    a('s_cselect_b32 s%d, 600, s%d' % (U0, U0))
    a('v_lshrrev_b32 v12, 3, v1')
    a('s_and_b32 s11, s%d, 3' % W)
    a('s_lshl_b32 s11, s11, 3')
    a('v_add_u32 v12, s11, v12')
    a('v_mul_u32_u24 v12, 1280, v12')
    a('v_and_b32 v13, 7, v1')
    a('v_lshl_add_u32 v12, v13, 4, v12')
    def w2piece(ureg, ldsoff):
        a('s_mul_i32 s11, s%d, 6554' % ureg)
        a('s_lshr_b32 s11, s11, 16')
        a('s_mul_i32 s%d, s11, 10' % T1)
        a('s_sub_u32 s%d, s%d, s%d' % (T1, ureg, T1))
        a('s_mul_i32 s11, s11, %d' % (32 * 1280))
        a('s_lshl_b32 s%d, s%d, 7' % (T1, T1))
        a('s_add_u32 m0, s%d, %d' % (g['LW'], ldsoff))
        a('s_add_u32 s11, s11, s%d' % T1)
        a('buffer_load_dwordx4 v12, %s, s11 offen lds' % s(SH, 4))
    w2piece(U0, LDS_W2S)
    L = a.newlabel('W2')
    a('s_cmp_ge_u32 s%d, 4' % W)
    a('s_cbranch_scc1 %s' % L)
    a('s_add_u32 s73, s%d, 20' % U0)
    w2piece(73, LDS_W2S + 8192)
    a.label(L)
    a('s_barrier')
    emit_ops(a, g1_dma_ops(a, 1))
    flag_srd(a)
    gemm1_post_addr(a)
    srd(a, SH, P_WS, SZ_W, WS_W2P)
    a('s_waitcnt vmcnt(7)')
    a('s_barrier')
    stamp(a, 2)
    if OPT['prio']:
        L = a.newlabel('PR')
        a('s_cmp_lt_u32 s%d, 4' % W)
        a('s_cbranch_scc1 %s' % L)
        a('s_setprio 1')
        a.label(L)
    g1_reads(a, 0, 0, 0)
    pend = g1_dma_ops(a, 2)
    for sidx in range(7):
        nxt = g1_dma_ops(a, sidx + 3)
        if sidx == 0:
            q = {0: pend[0:2], 1: pend[2:4], 2: pend[4:6], 3: nxt[0:2]}
        else:
            q = {0: pend[2:4], 1: pend[4:6], 3: nxt[0:2]}
        extra = None; ab = None; vm = 6
        if sidx == 1:
            def ex(a):
                a('ds_read_b64_tr_b16 v[228:229], v236')
                a('ds_read_b64_tr_b16 v[230:231], v236 offset:1024')
                a('ds_read_b64_tr_b16 v[232:233], v236 offset:8192')
                a('ds_read_b64_tr_b16 v[234:235], v236 offset:9216')
                return 4
            extra = {1: ex}
            def ab(a):
                a('s_lshl_b32 s11, s%d, 2' % U0)
                a('s_and_b32 s71, s%d, 3' % W)
                a('s_add_u32 s11, s11, s71')
                a('s_lshl_b32 s11, s11, 10')
                a('buffer_store_dwordx4 v[228:231], v237, %s, s11 offen sc1' % s(SH, 4))
                a('s_add_u32 s11, s11, %d' % (20 * 4096))
                a('s_cmp_lt_u32 s%d, 4' % W)
                a('s_cselect_b32 s11, s11, 0x7000000')
                a('buffer_store_dwordx4 v[232:235], v237, %s, s11 offen sc1' % s(SH, 4))
        bb = None
        if sidx == 1:
            ab1 = ab
            def ab(a):
                go_issue(a); ab1(a)
        if sidx == 2:
            vm = 8
            bb = go_check
            ab = go_fetch
        if sidx == 3:
            def ab(a):
                go_sgpr(a)
                a('s_lshl_b32 s11, s76, 3')
                a('s_add_u32 s11, s11, %s' % hex(F_W))
                a('s_cmp_eq_u32 s%d, 0' % W)
                a('s_cselect_b32 s11, s11, %s' % hex(OOB))
                set_flag(a, 11)
        if sidx == 4: vm = 7
        if sidx == 5: stamp(a, 3)
        if sidx == 6:
            def ab(a):
                a(PF_LOAD)
        g1_step(a, sidx, q, vm, ab, extra, bb)
        pend = nxt
    srd(a, SH, P_WS, SZ_H, None if WS_H == 0 else WS_H)
    return pend

def gemm1_tail(a, pend, role):
    if role == 'G2':
        pre7, ops8, ops9, ops10 = g2_prefetch_ops(a)
    elif role == 'CV':
        pre7, ops8, ops9, ops10 = cv_prefetch_ops(a)
    else:
        pre7, ops8, ops9, ops10 = None, [], [], []
    def split(ops):
        n = (len(ops) + 3) // 4
        return [ops[i * n:(i + 1) * n] for i in range(4)]
    s8, s9 = split(ops8), split(ops9)
    g1_step(a, 7, {0: pend[2:4], 1: pend[4:6], 3: s8[0]}, 6, pre7, None, pf_check if role != 'NONE' else None)
    g1_step(a, 8, {0: s8[1], 1: s8[2], 2: s8[3], 3: s9[0]}, len(ops8))
    g1_step(a, 9, {0: s9[1], 1: s9[2], 2: s9[3]}, None)
    stamp(a, 4)
    g = G1S
    for sh in (1, 2):
        a('v_add_f32_dpp v217, v217, v217 quad_perm:%s row_mask:0xf bank_mask:0xf' % ('[1,0,3,2]' if sh == 1 else '[2,3,0,1]'))
        a('s_nop 1')
    a('v_add_f32_dpp v217, v217, v217 row_half_mirror row_mask:0xf bank_mask:0xf')
    a('s_mov_b32 s74, %s' % NLOG2E)
    a('s_mov_b32 s75, %s' % NLOG2E)
    a('v_mul_f32 v217, s74, v217')
    a('v_exp_f32 v217, v217')
    a('v_lshrrev_b32 v218, 3, v1')
    a('v_add_f32 v217, 1.0, v217')
    a('v_rcp_f32 v217, v217')
    a('v_lshlrev_b32 v218, 2, v218')
    srd(a, g['SX'], P_WS, 8192, WS_G)
    a('s_mov_b32 exec_lo, 0x01010101')
    a('s_mov_b32 exec_hi, 0x01010101')
    a('buffer_store_dword v217, v218, %s, s%d offen sc1' % (s(g['SX'], 4), g['GO']))
    a('s_mov_b64 exec, -1')
    T = G1_FR
    for nt in range(2):
        G = G1_ACC + nt * 16
        U = G1_ACC + (2 + nt) * 16
        for i in range(0, 16, 2):
            a('v_pk_mul_f32 %s, %s, s[74:75]' % (v(T + i, 2), v(G + i, 2)))
        for i in range(0, 16, 2):
            a('v_exp_f32 v%d, v%d' % (T + i, T + i))
            a('v_exp_f32 v%d, v%d' % (T + i + 1, T + i + 1))
            a('v_pk_mul_f32 %s, %s, %s' % (v(G + i, 2), v(G + i, 2), v(U + i, 2)))
        for i in range(0, 16, 2):
            a('v_pk_add_f32 %s, %s, 1.0 op_sel_hi:[1,0]' % (v(T + i, 2), v(T + i, 2)))
        for i in range(16):
            a('v_rcp_f32 v%d, v%d' % (T + i, T + i))
        a('s_nop 0')
        for i in range(0, 16, 2):
            a('v_pk_mul_f32 %s, %s, %s' % (v(G + i, 2), v(G + i, 2), v(T + i, 2)))
        O = T + 16 + 8 * nt
        for i in range(8):
            a('v_cvt_pk_bf16_f32 v%d, v%d, v%d' % (O + i, G + 2 * i, G + 2 * i + 1))
            if i & 3 == 3:
                jp = i >> 2
                a('buffer_store_dwordx4 %s, v213, %s, s%d offen offset:%d sc1' % (v(O + 4 * jp, 4), s(g['SH'], 4), g['HO'], nt * 2048 + jp * 512))
    a('s_barrier')
    if role == 'CV':
        a('s_waitcnt vmcnt(5)')
        stamp(a, 5)
    else:
        emit_ops(a, ops10[:5])
        a('s_waitcnt vmcnt(%d)' % len(ops10[:5]))
        set_flag(a, S_F1)
        stamp(a, 5)
        emit_ops(a, ops10[5:])

def prep_pre(a):
    PID, W = 8, S_W
    a('s_mul_i32 s65, s%d, 205' % PID)
    a('s_lshr_b32 s65, s65, 11')
    a('s_mul_i32 s66, s65, 10')
    a('s_sub_u32 s66, s%d, s66' % PID)
    a('s_lshl_b32 s%d, s66, 4' % S_F1)
    a('s_add_u32 s%d, s%d, s65' % (S_F1, S_F1))
    a('s_lshl_b32 s%d, s%d, 3' % (S_F1, S_F1))
    a('s_add_u32 s%d, s%d, %s' % (S_F1, S_F1, hex(F_U)))
    a('s_cmp_eq_u32 s%d, 0' % W)
    a('s_cselect_b32 s%d, s%d, %s' % (S_F1, S_F1, hex(OOB)))
    a('s_lshl_b32 s67, s65, 9')
    a('s_lshl_b32 s68, s%d, 6' % W)
    a('s_add_u32 s67, s67, s68')
    a('v_and_b32 v2, 0x38, v1')
    a('v_add_u32 v2, s67, v2')
    a('v_and_b32 v3, 7, v1')
    a('s_lshl_b32 s68, s66, 3')
    a('v_add_u32 v3, s68, v3')
    a('v_mul_u32_u24 v4, 1280, v2')
    a('v_lshl_add_u32 v4, v3, 4, v4')
    a('v_subrev_u32 v5, 3840, v4')
    a('v_lshlrev_b32 v6, 6, v3')

def prep(a):
    SA, SB, SC, SD = 44, 48, 52, 56
    C5120, MASK, T = 60, 61, 62
    flag_srd(a)
    a('v_lshlrev_b32 v237, 4, v1')
    srd(a, SA, P_K, SZ_ACT)
    srd(a, SB, P_V, SZ_ACT)
    srd(a, SC, P_SK, 640 * 8)
    a('s_movk_i32 s%d, 5120' % C5120)
    KR, VR, WR = 16, 60, 92
    for i in range(4):
        a('buffer_load_dwordx4 %s, v6, %s, 0 offen offset:%d' % (v(WR + 4 * i, 4), s(SC, 4), 16 * i))
    for r in range(3):
        a('buffer_load_dwordx4 %s, v5, %s, 0 offen offset:%d' % (v(KR + 4 * r, 4), s(SA, 4), 1280 * r))
    for r in range(8):
        a('buffer_load_dwordx4 %s, v4, %s, %s offen offset:%d' % (v(KR + 12 + 4 * r, 4), s(SA, 4), '0' if r < 4 else 's%d' % C5120, 1280 * (r & 3)))
    for r in range(8):
        a('buffer_load_dwordx4 %s, v4, %s, %s offen offset:%d' % (v(VR + 4 * r, 4), s(SB, 4), '0' if r < 4 else 's%d' % C5120, 1280 * (r & 3)))
    stamp(a, 1)
    srd(a, SD, P_WS, SZ_ACT, WS_UT)
    a('v_lshlrev_b32 v12, 15, v3')
    a('v_sub_u32 v13, 2040, v2')
    a('v_lshl_add_u32 v12, v13, 1, v12')
    a('s_mov_b32 s%d, 0xffff0000' % MASK)
    a('s_waitcnt vmcnt(0)')
    go_issue(a)
    stamp(a, 2)
    KU, VU, WU, AC, OUT = 108, 130, 146, 154, 172
    for dw in range(4):
        for r in range(11):
            a('v_lshlrev_b32 v%d, 16, v%d' % (KU + 2 * r, KR + 4 * r + dw))
            a('v_and_b32 v%d, s%d, v%d' % (KU + 2 * r + 1, MASK, KR + 4 * r + dw))
        for r in range(8):
            a('v_lshlrev_b32 v%d, 16, v%d' % (VU + 2 * r, VR + 4 * r + dw))
            a('v_and_b32 v%d, s%d, v%d' % (VU + 2 * r + 1, MASK, VR + 4 * r + dw))
        for ch in range(2):
            for t in range(4):
                src = WR + 4 * dw + 2 * ch + (t >> 1)
                if t & 1:
                    a('v_and_b32 v%d, s%d, v%d' % (WU + 2 * t + ch, MASK, src))
                else:
                    a('v_lshlrev_b32 v%d, 16, v%d' % (WU + 2 * t + ch, src))
        for r in range(8):
            a('v_pk_mul_f32 %s, %s, %s' % (v(AC + 2 * r, 2), v(KU + 2 * r, 2), v(WU + 6, 2)))
        for t in (2, 1, 0):
            for r in range(8):
                a('v_pk_fma_f32 %s, %s, %s, %s' % (v(AC + 2 * r, 2), v(KU + 2 * (r + 3 - t), 2), v(WU + 2 * t, 2), v(AC + 2 * r, 2)))
        for r in range(8):
            a('v_pk_mul_f32 %s, %s, %s' % (v(AC + 2 * r, 2), v(AC + 2 * r, 2), v(VU + 2 * r, 2)))
        O = OUT + 8 * (dw & 1)
        for ch in range(2):
            for i in range(4):
                a('v_cvt_pk_bf16_f32 v%d, v%d, v%d' % (O + 4 * ch + i, AC + 2 * (7 - 2 * i) + ch, AC + 2 * (6 - 2 * i) + ch))
        for ch in range(2):
            a('s_mov_b32 s%d, %d' % (T, (2 * dw + ch) * 4096))
            a('buffer_store_dwordx4 %s, v12, %s, s%d offen sc1' % (v(O + 4 * ch, 4), s(SD, 4), T))
    stamp(a, 3)
    a('s_waitcnt vmcnt(0)')
    go_check(a)
    a('s_barrier')
    set_flag(a, S_F1)
    go_fetch(a)
    a('s_waitcnt lgkmcnt(0)')
    go_sgpr(a)
    stamp(a, 5)

CW = 13824
C_HA, C_HB, C_U = 0, 4640, 9280
CVS = dict(SH=48, SU=52, SZ=44, D=65, DO=66, LB=67, T=68, DV=69, W=9)
def cv_prefetch_ops(a):
    c = CVS
    def pre(a):
        srd(a, c['SH'], P_SSMK, SZ_ACT)
        srd(a, c['SU'], P_WS, SZ_ACT, WS_UT)
        a('s_sub_u32 s%d, s%d, 4' % (c['W'], S_W))
        a('s_lshl_b32 s%d, s7, 2' % c['D'])
        a('s_add_u32 s%d, s%d, s%d' % (c['D'], c['D'], c['W']))
        a('s_lshl_b32 s%d, s%d, 12' % (c['DO'], c['D']))
        a('s_mul_i32 s%d, s%d, %d' % (c['LB'], c['W'], CW))
        a('s_add_u32 s%d, s%d, %d' % (c['LB'], c['LB'], CONV_BASE))
        a('v_add_u32 v238, s%d, v237' % c['DO'])
        a('v_subrev_u32 v239, 2, v238')
    ops = []
    for (dst, vo, S, fl) in ((C_U, 238, c['SU'], ' sc1'), (C_HA + 512, 238, c['SH'], ''), (C_HB + 512, 239, c['SH'], '')):
        for i in range(4):
            ops.append(('s_add_u32 m0, s%d, %d' % (c['LB'], dst) if i == 0 else '',
                        'buffer_load_dwordx4 v%d, %s, 0 offen offset:%d%s lds' % (vo, s(S, 4), i * 1024, fl)))
    return pre, ops, [], []

def conv(a):
    c = CVS
    SZ, D, DO, LB, T, DV, W = c['SZ'], c['D'], c['DO'], c['LB'], c['T'], c['DV'], c['W']
    if OPT['cprio']: a('s_setprio %d' % OPT['cprio'])
    a('s_lshr_b32 s%d, s%d, 1' % (T, D))
    a('s_lshl_b32 s%d, s%d, 2' % (T, T))
    a('s_load_dword s%d, s[%d:%d], s%d' % (DV, P_SSMD, P_SSMD + 1, T))
    a('v_mov_b32 v6, s%d' % LB)
    a('ds_read_b128 v[16:19], v6 offset:%d' % (C_HA + 512))
    a('v_mov_b32 v4, 0')
    a('v_mov_b32 v5, 0')
    a('v_lshl_add_u32 v2, v1, 3, s%d' % LB)
    a('ds_write_b64 v2, v[4:5] offset:%d' % C_HA)
    a('ds_write_b64 v2, v[4:5] offset:%d' % C_HB)
    a('v_lshl_add_u32 v2, v1, 2, s%d' % LB)
    a('ds_write_b32 v2, v4 offset:%d' % (C_U + 4096))
    a('v_and_b32 v7, 1, v1')
    a('v_xor_b32 v7, 1, v7')
    a('v_mul_u32_u24 v7, %d, v7' % (C_HB - C_HA))
    a('v_bfe_u32 v8, v1, 1, 3')
    a('v_lshl_add_u32 v7, v8, 6, v7')
    a('v_lshrrev_b32 v8, 4, v1')
    a('v_lshl_add_u32 v7, v8, 4, v7')
    a('s_add_u32 s%d, s%d, %d' % (T, LB, C_HA + 64))
    a('v_add_u32 v7, s%d, v7' % T)
    a('v_and_b32 v13, 15, v1')
    a('v_lshlrev_b32 v13, 2, v13')
    a('v_lshlrev_b32 v9, 4, v8')
    a('v_sub_u32 v9, v9, v13')
    a('s_add_u32 s%d, s%d, %d' % (T, LB, C_U + 60))
    a('v_add_u32 v9, s%d, v9' % T)
    for i in range(1, 4):
        a('v_add_u32 v%d, %d, v9' % (9 + i, 1024 * i))
    a('v_lshl_add_u32 v15, v8, 7, v13')
    a('s_add_u32 s%d, s%d, %d' % (T, LB, C_U + 444))
    a('v_sub_u32 v14, s%d, v15' % T)
    a('v_add_u32 v15, s%d, v15' % LB)
    a('s_waitcnt lgkmcnt(0)')
    a('v_alignbit_b32 v23, v19, v18, 16')
    a('v_alignbit_b32 v22, v18, v17, 16')
    a('v_alignbit_b32 v21, v17, v16, 16')
    a('v_lshlrev_b32 v20, 16, v16')
    a('ds_write_b128 v6, v[20:23] offset:%d' % (C_HB + 512))
    a('s_bitcmp1_b32 s%d, 0' % D)
    a('s_cselect_b32 s%d, 0, 16' % T)
    a('s_lshl_b32 s%d, s%d, s%d' % (DV, DV, T))
    a('s_and_b32 s%d, s%d, 0xffff0000' % (DV, DV))
    srd(a, SZ, P_WS, SZ_ACT, WS_Z4)
    stamp(a, 7)
    ACC = 16
    GB = [48, 112]
    FB = [80, 144]
    def reads(j, b):
        for i in range(8):
            a('ds_read_b128 %s, v7 offset:%d' % (v(GB[b] + 4 * i, 4), 64 * j + 512 * i))
            rb = 7 - i
            o = (512 * (rb & 1) + 64 * j) // 4
            a('ds_read2_b32 %s, v%d offset0:%d offset1:%d' % (v(FB[b] + 4 * i, 2), 9 + (rb >> 1), o, o + 1))
            a('ds_read2_b32 %s, v%d offset0:%d offset1:%d' % (v(FB[b] + 4 * i + 2, 2), 9 + (rb >> 1), o + 2, o + 3))
    def ureads():
        for n in range(8):
            for hh in range(2):
                a('ds_read_b32 v%d, v14 offset:%d' % (48 + 2 * n + hh, 512 * (7 - n) + 64 * (1 - hh)))
    reads(0, 0)
    for j in range(8):
        b = j & 1
        if j == OPT['cflag']:
            a('s_waitcnt vmcnt(0)')
            set_flag(a, S_F1)
            stamp(a, 6)
        a('s_waitcnt lgkmcnt(0)')
        nxt = capture(a, (lambda: reads(j + 1, b ^ 1)) if j < 7 else ureads)
        ms = []
        for n in range(8):
            for aa in range(n + 1):
                acc = v(ACC + 4 * n, 4)
                first = (j == 0 and aa == 0)
                ms.append('    v_mfma_f32_16x16x32_bf16 %s, %s, %s, %s' % (acc, v(GB[b] + 4 * aa, 4), v(FB[b] + 4 * (n - aa), 4), '0' if first else acc))
        for i, m in enumerate(ms):
            a.lines.append(m)
            if i < len(nxt):
                a.lines.append(nxt[i])
    stamp(a, 8)
    a('s_mov_b32 s%d, 0xffff0000' % T)
    a('s_waitcnt lgkmcnt(0)')
    for n in range(8):
        for hh in range(2):
            u = 48 + 2 * n + hh
            a('v_and_b32 v%d, s%d, v%d' % (64 + 2 * n + hh, T, u))
            a('v_lshlrev_b32 v%d, 16, v%d' % (u, u))
            a('v_fmac_f32 v%d, s%d, v%d' % (ACC + 4 * n + 2 * hh, DV, 64 + 2 * n + hh))
            a('v_fmac_f32 v%d, s%d, v%d' % (ACC + 4 * n + 2 * hh + 1, DV, u))
            a('v_cvt_pk_bf16_f32 v%d, v%d, v%d' % (u, ACC + 4 * n + 2 * hh, ACC + 4 * n + 2 * hh + 1))
            a('ds_write_b32 v15, v%d offset:%d' % (u, C_HA + 512 * n + 64 * hh))
    a('v_mov_b32 v4, %d' % LDS_CNT)
    a('s_waitcnt lgkmcnt(0)')
    a('s_mov_b64 exec, 1')
    a('ds_add_u32 v4, v253')
    a('s_mov_b64 exec, -1')
    a('v_bfe_u32 v2, v1, 2, 2')
    a('v_mul_u32_u24 v2, %d, v2' % CW)
    a('v_lshl_add_u32 v2, v8, 5, v2')
    a('v_and_b32 v3, 3, v1')
    a('v_lshl_add_u32 v2, v3, 3, v2')
    a('s_lshl_b32 s%d, s%d, 10' % (T, W))
    a('s_add_u32 s%d, s%d, %d' % (T, T, CONV_BASE))
    a('v_add_u32 v2, s%d, v2' % T)
    a('v_lshlrev_b32 v3, 3, v1')
    a('s_lshl_b32 s%d, s7, 14' % DO)
    a('s_lshl_b32 s%d, s%d, 12' % (T, W))
    a('s_add_u32 s%d, s%d, s%d' % (DO, DO, T))
    L, Dn = a.newlabel('CS'), a.newlabel('CSD')
    a('s_mov_b32 s%d, 0x100000' % T)
    a.label(L)
    a('ds_read_b32 v6, v4')
    a('s_waitcnt lgkmcnt(0)')
    a('v_cmp_eq_u32 vcc, 4, v6')
    a('s_cbranch_vccnz %s' % Dn)
    a('s_sub_u32 s%d, s%d, 1' % (T, T))
    a('s_cbranch_scc0 %s' % L)
    a.label(Dn)
    stamp(a, 9)
    for i in range(8):
        a('ds_read_b64_tr_b16 %s, v2 offset:%d' % (v(16 + 2 * i, 2), C_HA + 128 * i))
    for i in range(8):
        a('s_waitcnt lgkmcnt(%d)' % (7 - i))
        a('buffer_store_dwordx2 %s, v3, %s, s%d offen offset:%d sc1' % (v(16 + 2 * i, 2), s(SZ, 4), DO, 512 * i))
    a('s_waitcnt vmcnt(0)')
    set_flag(a, S_F2)
    stamp_end(a)
    a('s_endpgm')

G2S = dict(SW=48, SQ=52, SH=56, SZ=44, SG=60, SO=64, KB=68, O=69, T=71, T2=72, LB=73, RB=8, CB=9)
G2_ACC, G2_WB, G2_HB = 28, 108, 208
def g2_lds(r):
    return (49152 + r * 20480) if r < 2 else ((r - 2) * 20480)
def g2_ks(p, dst):
    c = G2S
    L = ['s_add_u32 s%d, s%d, %d' % (dst, c['KB'], 4 * p),
         's_cmp_ge_u32 s%d, 54' % dst,
         's_cselect_b32 s%d, 54, 0' % c['T'],
         's_sub_u32 s%d, s%d, s%d' % (dst, dst, c['T'])]
    if p == 13:
        L += ['s_cmp_ge_u32 s%d, 2' % S_W, 's_cselect_b32 s%d, 60, s%d' % (dst, dst)]
    return L
def g2_w_ops(p, slot):
    c = G2S
    B = G2_WB + 20 * slot
    ops = []
    for t in range(5):
        pre = '\n'.join(g2_ks(p, c['O']) + ['s_mul_i32 s%d, s%d, 40960' % (c['O'], c['O'])]) if t == 0 else ''
        ops.append((pre, 'buffer_load_dwordx4 %s, v%d, %s, s%d offen offset:%d sc1' % (v(B + 4 * t, 4), 237 if t < 4 else 238, s(c['SW'], 4), c['O'], (t & 3) * 1024)))
    return ops
def g2_wl_ops(p, r):
    c = G2S
    ops = []
    for t in range(5):
        pre = ''
        if t == 0:
            pre = '\n'.join(g2_ks(p, c['O']) + ['s_mul_i32 s%d, s%d, 40960' % (c['O'], c['O']), 's_add_u32 m0, s%d, %d' % (c['LB'], g2_lds(r))])
        if t == 4:
            pre = 's_add_u32 m0, s%d, %d' % (c['LB'], g2_lds(r) + 4096)
        ops.append((pre, 'buffer_load_dwordx4 v%d, %s, s%d offen offset:%d sc1 lds' % (237 if t < 4 else 238, s(c['SW'], 4), c['O'], (t & 3) * 1024)))
    return ops
def g2_prefetch_ops(a):
    c = G2S
    def pre(a):
        RB, CB, T, T2 = c['RB'], c['CB'], c['T'], c['T2']
        a('s_lshl_b32 s%d, s3, 2' % RB)
        a('s_lshr_b32 s%d, s4, 3' % CB)
        a('s_add_u32 s%d, s%d, s%d' % (RB, RB, CB))
        a('s_and_b32 s%d, s4, 7' % CB)
        a('s_mul_i32 s%d, s%d, 5120' % (T, CB))
        a('s_add_u32 s%d, s%d, %s' % (T, T, hex(WS_W2P)))
        srd(a, c['SW'], P_WS, 53 * 40960 + 5120, 's%d' % T)
        if OPT['rot2']:
            a('s_and_b32 s%d, s%d, 3' % (T, RB))
            a('s_mul_i32 s%d, s%d, 13' % (T, T))
            a('s_mul_i32 s%d, s%d, 7' % (T2, CB))
            a('s_add_u32 s%d, s%d, s%d' % (T, T, T2))
            a('s_add_u32 s%d, s%d, s%d' % (T, T, S_W))
            a('s_cmp_ge_u32 s%d, 54' % T)
            a('s_cselect_b32 s%d, 54, 0' % T2)
            a('s_sub_u32 s%d, s%d, s%d' % (c['KB'], T, T2))
        else:
            a('s_mov_b32 s%d, s%d' % (c['KB'], S_W))
        a('s_mul_i32 s%d, s%d, 5120' % (c['LB'], S_W))
        a('v_add_u32 v238, 4096, v237')
    w = []
    for p in range(5): w += g2_w_ops(p, p)
    ops8 = w[:15]
    ops9 = w[15:] + g2_wl_ops(5, 0)
    ops10 = g2_wl_ops(6, 1) + g2_wl_ops(7, 2) + g2_wl_ops(8, 3)
    return pre, ops8, ops9, ops10

def gemm2(a):
    c = G2S
    RB, CB, W = c['RB'], c['CB'], S_W
    SH, SW, SQ, SZ, SG, SO, O, T, T2 = c['SH'], c['SW'], c['SQ'], c['SZ'], c['SG'], c['SO'], c['O'], c['T'], c['T2']
    ACC, WB, HB = G2_ACC, G2_WB, G2_HB
    DH = 3
    a('s_setprio 0')
    a('v_mov_b32 v2, v237')
    a('v_mov_b32 v3, v238')
    a('s_mul_i32 s%d, s%d, %d' % (T, RB, 54 * 4096))
    if WS_H: a('s_add_u32 s%d, s%d, %s' % (T, T, hex(WS_H)))
    srd(a, SH, P_WS, 54 * 4096, 's%d' % T)
    srd(a, SQ, P_Q, SZ_ACT)
    a('s_lshl_b32 s%d, s%d, 6' % (T, RB))
    a('s_lshl_b32 s%d, s%d, 4' % (T2, W))
    a('s_add_u32 s%d, s%d, s%d' % (T, T, T2))
    a('v_and_b32 v8, 15, v1')
    a('v_add_u32 v8, s%d, v8' % T)
    a('v_lshrrev_b32 v9, 4, v1')
    a('v_mul_u32_u24 v10, 1280, v8')
    a('v_lshl_add_u32 v10, v9, 3, v10')
    a('s_mul_i32 s%d, s%d, 160' % (T, CB))
    a('v_add_u32 v10, s%d, v10' % T)
    for mt in range(5):
        a('buffer_load_dwordx2 %s, v10, %s, 0 offen offset:%d' % (v(12 + 2 * mt, 2), s(SQ, 4), 32 * mt))
    a('v_min_u32 v22, 53, v1')
    a('s_lshl_b32 s%d, s%d, 9' % (T, RB))
    a('v_lshl_add_u32 v22, v22, 3, s%d' % T)
    FH_LOAD = 'buffer_load_dwordx2 v[26:27], v22, %s, 0 offen sc1' % s(SF, 4)
    a('v_lshlrev_b32 v11, 14, v9')
    a('v_lshl_add_u32 v11, v8, 3, v11')
    a('s_mul_i32 s%d, s%d, %d' % (T, CB, 20 * 16384))
    a('v_add_u32 v11, s%d, v11' % T)
    a('v_lshlrev_b32 v8, 2, v8')
    srd(a, SZ, P_WS, SZ_ACT, WS_Z4)
    srd(a, SG, P_WS, 8192, WS_G)
    srd(a, SO, P_OUT, SZ_ACT)
    for j in range(4):
        a('s_xor_b32 s%d, s%d, %d' % (T, W, j))
        a('s_lshl_b32 s%d, s%d, 10' % (T, T))
        a('v_add_u32 v%d, s%d, v2' % (4 + j, T))
    a('v_add_u32 v24, s%d, v2' % c['LB'])
    a('s_lshl_b32 s%d, s%d, 2' % (T, CB))
    a('s_lshr_b32 s%d, s%d, 3' % (T2, RB))
    a('s_add_u32 s%d, s%d, s%d' % (T, T, T2))
    a('s_lshl_b32 s%d, s%d, 8' % (T, T))
    a('s_add_u32 s%d, s%d, %s' % (T, T, hex(F_Z)))
    a('v_min_u32 v25, 19, v1')
    a('v_lshl_add_u32 v25, v25, 3, s%d' % T)
    FZ_LOAD = 'buffer_load_dwordx2 v[26:27], v25, %s, 0 offen sc1' % s(SF, 4)
    stamp(a, 6)
    LW_, LD_ = a.newlabel('HW'), a.newlabel('HD')
    a('s_cmp_lg_u32 s%d, 0' % W)
    a('s_cbranch_scc1 %s' % LW_)
    poll(a, FH_LOAD, 26, T2, sleep=1)
    a('ds_write_b32 v254, v253 offset:4')
    a('s_branch %s' % LD_)
    a.label(LW_)
    a('s_mov_b32 s%d, 0x400000' % T2)
    LL_ = a.newlabel('HL')
    a.label(LL_)
    a('ds_read_b32 v23, v254 offset:4')
    a('s_waitcnt lgkmcnt(0)')
    a('v_cmp_eq_u32 vcc, 1, v23')
    a('s_cbranch_vccnz %s' % LD_)
    a('s_sleep 1')
    a('s_sub_u32 s%d, s%d, 1' % (T2, T2))
    a('s_cbranch_scc0 %s' % LL_)
    a.label(LD_)
    stamp(a, 7)
    order = [0, 1, 2, 3, 4, 5, 6, 9, 10, 7, 8, 11, 12, 13]
    slot = [0, 1, 2, 3, 4, 3, 4, 0, 1, 3, 4, 2, 0, 1]
    refill = {0: ('g', 9), 1: ('g', 10), 2: ('g', 11), 3: ('l', 5), 4: ('l', 6), 5: ('l', 7), 6: ('l', 8), 7: ('g', 12), 8: ('g', 13)}
    def h_ops(r):
        B = HB + 16 * (r % DH)
        ops = []
        for t in range(4):
            pre = '\n'.join(g2_ks(order[r], O) + ['s_lshl_b32 s%d, s%d, 12' % (O, O)]) if t == 0 else ''
            ops.append((pre, 'buffer_load_dwordx4 %s, v%d, %s, s%d offen sc1' % (v(B + 4 * t, 4), 4 + t, s(SH, 4), O)))
        return ops
    def emit(ops):
        for pre, ld in ops:
            if pre: a(pre)
            a(ld.replace('v237', 'v2').replace('v238', 'v3'))
    q = []; lq = []
    for r in range(DH):
        emit(h_ops(r)); q += [('h', r)] * 4
    a('buffer_load_dword v9, v8, %s, 0 offen sc1' % s(SG, 4)); q.append(('x', 0))
    ZR = WB + 60
    for r in range(14):
        p = order[r]
        need = [k for k, e in enumerate(q) if e in (('h', r), ('w', p)) or (r == 12 and e == ('fz', 0))]
        last = max(need)
        wait = 's_waitcnt vmcnt(%d)' % (len(q) - 1 - last)
        q[:] = q[last + 1:]
        ln = [k for k, e in enumerate(lq) if e == p]
        if ln:
            wait += ' lgkmcnt(%d)' % (len(lq) - 1 - max(ln)); lq[:] = lq[max(ln) + 1:]
        a(wait)
        if r == 12:
            poll_check(a, FZ_LOAD, 26, T2, sleep=1)
            for mt in range(5):
                a('s_mov_b32 s%d, %s' % (T, hex(65536 * mt)))
                a('buffer_load_dwordx2 %s, v11, %s, s%d offen sc1' % (v(ZR + 2 * mt, 2), s(SZ, 4), T)); q.append(('x', 0))
        Bw = WB + 20 * slot[r]; Bh = HB + 16 * (r % DH)
        for mt in range(5):
            for j in range(4):
                acc = v(ACC + (j * 5 + mt) * 4, 4)
                a('v_mfma_f32_16x16x32_bf16 %s, %s, %s, %s' % (acc, v(Bw + 4 * mt, 4), v(Bh + 4 * j, 4), '0' if r == 0 else acc))
        if r == 9:
            a(FZ_LOAD); q.append(('fz', 0))
        if r + DH < 14:
            emit(h_ops(r + DH)); q += [('h', r + DH)] * 4
        if r in refill:
            kind, pp = refill[r]
            if kind == 'g':
                emit(g2_w_ops(pp, slot[r])); q += [('w', pp)] * 5
            else:
                lb = g2_lds(pp - 5)
                for t in range(5):
                    off = lb + t * 1024
                    if off > 65535:
                        a('v_add_u32 v23, %d, v24' % (lb)) if t == 0 or (lb + (t - 1) * 1024) <= 65535 else None
                        a('ds_read_b128 %s, v23 offset:%d' % (v(Bw + 4 * t, 4), t * 1024))
                    else:
                        a('ds_read_b128 %s, v24 offset:%d' % (v(Bw + 4 * t, 4), off))
                    lq.append(pp)
    stamp(a, 8)
    rbuf = [g2_lds(2), g2_lds(3), g2_lds(0)]
    for j in range(1, 4):
        a('s_xor_b32 s%d, s%d, %d' % (T, W, j))
        a('s_mul_i32 s%d, s%d, 5120' % (T, T))
        a('v_add_u32 v%d, s%d, v2' % (4 + j, T))
    a('s_nop 1')
    for j in range(1, 4):
        for mt in range(5):
            a('ds_write_b128 v24, %s offset:%d' % (v(ACC + (j * 5 + mt) * 4, 4), rbuf[j - 1] + mt * 1024))
    a('s_mov_b32 s%d, 0xffff0000' % T)
    a('s_waitcnt vmcnt(0)')
    for mt in range(5):
        for h in range(2):
            qq, z = 12 + 2 * mt + h, ZR + 2 * mt + h
            d = WB + 4 * mt + 2 * h
            a('v_lshlrev_b32 v%d, 16, v%d' % (d, qq))
            a('v_and_b32 v%d, s%d, v%d' % (d + 1, T, qq))
            a('v_lshlrev_b32 v%d, 16, v%d' % (qq, z))
            a('v_and_b32 v%d, s%d, v%d' % (z, T, z))
            a('v_mul_f32 v%d, v%d, v%d' % (d, d, qq))
            a('v_mul_f32 v%d, v%d, v%d' % (d + 1, d + 1, z))
    for i in range(20):
        a('v_mul_f32 v%d, v9, v%d' % (WB + i, WB + i))
    a('v_sub_f32 v9, 1.0, v9')
    a('s_waitcnt lgkmcnt(0)')
    a('s_barrier')
    stamp(a, 9)
    for mt in range(5):
        for j in range(1, 4):
            a('ds_read_b128 %s, v%d offset:%d' % (v(ACC + (j * 5 + mt) * 4, 4), 4 + j, rbuf[j - 1] + mt * 1024))
    for mt in range(5):
        a('s_waitcnt lgkmcnt(%d)' % (3 * (4 - mt)))
        A0 = ACC + 4 * mt
        for h in range(2):
            a('v_pk_add_f32 %s, %s, %s' % (v(A0 + 2 * h, 2), v(A0 + 2 * h, 2), v(A0 + 20 + 2 * h, 2)))
            a('v_pk_add_f32 %s, %s, %s' % (v(A0 + 40 + 2 * h, 2), v(A0 + 40 + 2 * h, 2), v(A0 + 60 + 2 * h, 2)))
        for h in range(2):
            a('v_pk_add_f32 %s, %s, %s' % (v(A0 + 2 * h, 2), v(A0 + 2 * h, 2), v(A0 + 40 + 2 * h, 2)))
        for i in range(4):
            a('v_fmac_f32 v%d, v9, v%d' % (WB + 4 * mt + i, A0 + i))
        a('v_cvt_pk_bf16_f32 v%d, v%d, v%d' % (12 + 2 * mt, WB + 4 * mt, WB + 4 * mt + 1))
        a('v_cvt_pk_bf16_f32 v%d, v%d, v%d' % (13 + 2 * mt, WB + 4 * mt + 2, WB + 4 * mt + 3))
        a('buffer_store_dwordx2 %s, v10, %s, 0 offen offset:%d' % (v(12 + 2 * mt, 2), s(SO, 4), 32 * mt))
    stamp_end(a)
    a('s_endpgm')

def kernel(a, name):
    a.raw('.p2align 8')
    a.label(name)
    a('s_cmp_ge_u32 s2, 256')
    a('s_cbranch_scc1 K_exit')
    a('s_load_dwordx16 s[16:31], s[0:1], 0')
    a('s_load_dwordx8 s[32:39], s[0:1], 64')
    a('s_load_dwordx4 s[40:43], s[0:1], 96')
    a('s_memrealtime s[74:75]')
    stamp_begin(a)
    a('v_lshrrev_b32 v1, 6, v0')
    a('s_and_b32 s3, s2, 7')
    a('v_readfirstlane_b32 s%d, v1' % S_W)
    a('v_and_b32 v1, 63, v0')
    a('s_lshr_b32 s4, s2, 3')
    a('s_lshl_b32 s6, s3, 2')
    a('s_add_u32 s6, s6, s%d' % S_W)
    a('s_lshl_b32 s6, s6, 5')
    a('s_add_u32 s6, s6, s4')
    a('s_lshl_b32 s6, s6, 3')
    a('s_add_u32 s6, s6, %s' % hex(F_Z - 4 * 256 - 12 * 8))
    a('s_cmp_lt_u32 s4, 12')
    a('s_cselect_b32 s6, %s, s6' % hex(OOB))
    a('s_cmp_lt_u32 s%d, 4' % S_W)
    a('s_cselect_b32 s6, %s, s6' % hex(OOB))
    common_pre(a)
    a('s_and_b32 s65, s3, 3')
    a('s_lshr_b32 s66, s3, 2')
    a('s_cmp_eq_u32 s65, 3')
    a('s_cselect_b32 s67, 24, 28')
    a('s_cmp_ge_u32 s4, s67')
    a('s_cbranch_scc1 K_prep')
    a('s_lshl_b32 s8, s66, 2')
    a('s_and_b32 s9, s4, 3')
    a('s_add_u32 s8, s8, s9')
    a('s_mul_i32 s9, s65, 7')
    a('s_lshr_b32 s11, s4, 2')
    a('s_add_u32 s9, s9, s11')
    gemm1_pre(a)
    a('s_waitcnt lgkmcnt(0)')
    pend = gemm1_head(a)
    a('s_cmp_lt_u32 s%d, 4' % S_W)
    a('s_cbranch_scc1 K_tail_g2')
    a('s_cmp_lt_u32 s4, 12')
    a('s_cbranch_scc1 K_tail_none')
    gemm1_tail(a, pend, 'CV')
    a.label('K_conv')
    conv(a)
    a.label('K_tail_none')
    gemm1_tail(a, pend, 'NONE')
    stamp_end(a)
    a('s_endpgm')
    a.label('K_prep')
    a('s_mul_i32 s8, s66, 3')
    a('s_add_u32 s8, s8, s65')
    a('s_lshl_b32 s8, s8, 2')
    a('s_lshl_b32 s9, s66, 3')
    a('s_add_u32 s9, s9, 24')
    a('s_cmp_eq_u32 s65, 3')
    a('s_cselect_b32 s8, s9, s8')
    a('s_add_u32 s8, s8, s4')
    a('s_sub_u32 s8, s8, s67')
    prep_pre(a)
    a('s_waitcnt lgkmcnt(0)')
    prep(a)
    a(PF_LOAD)
    a('s_waitcnt vmcnt(0)')
    pf_check(a)
    a('s_barrier')
    a('s_cmp_lt_u32 s%d, 4' % S_W)
    a('s_cbranch_scc1 K_prep_g2')
    pre, ops, _, _ = cv_prefetch_ops(a)
    pre(a); emit_ops(a, ops)
    a('s_waitcnt vmcnt(0)')
    a('s_branch K_conv')
    a.label('K_prep_g2')
    pre, o1, o2, o3 = g2_prefetch_ops(a)
    pre(a); emit_ops(a, o1 + o2 + o3)
    a('s_branch K_gemm2')
    a.label('K_tail_g2')
    gemm1_tail(a, pend, 'G2')
    a.label('K_gemm2')
    gemm2(a)
    a.label('K_exit')
    a('s_endpgm')

def main(out):
    hdr = open('cdna_kernels/%s.s.ref' % NAME).read().split('\n')
    head = [l for l in hdr if l.startswith(';') and '@launch' not in l and 'Override' not in l and 'grid=ceil' not in l]
    a = Asm()
    for l in head: a.raw(l)
    a.raw('; @launch grid=(256,1,1) block=(512,1,1) lds=%d' % LDS_TOTAL)
    a.raw('.amdgcn_target "amdgcn-amd-amdhsa--gfx950"')
    a.raw('.text')
    nm = NAME + '_kernel'
    a.raw('.globl %s' % nm)
    a.raw('.type %s,@function' % nm)
    kernel(a, nm)
    a.raw('.section .rodata,"a"')
    a.raw(kernel_desc(nm, 256))
    open(out, 'w').write(a.text())

if __name__ == '__main__':
    out = 'cdna_kernels/%s.s' % NAME
    for arg in sys.argv[1:]:
        if '=' in arg:
            k, val = arg.split('='); OPT[k] = int(val)
        else:
            out = arg
    main(out)
```

```python
import sys, copy
from asmlib import *

NAME = 'gated_mix__ssm_conv_h3__glu_gated_swiglu__prompt'
WS_H = 0
WS_W2P = 0x800000
WS_UT = 0xC00000
WS_Z4 = 0x1000000
WS_G = 0x1400000
WS_F = 0x1500000
F_H, F_U, F_W, F_Z = 0, 0x4000, 0x4800, 0x5000
F_SIZE = 0x8000
SZ_ACT = 2048 * 640 * 2
SZ_W = 640 * 1728 * 2
SZ_H = 2048 * 1728 * 2
P_Q, P_K, P_V, P_SK, P_SSMK, P_SSMD, P_BX, P_W1, P_W3, P_W2, P_GW, P_OUT, P_DBG, P_WS = [16 + 2 * i for i in range(14)]
NLOG2E = '0xbfb8aa3b'
OPT = dict(rot2=1, stamp=0, prio=0, cprio=2, cflag=1, touch=1, nodma=0, tp=2, lead=3, rot2r=0, rot1=0)
LDS_TOTAL = 163840
LDS_CNT = LDS_TOTAL - 16
SLOT = [0, 98304, 49152]
LDS_W2S = 147456
LDS_GW = 159744
CONV_BASE = 98304
S_W = 10
SF = 12
S_F1, S_F2 = 5, 6
WS_DBG = 0x2000000
OOB = 0x10000

def stamp(a, i, mode=1):
    if OPT['stamp'] == mode:
        a('s_memtime s[%d:%d]' % (80 + 2 * i, 81 + 2 * i))
def stamp_begin(a):
    if OPT['stamp']:
        a('s_memrealtime s[78:79]')
        for i in range(11): a('s_mov_b64 s[%d:%d], 0' % (80 + 2 * i, 81 + 2 * i))
        a('s_memtime s[80:81]')
def stamp_end(a):
    if OPT['stamp']:
        a('s_waitcnt vmcnt(0) lgkmcnt(0)')
        a('s_memtime s[100:101]')
        a('s_memrealtime s[76:77]')
        srd(a, 44, P_WS, 0x100000, WS_DBG)
        a('s_lshl_b32 s5, s2, 3')
        a('s_add_u32 s5, s5, s10')
        a('s_lshl_b32 s5, s5, 6')
        a('s_waitcnt lgkmcnt(0)')
        a('v_mov_b32 v0, s78')
        a('v_mov_b32 v1, s76')
        for i in range(11): a('v_mov_b32 v%d, s%d' % (2 + i, 80 + 2 * i))
        a('v_mov_b32 v16, s5')
        a('s_mov_b64 exec, 1')
        for i in range(4):
            a('buffer_store_dwordx4 v[%d:%d], v16, s[44:47], 0 offen offset:%d' % (4 * i, 4 * i + 3, 16 * i))

def capture(a, fn):
    save = a.lines; a.lines = []
    fn()
    out = a.lines; a.lines = save
    return out

class Q:
    def __init__(self): self.q = []
    def push(self, tag, sure=True): self.q.append((tag, sure))
    def need(self, tags):
        idx = [i for i, (t, _) in enumerate(self.q) if t in tags]
        if not idx: return None
        last = max(idx)
        n = sum(1 for (_, sure) in self.q[last + 1:] if sure)
        self.q = self.q[last + 1:]
        return n
    def clear(self): self.q = []

NC = 's[0:1]'
def poll_check(a, loadline, vtmp, sc, sleep=2):
    L, D = a.newlabel('POLL'), a.newlabel('POLLD')
    a('s_mov_b32 s%d, 0x20000' % sc)
    a.label(L)
    a('v_cmp_eq_u64 vcc, %s, %s' % (NC, v(vtmp, 2)))
    a('s_cmp_eq_u64 vcc, -1')
    a('s_cbranch_scc1 %s' % D)
    a('s_sleep %d' % sleep)
    a(loadline)
    a('s_waitcnt vmcnt(0)')
    a('s_sub_u32 s%d, s%d, 1' % (sc, sc))
    a('s_cbranch_scc0 %s' % L)
    a.label(D)
def poll(a, loadline, vtmp, sc, sleep=2):
    a(loadline)
    a('s_waitcnt vmcnt(0)')
    poll_check(a, loadline, vtmp, sc, sleep)

GO_LOAD = 'buffer_load_dwordx2 v[250:251], v252, s[72:75], s11 offen sc1'
PF_LOAD = 'buffer_load_dwordx2 v[244:245], v248, s[%d:%d], 0 offen sc1' % (SF, SF + 3)

def set_flag(a, soff):
    a('s_mov_b64 exec, 1')
    a('buffer_store_dwordx2 v[250:251], v252, %s, s%d offen sc1' % (s(SF, 4), soff))
    a('s_mov_b64 exec, -1')

def nonce_publish(a):
    L = a.newlabel('NP')
    a('s_or_b32 s11, s2, s%d' % S_W)
    a('s_cmp_lg_u32 s11, 0')
    a('s_cbranch_scc1 %s' % L)
    a('s_or_b32 s74, s74, 1')
    a('v_mov_b32 v250, s74')
    a('v_mov_b32 v251, s75')
    a('v_lshlrev_b32 v249, 7, v1')
    a('s_mov_b64 exec, 3')
    a('global_store_dwordx2 v249, v[250:251], s[%d:%d] sc1' % (P_DBG, P_DBG + 1))
    a('s_mov_b64 exec, -1')
    a.label(L)
def go_off(a):
    a('s_and_b32 s11, s4, 1')
    a('s_lshl_b32 s11, s11, 7')
def go_issue(a):
    srd(a, 72, P_DBG, 256)
    go_off(a)
    a('s_cmp_eq_u32 s%d, 0' % S_W)
    a('s_cselect_b32 s11, s11, %s' % hex(OOB))
    a(GO_LOAD)
def go_check(a):
    L, R, D = a.newlabel('GOC'), a.newlabel('GOR'), a.newlabel('GOD')
    a('s_cmp_lg_u32 s%d, 0' % S_W)
    a('s_cbranch_scc1 %s' % L)
    go_off(a)
    a('s_mov_b32 s69, 0x20000')
    a.label(R)
    a('v_cmp_ne_u32 vcc, 0, v250')
    a('s_cbranch_vccnz %s' % D)
    a('s_sleep 4')
    a(GO_LOAD)
    a('s_waitcnt vmcnt(0)')
    a('s_sub_u32 s69, s69, 1')
    a('s_cbranch_scc0 %s' % R)
    a.label(D)
    a('ds_write_b64 v254, v[250:251] offset:8')
    a('s_waitcnt lgkmcnt(0)')
    a.label(L)
GO_FETCH = 'ds_read_b64 v[250:251], v254 offset:8'
def go_sgpr(a):
    a('v_readfirstlane_b32 s0, v250')
    a('v_readfirstlane_b32 s1, v251')
def fw_check(a):
    D = a.newlabel('PFD')
    a('s_cmp_lg_u32 s%d, 0' % S_W)
    a('s_cbranch_scc1 %s' % D)
    poll_check(a, PF_LOAD, 244, 11, sleep=4)
    a.label(D)

def common_pre(a):
    a('v_mov_b32 v252, 0')
    a('v_mov_b32 v253, 1')
    a('s_mul_i32 s7, s3, 20')
    a('s_add_u32 s7, s7, s4')
    a('s_sub_u32 s7, s7, 12')
    a('s_lshr_b32 s11, s7, 4')
    a('s_lshl_b32 s11, s11, 7')
    a('s_add_u32 s11, s11, %s' % hex(F_U))
    a('s_cmp_ge_u32 s%d, 4' % S_W)
    a('s_cselect_b32 s11, s11, %s' % hex(OOB))
    a('s_cselect_b32 s65, 3, 35')
    a('s_and_b32 s66, s4, 7')
    a('s_mul_i32 s66, s66, 5')
    a('s_lshr_b32 s66, s66, 2')
    a('s_mul_i32 s66, s66, 144')
    a('s_add_u32 s66, s66, %s' % hex(F_W))
    a('s_cmp_eq_u32 s%d, 0' % S_W)
    a('s_cselect_b32 s11, s66, s11')
    a('v_min_u32 v248, s65, v1')
    a('v_lshl_add_u32 v248, v248, 3, s11')
    a('v_mov_b32 v254, %d' % LDS_CNT)
    a('ds_write_b32 v254, v252')
    a('ds_write_b32 v254, v252 offset:4')
    a('v_lshlrev_b32 v237, 4, v1')

def flag_srd(a):
    srd(a, SF, P_WS, F_SIZE, WS_F)

G1_FR, G1_ACC = 12, 44
SX, SW1, SW3, SH = 44, 48, 52, 56
OX, OW, LW, HO, GO = 60, 61, 62, 63, 64
GID, U0 = 70, 71

def gemm1_pre(a):
    RB, CB, W = 8, 9, S_W
    a('s_lshl_b32 s%d, s%d, 10' % (LW, W))
    a('v_lshrrev_b32 v13, 3, v1')
    a('s_lshl_b32 s11, s%d, 3' % W)
    a('v_add_u32 v13, s11, v13')
    a('v_bfe_u32 v14, v13, 1, 3')
    a('v_and_b32 v15, 7, v1')
    a('v_xor_b32 v14, v14, v15')
    a('v_lshlrev_b32 v14, 4, v14')
    a('v_mul_u32_u24 v2, 1280, v13')
    a('v_add_u32 v2, v2, v14')
    for i in range(1, 4):
        a('v_add_u32 v%d, %s, v2' % (2 + i, hex(i * 81920)))
    a('v_bfe_u32 v14, v13, 1, 1')
    a('v_lshlrev_b32 v14, 2, v14')
    a('v_xor_b32 v14, v14, v15')
    a('v_lshlrev_b32 v14, 4, v14')
    a('v_mul_u32_u24 v6, 3456, v13')
    a('v_add_u32 v6, v6, v14')
    if OPT['touch']:
        a('v_mul_u32_u24 v16, 205, v1')
        a('v_lshrrev_b32 v16, 11, v16')
        a('v_mul_u32_u24 v17, 10, v16')
        a('v_sub_u32 v17, v1, v17')
        a('s_mul_i32 s11, s%d, 10' % W)
        a('v_add_u32 v17, s11, v17')
        a('v_min_u32 v17, 74, v17')
        a('s_lshr_b32 s11, s4, 2')
        a('s_mul_i32 s11, s11, 43')
        a('v_add_u32 v18, s11, v17')
        a('v_min_u32 v18, 255, v18')
        a('v_mul_u32_u24 v18, 1280, v18')
        a('v_subrev_u32 v19, 43, v17')
        a('v_and_b32 v19, 15, v19')
        a('s_and_b32 s11, s4, 3')
        a('s_lshl_b32 s11, s11, 4')
        a('v_add_u32 v19, s11, v19')
        a('v_mul_u32_u24 v19, 3456, v19')
        a('v_cmp_gt_u32 vcc, 43, v17')
        a('v_mov_b32 v20, %d' % (64 * 3456))
        a('v_mov_b32 v21, 128')
        a('v_cndmask_b32 v242, v20, v21, vcc')
        a('v_cndmask_b32 v18, v19, v18, vcc')
        a('v_mul_u32_u24 v16, v16, v242')
        a('v_add_u32 v18, v18, v16')
    a('s_lshr_b32 s65, s%d, 1' % W)
    a('s_and_b32 s66, s%d, 1' % W)
    a('s_lshl_b32 s67, s%d, 2' % RB)
    a('s_add_u32 s67, s67, s65')
    a('s_lshl_b32 s68, s%d, 1' % CB)
    a('s_add_u32 s68, s68, s66')
    a('s_lshl_b32 s%d, s67, 6' % S_F1)
    a('s_add_u32 s%d, s%d, s68' % (S_F1, S_F1))
    a('s_lshl_b32 s%d, s%d, 3' % (S_F1, S_F1))

def touch_lines(lo, n):
    m = ((1 << n) - 1) << lo
    return ['s_mov_b32 exec_lo, %s' % hex(m & 0xffffffff), 's_mov_b32 exec_hi, %s' % hex(m >> 32),
            'global_load_dword v243, v[240:241], off', 's_mov_b64 exec, -1']

def gemm1_post_addr(a):
    W = S_W
    a('s_mul_i32 s%d, s67, 54' % HO)
    a('s_add_u32 s%d, s%d, s68' % (HO, HO))
    a('s_lshl_b32 s%d, s%d, 12' % (HO, HO))
    a('s_lshl_b32 s11, s65, 13')
    a('v_and_b32 v13, 31, v1')
    a('v_lshrrev_b32 v14, 5, v1')
    a('v_bfe_u32 v15, v1, 1, 3')
    a('v_xor_b32 v15, v15, v14')
    a('v_lshlrev_b32 v12, 7, v13')
    a('v_add_u32 v12, s11, v12')
    for kk in range(4):
        a('v_xor_b32 v%d, %d, v15' % (7 + kk, 2 * kk))
        a('v_lshl_add_u32 v%d, v%d, 4, v12' % (7 + kk, 7 + kk))
    a('v_bfe_u32 v11, v1, 2, 2')
    a('v_lshl_add_u32 v11, v14, 3, v11')
    a('v_lshlrev_b32 v11, 7, v11')
    a('v_bfe_u32 v12, v1, 3, 1')
    a('v_xor_b32 v12, s66, v12')
    a('v_lshl_add_u32 v11, v12, 6, v11')
    a('v_bfe_u32 v12, v1, 4, 1')
    a('v_lshl_add_u32 v11, v12, 5, v11')
    a('v_and_b32 v12, 3, v1')
    a('v_lshl_add_u32 v11, v12, 3, v11')
    a('v_add_u32 v11, 0x8000, v11')
    for i in range(5):
        a('v_add_u32 v%d, 0x18000, v%d' % (208 + i, 7 + i))
    a('v_bfe_u32 v12, v1, 4, 1')
    a('v_lshlrev_b32 v12, 10, v12')
    a('v_and_b32 v13, 15, v1')
    a('v_lshl_add_u32 v12, v13, 4, v12')
    a('v_lshl_add_u32 v213, v14, 8, v12')
    a('s_and_b32 s%d, s68, 7' % GO)
    a('s_lshl_b32 s69, s%d, 10' % GO)
    a('s_add_u32 s11, s11, s69')
    a('v_add_u32 v214, s11, v237')
    a('v_add_u32 v215, 0x18000, v214')
    a('s_and_b32 s69, s%d, 1' % GO)
    a('s_lshl_b32 s69, s69, 2')
    a('v_lshrrev_b32 v12, 4, v1')
    a('v_add_u32 v12, s69, v12')
    a('v_and_b32 v13, 7, v1')
    a('v_xor_b32 v12, v12, v13')
    a('v_lshlrev_b32 v216, 4, v12')
    a('v_add_u32 v216, %d, v216' % LDS_GW)
    if OPT['rot1']:
        a('s_lshl_b32 s69, s%d, 7' % KS0)
        a('v_add_u32 v216, s69, v216')
    a('v_mov_b32 v217, 0')
    a('s_lshl_b32 s%d, s%d, 5' % (GO, GO))
    a('s_lshl_b32 s69, s67, 8')
    a('s_add_u32 s%d, s%d, s69' % (GO, GO))
    a('s_cmp_lt_u32 s68, 8')
    a('s_cselect_b32 s%d, s%d, %s' % (GO, GO, hex(OOB)))
    a('v_lshrrev_b32 v12, 5, v1')
    a('v_bfe_u32 v13, v1, 2, 3')
    a('v_lshl_add_u32 v12, v12, 4, v13')
    a('v_lshlrev_b32 v12, 7, v12')
    a('v_and_b32 v13, 3, v1')
    a('v_lshl_add_u32 v12, v13, 3, v12')
    a('s_lshr_b32 s11, s%d, 2' % W)
    a('s_lshl_b32 s11, s11, 12')
    a('s_and_b32 s69, s%d, 3' % W)
    a('s_lshl_b32 s69, s69, 5')
    a('s_add_u32 s11, s11, s69')
    a('s_add_u32 s11, s11, %d' % LDS_W2S)
    a('v_add_u32 v236, s11, v12')

def item(lines, pre=(), vm=None, lg=None, needlg=(), needvm=()):
    if isinstance(lines, str): lines = [lines]
    if isinstance(pre, str): pre = [pre]
    return dict(pre=list(pre), lines=list(lines), vm=vm, lg=lg, needlg=set(needlg), needvm=set(needvm))

KS0 = 28
def g1_dma_items(stage):
    base = SLOT[stage % 3]
    it = []
    for m, S in ((0, SW1), (1, SW3)):
        pre = ['s_add_u32 m0, s%d, %s' % (LW, hex(base + 32768 + m * 8192))]
        if m == 0:
            if OPT['rot1']:
                pre = ['s_add_u32 s29, s%d, %d' % (KS0, stage), 's_cmp_ge_u32 s29, 10', 's_cselect_b32 s%d, 10, 0' % OW,
                       's_sub_u32 s29, s29, s%d' % OW, 's_mul_i32 s%d, s29, %d' % (OW, 64 * 3456)] + pre
            else:
                pre = ['s_mov_b32 s%d, %s' % (OW, hex(stage * 64 * 3456))] + pre
        it.append(item('buffer_load_dwordx4 v6, %s, s%d offen lds' % (s(S, 4), OW), pre, vm=('st', stage)))
    for i in range(4):
        pre = ['s_add_u32 m0, s%d, %s' % (LW, hex(base + i * 8192))]
        if i == 0:
            pre = [('s_lshl_b32 s%d, s29, 7' % OX) if OPT['rot1'] else ('s_movk_i32 s%d, %d' % (OX, stage * 128))] + pre
        it.append(item('buffer_load_dwordx4 v%d, %s, s%d offen lds' % (2 + i, s(SX, 4), OX), pre, vm=('st', stage)))
    if OPT['nodma'] and stage >= 3:
        it = []
    return it

class G1:
    def __init__(self, a):
        self.a = a; self.vq = Q(); self.lq = Q()
    def fork(self):
        g = G1(self.a); g.vq = copy.deepcopy(self.vq); g.lq = copy.deepcopy(self.lq); return g
    def wait(self, vm=(), lg=(), lgall=False):
        parts = []
        n = self.vq.need(set(vm)) if vm else None
        if n is not None: parts.append('vmcnt(%d)' % min(n, 63))
        if lgall:
            if self.lq.q: parts.append('lgkmcnt(0)')
            self.lq.clear()
        else:
            n = self.lq.need(set(lg)) if lg else None
            if n is not None: parts.append('lgkmcnt(%d)' % min(n, 15))
        if parts: self.a('s_waitcnt ' + ' '.join(parts))
    def emit(self, it, with_pre=True):
        a = self.a
        if with_pre and it['pre']:
            for l in it['pre']: a(l)
            if 'm0' in it['pre'][-1]: a('s_nop 0')
        if it['needlg'] or it['needvm']: self.wait(vm=it['needvm'], lg=it['needlg'])
        for l in it['lines']: a(l)
        if it['vm'] is not None: self.vq.push(it['vm'], sure=(it['vm'] != 'w2?'))
        if it['lg'] is not None: self.lq.push(it['lg'])
    def read_items(self, stage, kk):
        base = SLOT[stage % 3]; hi = base >= 98304
        off = base - (98304 if hi else 0)
        b = kk & 1
        B = G1_FR + 16 * b
        xa = (208 if hi else 7) + kk
        wa = 212 if hi else 11
        def w(m, h): return item('ds_read_b64_tr_b16 %s, v%d offset:%d' % (v(B + 8 + 4 * m + 2 * h, 2), wa, off + m * 8192 + kk * 2048 + h * 512), lg=('w', stage, kk, m))
        def x(nt): return item('ds_read_b128 %s, v%d offset:%d' % (v(B + 4 * nt, 4), xa, off + nt * 4096), lg=('x', stage, kk, nt))
        return [w(0, 0), w(0, 1), x(0), x(1), w(1, 0), w(1, 1)]
    def substep(self, sidx, kk, gaps):
        a = self.a
        B = G1_FR + 16 * (kk & 1)
        i = 0
        for m in range(2):
            for nt in range(2):
                g = gaps[i]
                if g and g[0]['pre']:
                    for l in g[0]['pre']: a(l)
                self.wait(lg=[('w', sidx, kk, m), ('x', sidx, kk, nt)])
                acc = v(G1_ACC + (m * 2 + nt) * 16, 16)
                a('v_mfma_f32_32x32x16_bf16 %s, %s, %s, %s' % (acc, v(B + 8 + 4 * m, 4), v(B + 4 * nt, 4), '0' if (sidx == 0 and kk == 0) else acc))
                for k, it in enumerate(g):
                    self.emit(it, with_pre=(k > 0))
                i += 1
    def step(self, sidx, ex, before_barrier=None, needvm=()):
        a = self.a
        a.comment('k-step %d' % sidx)
        if sidx < 9: stamp(a, sidx + 1, 2)
        base = SLOT[sidx % 3]; hi = base >= 98304
        for kk in range(4):
            if kk == 3:
                self.wait(vm=[('st', sidx + 1)] + list(needvm), lgall=True)
                if before_barrier: before_barrier(a)
                a('s_barrier')
            if kk < 3: r = self.read_items(sidx, kk + 1)
            elif sidx < 9: r = self.read_items(sidx + 1, 0)
            else: r = []
            e = list(ex.get(kk, []))
            if kk == 0:
                e = [item('ds_read_b128 v[220:223], v%d offset:%d' % (215 if hi else 214, base - (98304 if hi else 0)), lg='gx'),
                     item('ds_read_b128 v[224:227], v216 offset:%d' % (sidx * 128), lg='gx')] + e
            if kk == 2:
                e = e + [item(['v_dot2c_f32_bf16 v217, v%d, v%d' % (220 + i, 224 + i) for i in range(4)], needlg=['gx'])]
            h = (len(e) + 1) // 2
            if r: gaps = [r[0:3], r[3:6], e[:h], e[h:]]
            else:
                n4 = (len(e) + 3) // 4
                gaps = [e[i * n4:(i + 1) * n4] for i in range(4)]
            self.substep(sidx, kk, gaps)

def touch_item(stage):
    if not OPT['touch'] or stage > 9 or stage < OPT['tp']: return []
    lines = []
    if stage == 6:
        lines += ['v_mul_u32_u24 v218, 6, v242', 'v_add_co_u32 v240, vcc, v240, v218', 's_nop 1', 'v_addc_co_u32 v241, vcc, 0, v241, vcc']
    lines += touch_lines(10 * (stage % 6), 10)
    return [item(lines, vm='touch')]

def gemm1_head(a):
    RB, CB, W = 8, 9, S_W
    g = G1(a)
    nonce_publish(a)
    if OPT['rot1']:
        a('s_mul_i32 s11, s%d, 3' % RB)
        a('s_add_u32 s11, s11, s%d' % CB)
        a('s_mul_i32 s69, s11, 205')
        a('s_lshr_b32 s69, s69, 11')
        a('s_mul_i32 s69, s69, 10')
        a('s_sub_u32 s%d, s11, s69' % KS0)
    a('s_mul_i32 s11, s%d, %d' % (RB, 256 * 1280))
    srd(a, SX, P_Q, 256 * 1280, 's11')
    a('s_lshl_b32 s11, s%d, 7' % CB)
    a('s_sub_u32 s69, %s, s11' % hex(SZ_W))
    srd(a, SW1, P_W1, 's69', 's11')
    srd(a, SW3, P_W3, 's69', 's11')
    if OPT['touch']:
        a('v_cmp_gt_u32 vcc, 59, v17')
        a('v_mov_b32 v20, s%d' % SW3); a('v_mov_b32 v21, s%d' % SW1)
        a('v_cndmask_b32 v240, v20, v21, vcc')
        a('v_mov_b32 v20, s%d' % (SW3 + 1)); a('v_mov_b32 v21, s%d' % (SW1 + 1))
        a('v_cndmask_b32 v241, v20, v21, vcc')
        a('v_cmp_gt_u32 vcc, 43, v17')
        a('v_mov_b32 v20, s%d' % SX); a('v_mov_b32 v21, s%d' % (SX + 1))
        a('v_cndmask_b32 v240, v240, v20, vcc')
        a('v_cndmask_b32 v241, v241, v21, vcc')
        a('v_add_co_u32 v240, vcc, v240, v18')
        a('s_nop 1')
        a('v_addc_co_u32 v241, vcc, 0, v241, vcc')
        g.emit(item(touch_lines(0, 10 * OPT['tp']), vm='touch'))
    for it in g1_dma_items(0): g.emit(it)
    stamp(a, 1)
    L = a.newlabel('GW')
    a('s_cmp_ge_u32 s%d, 3' % W)
    a('s_cbranch_scc1 %s' % L)
    srd(a, SH, P_GW, 1280)
    a('v_add_u32 v12, s%d, v237' % LW)
    a('v_subrev_u32 v13, 1280, v12')
    a('v_min_u32 v12, v12, v13')
    a('v_subrev_u32 v13, 1280, v12')
    a('v_min_u32 v12, v12, v13')
    a('s_add_u32 m0, s%d, %d' % (LW, LDS_GW))
    a('s_nop 0')
    a('buffer_load_dwordx4 v12, %s, 0 offen lds' % s(SH, 4))
    a.label(L)
    g.vq.push('gw', sure=False)
    gemm1_post_addr(a)
    flag_srd(a)
    srd(a, SH, P_W2, SZ_W)
    a('s_mul_i32 s%d, s%d, 27' % (GID, RB))
    a('s_add_u32 s%d, s%d, s%d' % (GID, GID, CB))
    a('s_mul_i32 s11, s%d, 3641' % GID)
    a('s_lshr_b32 s11, s11, 16')
    a('s_mul_i32 s69, s11, 18')
    a('s_sub_u32 s69, s%d, s69' % GID)
    a('s_mul_i32 s69, s69, 3')
    a('s_lshr_b32 s72, s%d, 2' % W)
    a('s_add_u32 s69, s69, s72')
    a('s_cmp_ge_u32 s%d, 180' % GID)
    a('s_cselect_b32 s69, 60, s69')
    a('s_mul_i32 s%d, s69, 10' % U0)
    a('s_add_u32 s%d, s%d, s11' % (U0, U0))
    a('s_mul_i32 s69, s69, %d' % (32 * 1280))
    a('s_lshl_b32 s65, s11, 7')
    a('s_add_u32 s65, s65, s69')
    a('s_add_u32 s66, s65, %d' % (64 * 1280))
    a('s_cmp_lt_u32 s%d, 4' % W)
    a('s_cselect_b32 s66, s66, 0x7000000')
    a('s_and_b32 s67, s%d, 3' % W)
    a('s_lshl_b32 s67, s67, 10')
    a('s_add_u32 s67, s67, %d' % (LDS_W2S + 8192))
    a('s_cselect_b32 s67, s67, s67')
    a('v_lshrrev_b32 v12, 3, v1')
    a('s_and_b32 s69, s%d, 3' % W)
    a('s_lshl_b32 s69, s69, 3')
    a('v_add_u32 v12, s69, v12')
    a('v_mul_u32_u24 v12, 1280, v12')
    a('v_and_b32 v13, 7, v1')
    a('v_lshl_add_u32 v219, v13, 4, v12')
    a('s_barrier')
    for it in g1_dma_items(1): g.emit(it)
    g.wait(vm=[('st', 0), 'gw'])
    a('s_barrier')
    stamp(a, 2)
    if OPT['prio']:
        L = a.newlabel('PR')
        a('s_cmp_lt_u32 s%d, 4' % W)
        a('s_cbranch_scc1 %s' % L)
        a('s_setprio 1')
        a.label(L)
    for it in g.read_items(0, 0): g.emit(it)
    d = [g1_dma_items(i) for i in range(10)] + [[], [], []]
    ld = OPT['lead']
    t0 = []
    for st_ in range(OPT['tp'], ld): t0 += touch_item(st_)
    L2 = a.newlabel('W2')
    w2l = [item('buffer_load_dwordx4 v219, %s, s65 offen lds' % s(SH, 4), pre='s_add_u32 m0, s%d, %d' % (LW, LDS_W2S), vm='w2'),
           item(['s_cmp_ge_u32 s%d, 4' % W, 's_cbranch_scc1 %s' % L2, 's_mov_b32 m0, s67', 's_nop 0',
                 'buffer_load_dwordx4 v219, %s, s66 offen lds' % s(SH, 4), L2 + ':'], vm='w2?')]
    g.step(0, {0: t0 + d[2][0:2], 1: d[2][2:5], 2: d[2][5:6] + touch_item(ld), 3: d[3][0:2]})
    g.step(1, {0: d[3][2:4], 1: d[3][4:6], 2: touch_item(ld + 1) + w2l + [item(capture_l(a, go_issue), vm='go')], 3: d[4][0:2]})
    g.step(2, {0: d[4][2:4], 1: d[4][4:6], 2: touch_item(ld + 2), 3: [item(GO_FETCH, lg='go')] + d[5][0:2]}, before_barrier=go_check, needvm=['go', 'w2', 'w2?'])
    srd(a, SH, P_WS, SZ_W, WS_W2P)
    w2r = [item('ds_read_b64_tr_b16 v[228:229], v236', lg='w2f'), item('ds_read_b64_tr_b16 v[230:231], v236 offset:1024', lg='w2f'),
           item('ds_read_b64_tr_b16 v[232:233], v236 offset:8192', lg='w2f'), item('ds_read_b64_tr_b16 v[234:235], v236 offset:9216', lg='w2f')]
    w2s = [item('buffer_store_dwordx4 v[228:231], v237, %s, s11 offen sc1' % s(SH, 4),
                pre=['s_lshl_b32 s11, s%d, 2' % U0, 's_and_b32 s69, s%d, 3' % W, 's_add_u32 s11, s11, s69', 's_lshl_b32 s11, s11, 10'], vm='w2s', needlg=['w2f']),
           item('buffer_store_dwordx4 v[232:235], v237, %s, s11 offen sc1' % s(SH, 4),
                pre=['s_add_u32 s11, s11, %d' % (20 * 4096), 's_cmp_lt_u32 s%d, 4' % W, 's_cselect_b32 s11, s11, 0x7000000'], vm='w2s')]
    g.step(3, {0: w2r + d[5][2:4], 1: w2s + d[5][4:6], 2: touch_item(ld + 3) + [item(capture_l(a, go_sgpr), needlg=['go'])], 3: d[6][0:2]})
    fw = item(['s_lshl_b32 s11, s%d, 3' % GID, 's_add_u32 s11, s11, %s' % hex(F_W), 's_cmp_eq_u32 s%d, 0' % W,
               's_cselect_b32 s11, s11, %s' % hex(OOB)] + capture_l(a, lambda a: set_flag(a, 11)), vm='fw')
    g.step(4, {0: d[6][2:4], 1: d[6][4:6], 2: touch_item(ld + 4), 3: [fw] + d[7][0:2]}, needvm=['w2s'])
    srd(a, SH, P_WS, SZ_H, None if WS_H == 0 else WS_H)
    return g, d

def capture_l(a, fn):
    return [l.strip() for l in capture(a, lambda: fn(a))]

def gemm1_tail(a, g, d, role):
    g = g.fork()
    pf = [item(PF_LOAD, vm='pf')]
    ex = {s_: {0: d[s_ + 2][2:4], 1: d[s_ + 2][4:6], 2: touch_item(s_ + OPT['lead']), 3: d[s_ + 3][0:2]} for s_ in range(5, 10)}
    bb = {}; nv = {}
    post = []
    if role == 'G2':
        ex[6][0] = pf + ex[6][0]
        bb[6] = fw_check; nv[6] = ['pf']
        ex[5][0] = ex[5][0] + [item(capture_l(a, g2_pre))]
        w = []
        for p in range(5): w += g2_w_items(p, p)
        plan = [(6, 3, 1), (7, 0, 1), (7, 1, 1), (7, 2, 3), (7, 3, 3), (8, 0, 3), (8, 1, 3), (8, 2, 3), (8, 3, 3), (9, 0, 2), (9, 1, 2)]
        k = 0
        for (s_, kk, n) in plan:
            ex[s_][kk] = ex[s_][kk] + w[k:k + n]; k += n
        assert k == 25
        l0 = g2_wl_items(5, 0)
        ex[9][2] = l0[0:2]; ex[9][3] = l0[2:5]
        post = g2_wl_items(6, 1) + g2_wl_items(7, 2) + g2_wl_items(8, 3)
    elif role == 'CV':
        ex[5][0] = ex[5][0] + [item(capture_l(a, cv_pre))]
        ex[5][2] = ex[5][2] + [item(['s_mov_b32 exec_hi, 0', 'buffer_load_dword v246, v246, s[72:75], 0 offen', 's_mov_b64 exec, -1'], vm='touch2')]
        hd = cv_h_items()
        ex[7][3] = hd[0:2]; ex[8][0] = hd[2:4]; ex[8][1] = hd[4:6]; ex[8][2] = hd[6:8]
        ex[8][3] = pf
        ex[9][3] = [item(capture_l(a, cv_try_u), needvm=['pf'])]
    for s_ in range(5, 10):
        if s_ == 5: stamp(a, 3)
        g.step(s_, ex[s_], before_barrier=bb.get(s_), needvm=nv.get(s_, ()))
    stamp(a, 4)
    for sh in (1, 2):
        a('v_add_f32_dpp v217, v217, v217 quad_perm:%s row_mask:0xf bank_mask:0xf' % ('[1,0,3,2]' if sh == 1 else '[2,3,0,1]'))
        a('s_nop 1')
    a('v_add_f32_dpp v217, v217, v217 row_half_mirror row_mask:0xf bank_mask:0xf')
    a('s_mov_b32 s60, %s' % NLOG2E)
    a('s_mov_b32 s61, %s' % NLOG2E)
    a('v_mul_f32 v217, s60, v217')
    a('v_exp_f32 v217, v217')
    a('v_lshrrev_b32 v218, 3, v1')
    a('v_add_f32 v217, 1.0, v217')
    a('v_rcp_f32 v217, v217')
    a('v_lshlrev_b32 v218, 2, v218')
    srd(a, SX, P_WS, 8192, WS_G)
    a('s_mov_b32 exec_lo, 0x01010101')
    a('s_mov_b32 exec_hi, 0x01010101')
    a('buffer_store_dword v217, v218, %s, s%d offen sc1' % (s(SX, 4), GO))
    a('s_mov_b64 exec, -1')
    T = G1_FR
    for nt in range(2):
        for jp in range(2):
            G = G1_ACC + nt * 16 + 8 * jp
            U = G1_ACC + (2 + nt) * 16 + 8 * jp
            for i in range(0, 8, 2):
                a('v_pk_mul_f32 %s, %s, s[60:61]' % (v(T + i, 2), v(G + i, 2)))
            for i in range(0, 8, 2):
                a('v_exp_f32 v%d, v%d' % (T + i, T + i))
                a('v_exp_f32 v%d, v%d' % (T + i + 1, T + i + 1))
                a('v_pk_mul_f32 %s, %s, %s' % (v(G + i, 2), v(G + i, 2), v(U + i, 2)))
            for i in range(0, 8, 2):
                a('v_pk_add_f32 %s, %s, 1.0 op_sel_hi:[1,0]' % (v(T + i, 2), v(T + i, 2)))
            for i in range(8):
                a('v_rcp_f32 v%d, v%d' % (T + i, T + i))
            a('s_nop 0')
            for i in range(0, 8, 2):
                a('v_pk_mul_f32 %s, %s, %s' % (v(G + i, 2), v(G + i, 2), v(T + i, 2)))
            O = T + 16 + 8 * nt + 4 * jp
            for i in range(4):
                a('v_cvt_pk_bf16_f32 v%d, v%d, v%d' % (O + i, G + 2 * i, G + 2 * i + 1))
            a('buffer_store_dwordx4 %s, v213, %s, s%d offen offset:%d sc1' % (v(O, 4), s(SH, 4), HO, nt * 2048 + jp * 512))
    if role == 'CV':
        L = a.newlabel('UOK')
        a('s_cmp_eq_u32 s70, 1')
        a('s_cbranch_scc1 %s' % L)
        a('s_waitcnt vmcnt(0)')
        set_flag(a, S_F1)
        poll_check(a, PF_LOAD, 244, 11, sleep=2)
        cv_u_loads(a)
        a('s_waitcnt vmcnt(0)')
        a.label(L)
        a('s_waitcnt vmcnt(5)')
        stamp(a, 5)
    else:
        for it in post[:5]: g.emit(it)
        a('s_waitcnt vmcnt(%d)' % len(post[:5]))
        set_flag(a, S_F1)
        stamp(a, 5)
        for it in post[5:]: g.emit(it)

def prep_pre(a):
    PID, W = 8, S_W
    a('s_mul_i32 s65, s%d, 205' % PID)
    a('s_lshr_b32 s65, s65, 11')
    a('s_mul_i32 s66, s65, 10')
    a('s_sub_u32 s66, s%d, s66' % PID)
    a('s_lshl_b32 s%d, s66, 4' % S_F1)
    a('s_add_u32 s%d, s%d, s65' % (S_F1, S_F1))
    a('s_lshl_b32 s%d, s%d, 3' % (S_F1, S_F1))
    a('s_add_u32 s%d, s%d, %s' % (S_F1, S_F1, hex(F_U)))
    a('s_cmp_eq_u32 s%d, 0' % W)
    a('s_cselect_b32 s%d, s%d, %s' % (S_F1, S_F1, hex(OOB)))
    a('s_lshl_b32 s67, s65, 9')
    a('s_lshl_b32 s68, s%d, 6' % W)
    a('s_add_u32 s67, s67, s68')
    a('v_and_b32 v2, 0x38, v1')
    a('v_add_u32 v2, s67, v2')
    a('v_and_b32 v3, 7, v1')
    a('s_lshl_b32 s68, s66, 3')
    a('v_add_u32 v3, s68, v3')
    a('v_mul_u32_u24 v4, 1280, v2')
    a('v_lshl_add_u32 v4, v3, 4, v4')
    a('v_subrev_u32 v5, 3840, v4')
    a('v_lshlrev_b32 v6, 6, v3')

def prep(a):
    SA, SB, SC, SD = 44, 48, 52, 56
    C5120, MASK, T = 60, 61, 62
    srd(a, SA, P_K, SZ_ACT)
    srd(a, SB, P_V, SZ_ACT)
    srd(a, SC, P_SK, 640 * 8)
    a('s_movk_i32 s%d, 5120' % C5120)
    KR, VR, WR = 16, 60, 92
    for r in range(8):
        a('buffer_load_dwordx4 %s, v4, %s, %s offen offset:%d' % (v(KR + 12 + 4 * r, 4), s(SA, 4), '0' if r < 4 else 's%d' % C5120, 1280 * (r & 3)))
    for r in range(3):
        a('buffer_load_dwordx4 %s, v5, %s, 0 offen offset:%d' % (v(KR + 4 * r, 4), s(SA, 4), 1280 * r))
    for i in range(4):
        a('buffer_load_dwordx4 %s, v6, %s, 0 offen offset:%d' % (v(WR + 4 * i, 4), s(SC, 4), 16 * i))
    for r in range(8):
        a('buffer_load_dwordx4 %s, v4, %s, %s offen offset:%d' % (v(VR + 4 * r, 4), s(SB, 4), '0' if r < 4 else 's%d' % C5120, 1280 * (r & 3)))
    stamp(a, 1)
    flag_srd(a)
    srd(a, SD, P_WS, SZ_ACT, WS_UT)
    a('v_lshlrev_b32 v12, 15, v3')
    a('v_sub_u32 v13, 2040, v2')
    a('v_lshl_add_u32 v12, v13, 1, v12')
    a('s_mov_b32 s%d, 0xffff0000' % MASK)
    a('s_waitcnt vmcnt(8)')
    stamp(a, 2)
    KU, WU, AC, VU, OUT = 108, 130, 138, 202, 218
    for dw in range(4):
        for r in range(11):
            a('v_lshlrev_b32 v%d, 16, v%d' % (KU + 2 * r, KR + 4 * r + dw))
            a('v_and_b32 v%d, s%d, v%d' % (KU + 2 * r + 1, MASK, KR + 4 * r + dw))
        for ch in range(2):
            for t in range(4):
                src = WR + 4 * dw + 2 * ch + (t >> 1)
                if t & 1:
                    a('v_and_b32 v%d, s%d, v%d' % (WU + 2 * t + ch, MASK, src))
                else:
                    a('v_lshlrev_b32 v%d, 16, v%d' % (WU + 2 * t + ch, src))
        A = AC + 16 * dw
        for r in range(8):
            a('v_pk_mul_f32 %s, %s, %s' % (v(A + 2 * r, 2), v(KU + 2 * r, 2), v(WU + 6, 2)))
        for t in (2, 1, 0):
            for r in range(8):
                a('v_pk_fma_f32 %s, %s, %s, %s' % (v(A + 2 * r, 2), v(KU + 2 * (r + 3 - t), 2), v(WU + 2 * t, 2), v(A + 2 * r, 2)))
    a('s_waitcnt vmcnt(0)')
    go_issue(a)
    for dw in range(4):
        A = AC + 16 * dw
        for r in range(8):
            a('v_lshlrev_b32 v%d, 16, v%d' % (VU + 2 * r, VR + 4 * r + dw))
            a('v_and_b32 v%d, s%d, v%d' % (VU + 2 * r + 1, MASK, VR + 4 * r + dw))
        for r in range(8):
            a('v_pk_mul_f32 %s, %s, %s' % (v(A + 2 * r, 2), v(A + 2 * r, 2), v(VU + 2 * r, 2)))
        O = OUT + 8 * (dw & 1)
        for ch in range(2):
            for i in range(4):
                a('v_cvt_pk_bf16_f32 v%d, v%d, v%d' % (O + 4 * ch + i, A + 2 * (7 - 2 * i) + ch, A + 2 * (6 - 2 * i) + ch))
        for ch in range(2):
            a('s_mov_b32 s%d, %d' % (T, (2 * dw + ch) * 4096))
            a('buffer_store_dwordx4 %s, v12, %s, s%d offen sc1' % (v(O + 4 * ch, 4), s(SD, 4), T))
    stamp(a, 3)
    a('s_waitcnt vmcnt(0)')
    go_check(a)
    a('s_barrier')
    set_flag(a, S_F1)
    a(GO_FETCH)
    a('s_waitcnt lgkmcnt(0)')
    go_sgpr(a)
    stamp(a, 5)

CW = 13824
C_HA, C_HB, C_U = 0, 4640, 9280
CV_D, CV_DO, CV_LB, CV_T, CV_DV, CV_W = 65, 66, 67, 68, 69, 9
def cv_pre(a):
    srd(a, 72, P_SSMK, SZ_ACT)
    a('s_sub_u32 s%d, s%d, 4' % (CV_W, S_W))
    a('s_lshl_b32 s%d, s7, 2' % CV_D)
    a('s_add_u32 s%d, s%d, s%d' % (CV_D, CV_D, CV_W))
    a('s_lshl_b32 s%d, s%d, 12' % (CV_DO, CV_D))
    a('s_mul_i32 s%d, s%d, %d' % (CV_LB, CV_W, CW))
    a('s_add_u32 s%d, s%d, %d' % (CV_LB, CV_LB, CONV_BASE))
    a('v_add_u32 v238, s%d, v237' % CV_DO)
    a('v_subrev_u32 v239, 2, v238')
    a('v_lshl_add_u32 v246, v1, 7, s%d' % CV_DO)
    a('s_mov_b32 s70, 0')
def cv_h_items():
    it = []
    for (dst, vo) in ((C_HA + 512, 238), (C_HB + 512, 239)):
        for i in range(4):
            it.append(item('buffer_load_dwordx4 v%d, s[72:75], 0 offen offset:%d lds' % (vo, i * 1024),
                           pre=['s_add_u32 m0, s%d, %d' % (CV_LB, dst)] if i == 0 else [], vm='cvh'))
    return it
def cv_u_loads(a):
    srd(a, 48, P_WS, SZ_ACT, WS_UT)
    a('s_add_u32 m0, s%d, %d' % (CV_LB, C_U))
    a('s_nop 0')
    for i in range(4):
        a('buffer_load_dwordx4 v238, s[48:51], 0 offen offset:%d sc1 lds' % (i * 1024))
def cv_try_u(a):
    L = a.newlabel('UT')
    a('v_cmp_eq_u64 vcc, %s, v[244:245]' % NC)
    a('s_cmp_eq_u64 vcc, -1')
    a('s_cbranch_scc0 %s' % L)
    cv_u_loads(a)
    a('s_mov_b32 s70, 1')
    a.label(L)

def conv(a):
    SZ, D, DO, LB, T, DV, W = 44, CV_D, CV_DO, CV_LB, CV_T, CV_DV, CV_W
    if OPT['cprio']: a('s_setprio %d' % OPT['cprio'])
    a('s_lshr_b32 s%d, s%d, 1' % (T, D))
    a('s_lshl_b32 s%d, s%d, 2' % (T, T))
    a('s_load_dword s%d, s[%d:%d], s%d' % (DV, P_SSMD, P_SSMD + 1, T))
    a('v_mov_b32 v6, s%d' % LB)
    a('ds_read_b128 v[16:19], v6 offset:%d' % (C_HA + 512))
    a('v_mov_b32 v4, 0')
    a('v_mov_b32 v5, 0')
    a('v_lshl_add_u32 v2, v1, 3, s%d' % LB)
    a('ds_write_b64 v2, v[4:5] offset:%d' % C_HA)
    a('ds_write_b64 v2, v[4:5] offset:%d' % C_HB)
    a('v_lshl_add_u32 v2, v1, 2, s%d' % LB)
    a('ds_write_b32 v2, v4 offset:%d' % (C_U + 4096))
    a('v_and_b32 v7, 1, v1')
    a('v_xor_b32 v7, 1, v7')
    a('v_mul_u32_u24 v7, %d, v7' % (C_HB - C_HA))
    a('v_bfe_u32 v8, v1, 1, 3')
    a('v_lshl_add_u32 v7, v8, 6, v7')
    a('v_lshrrev_b32 v8, 4, v1')
    a('v_lshl_add_u32 v7, v8, 4, v7')
    a('s_add_u32 s%d, s%d, %d' % (T, LB, C_HA + 64))
    a('v_add_u32 v7, s%d, v7' % T)
    a('v_and_b32 v13, 15, v1')
    a('v_lshlrev_b32 v13, 2, v13')
    a('v_lshlrev_b32 v9, 4, v8')
    a('v_sub_u32 v9, v9, v13')
    a('s_add_u32 s%d, s%d, %d' % (T, LB, C_U + 60))
    a('v_add_u32 v9, s%d, v9' % T)
    for i in range(1, 4):
        a('v_add_u32 v%d, %d, v9' % (9 + i, 1024 * i))
    a('v_lshl_add_u32 v15, v8, 7, v13')
    a('s_add_u32 s%d, s%d, %d' % (T, LB, C_U + 444))
    a('v_sub_u32 v14, s%d, v15' % T)
    a('v_add_u32 v15, s%d, v15' % LB)
    a('s_waitcnt lgkmcnt(0)')
    a('v_alignbit_b32 v23, v19, v18, 16')
    a('v_alignbit_b32 v22, v18, v17, 16')
    a('v_alignbit_b32 v21, v17, v16, 16')
    a('v_lshlrev_b32 v20, 16, v16')
    a('ds_write_b128 v6, v[20:23] offset:%d' % (C_HB + 512))
    a('s_bitcmp1_b32 s%d, 0' % D)
    a('s_cselect_b32 s%d, 0, 16' % T)
    a('s_lshl_b32 s%d, s%d, s%d' % (DV, DV, T))
    a('s_and_b32 s%d, s%d, 0xffff0000' % (DV, DV))
    srd(a, SZ, P_WS, SZ_ACT, WS_Z4)
    stamp(a, 7)
    ACC = 16
    GB = [48, 112]
    FB = [80, 144]
    def reads(j, b):
        for i in range(8):
            a('ds_read_b128 %s, v7 offset:%d' % (v(GB[b] + 4 * i, 4), 64 * j + 512 * i))
            rb = 7 - i
            o = (512 * (rb & 1) + 64 * j) // 4
            a('ds_read2_b32 %s, v%d offset0:%d offset1:%d' % (v(FB[b] + 4 * i, 2), 9 + (rb >> 1), o, o + 1))
            a('ds_read2_b32 %s, v%d offset0:%d offset1:%d' % (v(FB[b] + 4 * i + 2, 2), 9 + (rb >> 1), o + 2, o + 3))
    def ureads():
        for n in range(8):
            for hh in range(2):
                a('ds_read_b32 v%d, v14 offset:%d' % (48 + 2 * n + hh, 512 * (7 - n) + 64 * (1 - hh)))
    reads(0, 0)
    for j in range(8):
        b = j & 1
        if j == OPT['cflag']:
            a('s_waitcnt vmcnt(0)')
            set_flag(a, S_F1)
            stamp(a, 6)
        a('s_waitcnt lgkmcnt(0)')
        nxt = capture(a, (lambda: reads(j + 1, b ^ 1)) if j < 7 else ureads)
        ms = []
        for n in range(8):
            for aa in range(n + 1):
                acc = v(ACC + 4 * n, 4)
                first = (j == 0 and aa == 0)
                ms.append('    v_mfma_f32_16x16x32_bf16 %s, %s, %s, %s' % (acc, v(GB[b] + 4 * aa, 4), v(FB[b] + 4 * (n - aa), 4), '0' if first else acc))
        for i, m in enumerate(ms):
            a.lines.append(m)
            if i < len(nxt):
                a.lines.append(nxt[i])
    stamp(a, 8)
    a('s_mov_b32 s%d, 0xffff0000' % T)
    a('s_waitcnt lgkmcnt(0)')
    for n in range(8):
        for hh in range(2):
            u = 48 + 2 * n + hh
            a('v_and_b32 v%d, s%d, v%d' % (64 + 2 * n + hh, T, u))
            a('v_lshlrev_b32 v%d, 16, v%d' % (u, u))
            a('v_fmac_f32 v%d, s%d, v%d' % (ACC + 4 * n + 2 * hh, DV, 64 + 2 * n + hh))
            a('v_fmac_f32 v%d, s%d, v%d' % (ACC + 4 * n + 2 * hh + 1, DV, u))
            a('v_cvt_pk_bf16_f32 v%d, v%d, v%d' % (u, ACC + 4 * n + 2 * hh, ACC + 4 * n + 2 * hh + 1))
            a('ds_write_b32 v15, v%d offset:%d' % (u, C_HA + 512 * n + 64 * hh))
    a('s_waitcnt lgkmcnt(0)')
    a('s_mov_b64 exec, 1')
    a('ds_add_u32 v254, v253')
    a('s_mov_b64 exec, -1')
    a('v_bfe_u32 v2, v1, 2, 2')
    a('v_mul_u32_u24 v2, %d, v2' % CW)
    a('v_lshl_add_u32 v2, v8, 5, v2')
    a('v_and_b32 v3, 3, v1')
    a('v_lshl_add_u32 v2, v3, 3, v2')
    a('s_lshl_b32 s%d, s%d, 10' % (T, W))
    a('s_add_u32 s%d, s%d, %d' % (T, T, CONV_BASE))
    a('v_add_u32 v2, s%d, v2' % T)
    a('v_lshlrev_b32 v3, 3, v1')
    a('s_lshl_b32 s%d, s7, 14' % DO)
    a('s_lshl_b32 s%d, s%d, 12' % (T, W))
    a('s_add_u32 s%d, s%d, s%d' % (DO, DO, T))
    L, Dn = a.newlabel('CS'), a.newlabel('CSD')
    a('s_mov_b32 s%d, 0x100000' % T)
    a.label(L)
    a('ds_read_b32 v6, v254')
    a('s_waitcnt lgkmcnt(0)')
    a('v_cmp_eq_u32 vcc, 4, v6')
    a('s_cbranch_vccnz %s' % Dn)
    a('s_sub_u32 s%d, s%d, 1' % (T, T))
    a('s_cbranch_scc0 %s' % L)
    a.label(Dn)
    stamp(a, 9)
    for i in range(8):
        a('ds_read_b64_tr_b16 %s, v2 offset:%d' % (v(16 + 2 * i, 2), C_HA + 128 * i))
    for i in range(8):
        a('s_waitcnt lgkmcnt(%d)' % (7 - i))
        a('buffer_store_dwordx2 %s, v3, %s, s%d offen offset:%d sc1' % (v(16 + 2 * i, 2), s(SZ, 4), DO, 512 * i))
    a('s_waitcnt vmcnt(0)')
    set_flag(a, S_F2)
    stamp_end(a)
    a('s_endpgm')

G2_SW = 72
G2_KB, G2_O, G2_T, G2_T2, G2_LB, G2_RB, G2_CB = 65, 66, 67, 68, 69, 8, 9
G2_ACC, G2_WB, G2_HB = 28, 108, 208
def g2_lds(r):
    return (49152 + r * 20480) if r < 2 else ((r - 2) * 20480)
def g2_ks(p, dst):
    L = ['s_add_u32 s%d, s%d, %d' % (dst, G2_KB, 4 * p),
         's_cmp_ge_u32 s%d, 54' % dst,
         's_cselect_b32 s%d, 54, 0' % G2_T,
         's_sub_u32 s%d, s%d, s%d' % (dst, dst, G2_T)]
    if p == 13:
        L += ['s_cmp_ge_u32 s%d, 2' % S_W, 's_cselect_b32 s%d, 60, s%d' % (dst, dst)]
    return L
def g2_w_items(p, slot, va=237):
    B = G2_WB + 20 * slot
    it = []
    for t in range(5):
        pre = g2_ks(p, G2_O) + ['s_mul_i32 s%d, s%d, 40960' % (G2_O, G2_O)] if t == 0 else []
        it.append(item('buffer_load_dwordx4 %s, v%d, %s, s%d offen offset:%d sc1' % (v(B + 4 * t, 4), va if t < 4 else va + 1, s(G2_SW, 4), G2_O, (t & 3) * 1024), pre, vm=('w', p)))
    return it
def g2_wl_items(p, r):
    it = []
    for t in range(5):
        pre = []
        if t == 0:
            pre = g2_ks(p, G2_O) + ['s_mul_i32 s%d, s%d, 40960' % (G2_O, G2_O), 's_add_u32 m0, s%d, %d' % (G2_LB, g2_lds(r))]
        if t == 4:
            pre = ['s_add_u32 m0, s%d, %d' % (G2_LB, g2_lds(r) + 4096)]
        it.append(item('buffer_load_dwordx4 v%d, %s, s%d offen offset:%d sc1 lds' % (237 if t < 4 else 238, s(G2_SW, 4), G2_O, (t & 3) * 1024), pre, vm=('wl', p)))
    return it
def g2_pre(a):
    RB, CB, T, T2 = G2_RB, G2_CB, G2_T, G2_T2
    a('s_lshl_b32 s%d, s3, 2' % RB)
    a('s_lshr_b32 s%d, s4, 3' % CB)
    a('s_add_u32 s%d, s%d, s%d' % (RB, RB, CB))
    a('s_and_b32 s%d, s4, 7' % CB)
    a('s_mul_i32 s%d, s%d, 5120' % (T, CB))
    a('s_add_u32 s%d, s%d, %s' % (T, T, hex(WS_W2P)))
    srd(a, G2_SW, P_WS, 53 * 40960 + 5120, 's%d' % T)
    if OPT['rot2']:
        a('s_and_b32 s%d, s%d, 3' % (T, RB))
        a('s_mul_i32 s%d, s%d, %d' % (T, T, 13 if OPT['rot2r'] else 0))
        a('s_mul_i32 s%d, s%d, 7' % (T2, CB))
        a('s_add_u32 s%d, s%d, s%d' % (T, T, T2))
        a('s_add_u32 s%d, s%d, s%d' % (T, T, S_W))
        a('s_cmp_ge_u32 s%d, 54' % T)
        a('s_cselect_b32 s%d, 54, 0' % T2)
        a('s_sub_u32 s%d, s%d, s%d' % (G2_KB, T, T2))
    else:
        a('s_mov_b32 s%d, s%d' % (G2_KB, S_W))
    a('s_mul_i32 s%d, s%d, 5120' % (G2_LB, S_W))
    a('v_add_u32 v238, 4096, v237')

def gemm2(a):
    RB, CB, W = G2_RB, G2_CB, S_W
    SHh, SQ, SZ, SG, SO = 56, 52, 44, 60, 48
    O, T, T2 = G2_O, G2_T, G2_T2
    ACC, WB, HB = G2_ACC, G2_WB, G2_HB
    DH = 3
    a('s_setprio 0')
    a('v_mov_b32 v2, v237')
    a('v_mov_b32 v3, v238')
    a('v_min_u32 v22, 53, v1')
    a('s_lshl_b32 s%d, s%d, 9' % (T, RB))
    a('v_lshl_add_u32 v22, v22, 3, s%d' % T)
    FH_LOAD = 'buffer_load_dwordx2 v[26:27], v22, %s, 0 offen sc1' % s(SF, 4)
    a('s_mul_i32 s%d, s%d, %d' % (T, RB, 54 * 4096))
    if WS_H: a('s_add_u32 s%d, s%d, %s' % (T, T, hex(WS_H)))
    srd(a, SHh, P_WS, 54 * 4096, 's%d' % T)
    srd(a, SQ, P_Q, SZ_ACT)
    a('s_lshl_b32 s%d, s%d, 6' % (T, RB))
    a('s_lshl_b32 s%d, s%d, 4' % (T2, W))
    a('s_add_u32 s%d, s%d, s%d' % (T, T, T2))
    a('v_and_b32 v8, 15, v1')
    a('v_add_u32 v8, s%d, v8' % T)
    a('v_lshrrev_b32 v9, 4, v1')
    a('v_mul_u32_u24 v10, 1280, v8')
    a('v_lshl_add_u32 v10, v9, 3, v10')
    a('s_mul_i32 s%d, s%d, 160' % (T, CB))
    a('v_add_u32 v10, s%d, v10' % T)
    for mt in range(5):
        a('buffer_load_dwordx2 %s, v10, %s, 0 offen offset:%d' % (v(12 + 2 * mt, 2), s(SQ, 4), 32 * mt))
    a('v_lshlrev_b32 v11, 14, v9')
    a('v_lshl_add_u32 v11, v8, 3, v11')
    a('s_mul_i32 s%d, s%d, %d' % (T, CB, 20 * 16384))
    a('v_add_u32 v11, s%d, v11' % T)
    a('v_lshlrev_b32 v8, 2, v8')
    srd(a, SZ, P_WS, SZ_ACT, WS_Z4)
    srd(a, SG, P_WS, 8192, WS_G)
    srd(a, SO, P_OUT, SZ_ACT)
    for j in range(4):
        a('s_xor_b32 s%d, s%d, %d' % (T, W, j))
        a('s_lshl_b32 s%d, s%d, 10' % (T, T))
        a('v_add_u32 v%d, s%d, v2' % (4 + j, T))
    a('v_add_u32 v24, s%d, v2' % G2_LB)
    a('s_lshl_b32 s%d, s%d, 2' % (T, CB))
    a('s_lshr_b32 s%d, s%d, 3' % (T2, RB))
    a('s_add_u32 s%d, s%d, s%d' % (T, T, T2))
    a('s_lshl_b32 s%d, s%d, 8' % (T, T))
    a('s_add_u32 s%d, s%d, %s' % (T, T, hex(F_Z)))
    a('v_min_u32 v25, 19, v1')
    a('v_lshl_add_u32 v25, v25, 3, s%d' % T)
    FZ_LOAD = 'buffer_load_dwordx2 v[26:27], v25, %s, 0 offen sc1' % s(SF, 4)
    stamp(a, 6)
    LW_, LD_, LL_ = a.newlabel('HW'), a.newlabel('HD'), a.newlabel('HL')
    a('s_cmp_lg_u32 s%d, 0' % W)
    a('s_cbranch_scc1 %s' % LW_)
    poll(a, FH_LOAD, 26, T2, sleep=1)
    a('ds_write_b32 v254, v253 offset:4')
    a('s_branch %s' % LD_)
    a.label(LW_)
    a('s_mov_b32 s%d, 0x400000' % T2)
    a.label(LL_)
    a('ds_read_b32 v23, v254 offset:4')
    a('s_waitcnt lgkmcnt(0)')
    a('v_cmp_eq_u32 vcc, 1, v23')
    a('s_cbranch_vccnz %s' % LD_)
    a('s_sleep 1')
    a('s_sub_u32 s%d, s%d, 1' % (T2, T2))
    a('s_cbranch_scc0 %s' % LL_)
    a.label(LD_)
    stamp(a, 7)
    order = [0, 1, 2, 3, 4, 5, 6, 9, 10, 7, 8, 11, 12, 13]
    slot = [0, 1, 2, 3, 4, 3, 4, 0, 1, 3, 4, 2, 0, 1]
    refill = {0: ('g', 9), 1: ('g', 10), 2: ('g', 11), 3: ('l', 5), 4: ('l', 6), 5: ('l', 7), 6: ('l', 8), 7: ('g', 12), 8: ('g', 13)}
    g = G1(a)
    def h_items(r):
        B = HB + 16 * (r % DH)
        return [item('buffer_load_dwordx4 %s, v%d, %s, s%d offen sc1' % (v(B + 4 * t, 4), 4 + t, s(SHh, 4), O),
                     g2_ks(order[r], O) + ['s_lshl_b32 s%d, s%d, 12' % (O, O)] if t == 0 else [], vm=('h', r)) for t in range(4)]
    for r in range(DH):
        for it in h_items(r): g.emit(it)
    g.emit(item('buffer_load_dword v9, v8, %s, 0 offen sc1' % s(SG, 4), vm='x'))
    ZR = WB + 60
    rbuf = [g2_lds(2), g2_lds(3), g2_lds(0)]
    for r in range(14):
        p = order[r]
        g.wait(vm=[('h', r), ('w', p)] + (['fz'] if r == 12 else []), lg=[('wl', p)])
        if r == 12:
            poll_check(a, FZ_LOAD, 26, T2, sleep=1)
            for mt in range(5):
                g.emit(item('buffer_load_dwordx2 %s, v11, %s, s%d offen sc1' % (v(ZR + 2 * mt, 2), s(SZ, 4), T), 's_mov_b32 s%d, %s' % (T, hex(65536 * mt)), vm='x'))
        Bw = WB + 20 * slot[r]; Bh = HB + 16 * (r % DH)
        if r < 13:
            for mt in range(5):
                for j in range(4):
                    acc = v(ACC + (j * 5 + mt) * 4, 4)
                    a('v_mfma_f32_16x16x32_bf16 %s, %s, %s, %s' % (acc, v(Bw + 4 * mt, 4), v(Bh + 4 * j, 4), '0' if r == 0 else acc))
        else:
            seq = [(j, mt) for j in (1, 2, 3, 0) for mt in range(5)]
            wr = ['ds_write_b128 v24, %s offset:%d' % (v(ACC + (j * 5 + mt) * 4, 4), rbuf[j - 1] + mt * 1024) for (j, mt) in seq[:15]]
            for i, (j, mt) in enumerate(seq):
                acc = v(ACC + (j * 5 + mt) * 4, 4)
                a('v_mfma_f32_16x16x32_bf16 %s, %s, %s, %s' % (acc, v(Bw + 4 * mt, 4), v(Bh + 4 * j, 4), acc))
                if i >= 9: a(wr[i - 9])
            stamp(a, 8)
            for j in range(1, 4):
                a('s_xor_b32 s%d, s%d, %d' % (T, W, j))
                a('s_mul_i32 s%d, s%d, 5120' % (T, T))
                a('v_add_u32 v%d, s%d, v2' % (4 + j, T))
            for l in wr[11:]: a(l)
        if r == 9:
            g.emit(item(FZ_LOAD, vm='fz'))
        if r + DH < 14:
            for it in h_items(r + DH): g.emit(it)
        if r in refill:
            kind, pp = refill[r]
            if kind == 'g':
                for it in g2_w_items(pp, slot[r], va=2): g.emit(it)
            else:
                lb = g2_lds(pp - 5)
                if lb + 4096 > 65535:
                    a('v_add_u32 v23, %d, v24' % lb); ad, lb = 23, 0
                else: ad = 24
                for t in range(5):
                    g.emit(item('ds_read_b128 %s, v%d offset:%d' % (v(Bw + 4 * t, 4), ad, lb + t * 1024), lg=('wl', pp)))
    a('s_mov_b32 s%d, 0xffff0000' % T)
    a('s_waitcnt vmcnt(0)')
    for mt in range(5):
        for h in range(2):
            qq, z = 12 + 2 * mt + h, ZR + 2 * mt + h
            d = WB + 4 * mt + 2 * h
            a('v_lshlrev_b32 v%d, 16, v%d' % (d, qq))
            a('v_and_b32 v%d, s%d, v%d' % (d + 1, T, qq))
            a('v_lshlrev_b32 v%d, 16, v%d' % (qq, z))
            a('v_and_b32 v%d, s%d, v%d' % (z, T, z))
            a('v_mul_f32 v%d, v%d, v%d' % (d, d, qq))
            a('v_mul_f32 v%d, v%d, v%d' % (d + 1, d + 1, z))
        if mt == 1:
            a('s_waitcnt lgkmcnt(0)')
            a('s_barrier')
            stamp(a, 9)
            for m2 in range(5):
                for j in range(1, 4):
                    a('ds_read_b128 %s, v%d offset:%d' % (v(ACC + (j * 5 + m2) * 4, 4), 4 + j, rbuf[j - 1] + m2 * 1024))
    for i in range(20):
        a('v_mul_f32 v%d, v9, v%d' % (WB + i, WB + i))
    a('v_sub_f32 v9, 1.0, v9')
    for mt in range(5):
        a('s_waitcnt lgkmcnt(%d)' % (3 * (4 - mt)))
        A0 = ACC + 4 * mt
        for h in range(2):
            a('v_pk_add_f32 %s, %s, %s' % (v(A0 + 2 * h, 2), v(A0 + 2 * h, 2), v(A0 + 20 + 2 * h, 2)))
            a('v_pk_add_f32 %s, %s, %s' % (v(A0 + 40 + 2 * h, 2), v(A0 + 40 + 2 * h, 2), v(A0 + 60 + 2 * h, 2)))
        for h in range(2):
            a('v_pk_add_f32 %s, %s, %s' % (v(A0 + 2 * h, 2), v(A0 + 2 * h, 2), v(A0 + 40 + 2 * h, 2)))
        for i in range(4):
            a('v_fmac_f32 v%d, v9, v%d' % (WB + 4 * mt + i, A0 + i))
        a('v_cvt_pk_bf16_f32 v%d, v%d, v%d' % (12 + 2 * mt, WB + 4 * mt, WB + 4 * mt + 1))
        a('v_cvt_pk_bf16_f32 v%d, v%d, v%d' % (13 + 2 * mt, WB + 4 * mt + 2, WB + 4 * mt + 3))
        a('buffer_store_dwordx2 %s, v10, %s, 0 offen offset:%d' % (v(12 + 2 * mt, 2), s(SO, 4), 32 * mt))
    stamp_end(a)
    a('s_endpgm')

def kernel(a, name):
    a.raw('.p2align 8')
    a.label(name)
    a('s_cmp_ge_u32 s2, 256')
    a('s_cbranch_scc1 K_exit')
    a('s_load_dwordx16 s[16:31], s[0:1], 0')
    a('s_load_dwordx8 s[32:39], s[0:1], 64')
    a('s_load_dwordx4 s[40:43], s[0:1], 96')
    a('s_memrealtime s[74:75]')
    stamp_begin(a)
    a('v_lshrrev_b32 v1, 6, v0')
    a('s_and_b32 s3, s2, 7')
    a('v_readfirstlane_b32 s%d, v1' % S_W)
    a('v_and_b32 v1, 63, v0')
    a('s_lshr_b32 s4, s2, 3')
    a('s_lshl_b32 s6, s3, 2')
    a('s_add_u32 s6, s6, s%d' % S_W)
    a('s_lshl_b32 s6, s6, 5')
    a('s_add_u32 s6, s6, s4')
    a('s_lshl_b32 s6, s6, 3')
    a('s_add_u32 s6, s6, %s' % hex(F_Z - 4 * 256 - 12 * 8))
    common_pre(a)
    a('s_and_b32 s65, s3, 3')
    a('s_lshr_b32 s66, s3, 2')
    a('s_cmp_eq_u32 s65, 3')
    a('s_cselect_b32 s67, 24, 28')
    a('s_cmp_ge_u32 s4, s67')
    a('s_cbranch_scc1 K_prep')
    a('s_lshl_b32 s8, s66, 2')
    a('s_and_b32 s9, s4, 3')
    a('s_add_u32 s8, s8, s9')
    a('s_mul_i32 s9, s65, 7')
    a('s_lshr_b32 s11, s4, 2')
    a('s_add_u32 s9, s9, s11')
    gemm1_pre(a)
    a('s_waitcnt lgkmcnt(0)')
    g, d = gemm1_head(a)
    a('s_cmp_lt_u32 s%d, 4' % S_W)
    a('s_cbranch_scc1 K_tail_g2')
    a('s_cmp_lt_u32 s4, 12')
    a('s_cbranch_scc1 K_tail_none')
    gemm1_tail(a, g, d, 'CV')
    a.label('K_conv')
    conv(a)
    a.label('K_tail_none')
    gemm1_tail(a, g, d, 'NONE')
    stamp_end(a)
    a('s_endpgm')
    a.label('K_prep')
    a('s_mul_i32 s8, s66, 3')
    a('s_add_u32 s8, s8, s65')
    a('s_lshl_b32 s8, s8, 2')
    a('s_lshl_b32 s9, s66, 3')
    a('s_add_u32 s9, s9, 24')
    a('s_cmp_eq_u32 s65, 3')
    a('s_cselect_b32 s8, s9, s8')
    a('s_add_u32 s8, s8, s4')
    a('s_sub_u32 s8, s8, s67')
    prep_pre(a)
    a('s_waitcnt lgkmcnt(0)')
    prep(a)
    a('s_cmp_lt_u32 s%d, 4' % S_W)
    a('s_cbranch_scc1 K_prep_g2')
    gp = G1(a)
    cv_pre(a)
    for it in cv_h_items(): gp.emit(it)
    poll(a, PF_LOAD, 244, 11, sleep=4)
    cv_u_loads(a)
    a('s_barrier')
    a('s_waitcnt vmcnt(0)')
    a('s_branch K_conv')
    a.label('K_prep_g2')
    a(PF_LOAD)
    a('s_waitcnt vmcnt(0)')
    fw_check(a)
    g2_pre(a)
    a('s_barrier')
    for p in range(5):
        for it in g2_w_items(p, p): gp.emit(it)
    for r in range(4):
        for it in g2_wl_items(5 + r, r): gp.emit(it)
    a('s_branch K_gemm2')
    a.label('K_tail_g2')
    gemm1_tail(a, g, d, 'G2')
    a.label('K_gemm2')
    gemm2(a)
    a.label('K_exit')
    a('s_endpgm')

def main(out):
    hdr = open('cdna_kernels/%s.s.ref' % NAME).read().split('\n')
    head = [l for l in hdr if l.startswith(';') and '@launch' not in l and 'Override' not in l and 'grid=ceil' not in l]
    a = Asm()
    for l in head: a.raw(l)
    a.raw('; @launch grid=(256,1,1) block=(512,1,1) lds=%d' % LDS_TOTAL)
    a.raw('.amdgcn_target "amdgcn-amd-amdhsa--gfx950"')
    a.raw('.text')
    nm = NAME + '_kernel'
    a.raw('.globl %s' % nm)
    a.raw('.type %s,@function' % nm)
    kernel(a, nm)
    a.raw('.section .rodata,"a"')
    a.raw(kernel_desc(nm, 256))
    open(out, 'w').write(a.text())

if __name__ == '__main__':
    out = 'cdna_kernels/%s.s' % NAME
    for arg in sys.argv[1:]:
        if '=' in arg:
            k, val = arg.split('='); OPT[k] = int(val)
        else:
            out = arg
    main(out)
```

```python
import sys, copy
from asmlib import *

NAME = 'gated_mix__ssm_conv_h3__glu_gated_swiglu__prompt'
WS_H = 0
WS_W2P = 0x800000
WS_UT = 0xC00000
WS_Z4 = 0x1000000
WS_G = 0x1400000
WS_F = 0x1500000
F_H, F_U, F_W, F_Z = 0, 0x4000, 0x4800, 0x5000
F_SIZE = 0x9000
SZ_ACT = 2048 * 640 * 2
SZ_W = 640 * 1728 * 2
SZ_H = 2048 * 1728 * 2
P_Q, P_K, P_V, P_SK, P_SSMK, P_SSMD, P_BX, P_W1, P_W3, P_W2, P_GW, P_OUT, P_DBG, P_WS = [16 + 2 * i for i in range(14)]
NLOG2E = '0xbfb8aa3b'
OPT = dict(rot2=1, stamp=0, prio=0, cprio=2, cflag=0, touch=0, nodma=0, tp=2, lead=3, rot2r=0, rot1=10)
LDS_TOTAL = 163840
LDS_CNT = LDS_TOTAL - 32
SLOT = [0, 98304, 49152]
LDS_W2S = 147456
LDS_GW = 159744
CONV_BASE = 98304
S_W = 10
SF = 12
S_F1, S_F2 = 5, 6
WS_DBG = 0x2000000
OOB = 0x10000

def stamp(a, i, mode=1):
    if OPT['stamp'] == mode:
        a('s_memtime s[%d:%d]' % (80 + 2 * i, 81 + 2 * i))
def stamp_begin(a):
    if OPT['stamp']:
        a('s_memrealtime s[78:79]')
        for i in range(11): a('s_mov_b64 s[%d:%d], 0' % (80 + 2 * i, 81 + 2 * i))
        a('s_memtime s[80:81]')
def stamp_end(a):
    if OPT['stamp']:
        a('s_waitcnt vmcnt(0) lgkmcnt(0)')
        a('s_memtime s[100:101]')
        a('s_memrealtime s[76:77]')
        srd(a, 44, P_WS, 0x100000, WS_DBG)
        a('s_lshl_b32 s5, s2, 3')
        a('s_add_u32 s5, s5, s10')
        a('s_lshl_b32 s5, s5, 6')
        a('s_waitcnt lgkmcnt(0)')
        a('v_mov_b32 v0, s78')
        a('v_mov_b32 v1, s76')
        for i in range(11): a('v_mov_b32 v%d, s%d' % (2 + i, 80 + 2 * i))
        a('v_mov_b32 v16, s5')
        a('s_mov_b64 exec, 1')
        for i in range(4):
            a('buffer_store_dwordx4 v[%d:%d], v16, s[44:47], 0 offen offset:%d' % (4 * i, 4 * i + 3, 16 * i))

def capture(a, fn):
    save = a.lines; a.lines = []
    fn()
    out = a.lines; a.lines = save
    return out

class Q:
    def __init__(self): self.q = []
    def push(self, tag, sure=True): self.q.append((tag, sure))
    def need(self, tags):
        idx = [i for i, (t, _) in enumerate(self.q) if t in tags]
        if not idx: return None
        last = max(idx)
        n = sum(1 for (_, sure) in self.q[last + 1:] if sure)
        self.q = self.q[last + 1:]
        return n
    def clear(self): self.q = []

NC = 's[0:1]'
def poll_check(a, loadline, vtmp, sc, sleep=2):
    L, D = a.newlabel('POLL'), a.newlabel('POLLD')
    a('s_mov_b32 s%d, 0x20000' % sc)
    a.label(L)
    a('v_cmp_eq_u64 vcc, %s, %s' % (NC, v(vtmp, 2)))
    a('s_cmp_eq_u64 vcc, -1')
    a('s_cbranch_scc1 %s' % D)
    a('s_sleep %d' % sleep)
    a(loadline)
    a('s_waitcnt vmcnt(0)')
    a('s_sub_u32 s%d, s%d, 1' % (sc, sc))
    a('s_cbranch_scc0 %s' % L)
    a.label(D)
def poll(a, loadline, vtmp, sc, sleep=2):
    a(loadline)
    a('s_waitcnt vmcnt(0)')
    poll_check(a, loadline, vtmp, sc, sleep)

GO_LOAD = 'buffer_load_dwordx2 v[250:251], v252, s[72:75], s11 offen sc1'
PF_LOAD = 'buffer_load_dwordx2 v[244:245], v248, s[%d:%d], 0 offen sc1' % (SF, SF + 3)

def set_flag(a, soff):
    a('s_mov_b64 exec, 1')
    a('buffer_store_dwordx2 v[250:251], v252, %s, s%d offen sc1' % (s(SF, 4), soff))
    a('s_mov_b64 exec, -1')

def nonce_publish(a):
    L = a.newlabel('NP')
    a('s_or_b32 s11, s2, s%d' % S_W)
    a('s_cmp_lg_u32 s11, 0')
    a('s_cbranch_scc1 %s' % L)
    a('s_or_b32 s74, s74, 1')
    a('v_mov_b32 v250, s74')
    a('v_mov_b32 v251, s75')
    a('v_lshlrev_b32 v249, 7, v1')
    a('s_mov_b64 exec, 3')
    a('global_store_dwordx2 v249, v[250:251], s[%d:%d] sc1' % (P_DBG, P_DBG + 1))
    a('s_mov_b64 exec, -1')
    a.label(L)
def go_off(a):
    a('s_and_b32 s11, s4, 1')
    a('s_lshl_b32 s11, s11, 7')
def go_issue(a):
    srd(a, 72, P_DBG, 256)
    go_off(a)
    a('s_cmp_eq_u32 s%d, 0' % S_W)
    a('s_cselect_b32 s11, s11, %s' % hex(OOB))
    a(GO_LOAD)
def go_check(a):
    L, R, D = a.newlabel('GOC'), a.newlabel('GOR'), a.newlabel('GOD')
    a('s_cmp_lg_u32 s%d, 0' % S_W)
    a('s_cbranch_scc1 %s' % L)
    go_off(a)
    a('s_mov_b32 s69, 0x20000')
    a.label(R)
    a('v_cmp_ne_u32 vcc, 0, v250')
    a('s_cbranch_vccnz %s' % D)
    a('s_sleep 4')
    a(GO_LOAD)
    a('s_waitcnt vmcnt(0)')
    a('s_sub_u32 s69, s69, 1')
    a('s_cbranch_scc0 %s' % R)
    a.label(D)
    a('ds_write_b64 v254, v[250:251] offset:8')
    a('s_waitcnt lgkmcnt(0)')
    a.label(L)
GO_FETCH = 'ds_read_b64 v[250:251], v254 offset:8'
def go_sgpr(a):
    a('v_readfirstlane_b32 s0, v250')
    a('v_readfirstlane_b32 s1, v251')
def fw_check(a):
    D = a.newlabel('PFD')
    a('s_cmp_lg_u32 s%d, 0' % S_W)
    a('s_cbranch_scc1 %s' % D)
    poll_check(a, PF_LOAD, 244, 11, sleep=4)
    a.label(D)

def common_pre(a):
    a('v_mov_b32 v252, 0')
    a('v_mov_b32 v253, 1')
    a('v_mov_b32 v254, %d' % LDS_CNT)
    a('ds_write_b32 v254, v252')
    a('ds_write_b32 v254, v252 offset:4')
    a('ds_write_b32 v254, v252 offset:16')
    a('v_lshlrev_b32 v237, 4, v1')

def flag_srd(a):
    srd(a, SF, P_WS, F_SIZE, WS_F)

G1_FR, G1_ACC = 12, 44
SX, SW1, SW3, SH = 44, 48, 52, 56
OX, OW, LW, HO, GO = 60, 61, 62, 63, 64
GID, U0 = 70, 71

def gemm1_pre(a):
    RB, CB, W = 8, 9, S_W
    a('s_lshl_b32 s%d, s%d, 10' % (LW, W))
    a('v_lshrrev_b32 v13, 3, v1')
    a('s_lshl_b32 s11, s%d, 3' % W)
    a('v_add_u32 v13, s11, v13')
    a('v_bfe_u32 v14, v13, 1, 3')
    a('v_and_b32 v15, 7, v1')
    a('v_xor_b32 v14, v14, v15')
    a('v_lshlrev_b32 v14, 4, v14')
    a('v_mul_u32_u24 v2, 1280, v13')
    a('v_add_u32 v2, v2, v14')
    for i in range(1, 4):
        a('v_add_u32 v%d, %s, v2' % (2 + i, hex(i * 81920)))
    a('v_bfe_u32 v14, v13, 1, 1')
    a('v_lshlrev_b32 v14, 2, v14')
    a('v_xor_b32 v14, v14, v15')
    a('v_lshlrev_b32 v14, 4, v14')
    a('v_mul_u32_u24 v6, 3456, v13')
    a('v_add_u32 v6, v6, v14')
    if OPT['touch']:
        a('v_mul_u32_u24 v16, 205, v1')
        a('v_lshrrev_b32 v16, 11, v16')
        a('v_mul_u32_u24 v17, 10, v16')
        a('v_sub_u32 v17, v1, v17')
        a('s_mul_i32 s11, s%d, 10' % W)
        a('v_add_u32 v17, s11, v17')
        a('v_min_u32 v17, 74, v17')
        a('s_lshr_b32 s11, s4, 2')
        a('s_mul_i32 s11, s11, 43')
        a('v_add_u32 v18, s11, v17')
        a('v_min_u32 v18, 255, v18')
        a('v_mul_u32_u24 v18, 1280, v18')
        a('v_subrev_u32 v19, 43, v17')
        a('v_and_b32 v19, 15, v19')
        a('s_and_b32 s11, s4, 3')
        a('s_lshl_b32 s11, s11, 4')
        a('v_add_u32 v19, s11, v19')
        a('v_mul_u32_u24 v19, 3456, v19')
        a('v_cmp_gt_u32 vcc, 43, v17')
        a('v_mov_b32 v20, %d' % (64 * 3456))
        a('v_mov_b32 v21, 128')
        a('v_cndmask_b32 v242, v20, v21, vcc')
        a('v_cndmask_b32 v18, v19, v18, vcc')
        a('v_mul_u32_u24 v16, v16, v242')
        a('v_add_u32 v18, v18, v16')
    a('s_lshr_b32 s65, s%d, 1' % W)
    a('s_and_b32 s66, s%d, 1' % W)
    a('s_lshl_b32 s67, s%d, 2' % RB)
    a('s_add_u32 s67, s67, s65')
    a('s_lshl_b32 s68, s%d, 1' % CB)
    a('s_add_u32 s68, s68, s66')
    a('s_lshl_b32 s%d, s67, 6' % S_F1)
    a('s_add_u32 s%d, s%d, s68' % (S_F1, S_F1))
    a('s_lshl_b32 s%d, s%d, 3' % (S_F1, S_F1))

def touch_lines(lo, n):
    m = ((1 << n) - 1) << lo
    return ['s_mov_b32 exec_lo, %s' % hex(m & 0xffffffff), 's_mov_b32 exec_hi, %s' % hex(m >> 32),
            'global_load_dword v243, v[240:241], off', 's_mov_b64 exec, -1']

def gemm1_post_addr(a):
    W = S_W
    a('s_mul_i32 s%d, s67, 54' % HO)
    a('s_add_u32 s%d, s%d, s68' % (HO, HO))
    a('s_lshl_b32 s%d, s%d, 12' % (HO, HO))
    a('s_lshl_b32 s11, s65, 13')
    a('v_and_b32 v13, 31, v1')
    a('v_lshrrev_b32 v14, 5, v1')
    a('v_bfe_u32 v15, v1, 1, 3')
    a('v_xor_b32 v15, v15, v14')
    a('v_lshlrev_b32 v12, 7, v13')
    a('v_add_u32 v12, s11, v12')
    for kk in range(4):
        a('v_xor_b32 v%d, %d, v15' % (7 + kk, 2 * kk))
        a('v_lshl_add_u32 v%d, v%d, 4, v12' % (7 + kk, 7 + kk))
    a('v_bfe_u32 v11, v1, 2, 2')
    a('v_lshl_add_u32 v11, v14, 3, v11')
    a('v_lshlrev_b32 v11, 7, v11')
    a('v_bfe_u32 v12, v1, 3, 1')
    a('v_xor_b32 v12, s66, v12')
    a('v_lshl_add_u32 v11, v12, 6, v11')
    a('v_bfe_u32 v12, v1, 4, 1')
    a('v_lshl_add_u32 v11, v12, 5, v11')
    a('v_and_b32 v12, 3, v1')
    a('v_lshl_add_u32 v11, v12, 3, v11')
    a('v_add_u32 v11, 0x8000, v11')
    for i in range(5):
        a('v_add_u32 v%d, 0x18000, v%d' % (208 + i, 7 + i))
    a('v_bfe_u32 v12, v1, 4, 1')
    a('v_lshlrev_b32 v12, 10, v12')
    a('v_and_b32 v13, 15, v1')
    a('v_lshl_add_u32 v12, v13, 4, v12')
    a('v_lshl_add_u32 v213, v14, 8, v12')
    a('s_and_b32 s%d, s68, 7' % GO)
    a('s_lshl_b32 s69, s%d, 10' % GO)
    a('s_add_u32 s11, s11, s69')
    a('v_add_u32 v214, s11, v237')
    a('v_add_u32 v215, 0x18000, v214')
    a('s_and_b32 s69, s%d, 1' % GO)
    a('s_lshl_b32 s69, s69, 2')
    a('v_lshrrev_b32 v12, 4, v1')
    a('v_add_u32 v12, s69, v12')
    a('v_and_b32 v13, 7, v1')
    a('v_xor_b32 v12, v12, v13')
    a('v_lshlrev_b32 v216, 4, v12')
    a('v_add_u32 v216, %d, v216' % LDS_GW)
    if OPT['rot1']:
        a('s_lshl_b32 s69, s%d, 7' % KS0)
        a('v_add_u32 v216, s69, v216')
    a('v_mov_b32 v217, 0')
    a('s_lshl_b32 s%d, s%d, 5' % (GO, GO))
    a('s_lshl_b32 s69, s67, 8')
    a('s_add_u32 s%d, s%d, s69' % (GO, GO))
    a('s_cmp_lt_u32 s68, 8')
    a('s_cselect_b32 s%d, s%d, %s' % (GO, GO, hex(OOB)))
    a('v_lshrrev_b32 v12, 5, v1')
    a('v_bfe_u32 v13, v1, 2, 3')
    a('v_lshl_add_u32 v12, v12, 4, v13')
    a('v_lshlrev_b32 v12, 7, v12')
    a('v_and_b32 v13, 3, v1')
    a('v_lshl_add_u32 v12, v13, 3, v12')
    a('s_lshr_b32 s11, s%d, 2' % W)
    a('s_lshl_b32 s11, s11, 12')
    a('s_and_b32 s69, s%d, 3' % W)
    a('s_lshl_b32 s69, s69, 5')
    a('s_add_u32 s11, s11, s69')
    a('s_add_u32 s11, s11, %d' % LDS_W2S)
    a('v_add_u32 v236, s11, v12')

def item(lines, pre=(), vm=None, lg=None, needlg=(), needvm=()):
    if isinstance(lines, str): lines = [lines]
    if isinstance(pre, str): pre = [pre]
    return dict(pre=list(pre), lines=list(lines), vm=vm, lg=lg, needlg=set(needlg), needvm=set(needvm))

KS0 = 28
def g1_dma_items(stage):
    base = SLOT[stage % 3]
    it = []
    for m, S in ((0, SW1), (1, SW3)):
        pre = ['s_add_u32 m0, s%d, %s' % (LW, hex(base + 32768 + m * 8192))]
        if m == 0:
            if OPT['rot1']:
                pre = ['s_add_u32 s29, s%d, %d' % (KS0, stage), 's_cmp_ge_u32 s29, 10', 's_cselect_b32 s%d, 10, 0' % OW,
                       's_sub_u32 s29, s29, s%d' % OW, 's_mul_i32 s%d, s29, %d' % (OW, 64 * 3456)] + pre
            else:
                pre = ['s_mov_b32 s%d, %s' % (OW, hex(stage * 64 * 3456))] + pre
        it.append(item('buffer_load_dwordx4 v6, %s, s%d offen lds' % (s(S, 4), OW), pre, vm=('st', stage)))
    for i in range(4):
        pre = ['s_add_u32 m0, s%d, %s' % (LW, hex(base + i * 8192))]
        if i == 0:
            pre = [('s_lshl_b32 s%d, s29, 7' % OX) if OPT['rot1'] else ('s_movk_i32 s%d, %d' % (OX, stage * 128))] + pre
        it.append(item('buffer_load_dwordx4 v%d, %s, s%d offen lds' % (2 + i, s(SX, 4), OX), pre, vm=('st', stage)))
    if OPT['nodma'] and stage >= 3:
        it = []
    return it

class G1:
    def __init__(self, a):
        self.a = a; self.vq = Q(); self.lq = Q()
    def fork(self):
        g = G1(self.a); g.vq = copy.deepcopy(self.vq); g.lq = copy.deepcopy(self.lq); return g
    def wait(self, vm=(), lg=(), lgall=False):
        parts = []
        n = self.vq.need(set(vm)) if vm else None
        if n is not None: parts.append('vmcnt(%d)' % min(n, 63))
        if lgall:
            if self.lq.q: parts.append('lgkmcnt(0)')
            self.lq.clear()
        else:
            n = self.lq.need(set(lg)) if lg else None
            if n is not None: parts.append('lgkmcnt(%d)' % min(n, 15))
        if parts: self.a('s_waitcnt ' + ' '.join(parts))
    def emit(self, it, with_pre=True):
        a = self.a
        if with_pre and it['pre']:
            for l in it['pre']: a(l)
            if 'm0' in it['pre'][-1]: a('s_nop 0')
        if it['needlg'] or it['needvm']: self.wait(vm=it['needvm'], lg=it['needlg'])
        for l in it['lines']: a(l)
        if it['vm'] is not None: self.vq.push(it['vm'], sure=(it['vm'] != 'w2?'))
        if it['lg'] is not None: self.lq.push(it['lg'])
    def read_items(self, stage, kk):
        base = SLOT[stage % 3]; hi = base >= 98304
        off = base - (98304 if hi else 0)
        b = kk & 1
        B = G1_FR + 16 * b
        xa = (208 if hi else 7) + kk
        wa = 212 if hi else 11
        def w(m, h): return item('ds_read_b64_tr_b16 %s, v%d offset:%d' % (v(B + 8 + 4 * m + 2 * h, 2), wa, off + m * 8192 + kk * 2048 + h * 512), lg=('w', stage, kk, m))
        def x(nt): return item('ds_read_b128 %s, v%d offset:%d' % (v(B + 4 * nt, 4), xa, off + nt * 4096), lg=('x', stage, kk, nt))
        return [w(0, 0), w(0, 1), x(0), x(1), w(1, 0), w(1, 1)]
    def substep(self, sidx, kk, gaps):
        a = self.a
        B = G1_FR + 16 * (kk & 1)
        i = 0
        for m in range(2):
            for nt in range(2):
                g = gaps[i]
                if g and g[0]['pre']:
                    for l in g[0]['pre']: a(l)
                self.wait(lg=[('w', sidx, kk, m), ('x', sidx, kk, nt)])
                acc = v(G1_ACC + (m * 2 + nt) * 16, 16)
                a('v_mfma_f32_32x32x16_bf16 %s, %s, %s, %s' % (acc, v(B + 8 + 4 * m, 4), v(B + 4 * nt, 4), '0' if (sidx == 0 and kk == 0) else acc))
                for k, it in enumerate(g):
                    self.emit(it, with_pre=(k > 0))
                i += 1
    def step(self, sidx, ex, before_barrier=None, needvm=()):
        a = self.a
        a.comment('k-step %d' % sidx)
        if sidx < 9: stamp(a, sidx + 1, 2)
        base = SLOT[sidx % 3]; hi = base >= 98304
        for kk in range(4):
            if kk == 3:
                self.wait(vm=[('st', sidx + 1)] + list(needvm), lgall=True)
                if before_barrier: before_barrier(a)
                a('s_barrier')
            if kk < 3: r = self.read_items(sidx, kk + 1)
            elif sidx < 9: r = self.read_items(sidx + 1, 0)
            else: r = []
            e = list(ex.get(kk, []))
            if kk == 0:
                e = [item('ds_read_b128 v[220:223], v%d offset:%d' % (215 if hi else 214, base - (98304 if hi else 0)), lg='gx'),
                     item('ds_read_b128 v[224:227], v216 offset:%d' % (sidx * 128), lg='gx')] + e
            if kk == 2:
                e = e + [item(['v_dot2c_f32_bf16 v217, v%d, v%d' % (220 + i, 224 + i) for i in range(4)], needlg=['gx'])]
            h = (len(e) + 1) // 2
            if r: gaps = [r[0:3], r[3:6], e[:h], e[h:]]
            else:
                n4 = (len(e) + 3) // 4
                gaps = [e[i * n4:(i + 1) * n4] for i in range(4)]
            self.substep(sidx, kk, gaps)

def touch_item(stage):
    if not OPT['touch'] or stage > 9 or stage < OPT['tp']: return []
    lines = []
    if stage == 6:
        lines += ['v_mul_u32_u24 v218, 6, v242', 'v_add_co_u32 v240, vcc, v240, v218', 's_nop 1', 'v_addc_co_u32 v241, vcc, 0, v241, vcc']
    lines += touch_lines(10 * (stage % 6), 10)
    return [item(lines, vm='touch')]

def gemm1_head(a):
    RB, CB, W = 8, 9, S_W
    g = G1(a)
    nonce_publish(a)
    if OPT['rot1']:
        R = OPT['rot1']
        a('s_mul_i32 s11, s%d, %d' % (RB, 3 if R != 3 else 1))
        a('s_add_u32 s11, s11, s%d' % CB)
        a('s_mul_i32 s69, s11, %d' % ((2048 + R - 1) // R))
        a('s_lshr_b32 s69, s69, 11')
        a('s_mul_i32 s69, s69, %d' % R)
        a('s_sub_u32 s%d, s11, s69' % KS0)
        if R != 10: a('s_mul_i32 s%d, s%d, %d' % (KS0, KS0, 10 // R))
    a('s_mul_i32 s11, s%d, %d' % (RB, 256 * 1280))
    srd(a, SX, P_Q, 256 * 1280, 's11')
    a('s_lshl_b32 s11, s%d, 7' % CB)
    a('s_sub_u32 s69, %s, s11' % hex(SZ_W))
    srd(a, SW1, P_W1, 's69', 's11')
    srd(a, SW3, P_W3, 's69', 's11')
    if OPT['touch']:
        a('v_cmp_gt_u32 vcc, 59, v17')
        a('v_mov_b32 v20, s%d' % SW3); a('v_mov_b32 v21, s%d' % SW1)
        a('v_cndmask_b32 v240, v20, v21, vcc')
        a('v_mov_b32 v20, s%d' % (SW3 + 1)); a('v_mov_b32 v21, s%d' % (SW1 + 1))
        a('v_cndmask_b32 v241, v20, v21, vcc')
        a('v_cmp_gt_u32 vcc, 43, v17')
        a('v_mov_b32 v20, s%d' % SX); a('v_mov_b32 v21, s%d' % (SX + 1))
        a('v_cndmask_b32 v240, v240, v20, vcc')
        a('v_cndmask_b32 v241, v241, v21, vcc')
        a('v_add_co_u32 v240, vcc, v240, v18')
        a('s_nop 1')
        a('v_addc_co_u32 v241, vcc, 0, v241, vcc')
        g.emit(item(touch_lines(0, 10 * OPT['tp']), vm='touch'))
    for it in g1_dma_items(0): g.emit(it)
    stamp(a, 1)
    L = a.newlabel('GW')
    a('s_cmp_ge_u32 s%d, 3' % W)
    a('s_cbranch_scc1 %s' % L)
    srd(a, SH, P_GW, 1280)
    a('v_add_u32 v12, s%d, v237' % LW)
    a('v_subrev_u32 v13, 1280, v12')
    a('v_min_u32 v12, v12, v13')
    a('v_subrev_u32 v13, 1280, v12')
    a('v_min_u32 v12, v12, v13')
    a('s_add_u32 m0, s%d, %d' % (LW, LDS_GW))
    a('s_nop 0')
    a('buffer_load_dwordx4 v12, %s, 0 offen lds' % s(SH, 4))
    a.label(L)
    g.vq.push('gw', sure=False)
    gemm1_post_addr(a)
    flag_srd(a)
    srd(a, SH, P_W2, SZ_W)
    a('s_mul_i32 s%d, s%d, 27' % (GID, RB))
    a('s_add_u32 s%d, s%d, s%d' % (GID, GID, CB))
    a('s_mul_i32 s11, s%d, 3641' % GID)
    a('s_lshr_b32 s11, s11, 16')
    a('s_mul_i32 s69, s11, 18')
    a('s_sub_u32 s69, s%d, s69' % GID)
    a('s_mul_i32 s69, s69, 3')
    a('s_lshr_b32 s72, s%d, 2' % W)
    a('s_add_u32 s69, s69, s72')
    a('s_cmp_ge_u32 s%d, 180' % GID)
    a('s_cselect_b32 s69, 60, s69')
    a('s_mul_i32 s%d, s69, 10' % U0)
    a('s_add_u32 s%d, s%d, s11' % (U0, U0))
    a('s_mul_i32 s69, s69, %d' % (32 * 1280))
    a('s_lshl_b32 s65, s11, 7')
    a('s_add_u32 s65, s65, s69')
    a('s_add_u32 s66, s65, %d' % (64 * 1280))
    a('s_cmp_lt_u32 s%d, 4' % W)
    a('s_cselect_b32 s66, s66, 0x7000000')
    a('s_and_b32 s67, s%d, 3' % W)
    a('s_lshl_b32 s67, s67, 10')
    a('s_add_u32 s67, s67, %d' % (LDS_W2S + 8192))
    a('s_cselect_b32 s67, s67, s67')
    a('v_lshrrev_b32 v12, 3, v1')
    a('s_and_b32 s69, s%d, 3' % W)
    a('s_lshl_b32 s69, s69, 3')
    a('v_add_u32 v12, s69, v12')
    a('v_mul_u32_u24 v12, 1280, v12')
    a('v_and_b32 v13, 7, v1')
    a('v_lshl_add_u32 v219, v13, 4, v12')
    L2 = a.newlabel('W2')
    w2l = [item('buffer_load_dwordx4 v219, %s, s65 offen lds' % s(SH, 4), pre='s_add_u32 m0, s%d, %d' % (LW, LDS_W2S), vm='w2'),
           item(['s_cmp_ge_u32 s%d, 4' % W, 's_cbranch_scc1 %s' % L2, 's_mov_b32 m0, s67', 's_nop 0',
                 'buffer_load_dwordx4 v219, %s, s66 offen lds' % s(SH, 4), L2 + ':'], vm='w2?')]
    for it in w2l: g.emit(it)
    a('s_barrier')
    for it in g1_dma_items(1): g.emit(it)
    g.emit(item(capture_l(a, go_issue), vm='go'))
    srd(a, SH, P_WS, SZ_W, WS_W2P)
    g.wait(vm=[('st', 0), 'gw', 'w2', 'w2?'])
    a('s_barrier')
    stamp(a, 2)
    if OPT['prio']:
        L = a.newlabel('PR')
        a('s_cmp_lt_u32 s%d, 4' % W)
        a('s_cbranch_scc1 %s' % L)
        a('s_setprio 1')
        a.label(L)
    for it in g.read_items(0, 0): g.emit(it)
    d = [g1_dma_items(i) for i in range(10)] + [[], [], []]
    ld = OPT['lead']
    t0 = []
    for st_ in range(OPT['tp'], ld): t0 += touch_item(st_)
    w2r = [item('ds_read_b64_tr_b16 v[228:229], v236', lg='w2f'), item('ds_read_b64_tr_b16 v[230:231], v236 offset:1024', lg='w2f'),
           item('ds_read_b64_tr_b16 v[232:233], v236 offset:8192', lg='w2f'), item('ds_read_b64_tr_b16 v[234:235], v236 offset:9216', lg='w2f')]
    w2s = [item('buffer_store_dwordx4 v[228:231], v237, %s, s11 offen sc1' % s(SH, 4),
                pre=['s_lshl_b32 s11, s%d, 2' % U0, 's_and_b32 s69, s%d, 3' % W, 's_add_u32 s11, s11, s69', 's_lshl_b32 s11, s11, 10'], vm='w2s', needlg=['w2f']),
           item('buffer_store_dwordx4 v[232:235], v237, %s, s11 offen sc1' % s(SH, 4),
                pre=['s_add_u32 s11, s11, %d' % (20 * 4096), 's_cmp_lt_u32 s%d, 4' % W, 's_cselect_b32 s11, s11, 0x7000000'], vm='w2s')]
    g.step(0, {0: w2r + t0 + d[2][0:2], 1: d[2][2:6], 2: w2s + touch_item(ld), 3: d[3][0:2]})
    g.step(1, {0: d[3][2:4], 1: d[3][4:6], 2: touch_item(ld + 1), 3: [item(GO_FETCH, lg='go')] + d[4][0:2]}, before_barrier=go_check, needvm=['go'])
    fw = item(['s_lshl_b32 s11, s%d, 3' % GID, 's_add_u32 s11, s11, %s' % hex(F_W), 's_cmp_eq_u32 s%d, 0' % W,
               's_cselect_b32 s11, s11, %s' % hex(OOB)] + capture_l(a, lambda a: set_flag(a, 11)), vm='fw')
    g.step(2, {0: d[4][2:4], 1: d[4][4:6], 2: touch_item(ld + 2) + [item(capture_l(a, go_sgpr), needlg=['go'])], 3: [fw] + d[5][0:2]}, needvm=['w2s'])
    srd(a, SH, P_WS, SZ_H, None if WS_H == 0 else WS_H)
    g.step(3, {0: d[5][2:4], 1: d[5][4:6], 2: touch_item(ld + 3), 3: d[6][0:2]})
    g.step(4, {0: d[6][2:4], 1: d[6][4:6], 2: touch_item(ld + 4), 3: d[7][0:2]})
    return g, d

def capture_l(a, fn):
    return [l.strip() for l in capture(a, lambda: fn(a))]

def gemm1_tail(a, g, d, role):
    g = g.fork()
    pf = [item(PF_LOAD, vm='pf')]
    ex = {s_: {0: d[s_ + 2][2:4], 1: d[s_ + 2][4:6], 2: touch_item(s_ + OPT['lead']), 3: d[s_ + 3][0:2]} for s_ in range(5, 10)}
    bb = {}; nv = {}
    post = []
    if role == 'G2':
        ex[6][0] = pf + ex[6][0]
        bb[6] = fw_check; nv[6] = ['pf']
        ex[5][0] = ex[5][0] + [item(capture_l(a, g2_pre))]
        w = []
        for p in range(5): w += g2_w_items(p, p)
        plan = [(6, 3, 1), (7, 0, 1), (7, 1, 1), (7, 2, 3), (7, 3, 3), (8, 0, 3), (8, 1, 3), (8, 2, 3), (8, 3, 3), (9, 0, 2), (9, 1, 2)]
        k = 0
        for (s_, kk, n) in plan:
            ex[s_][kk] = ex[s_][kk] + w[k:k + n]; k += n
        assert k == 25
        l0 = g2_wl_items(5, 0)
        ex[9][2] = l0[0:2]; ex[9][3] = l0[2:5]
        post = g2_wl_items(6, 1) + g2_wl_items(7, 2) + g2_wl_items(8, 3)
    elif role == 'CV':
        ex[5][0] = ex[5][0] + [item(['s_mov_b32 s7, s%d' % GID, 's_mov_b32 s%d, %d' % (CV_RB, CONV_BASE), 's_movk_i32 s%d, 1000' % CV_NX] + capture_l(a, cv_pre))]
        ex[5][2] = ex[5][2] + [item(['s_mov_b32 exec_hi, 0', 'buffer_load_dword v246, v246, s[72:75], 0 offen', 's_mov_b64 exec, -1'], vm='touch2')]
        hd = cv_h_items()
        ex[7][3] = hd[0:2]; ex[8][0] = hd[2:4]
        ex[8][3] = pf
        nv[9] = ['cvh']
        ex[9][3] = [item(capture_l(a, cv_try_u), needvm=['pf'])]
    for s_ in range(5, 10):
        if s_ == 5: stamp(a, 3)
        g.step(s_, ex[s_], before_barrier=bb.get(s_), needvm=nv.get(s_, ()))
    stamp(a, 4)
    for sh in (1, 2):
        a('v_add_f32_dpp v217, v217, v217 quad_perm:%s row_mask:0xf bank_mask:0xf' % ('[1,0,3,2]' if sh == 1 else '[2,3,0,1]'))
        a('s_nop 1')
    a('v_add_f32_dpp v217, v217, v217 row_half_mirror row_mask:0xf bank_mask:0xf')
    a('s_mov_b32 s60, %s' % NLOG2E)
    a('s_mov_b32 s61, %s' % NLOG2E)
    a('v_mul_f32 v217, s60, v217')
    a('v_exp_f32 v217, v217')
    a('v_lshrrev_b32 v218, 3, v1')
    a('v_add_f32 v217, 1.0, v217')
    a('v_rcp_f32 v217, v217')
    a('v_lshlrev_b32 v218, 2, v218')
    srd(a, SX, P_WS, 8192, WS_G)
    a('s_mov_b32 exec_lo, 0x01010101')
    a('s_mov_b32 exec_hi, 0x01010101')
    a('buffer_store_dword v217, v218, %s, s%d offen sc1' % (s(SX, 4), GO))
    a('s_mov_b64 exec, -1')
    T = G1_FR
    for nt in range(2):
        for jp in range(2):
            G = G1_ACC + nt * 16 + 8 * jp
            U = G1_ACC + (2 + nt) * 16 + 8 * jp
            for i in range(0, 8, 2):
                a('v_pk_mul_f32 %s, %s, s[60:61]' % (v(T + i, 2), v(G + i, 2)))
            for i in range(0, 8, 2):
                a('v_exp_f32 v%d, v%d' % (T + i, T + i))
                a('v_exp_f32 v%d, v%d' % (T + i + 1, T + i + 1))
                a('v_pk_mul_f32 %s, %s, %s' % (v(G + i, 2), v(G + i, 2), v(U + i, 2)))
            for i in range(0, 8, 2):
                a('v_pk_add_f32 %s, %s, 1.0 op_sel_hi:[1,0]' % (v(T + i, 2), v(T + i, 2)))
            for i in range(8):
                a('v_rcp_f32 v%d, v%d' % (T + i, T + i))
            a('s_nop 0')
            for i in range(0, 8, 2):
                a('v_pk_mul_f32 %s, %s, %s' % (v(G + i, 2), v(G + i, 2), v(T + i, 2)))
            O = T + 16 + 8 * nt + 4 * jp
            for i in range(4):
                a('v_cvt_pk_bf16_f32 v%d, v%d, v%d' % (O + i, G + 2 * i, G + 2 * i + 1))
            a('buffer_store_dwordx4 %s, v213, %s, s%d offen offset:%d sc1' % (v(O, 4), s(SH, 4), HO, nt * 2048 + jp * 512))
    if role == 'CV':
        L = a.newlabel('UOK')
        a('s_cmp_eq_u32 s%d, 1' % CV_T)
        a('s_cbranch_scc1 %s' % L)
        a('s_waitcnt vmcnt(0)')
        set_flag(a, S_F1)
        poll_check(a, PF_LOAD, 244, 11, sleep=2)
        cv_u_loads(a)
        a('s_waitcnt vmcnt(0)')
        a.label(L)
        a('s_waitcnt vmcnt(5)')
        stamp(a, 5)
    else:
        for it in post[:5]: g.emit(it)
        a('s_waitcnt vmcnt(%d)' % len(post[:5]))
        set_flag(a, S_F1)
        stamp(a, 5)
        for it in post[5:]: g.emit(it)

def prep_pre(a):
    PID, W = 8, S_W
    a('s_mul_i32 s65, s%d, 205' % PID)
    a('s_lshr_b32 s65, s65, 11')
    a('s_mul_i32 s66, s65, 10')
    a('s_sub_u32 s66, s%d, s66' % PID)
    a('s_lshl_b32 s%d, s66, 4' % S_F1)
    a('s_add_u32 s%d, s%d, s65' % (S_F1, S_F1))
    a('s_lshl_b32 s%d, s%d, 3' % (S_F1, S_F1))
    a('s_add_u32 s%d, s%d, %s' % (S_F1, S_F1, hex(F_U)))
    a('s_cmp_eq_u32 s%d, 0' % W)
    a('s_cselect_b32 s%d, s%d, %s' % (S_F1, S_F1, hex(OOB)))
    a('s_lshl_b32 s67, s65, 9')
    a('s_lshl_b32 s68, s%d, 6' % W)
    a('s_add_u32 s67, s67, s68')
    a('v_and_b32 v2, 0x38, v1')
    a('v_add_u32 v2, s67, v2')
    a('v_and_b32 v3, 7, v1')
    a('s_lshl_b32 s68, s66, 3')
    a('v_add_u32 v3, s68, v3')
    a('v_mul_u32_u24 v4, 1280, v2')
    a('v_lshl_add_u32 v4, v3, 4, v4')
    a('v_subrev_u32 v5, 3840, v4')
    a('v_lshlrev_b32 v6, 6, v3')

def prep(a):
    SA, SB, SC, SD = 44, 48, 52, 56
    C5120, MASK, T = 60, 61, 62
    srd(a, SA, P_K, SZ_ACT)
    srd(a, SB, P_V, SZ_ACT)
    srd(a, SC, P_SK, 640 * 8)
    a('s_movk_i32 s%d, 5120' % C5120)
    KR, VR, WR = 16, 60, 92
    for r in range(8):
        a('buffer_load_dwordx4 %s, v4, %s, %s offen offset:%d' % (v(KR + 12 + 4 * r, 4), s(SA, 4), '0' if r < 4 else 's%d' % C5120, 1280 * (r & 3)))
    for r in range(3):
        a('buffer_load_dwordx4 %s, v5, %s, 0 offen offset:%d' % (v(KR + 4 * r, 4), s(SA, 4), 1280 * r))
    for i in range(4):
        a('buffer_load_dwordx4 %s, v6, %s, 0 offen offset:%d' % (v(WR + 4 * i, 4), s(SC, 4), 16 * i))
    for r in range(8):
        a('buffer_load_dwordx4 %s, v4, %s, %s offen offset:%d' % (v(VR + 4 * r, 4), s(SB, 4), '0' if r < 4 else 's%d' % C5120, 1280 * (r & 3)))
    stamp(a, 1)
    flag_srd(a)
    srd(a, SD, P_WS, SZ_ACT, WS_UT)
    a('v_lshlrev_b32 v12, 15, v3')
    a('v_sub_u32 v13, 2040, v2')
    a('v_lshl_add_u32 v12, v13, 1, v12')
    a('s_mov_b32 s%d, 0xffff0000' % MASK)
    a('s_waitcnt vmcnt(8)')
    stamp(a, 2)
    KU, WU, AC, VU, OUT = 108, 130, 138, 202, 218
    for dw in range(4):
        for r in range(11):
            a('v_lshlrev_b32 v%d, 16, v%d' % (KU + 2 * r, KR + 4 * r + dw))
            a('v_and_b32 v%d, s%d, v%d' % (KU + 2 * r + 1, MASK, KR + 4 * r + dw))
        for ch in range(2):
            for t in range(4):
                src = WR + 4 * dw + 2 * ch + (t >> 1)
                if t & 1:
                    a('v_and_b32 v%d, s%d, v%d' % (WU + 2 * t + ch, MASK, src))
                else:
                    a('v_lshlrev_b32 v%d, 16, v%d' % (WU + 2 * t + ch, src))
        A = AC + 16 * dw
        for r in range(8):
            a('v_pk_mul_f32 %s, %s, %s' % (v(A + 2 * r, 2), v(KU + 2 * r, 2), v(WU + 6, 2)))
        for t in (2, 1, 0):
            for r in range(8):
                a('v_pk_fma_f32 %s, %s, %s, %s' % (v(A + 2 * r, 2), v(KU + 2 * (r + 3 - t), 2), v(WU + 2 * t, 2), v(A + 2 * r, 2)))
    a('s_waitcnt vmcnt(0)')
    go_issue(a)
    for dw in range(4):
        A = AC + 16 * dw
        for r in range(8):
            a('v_lshlrev_b32 v%d, 16, v%d' % (VU + 2 * r, VR + 4 * r + dw))
            a('v_and_b32 v%d, s%d, v%d' % (VU + 2 * r + 1, MASK, VR + 4 * r + dw))
        for r in range(8):
            a('v_pk_mul_f32 %s, %s, %s' % (v(A + 2 * r, 2), v(A + 2 * r, 2), v(VU + 2 * r, 2)))
        O = OUT + 8 * (dw & 1)
        for ch in range(2):
            for i in range(4):
                a('v_cvt_pk_bf16_f32 v%d, v%d, v%d' % (O + 4 * ch + i, A + 2 * (7 - 2 * i) + ch, A + 2 * (6 - 2 * i) + ch))
        for ch in range(2):
            a('s_mov_b32 s%d, %d' % (T, (2 * dw + ch) * 4096))
            a('buffer_store_dwordx4 %s, v12, %s, s%d offen sc1' % (v(O + 4 * ch, 4), s(SD, 4), T))
    stamp(a, 3)
    a('s_waitcnt vmcnt(0)')
    go_check(a)
    a('s_barrier')
    set_flag(a, S_F1)
    a(GO_FETCH)
    a('s_waitcnt lgkmcnt(0)')
    go_sgpr(a)
    stamp(a, 5)

CW = 13824
C_HA, C_HB, C_U = 0, 4640, 9280
C_EX = 2 * CW
CV_RB, CV_DO, CV_LB, CV_T, CV_DV, CV_W, CV_NX, CV_TG = 65, 66, 67, 68, 69, 9, 8, 71
def cv_pre(a):
    srd(a, 72, P_SSMK, SZ_ACT)
    a('s_and_b32 s%d, s%d, 3' % (CV_W, S_W))
    a('s_lshr_b32 s%d, s%d, 1' % (CV_T, CV_W))
    a('s_lshl_b32 s%d, s7, 1' % CV_DO)
    a('s_add_u32 s%d, s%d, s%d' % (CV_DO, CV_DO, CV_T))
    a('s_lshl_b32 s%d, s%d, 12' % (CV_DO, CV_DO))
    a('s_mul_i32 s%d, s%d, %d' % (CV_LB, CV_T, CW))
    a('s_add_u32 s%d, s%d, s%d' % (CV_LB, CV_LB, CV_RB))
    a('v_add_u32 v238, s%d, v237' % CV_DO)
    a('s_and_b32 s%d, s%d, 1' % (CV_T, CV_W))
    a('s_lshl_b32 s11, s%d, 1' % CV_T)
    a('v_subrev_u32 v239, s11, v238')
    a('s_mul_i32 s%d, s%d, %d' % (CV_DV, CV_T, C_HB))
    a('s_add_u32 s%d, s%d, s%d' % (CV_DV, CV_DV, CV_LB))
    a('v_lshl_add_u32 v246, v1, 7, s%d' % CV_DO)
    a('s_lshr_b32 s11, s7, 5')
    a('s_lshl_b32 s11, s11, 7')
    a('s_add_u32 s11, s11, %s' % hex(F_U))
    a('v_min_u32 v248, 3, v1')
    a('v_lshl_add_u32 v248, v248, 3, s11')
    a('s_mul_i32 s11, s7, 1639')
    a('s_lshr_b32 s11, s11, 16')
    a('s_mul_i32 s%d, s11, 40' % S_F2)
    a('s_sub_u32 s%d, s7, s%d' % (S_F2, S_F2))
    a('s_lshl_b32 s11, s11, 2')
    a('s_add_u32 s11, s11, s%d' % CV_W)
    a('s_lshl_b32 s11, s11, 6')
    a('s_add_u32 s%d, s%d, s11' % (S_F2, S_F2))
    a('s_lshl_b32 s%d, s%d, 3' % (S_F2, S_F2))
    a('s_add_u32 s%d, s%d, %s' % (S_F2, S_F2, hex(F_Z)))
    a('s_mov_b32 s%d, 0' % CV_T)
def cv_h_items():
    return [item('buffer_load_dwordx4 v239, s[72:75], 0 offen offset:%d lds' % (i * 1024),
                 pre=['s_add_u32 m0, s%d, 512' % CV_DV] if i == 0 else [], vm='cvh') for i in range(4)]
def cv_u_loads(a):
    srd(a, 48, P_WS, SZ_ACT, WS_UT)
    a('s_add_u32 m0, s%d, %d' % (CV_LB, C_U))
    a('s_nop 0')
    for i in range(4):
        a('buffer_load_dwordx4 v238, s[48:51], 0 offen offset:%d sc1 lds' % (i * 1024))
def cv_try_u(a):
    L = a.newlabel('UT')
    a('v_cmp_eq_u64 vcc, %s, v[244:245]' % NC)
    a('s_cmp_eq_u64 vcc, -1')
    a('s_cbranch_scc0 %s' % L)
    cv_u_loads(a)
    a('s_mov_b32 s%d, 1' % CV_T)
    a.label(L)
def gsync_init(a):
    a('s_cmp_lt_u32 s%d, 4' % S_W)
    a('s_cselect_b32 s11, 16, 0')
    a('v_add_u32 v249, s11, v254')
    a('s_mov_b32 s%d, 0' % CV_TG)
def gsync_arrive(a):
    a('s_waitcnt lgkmcnt(0)')
    a('s_mov_b64 exec, 1')
    a('ds_add_u32 v249, v253')
    a('s_mov_b64 exec, -1')
    a('s_add_u32 s%d, s%d, 4' % (CV_TG, CV_TG))
def gsync_wait(a):
    L, Dn = a.newlabel('CS'), a.newlabel('CSD')
    a('s_mov_b32 s11, 0x400000')
    a.label(L)
    a('ds_read_b32 v247, v249')
    a('s_waitcnt lgkmcnt(0)')
    a('v_cmp_le_u32 vcc, s%d, v247' % CV_TG)
    a('s_cbranch_vccnz %s' % Dn)
    a('s_sub_u32 s11, s11, 1')
    a('s_cbranch_scc0 %s' % L)
    a.label(Dn)

def conv(a):
    SZ, RB, DO, LB, T, DV, W = 44, CV_RB, CV_DO, CV_LB, CV_T, CV_DV, CV_W
    if OPT['cprio']: a('s_setprio %d' % OPT['cprio'])
    a('s_lshl_b32 s%d, s7, 2' % T)
    a('s_load_dword s%d, s[%d:%d], s%d' % (DV, P_SSMD, P_SSMD + 1, T))
    a('v_mov_b32 v6, s%d' % LB)
    a('ds_read_b128 v[16:19], v6 offset:%d' % (C_HA + 512))
    a('v_mov_b32 v4, 0')
    a('v_mov_b32 v5, 0')
    a('v_lshl_add_u32 v2, v1, 3, s%d' % LB)
    a('ds_write_b64 v2, v[4:5] offset:%d' % C_HA)
    a('ds_write_b64 v2, v[4:5] offset:%d' % C_HB)
    a('v_lshl_add_u32 v2, v1, 2, s%d' % LB)
    a('ds_write_b32 v2, v4 offset:%d' % (C_U + 4096))
    a('s_and_b32 s11, s%d, 1' % W)
    a('s_lshl_b32 s11, s11, 8')
    a('s_add_u32 s11, s11, s%d' % LB)
    a('v_and_b32 v7, 1, v1')
    a('v_xor_b32 v7, 1, v7')
    a('v_mul_u32_u24 v7, %d, v7' % (C_HB - C_HA))
    a('v_bfe_u32 v8, v1, 1, 3')
    a('v_lshl_add_u32 v7, v8, 6, v7')
    a('v_lshrrev_b32 v8, 4, v1')
    a('v_lshl_add_u32 v7, v8, 4, v7')
    a('s_add_u32 s%d, s11, %d' % (T, C_HA + 64))
    a('v_add_u32 v7, s%d, v7' % T)
    a('v_and_b32 v13, 15, v1')
    a('v_lshlrev_b32 v13, 2, v13')
    a('v_lshlrev_b32 v9, 4, v8')
    a('v_sub_u32 v9, v9, v13')
    a('s_add_u32 s%d, s11, %d' % (T, C_U + 60))
    a('v_add_u32 v9, s%d, v9' % T)
    for i in range(1, 4):
        a('v_add_u32 v%d, %d, v9' % (9 + i, 1024 * i))
    a('s_waitcnt lgkmcnt(0)')
    a('v_alignbit_b32 v23, v19, v18, 16')
    a('v_alignbit_b32 v22, v18, v17, 16')
    a('v_alignbit_b32 v21, v17, v16, 16')
    a('v_lshlrev_b32 v20, 16, v16')
    a('ds_write_b128 v6, v[20:23] offset:%d' % (C_HB + 512))
    ACC = 16
    GB = [48, 112]
    FB = [80, 144]
    def reads(j, b):
        for i in range(8):
            a('ds_read_b128 %s, v7 offset:%d' % (v(GB[b] + 4 * i, 4), 64 * j + 512 * i))
            rb = 7 - i
            o = (512 * (rb & 1) + 64 * j) // 4
            a('ds_read2_b32 %s, v%d offset0:%d offset1:%d' % (v(FB[b] + 4 * i, 2), 9 + (rb >> 1), o, o + 1))
            a('ds_read2_b32 %s, v%d offset0:%d offset1:%d' % (v(FB[b] + 4 * i + 2, 2), 9 + (rb >> 1), o + 2, o + 3))
    reads(0, 0)
    a('v_lshl_add_u32 v15, v8, 7, v13')
    a('s_lshl_b32 s11, s%d, 10' % W)
    a('s_sub_u32 s%d, s%d, s11' % (T, RB))
    a('s_add_u32 s%d, s%d, %d' % (T, T, C_U + 444 + 3072))
    a('v_sub_u32 v14, s%d, v15' % T)
    a('v_lshlrev_b32 v15, 1, v15')
    a('s_lshl_b32 s11, s%d, 13' % W)
    a('s_add_u32 s11, s11, s%d' % RB)
    a('v_add_u32 v2, s11, v237')
    a('s_lshl_b32 s11, s%d, 11' % W)
    a('s_add_u32 s%d, s11, s%d' % (T, RB))
    a('v_add_u32 v3, s%d, v237' % T)
    a('s_lshl_b32 s%d, s7, 13' % DO)
    a('s_add_u32 s%d, s%d, s11' % (DO, DO))
    srd(a, SZ, P_WS, SZ_ACT, WS_Z4)
    stamp(a, 7)
    for j in range(4):
        b = j & 1
        if j == OPT['cflag']:
            a('s_waitcnt vmcnt(0)')
            set_flag(a, S_F1)
            stamp(a, 6)
        a('s_waitcnt lgkmcnt(0)')
        ms = []
        for n in range(8):
            for aa in range(n + 1):
                acc = v(ACC + 4 * n, 4)
                first = (j == 0 and aa == 0)
                ms.append('    v_mfma_f32_16x16x32_bf16 %s, %s, %s, %s' % (acc, v(GB[b] + 4 * aa, 4), v(FB[b] + 4 * (n - aa), 4), '0' if first else acc))
        if j < 3:
            nxt = dict(enumerate(capture(a, lambda: reads(j + 1, b ^ 1))))
        else:
            nxt = {}
            for n in range(8):
                nxt[(n + 1) * (n + 2) // 2 - 1 + 9] = '    ds_write_b128 v2, %s offset:%d' % (v(ACC + 4 * n, 4), C_EX + 1024 * n)
        for i, m in enumerate(ms):
            a.lines.append(m)
            if i in nxt: a.lines.append(nxt.pop(i))
        if nxt:
            stamp(a, 8)
            a('s_lshl_b32 s%d, s%d, 16' % (T, DV))
            a('s_and_b32 s%d, s%d, 0xffff0000' % (DV, DV))
            a('s_nop 6')
            for i in sorted(nxt): a.lines.append(nxt[i])
    gsync_arrive(a)
    gsync_wait(a)
    stamp(a, 9)
    P = 48
    for c in range(2):
        for t in range(2):
            for h in range(2):
                a('ds_read_b128 %s, v3 offset:%d' % (v(P + 16 * c + 8 * t + 4 * h, 4), C_EX + (2 * c + h) * 8192 + t * 1024))
    UR = 80
    for c in range(2):
        for t in range(2):
            for hh in range(2):
                a('ds_read_b32 v%d, v14 offset:%d' % (UR + 4 * c + 2 * t + hh, c * CW + 512 * (1 - t) + 64 * (1 - hh)))
    a('s_mov_b32 s11, 0xffff0000')
    a('s_waitcnt lgkmcnt(8)')
    for c in range(2):
        for t in range(2):
            R = P + 16 * c + 8 * t
            a('v_pk_add_f32 %s, %s, %s' % (v(R, 2), v(R, 2), v(R + 4, 2)))
            a('v_pk_add_f32 %s, %s, %s' % (v(R + 2, 2), v(R + 2, 2), v(R + 6, 2)))
    a('s_waitcnt lgkmcnt(0)')
    for t in range(2):
        for hh in range(2):
            for c in range(2):
                u = UR + 4 * c + 2 * t + hh
                R = P + 16 * c + 8 * t + 2 * hh
                dv = T if c == 0 else DV
                a('v_and_b32 v%d, s11, v%d' % (96 + c, u))
                a('v_lshlrev_b32 v%d, 16, v%d' % (u, u))
                a('v_fmac_f32 v%d, s%d, v%d' % (R, dv, 96 + c))
                a('v_fmac_f32 v%d, s%d, v%d' % (R + 1, dv, u))
            R0, R1 = P + 8 * t + 2 * hh, P + 16 + 8 * t + 2 * hh
            O = 100 + 4 * t + 2 * hh
            a('v_cvt_pk_bf16_f32 v%d, v%d, v%d' % (O, R0, R1))
            a('v_cvt_pk_bf16_f32 v%d, v%d, v%d' % (O + 1, R0 + 1, R1 + 1))
            a('buffer_store_dwordx2 %s, v15, %s, s%d offen offset:%d sc1' % (v(O, 2), s(SZ, 4), DO, t * 1024 + hh * 128))
    a('s_cmp_ge_u32 s%d, 320' % CV_NX)
    a('s_cbranch_scc0 K_conv_more')
    a('s_waitcnt vmcnt(0)')
    set_flag(a, S_F2)
    stamp_end(a)
    a('s_endpgm')

G2_SW = 72
G2_KB, G2_O, G2_T, G2_T2, G2_LB, G2_RB, G2_CB = 65, 66, 67, 68, 69, 8, 9
G2_ACC, G2_WB, G2_HB = 28, 108, 208
def g2_lds(r):
    return (49152 + r * 20480) if r < 2 else ((r - 2) * 20480)
def g2_ks(p, dst):
    L = ['s_add_u32 s%d, s%d, %d' % (dst, G2_KB, 4 * p),
         's_cmp_ge_u32 s%d, 54' % dst,
         's_cselect_b32 s%d, 54, 0' % G2_T,
         's_sub_u32 s%d, s%d, s%d' % (dst, dst, G2_T)]
    if p == 13:
        L += ['s_cmp_ge_u32 s%d, 2' % S_W, 's_cselect_b32 s%d, 60, s%d' % (dst, dst)]
    return L
def g2_w_items(p, slot, va=237):
    B = G2_WB + 20 * slot
    it = []
    for t in range(5):
        pre = g2_ks(p, G2_O) + ['s_mul_i32 s%d, s%d, 40960' % (G2_O, G2_O)] if t == 0 else []
        it.append(item('buffer_load_dwordx4 %s, v%d, %s, s%d offen offset:%d sc1' % (v(B + 4 * t, 4), va if t < 4 else va + 1, s(G2_SW, 4), G2_O, (t & 3) * 1024), pre, vm=('w', p)))
    return it
def g2_wl_items(p, r):
    it = []
    for t in range(5):
        pre = []
        if t == 0:
            pre = g2_ks(p, G2_O) + ['s_mul_i32 s%d, s%d, 40960' % (G2_O, G2_O), 's_add_u32 m0, s%d, %d' % (G2_LB, g2_lds(r))]
        if t == 4:
            pre = ['s_add_u32 m0, s%d, %d' % (G2_LB, g2_lds(r) + 4096)]
        it.append(item('buffer_load_dwordx4 v%d, %s, s%d offen offset:%d sc1 lds' % (237 if t < 4 else 238, s(G2_SW, 4), G2_O, (t & 3) * 1024), pre, vm=('wl', p)))
    return it
def g2_pre(a):
    RB, CB, T, T2 = G2_RB, G2_CB, G2_T, G2_T2
    a('s_lshl_b32 s%d, s3, 2' % RB)
    a('s_lshr_b32 s%d, s4, 3' % CB)
    a('s_add_u32 s%d, s%d, s%d' % (RB, RB, CB))
    a('s_and_b32 s%d, s4, 7' % CB)
    a('s_mul_i32 s%d, s%d, 5120' % (T, CB))
    a('s_add_u32 s%d, s%d, %s' % (T, T, hex(WS_W2P)))
    srd(a, G2_SW, P_WS, 53 * 40960 + 5120, 's%d' % T)
    if OPT['rot2']:
        a('s_and_b32 s%d, s%d, 3' % (T, RB))
        a('s_mul_i32 s%d, s%d, %d' % (T, T, 13 if OPT['rot2r'] else 0))
        a('s_mul_i32 s%d, s%d, 7' % (T2, CB))
        a('s_add_u32 s%d, s%d, s%d' % (T, T, T2))
        a('s_add_u32 s%d, s%d, s%d' % (T, T, S_W))
        a('s_cmp_ge_u32 s%d, 54' % T)
        a('s_cselect_b32 s%d, 54, 0' % T2)
        a('s_sub_u32 s%d, s%d, s%d' % (G2_KB, T, T2))
    else:
        a('s_mov_b32 s%d, s%d' % (G2_KB, S_W))
    a('s_mul_i32 s%d, s%d, 5120' % (G2_LB, S_W))
    a('v_add_u32 v238, 4096, v237')
    a('s_mul_i32 s%d, s%d, 5' % (T, CB))
    a('s_lshr_b32 s%d, s%d, 2' % (T, T))
    a('s_mul_i32 s%d, s%d, 144' % (T, T))
    a('s_add_u32 s%d, s%d, %s' % (T, T, hex(F_W)))
    a('s_cmp_eq_u32 s%d, 0' % S_W)
    a('s_cselect_b32 s%d, s%d, %s' % (T, T, hex(OOB)))
    a('v_min_u32 v248, 35, v1')
    a('v_lshl_add_u32 v248, v248, 3, s%d' % T)

def gemm2(a):
    RB, CB, W = G2_RB, G2_CB, S_W
    SHh, SQ, SZ, SG, SO = 56, 52, 44, 60, 48
    O, T, T2 = G2_O, G2_T, G2_T2
    ACC, WB, HB = G2_ACC, G2_WB, G2_HB
    DH = 3
    a('s_setprio 0')
    a('v_mov_b32 v2, v237')
    a('v_mov_b32 v3, v238')
    a('v_min_u32 v22, 53, v1')
    a('s_lshl_b32 s%d, s%d, 9' % (T, RB))
    a('v_lshl_add_u32 v22, v22, 3, s%d' % T)
    FH_LOAD = 'buffer_load_dwordx2 v[26:27], v22, %s, 0 offen sc1' % s(SF, 4)
    a('s_mul_i32 s%d, s%d, %d' % (T, RB, 54 * 4096))
    if WS_H: a('s_add_u32 s%d, s%d, %s' % (T, T, hex(WS_H)))
    srd(a, SHh, P_WS, 54 * 4096, 's%d' % T)
    srd(a, SQ, P_Q, SZ_ACT)
    a('s_lshl_b32 s%d, s%d, 6' % (T, RB))
    a('s_lshl_b32 s%d, s%d, 4' % (T2, W))
    a('s_add_u32 s%d, s%d, s%d' % (T, T, T2))
    a('v_and_b32 v8, 15, v1')
    a('v_add_u32 v8, s%d, v8' % T)
    a('v_lshrrev_b32 v9, 4, v1')
    a('v_mul_u32_u24 v10, 1280, v8')
    a('v_lshl_add_u32 v10, v9, 3, v10')
    a('s_mul_i32 s%d, s%d, 160' % (T, CB))
    a('v_add_u32 v10, s%d, v10' % T)
    for mt in range(5):
        a('buffer_load_dwordx2 %s, v10, %s, 0 offen offset:%d' % (v(12 + 2 * mt, 2), s(SQ, 4), 32 * mt))
    a('v_lshlrev_b32 v11, 14, v9')
    a('v_lshl_add_u32 v11, v8, 2, v11')
    a('s_mul_i32 s%d, s%d, %d' % (T, CB, 40 * 8192))
    a('v_add_u32 v11, s%d, v11' % T)
    a('v_lshlrev_b32 v8, 2, v8')
    srd(a, SZ, P_WS, SZ_ACT, WS_Z4)
    srd(a, SG, P_WS, 8192, WS_G)
    srd(a, SO, P_OUT, SZ_ACT)
    for j in range(4):
        a('s_xor_b32 s%d, s%d, %d' % (T, W, j))
        a('s_lshl_b32 s%d, s%d, 10' % (T, T))
        a('v_add_u32 v%d, s%d, v2' % (4 + j, T))
    a('v_add_u32 v24, s%d, v2' % G2_LB)
    a('s_lshl_b32 s%d, s%d, 2' % (T, CB))
    a('s_lshr_b32 s%d, s%d, 3' % (T2, RB))
    a('s_add_u32 s%d, s%d, s%d' % (T, T, T2))
    a('s_lshl_b32 s%d, s%d, 9' % (T, T))
    a('s_add_u32 s%d, s%d, %s' % (T, T, hex(F_Z)))
    a('v_min_u32 v25, 39, v1')
    a('v_lshl_add_u32 v25, v25, 3, s%d' % T)
    FZ_LOAD = 'buffer_load_dwordx2 v[26:27], v25, %s, 0 offen sc1' % s(SF, 4)
    stamp(a, 6)
    LW_, LD_, LL_ = a.newlabel('HW'), a.newlabel('HD'), a.newlabel('HL')
    a('s_cmp_lg_u32 s%d, 0' % W)
    a('s_cbranch_scc1 %s' % LW_)
    poll(a, FH_LOAD, 26, T2, sleep=1)
    a('ds_write_b32 v254, v253 offset:4')
    a('s_branch %s' % LD_)
    a.label(LW_)
    a('s_mov_b32 s%d, 0x400000' % T2)
    a.label(LL_)
    a('ds_read_b32 v23, v254 offset:4')
    a('s_waitcnt lgkmcnt(0)')
    a('v_cmp_eq_u32 vcc, 1, v23')
    a('s_cbranch_vccnz %s' % LD_)
    a('s_sleep 1')
    a('s_sub_u32 s%d, s%d, 1' % (T2, T2))
    a('s_cbranch_scc0 %s' % LL_)
    a.label(LD_)
    stamp(a, 7)
    order = [0, 1, 2, 3, 4, 5, 6, 9, 10, 7, 8, 11, 12, 13]
    slot = [0, 1, 2, 3, 4, 3, 4, 0, 1, 3, 4, 2, 0, 1]
    refill = {0: ('g', 9), 1: ('g', 10), 2: ('g', 11), 3: ('l', 5), 4: ('l', 6), 5: ('l', 7), 6: ('l', 8), 7: ('g', 12), 8: ('g', 13)}
    g = G1(a)
    def h_items(r):
        B = HB + 16 * (r % DH)
        return [item('buffer_load_dwordx4 %s, v%d, %s, s%d offen sc1' % (v(B + 4 * t, 4), 4 + t, s(SHh, 4), O),
                     g2_ks(order[r], O) + ['s_lshl_b32 s%d, s%d, 12' % (O, O)] if t == 0 else [], vm=('h', r)) for t in range(4)]
    for r in range(DH):
        for it in h_items(r): g.emit(it)
    g.emit(item('buffer_load_dword v9, v8, %s, 0 offen sc1' % s(SG, 4), vm='x'))
    ZR = WB + 60
    rbuf = [g2_lds(2), g2_lds(3), g2_lds(0)]
    for r in range(14):
        p = order[r]
        g.wait(vm=[('h', r), ('w', p)] + (['fz'] if r == 12 else []), lg=[('wl', p)])
        if r == 12:
            poll_check(a, FZ_LOAD, 26, T2, sleep=1)
            for mt in range(5):
                for h in range(2):
                    g.emit(item('buffer_load_dword v%d, v11, %s, s%d offen sc1' % (ZR + 2 * mt + h, s(SZ, 4), T), 's_mov_b32 s%d, %s' % (T, hex(65536 * mt + 8192 * h)), vm='x'))
        Bw = WB + 20 * slot[r]; Bh = HB + 16 * (r % DH)
        if r < 13:
            for mt in range(5):
                for j in range(4):
                    acc = v(ACC + (j * 5 + mt) * 4, 4)
                    a('v_mfma_f32_16x16x32_bf16 %s, %s, %s, %s' % (acc, v(Bw + 4 * mt, 4), v(Bh + 4 * j, 4), '0' if r == 0 else acc))
        else:
            seq = [(j, mt) for j in (1, 2, 3, 0) for mt in range(5)]
            wr = ['ds_write_b128 v24, %s offset:%d' % (v(ACC + (j * 5 + mt) * 4, 4), rbuf[j - 1] + mt * 1024) for (j, mt) in seq[:15]]
            for i, (j, mt) in enumerate(seq):
                acc = v(ACC + (j * 5 + mt) * 4, 4)
                a('v_mfma_f32_16x16x32_bf16 %s, %s, %s, %s' % (acc, v(Bw + 4 * mt, 4), v(Bh + 4 * j, 4), acc))
                if i >= 9: a(wr[i - 9])
            stamp(a, 8)
            for j in range(1, 4):
                a('s_xor_b32 s%d, s%d, %d' % (T, W, j))
                a('s_mul_i32 s%d, s%d, 5120' % (T, T))
                a('v_add_u32 v%d, s%d, v2' % (4 + j, T))
            for l in wr[11:]: a(l)
        if r == 9:
            g.emit(item(FZ_LOAD, vm='fz'))
        if r + DH < 14:
            for it in h_items(r + DH): g.emit(it)
        if r in refill:
            kind, pp = refill[r]
            if kind == 'g':
                for it in g2_w_items(pp, slot[r], va=2): g.emit(it)
            else:
                lb = g2_lds(pp - 5)
                if lb + 4096 > 65535:
                    a('v_add_u32 v23, %d, v24' % lb); ad, lb = 23, 0
                else: ad = 24
                for t in range(5):
                    g.emit(item('ds_read_b128 %s, v%d offset:%d' % (v(Bw + 4 * t, 4), ad, lb + t * 1024), lg=('wl', pp)))
    a('s_mov_b32 s%d, 0xffff0000' % T)
    a('s_waitcnt vmcnt(0)')
    for mt in range(5):
        for h in range(2):
            qq, z = 12 + 2 * mt + h, ZR + 2 * mt + h
            d = WB + 4 * mt + 2 * h
            a('v_lshlrev_b32 v%d, 16, v%d' % (d, qq))
            a('v_and_b32 v%d, s%d, v%d' % (d + 1, T, qq))
            a('v_lshlrev_b32 v%d, 16, v%d' % (qq, z))
            a('v_and_b32 v%d, s%d, v%d' % (z, T, z))
            a('v_mul_f32 v%d, v%d, v%d' % (d, d, qq))
            a('v_mul_f32 v%d, v%d, v%d' % (d + 1, d + 1, z))
        if mt == 1:
            a('s_waitcnt lgkmcnt(0)')
            a('s_barrier')
            stamp(a, 9)
            for m2 in range(5):
                for j in range(1, 4):
                    a('ds_read_b128 %s, v%d offset:%d' % (v(ACC + (j * 5 + m2) * 4, 4), 4 + j, rbuf[j - 1] + m2 * 1024))
    for i in range(20):
        a('v_mul_f32 v%d, v9, v%d' % (WB + i, WB + i))
    a('v_sub_f32 v9, 1.0, v9')
    for mt in range(5):
        a('s_waitcnt lgkmcnt(%d)' % (3 * (4 - mt)))
        A0 = ACC + 4 * mt
        for h in range(2):
            a('v_pk_add_f32 %s, %s, %s' % (v(A0 + 2 * h, 2), v(A0 + 2 * h, 2), v(A0 + 20 + 2 * h, 2)))
            a('v_pk_add_f32 %s, %s, %s' % (v(A0 + 40 + 2 * h, 2), v(A0 + 40 + 2 * h, 2), v(A0 + 60 + 2 * h, 2)))
        for h in range(2):
            a('v_pk_add_f32 %s, %s, %s' % (v(A0 + 2 * h, 2), v(A0 + 2 * h, 2), v(A0 + 40 + 2 * h, 2)))
        for i in range(4):
            a('v_fmac_f32 v%d, v9, v%d' % (WB + 4 * mt + i, A0 + i))
        a('v_cvt_pk_bf16_f32 v%d, v%d, v%d' % (12 + 2 * mt, WB + 4 * mt, WB + 4 * mt + 1))
        a('v_cvt_pk_bf16_f32 v%d, v%d, v%d' % (13 + 2 * mt, WB + 4 * mt + 2, WB + 4 * mt + 3))
        a('buffer_store_dwordx2 %s, v10, %s, 0 offen offset:%d' % (v(12 + 2 * mt, 2), s(SO, 4), 32 * mt))
    stamp_end(a)
    a('s_endpgm')

def kernel(a, name):
    a.raw('.p2align 8')
    a.label(name)
    a('s_cmp_ge_u32 s2, 256')
    a('s_cbranch_scc1 K_exit')
    a('s_load_dwordx16 s[16:31], s[0:1], 0')
    a('s_load_dwordx8 s[32:39], s[0:1], 64')
    a('s_load_dwordx4 s[40:43], s[0:1], 96')
    a('s_memrealtime s[74:75]')
    stamp_begin(a)
    a('v_lshrrev_b32 v1, 6, v0')
    a('s_and_b32 s3, s2, 7')
    a('v_readfirstlane_b32 s%d, v1' % S_W)
    a('v_and_b32 v1, 63, v0')
    a('s_lshr_b32 s4, s2, 3')
    common_pre(a)
    a('s_and_b32 s65, s3, 3')
    a('s_lshr_b32 s66, s3, 2')
    a('s_cmp_eq_u32 s65, 3')
    a('s_cselect_b32 s67, 24, 28')
    a('s_cmp_ge_u32 s4, s67')
    a('s_cbranch_scc1 K_prep')
    a('s_lshl_b32 s8, s66, 2')
    a('s_and_b32 s9, s4, 3')
    a('s_add_u32 s8, s8, s9')
    a('s_mul_i32 s9, s65, 7')
    a('s_lshr_b32 s11, s4, 2')
    a('s_add_u32 s9, s9, s11')
    gemm1_pre(a)
    a('s_waitcnt lgkmcnt(0)')
    g, d = gemm1_head(a)
    a('s_cmp_lt_u32 s%d, 4' % S_W)
    a('s_cbranch_scc1 K_tail_g2')
    gemm1_tail(a, g, d, 'CV')
    gsync_init(a)
    a.label('K_conv')
    conv(a)
    a.label('K_prep')
    a('s_mul_i32 s8, s66, 3')
    a('s_add_u32 s8, s8, s65')
    a('s_lshl_b32 s8, s8, 2')
    a('s_lshl_b32 s9, s66, 3')
    a('s_add_u32 s9, s9, 24')
    a('s_cmp_eq_u32 s65, 3')
    a('s_cselect_b32 s8, s9, s8')
    a('s_add_u32 s8, s8, s4')
    a('s_sub_u32 s8, s8, s67')
    prep_pre(a)
    a('s_waitcnt lgkmcnt(0)')
    prep(a)
    gsync_init(a)
    a('s_mov_b32 s%d, %s' % (S_F1, hex(OOB)))
    a('s_cmp_lt_u32 s%d, 4' % S_W)
    a('s_cselect_b32 s7, 0, 40')
    a('s_cselect_b32 s%d, 0, %d' % (CV_RB, CONV_BASE))
    a('s_cselect_b32 s11, 0, 296')
    a('s_add_u32 s7, s7, s8')
    a('s_add_u32 s7, s7, 216')
    a('s_add_u32 s%d, s8, s11' % CV_NX)
    a.label('K_conv_load')
    gp = G1(a)
    cv_pre(a)
    for it in cv_h_items(): gp.emit(it)
    poll(a, PF_LOAD, 244, 11, sleep=4)
    cv_u_loads(a)
    gsync_arrive(a)
    gsync_wait(a)
    a('s_waitcnt vmcnt(0)')
    a('s_branch K_conv')
    a.label('K_conv_more')
    gsync_arrive(a)
    a('s_waitcnt vmcnt(0)')
    set_flag(a, S_F2)
    a('s_cmp_lt_u32 s%d, 4' % S_W)
    a('s_cbranch_scc1 K_prep_g2')
    gsync_wait(a)
    a('s_mov_b32 s7, s%d' % CV_NX)
    a('s_movk_i32 s%d, 1000' % CV_NX)
    a('s_branch K_conv_load')
    a.label('K_prep_g2')
    a('s_setprio 0')
    g2_pre(a)
    a(PF_LOAD)
    a('s_waitcnt vmcnt(0)')
    fw_check(a)
    gsync_arrive(a)
    gsync_wait(a)
    for p in range(5):
        for it in g2_w_items(p, p): gp.emit(it)
    for r in range(4):
        for it in g2_wl_items(5 + r, r): gp.emit(it)
    a('s_branch K_gemm2')
    a.label('K_tail_g2')
    gemm1_tail(a, g, d, 'G2')
    a.label('K_gemm2')
    gemm2(a)
    a.label('K_exit')
    a('s_endpgm')

def main(out):
    hdr = open('cdna_kernels/%s.s.ref' % NAME).read().split('\n')
    head = [l for l in hdr if l.startswith(';') and '@launch' not in l and 'Override' not in l and 'grid=ceil' not in l]
    a = Asm()
    for l in head: a.raw(l)
    a.raw('; @launch grid=(256,1,1) block=(512,1,1) lds=%d' % LDS_TOTAL)
    a.raw('.amdgcn_target "amdgcn-amd-amdhsa--gfx950"')
    a.raw('.text')
    nm = NAME + '_kernel'
    a.raw('.globl %s' % nm)
    a.raw('.type %s,@function' % nm)
    kernel(a, nm)
    a.raw('.section .rodata,"a"')
    a.raw(kernel_desc(nm, 256))
    open(out, 'w').write(a.text())

if __name__ == '__main__':
    out = 'cdna_kernels/%s.s' % NAME
    for arg in sys.argv[1:]:
        if '=' in arg:
            k, val = arg.split('='); OPT[k] = int(val)
        else:
            out = arg
    main(out)
```

```python
import sys, copy
from asmlib import *

NAME = 'gated_mix__ssm_conv_h3__glu_gated_swiglu__prompt'
WS_H = 0
WS_W2P = 0x800000
WS_UT = 0xC00000
WS_Z4 = 0x1000000
WS_G = 0x1400000
WS_F = 0x1500000
F_H, F_U, F_W, F_X, F_Z = 0, 0x40000, 0x50000, 0x58000, 0x60000
F_SIZE = 0xA0000
FS = 7
SZ_ACT = 2048 * 640 * 2
SZ_W = 640 * 1728 * 2
SZ_H = 2048 * 1728 * 2
P_Q, P_K, P_V, P_SK, P_SSMK, P_SSMD, P_BX, P_W1, P_W3, P_W2, P_GW, P_OUT, P_DBG, P_WS = [16 + 2 * i for i in range(14)]
NLOG2E = '0xbfb8aa3b'
OPT = dict(rot2=1, stamp=0, prio=0, cprio=1, cflag=0, touch=0, nodma=0, tp=2, lead=3, rot2r=0, rot1=10, eprio=3, gprio=2, fsl=8, ebar=1, npost=0, allwait=0, npre=10, fbar=0, zr=10, fwst=7, local=1, wbl2=0, arf=1, xw=0, xh=0, xsc=0, xq=0, zsl=16, fsx=3, fsh=3, fsw=3, fsu=7, fsz=3, ztrig=5)
LDS_TOTAL = 163840
LDS_CNT = LDS_TOTAL - 32
SLOT = [0, 98304, 49152]
LDS_W2S = 147456
LDS_GW = 159744
CONV_BASE = 98304
S_W = 10
SF = 12
S_F1, S_F2 = 5, 6
S_XCC = 77
WS_DBG = 0x2000000
OOB = 0x1000000

def stamp(a, i, mode=1):
    if OPT['stamp'] == mode:
        a('s_memtime s[%d:%d]' % (80 + 2 * i, 81 + 2 * i))
def stamp_begin(a):
    if OPT['stamp']:
        a('s_memrealtime s[78:79]')
        for i in range(11): a('s_mov_b64 s[%d:%d], 0' % (80 + 2 * i, 81 + 2 * i))
        a('s_memtime s[80:81]')
def stamp_end(a):
    if OPT['stamp']:
        a('s_waitcnt vmcnt(0) lgkmcnt(0)')
        a('s_memtime s[100:101]')
        a('s_memrealtime s[76:77]')
        srd(a, 44, P_WS, 0x100000, WS_DBG)
        a('s_lshl_b32 s5, s2, 3')
        a('s_add_u32 s5, s5, s10')
        a('s_lshl_b32 s5, s5, 6')
        a('s_waitcnt lgkmcnt(0)')
        a('v_mov_b32 v0, s78')
        a('v_mov_b32 v1, s76')
        for i in range(11): a('v_mov_b32 v%d, s%d' % (2 + i, 80 + 2 * i))
        a('v_mov_b32 v16, s5')
        a('s_mov_b64 exec, 1')
        for i in range(4):
            a('buffer_store_dwordx4 v[%d:%d], v16, s[44:47], 0 offen offset:%d' % (4 * i, 4 * i + 3, 16 * i))

def capture(a, fn):
    save = a.lines; a.lines = []
    fn()
    out = a.lines; a.lines = save
    return out

class Q:
    def __init__(self): self.q = []
    def push(self, tag, sure=True): self.q.append((tag, sure))
    def need(self, tags):
        idx = [i for i, (t, _) in enumerate(self.q) if t in tags]
        if not idx: return None
        last = max(idx)
        n = sum(1 for (_, sure) in self.q[last + 1:] if sure)
        self.q = self.q[last + 1:]
        return n
    def clear(self): self.q = []

NC = 's[0:1]'
def poll_check(a, loadline, vtmp, sc, sleep=2):
    L, D = a.newlabel('POLL'), a.newlabel('POLLD')
    a('s_mov_b32 s%d, 0x20000' % sc)
    a.label(L)
    a('v_cmp_eq_u64 vcc, %s, %s' % (NC, v(vtmp, 2)))
    a('s_cmp_eq_u64 vcc, -1')
    a('s_cbranch_scc1 %s' % D)
    a('s_sleep %d' % sleep)
    a(loadline)
    a('s_waitcnt vmcnt(0)')
    a('s_sub_u32 s%d, s%d, 1' % (sc, sc))
    a('s_cbranch_scc0 %s' % L)
    a.label(D)
def poll(a, loadline, vtmp, sc, sleep=2):
    a(loadline)
    a('s_waitcnt vmcnt(0)')
    poll_check(a, loadline, vtmp, sc, sleep)

GO_LOAD = 'buffer_load_dwordx2 v[250:251], v252, s[72:75], s11 offen sc1'
PF_LOAD = 'buffer_load_dwordx2 v[244:245], v248, s[%d:%d], 0 offen sc1' % (SF, SF + 3)

def set_flag(a, soff):
    a('s_mov_b64 exec, 1')
    a('buffer_store_dwordx2 v[250:251], v252, %s, s%d offen sc1' % (s(SF, 4), soff))
    a('s_mov_b64 exec, -1')

def fx_publish(a, wave):
    a('v_mov_b32 v240, v250')
    a('v_xor_b32 v241, s%d, v251' % S_XCC)
    a('s_lshl_b32 s11, s3, 5')
    a('s_add_u32 s11, s11, s4')
    a('s_lshl_b32 s11, s11, %d' % OPT['fsx'])
    a('s_add_u32 s11, s11, %s' % hex(F_X))
    a('s_cmp_eq_u32 s%d, %d' % (S_W, wave))
    a('s_cselect_b32 s11, s11, %s' % hex(OOB))
    a('s_mov_b64 exec, 1')
    a('buffer_store_dwordx2 v[240:241], v252, %s, s11 offen sc1' % s(SF, 4))
    a('s_mov_b64 exec, -1')
def fx_load(a):
    a('s_lshr_b32 s11, s%d, 1' % S_W)
    a('s_lshl_b32 s11, s11, 3')
    a('v_and_b32 v249, 7, v1')
    a('v_add_u32 v249, s11, v249')
    a('s_lshl_b32 s11, s3, %d' % (5 + OPT['fsx']))
    a('s_add_u32 s11, s11, %s' % hex(F_X))
    a('v_lshlrev_b32 v249, %d, v249' % OPT['fsx'])
    a('buffer_load_dwordx2 v[242:243], v249, %s, s11 offen sc1' % s(SF, 4))
def fx_eval(a):
    a('v_cmp_eq_u64 vcc, v[240:241], v[242:243]')
    a('s_cmp_eq_u64 vcc, -1')
    a('s_cselect_b32 s%d, %d, 0' % (S_XCC, 1 if OPT['local'] else 0))
def store2(a, line):
    L1, L2 = a.newlabel('SL1'), a.newlabel('SL2')
    a('s_cmp_eq_u32 s%d, 1' % S_XCC)
    a('s_cbranch_scc1 %s' % L1)
    a(line + ' sc1')
    a('s_branch %s' % L2)
    a.label(L1)
    a(line)
    a.label(L2)

def nonce_publish(a):
    L = a.newlabel('NP')
    a('s_or_b32 s11, s2, s%d' % S_W)
    a('s_cmp_lg_u32 s11, 0')
    a('s_cbranch_scc1 %s' % L)
    a('s_or_b32 s74, s74, 1')
    a('v_mov_b32 v250, s74')
    a('v_mov_b32 v251, s75')
    a('v_lshlrev_b32 v249, 7, v1')
    a('s_mov_b64 exec, 3')
    a('global_store_dwordx2 v249, v[250:251], s[%d:%d] sc1' % (P_DBG, P_DBG + 1))
    a('s_mov_b64 exec, -1')
    a.label(L)
def go_off(a):
    a('s_and_b32 s11, s4, 1')
    a('s_lshl_b32 s11, s11, 7')
def go_issue(a):
    srd(a, 72, P_DBG, 256)
    go_off(a)
    a('s_cmp_eq_u32 s%d, 0' % S_W)
    a('s_cselect_b32 s11, s11, %s' % hex(OOB))
    a(GO_LOAD)
def go_check(a):
    L, R, D = a.newlabel('GOC'), a.newlabel('GOR'), a.newlabel('GOD')
    a('s_cmp_lg_u32 s%d, 0' % S_W)
    a('s_cbranch_scc1 %s' % L)
    go_off(a)
    a('s_mov_b32 s69, 0x20000')
    a.label(R)
    a('v_cmp_ne_u32 vcc, 0, v250')
    a('s_cbranch_vccnz %s' % D)
    a('s_sleep 4')
    a(GO_LOAD)
    a('s_waitcnt vmcnt(0)')
    a('s_sub_u32 s69, s69, 1')
    a('s_cbranch_scc0 %s' % R)
    a.label(D)
    a('ds_write_b64 v254, v[250:251] offset:8')
    a('s_waitcnt lgkmcnt(0)')
    a.label(L)
GO_FETCH = 'ds_read_b64 v[250:251], v254 offset:8'
def go_sgpr(a):
    a('v_readfirstlane_b32 s0, v250')
    a('v_readfirstlane_b32 s1, v251')
def fw_check(a):
    D = a.newlabel('PFD')
    a('s_cmp_lg_u32 s%d, 0' % S_W)
    a('s_cbranch_scc1 %s' % D)
    poll_check(a, PF_LOAD, 244, 11, sleep=4)
    a.label(D)

def common_pre(a):
    a('v_mov_b32 v252, 0')
    a('v_mov_b32 v253, 1')
    a('v_mov_b32 v254, %d' % LDS_CNT)
    a('ds_write_b32 v254, v252')
    a('ds_write_b32 v254, v252 offset:4')
    a('ds_write_b32 v254, v252 offset:16')
    a('v_lshlrev_b32 v237, 4, v1')

def flag_srd(a):
    srd(a, SF, P_WS, F_SIZE, WS_F)

G1_FR, G1_ACC = 12, 44
SX, SW1, SW3, SH = 44, 48, 52, 56
OX, OW, LW, HO, GO = 60, 61, 62, 63, 64
GID, U0 = 70, 71

def gemm1_pre(a):
    RB, CB, W = 8, 9, S_W
    a('s_lshl_b32 s%d, s%d, 10' % (LW, W))
    a('v_lshrrev_b32 v13, 3, v1')
    a('s_lshl_b32 s11, s%d, 3' % W)
    a('v_add_u32 v13, s11, v13')
    a('v_bfe_u32 v14, v13, 1, 3')
    a('v_and_b32 v15, 7, v1')
    a('v_xor_b32 v14, v14, v15')
    a('v_lshlrev_b32 v14, 4, v14')
    a('v_mul_u32_u24 v2, 1280, v13')
    a('v_add_u32 v2, v2, v14')
    for i in range(1, 4):
        a('v_add_u32 v%d, %s, v2' % (2 + i, hex(i * 81920)))
    a('v_bfe_u32 v14, v13, 1, 1')
    a('v_lshlrev_b32 v14, 2, v14')
    a('v_xor_b32 v14, v14, v15')
    a('v_lshlrev_b32 v14, 4, v14')
    a('v_mul_u32_u24 v6, 3456, v13')
    a('v_add_u32 v6, v6, v14')
    if OPT['touch']:
        a('v_mul_u32_u24 v16, 205, v1')
        a('v_lshrrev_b32 v16, 11, v16')
        a('v_mul_u32_u24 v17, 10, v16')
        a('v_sub_u32 v17, v1, v17')
        a('s_mul_i32 s11, s%d, 10' % W)
        a('v_add_u32 v17, s11, v17')
        a('v_min_u32 v17, 74, v17')
        a('s_lshr_b32 s11, s4, 2')
        a('s_mul_i32 s11, s11, 43')
        a('v_add_u32 v18, s11, v17')
        a('v_min_u32 v18, 255, v18')
        a('v_mul_u32_u24 v18, 1280, v18')
        a('v_subrev_u32 v19, 43, v17')
        a('v_and_b32 v19, 15, v19')
        a('s_and_b32 s11, s4, 3')
        a('s_lshl_b32 s11, s11, 4')
        a('v_add_u32 v19, s11, v19')
        a('v_mul_u32_u24 v19, 3456, v19')
        a('v_cmp_gt_u32 vcc, 43, v17')
        a('v_mov_b32 v20, %d' % (64 * 3456))
        a('v_mov_b32 v21, 128')
        a('v_cndmask_b32 v242, v20, v21, vcc')
        a('v_cndmask_b32 v18, v19, v18, vcc')
        a('v_mul_u32_u24 v16, v16, v242')
        a('v_add_u32 v18, v18, v16')
    a('s_mul_i32 s%d, s%d, 27' % (GID, RB))
    a('s_add_u32 s%d, s%d, s%d' % (GID, GID, CB))
    a('s_lshr_b32 s65, s%d, 1' % W)
    a('s_and_b32 s66, s%d, 1' % W)
    a('s_lshl_b32 s67, s%d, 2' % RB)
    a('s_add_u32 s67, s67, s65')
    a('s_lshl_b32 s68, s%d, 1' % CB)
    a('s_add_u32 s68, s68, s66')
    a('s_lshl_b32 s%d, s67, 6' % S_F1)
    a('s_add_u32 s%d, s%d, s68' % (S_F1, S_F1))
    a('s_lshl_b32 s%d, s%d, %d' % (S_F1, S_F1, OPT['fsh']))

def touch_lines(lo, n):
    m = ((1 << n) - 1) << lo
    return ['s_mov_b32 exec_lo, %s' % hex(m & 0xffffffff), 's_mov_b32 exec_hi, %s' % hex(m >> 32),
            'global_load_dword v243, v[240:241], off', 's_mov_b64 exec, -1']

def gemm1_post_addr(a):
    W = S_W
    a('s_mul_i32 s%d, s67, 54' % HO)
    a('s_add_u32 s%d, s%d, s68' % (HO, HO))
    a('s_lshl_b32 s%d, s%d, 12' % (HO, HO))
    a('s_lshl_b32 s11, s65, 13')
    a('v_and_b32 v13, 31, v1')
    a('v_lshrrev_b32 v14, 5, v1')
    a('v_bfe_u32 v15, v1, 1, 3')
    a('v_xor_b32 v15, v15, v14')
    a('v_lshlrev_b32 v12, 7, v13')
    a('v_add_u32 v12, s11, v12')
    for kk in range(4):
        a('v_xor_b32 v%d, %d, v15' % (7 + kk, 2 * kk))
        a('v_lshl_add_u32 v%d, v%d, 4, v12' % (7 + kk, 7 + kk))
    a('v_bfe_u32 v11, v1, 2, 2')
    a('v_lshl_add_u32 v11, v14, 3, v11')
    a('v_lshlrev_b32 v11, 7, v11')
    a('v_bfe_u32 v12, v1, 3, 1')
    a('v_xor_b32 v12, s66, v12')
    a('v_lshl_add_u32 v11, v12, 6, v11')
    a('v_bfe_u32 v12, v1, 4, 1')
    a('v_lshl_add_u32 v11, v12, 5, v11')
    a('v_and_b32 v12, 3, v1')
    a('v_lshl_add_u32 v11, v12, 3, v11')
    a('v_add_u32 v11, 0x8000, v11')
    for i in range(5):
        a('v_add_u32 v%d, 0x18000, v%d' % (208 + i, 7 + i))
    a('v_bfe_u32 v12, v1, 4, 1')
    a('v_lshlrev_b32 v12, 10, v12')
    a('v_and_b32 v13, 15, v1')
    a('v_lshl_add_u32 v12, v13, 4, v12')
    a('v_lshl_add_u32 v213, v14, 8, v12')
    a('s_and_b32 s%d, s68, 7' % GO)
    a('s_lshl_b32 s69, s%d, 10' % GO)
    a('s_add_u32 s11, s11, s69')
    a('v_add_u32 v214, s11, v237')
    a('v_add_u32 v215, 0x18000, v214')
    a('s_and_b32 s69, s%d, 1' % GO)
    a('s_lshl_b32 s69, s69, 2')
    a('v_lshrrev_b32 v12, 4, v1')
    a('v_add_u32 v12, s69, v12')
    a('v_and_b32 v13, 7, v1')
    a('v_xor_b32 v12, v12, v13')
    a('v_lshlrev_b32 v216, 4, v12')
    a('v_add_u32 v216, %d, v216' % LDS_GW)
    if OPT['rot1']:
        a('s_lshl_b32 s69, s%d, 7' % KS0)
        a('v_add_u32 v216, s69, v216')
    a('v_mov_b32 v217, 0')
    a('s_lshl_b32 s%d, s%d, 5' % (GO, GO))
    a('s_lshl_b32 s69, s67, 8')
    a('s_add_u32 s%d, s%d, s69' % (GO, GO))
    a('s_cmp_lt_u32 s68, 8')
    a('s_cselect_b32 s%d, s%d, %s' % (GO, GO, hex(OOB)))
    a('v_lshrrev_b32 v12, 5, v1')
    a('v_bfe_u32 v13, v1, 2, 3')
    a('v_lshl_add_u32 v12, v12, 4, v13')
    a('v_lshlrev_b32 v12, 7, v12')
    a('v_and_b32 v13, 3, v1')
    a('v_lshl_add_u32 v12, v13, 3, v12')
    a('s_lshr_b32 s11, s%d, 2' % W)
    a('s_lshl_b32 s11, s11, 12')
    a('s_and_b32 s69, s%d, 3' % W)
    a('s_lshl_b32 s69, s69, 5')
    a('s_add_u32 s11, s11, s69')
    a('s_add_u32 s11, s11, %d' % LDS_W2S)
    a('v_add_u32 v236, s11, v12')

def item(lines, pre=(), vm=None, lg=None, needlg=(), needvm=()):
    if isinstance(lines, str): lines = [lines]
    if isinstance(pre, str): pre = [pre]
    return dict(pre=list(pre), lines=list(lines), vm=vm, lg=lg, needlg=set(needlg), needvm=set(needvm))

KS0 = 28
def g1_dma_items(stage):
    base = SLOT[stage % 3]
    it = []
    for m, S in ((0, SW1), (1, SW3)):
        pre = ['s_add_u32 m0, s%d, %s' % (LW, hex(base + 32768 + m * 8192))]
        if m == 0:
            if OPT['rot1']:
                pre = ['s_add_u32 s29, s%d, %d' % (KS0, stage), 's_cmp_ge_u32 s29, 10', 's_cselect_b32 s%d, 10, 0' % OW,
                       's_sub_u32 s29, s29, s%d' % OW, 's_mul_i32 s%d, s29, %d' % (OW, 64 * 3456)] + pre
            else:
                pre = ['s_mov_b32 s%d, %s' % (OW, hex(stage * 64 * 3456))] + pre
        it.append(item('buffer_load_dwordx4 v6, %s, s%d offen lds' % (s(S, 4), OW), pre, vm=('st', stage)))
    for i in range(4):
        pre = ['s_add_u32 m0, s%d, %s' % (LW, hex(base + i * 8192))]
        if i == 0:
            pre = [('s_lshl_b32 s%d, s29, 7' % OX) if OPT['rot1'] else ('s_movk_i32 s%d, %d' % (OX, stage * 128))] + pre
        it.append(item('buffer_load_dwordx4 v%d, %s, s%d offen lds' % (2 + i, s(SX, 4), OX), pre, vm=('st', stage)))
    if OPT['nodma'] and stage >= 3:
        it = []
    return it

class G1:
    def __init__(self, a):
        self.a = a; self.vq = Q(); self.lq = Q()
    def fork(self):
        g = G1(self.a); g.vq = copy.deepcopy(self.vq); g.lq = copy.deepcopy(self.lq); return g
    def wait(self, vm=(), lg=(), lgall=False):
        parts = []
        n = self.vq.need(set(vm)) if vm else None
        if n is not None: parts.append('vmcnt(%d)' % min(n, 63))
        if lgall:
            if self.lq.q: parts.append('lgkmcnt(0)')
            self.lq.clear()
        else:
            n = self.lq.need(set(lg)) if lg else None
            if n is not None: parts.append('lgkmcnt(%d)' % min(n, 15))
        if parts: self.a('s_waitcnt ' + ' '.join(parts))
    def emit(self, it, with_pre=True):
        a = self.a
        if with_pre and it['pre']:
            for l in it['pre']: a(l)
            if 'm0' in it['pre'][-1]: a('s_nop 0')
        if it['needlg'] or it['needvm']: self.wait(vm=it['needvm'], lg=it['needlg'])
        for l in it['lines']: a(l)
        if it['vm'] is not None: self.vq.push(it['vm'], sure=(it['vm'] != 'w2?'))
        if it['lg'] is not None: self.lq.push(it['lg'])
    def read_items(self, stage, kk):
        base = SLOT[stage % 3]; hi = base >= 98304
        off = base - (98304 if hi else 0)
        b = kk & 1
        B = G1_FR + 16 * b
        xa = (208 if hi else 7) + kk
        wa = 212 if hi else 11
        def w(m, h): return item('ds_read_b64_tr_b16 %s, v%d offset:%d' % (v(B + 8 + 4 * m + 2 * h, 2), wa, off + m * 8192 + kk * 2048 + h * 512), lg=('w', stage, kk, m))
        def x(nt): return item('ds_read_b128 %s, v%d offset:%d' % (v(B + 4 * nt, 4), xa, off + nt * 4096), lg=('x', stage, kk, nt))
        return [w(0, 0), w(0, 1), x(0), x(1), w(1, 0), w(1, 1)]
    def substep(self, sidx, kk, gaps):
        a = self.a
        B = G1_FR + 16 * (kk & 1)
        i = 0
        for m in range(2):
            for nt in range(2):
                g = gaps[i]
                if g and g[0]['pre']:
                    for l in g[0]['pre']: a(l)
                self.wait(lg=[('w', sidx, kk, m), ('x', sidx, kk, nt)])
                acc = v(G1_ACC + (m * 2 + nt) * 16, 16)
                a('v_mfma_f32_32x32x16_bf16 %s, %s, %s, %s' % (acc, v(B + 8 + 4 * m, 4), v(B + 4 * nt, 4), '0' if (sidx == 0 and kk == 0) else acc))
                for k, it in enumerate(g):
                    self.emit(it, with_pre=(k > 0))
                i += 1
    def step(self, sidx, ex, before_barrier=None, needvm=()):
        a = self.a
        a.comment('k-step %d' % sidx)
        if sidx < 9: stamp(a, sidx + 1, 2)
        base = SLOT[sidx % 3]; hi = base >= 98304
        for kk in range(4):
            if kk == 3:
                self.wait(vm=[('st', sidx + 1)] + list(needvm), lgall=True)
                if before_barrier: before_barrier(a)
                a('s_barrier')
            if kk < 3: r = self.read_items(sidx, kk + 1)
            elif sidx < 9: r = self.read_items(sidx + 1, 0)
            else: r = []
            e = list(ex.get(kk, []))
            if kk == 0:
                e = [item('ds_read_b128 v[220:223], v%d offset:%d' % (215 if hi else 214, base - (98304 if hi else 0)), lg='gx'),
                     item('ds_read_b128 v[224:227], v216 offset:%d' % (sidx * 128), lg='gx')] + e
            if kk == 2:
                e = e + [item(['v_dot2c_f32_bf16 v217, v%d, v%d' % (220 + i, 224 + i) for i in range(4)], needlg=['gx'])]
            h = (len(e) + 1) // 2
            if r: gaps = [r[0:3], r[3:6], e[:h], e[h:]]
            else:
                n4 = (len(e) + 3) // 4
                gaps = [e[i * n4:(i + 1) * n4] for i in range(4)]
            self.substep(sidx, kk, gaps)

def touch_item(stage):
    if not OPT['touch'] or stage > 9 or stage < OPT['tp']: return []
    lines = []
    if stage == 6:
        lines += ['v_mul_u32_u24 v218, 6, v242', 'v_add_co_u32 v240, vcc, v240, v218', 's_nop 1', 'v_addc_co_u32 v241, vcc, 0, v241, vcc']
    lines += touch_lines(10 * (stage % 6), 10)
    return [item(lines, vm='touch')]

def gemm1_head(a):
    RB, CB, W = 8, 9, S_W
    g = G1(a)
    nonce_publish(a)
    if OPT['rot1']:
        R = OPT['rot1']
        a('s_mul_i32 s11, s%d, %d' % (RB, 3 if R != 3 else 1))
        a('s_add_u32 s11, s11, s%d' % CB)
        a('s_mul_i32 s69, s11, %d' % ((2048 + R - 1) // R))
        a('s_lshr_b32 s69, s69, 11')
        a('s_mul_i32 s69, s69, %d' % R)
        a('s_sub_u32 s%d, s11, s69' % KS0)
        if R != 10: a('s_mul_i32 s%d, s%d, %d' % (KS0, KS0, 10 // R))
    a('s_mul_i32 s11, s%d, %d' % (RB, 256 * 1280))
    srd(a, SX, P_Q, 256 * 1280, 's11')
    a('s_lshl_b32 s11, s%d, 7' % CB)
    a('s_sub_u32 s69, %s, s11' % hex(SZ_W))
    srd(a, SW1, P_W1, 's69', 's11')
    srd(a, SW3, P_W3, 's69', 's11')
    if OPT['touch']:
        a('v_cmp_gt_u32 vcc, 59, v17')
        a('v_mov_b32 v20, s%d' % SW3); a('v_mov_b32 v21, s%d' % SW1)
        a('v_cndmask_b32 v240, v20, v21, vcc')
        a('v_mov_b32 v20, s%d' % (SW3 + 1)); a('v_mov_b32 v21, s%d' % (SW1 + 1))
        a('v_cndmask_b32 v241, v20, v21, vcc')
        a('v_cmp_gt_u32 vcc, 43, v17')
        a('v_mov_b32 v20, s%d' % SX); a('v_mov_b32 v21, s%d' % (SX + 1))
        a('v_cndmask_b32 v240, v240, v20, vcc')
        a('v_cndmask_b32 v241, v241, v21, vcc')
        a('v_add_co_u32 v240, vcc, v240, v18')
        a('s_nop 1')
        a('v_addc_co_u32 v241, vcc, 0, v241, vcc')
        g.emit(item(touch_lines(0, 10 * OPT['tp']), vm='touch'))
    for it in g1_dma_items(0): g.emit(it)
    stamp(a, 1)
    L = a.newlabel('GW')
    a('s_cmp_ge_u32 s%d, 3' % W)
    a('s_cbranch_scc1 %s' % L)
    srd(a, SH, P_GW, 1280)
    a('v_add_u32 v12, s%d, v237' % LW)
    a('v_subrev_u32 v13, 1280, v12')
    a('v_min_u32 v12, v12, v13')
    a('v_subrev_u32 v13, 1280, v12')
    a('v_min_u32 v12, v12, v13')
    a('s_add_u32 m0, s%d, %d' % (LW, LDS_GW))
    a('s_nop 0')
    a('buffer_load_dwordx4 v12, %s, 0 offen lds' % s(SH, 4))
    a.label(L)
    g.vq.push('gw', sure=False)
    gemm1_post_addr(a)
    flag_srd(a)
    srd(a, SH, P_W2, SZ_W)
    a('s_mul_i32 s11, s%d, 3641' % GID)
    a('s_lshr_b32 s11, s11, 16')
    a('s_mul_i32 s69, s11, 18')
    a('s_sub_u32 s69, s%d, s69' % GID)
    a('s_mul_i32 s69, s69, 3')
    a('s_lshr_b32 s72, s%d, 2' % W)
    a('s_add_u32 s69, s69, s72')
    a('s_cmp_ge_u32 s%d, 180' % GID)
    a('s_cselect_b32 s69, 60, s69')
    a('s_mul_i32 s%d, s69, 10' % U0)
    a('s_add_u32 s%d, s%d, s11' % (U0, U0))
    a('s_mul_i32 s69, s69, %d' % (32 * 1280))
    a('s_lshl_b32 s65, s11, 7')
    a('s_add_u32 s65, s65, s69')
    a('s_add_u32 s66, s65, %d' % (64 * 1280))
    a('s_cmp_lt_u32 s%d, 4' % W)
    a('s_cselect_b32 s66, s66, 0x7000000')
    a('s_and_b32 s67, s%d, 3' % W)
    a('s_lshl_b32 s67, s67, 10')
    a('s_add_u32 s67, s67, %d' % (LDS_W2S + 8192))
    a('s_cselect_b32 s67, s67, s67')
    a('v_lshrrev_b32 v12, 3, v1')
    a('s_and_b32 s69, s%d, 3' % W)
    a('s_lshl_b32 s69, s69, 3')
    a('v_add_u32 v12, s69, v12')
    a('v_mul_u32_u24 v12, 1280, v12')
    a('v_and_b32 v13, 7, v1')
    a('v_lshl_add_u32 v219, v13, 4, v12')
    L2 = a.newlabel('W2')
    w2l = [item('buffer_load_dwordx4 v219, %s, s65 offen lds' % s(SH, 4), pre='s_add_u32 m0, s%d, %d' % (LW, LDS_W2S), vm='w2'),
           item(['s_cmp_ge_u32 s%d, 4' % W, 's_cbranch_scc1 %s' % L2, 's_mov_b32 m0, s67', 's_nop 0',
                 'buffer_load_dwordx4 v219, %s, s66 offen lds' % s(SH, 4), L2 + ':'], vm='w2?')]
    a('s_barrier')
    for it in g1_dma_items(1): g.emit(it)
    g.wait(vm=[('st', 0), 'gw'])
    a('s_barrier')
    stamp(a, 2)
    if OPT['prio']:
        L = a.newlabel('PR')
        a('s_cmp_lt_u32 s%d, 4' % W)
        a('s_cbranch_scc1 %s' % L)
        a('s_setprio 1')
        a.label(L)
    for it in g.read_items(0, 0): g.emit(it)
    d = [g1_dma_items(i) for i in range(10)] + [[], [], []]
    ld = OPT['lead']
    t0 = []
    for st_ in range(OPT['tp'], ld): t0 += touch_item(st_)
    w2r = [item('ds_read_b64_tr_b16 v[228:229], v236', lg='w2f'), item('ds_read_b64_tr_b16 v[230:231], v236 offset:1024', lg='w2f'),
           item('ds_read_b64_tr_b16 v[232:233], v236 offset:8192', lg='w2f'), item('ds_read_b64_tr_b16 v[234:235], v236 offset:9216', lg='w2f')]
    w2s = [item('buffer_store_dwordx4 v[228:231], v237, %s, s11 offen sc1' % s(SH, 4),
                pre=['s_lshl_b32 s11, s%d, 2' % U0, 's_and_b32 s69, s%d, 3' % W, 's_add_u32 s11, s11, s69', 's_lshl_b32 s11, s11, 10'], vm='w2s', needlg=['w2f']),
           item('buffer_store_dwordx4 v[232:235], v237, %s, s11 offen sc1' % s(SH, 4),
                pre=['s_add_u32 s11, s11, %d' % (20 * 4096), 's_cmp_lt_u32 s%d, 4' % W, 's_cselect_b32 s11, s11, 0x7000000'], vm='w2s')]
    goi = item(capture_l(a, go_issue), vm='go')
    g.step(0, {0: w2l + [goi] + d[2][0:1], 1: d[2][1:4], 2: d[2][4:6], 3: d[3][0:2]})
    srd(a, SH, P_WS, SZ_W, WS_W2P)
    g.step(1, {0: d[3][2:4], 1: d[3][4:6], 3: [item(GO_FETCH, lg='go')] + w2r + d[4][0:2]}, before_barrier=go_check, needvm=['go', 'w2', 'w2?'])
    fw = item(['s_lshl_b32 s11, s%d, %d' % (GID, OPT['fsw']), 's_add_u32 s11, s11, %s' % hex(F_W), 's_cmp_eq_u32 s%d, 0' % W,
               's_cselect_b32 s11, s11, %s' % hex(OOB)] + capture_l(a, lambda a: set_flag(a, 11)), vm='fw')
    g.step(2, {0: w2s + d[4][2:4], 1: d[4][4:6], 2: [item(capture_l(a, go_sgpr), needlg=['go']), item(capture_l(a, lambda a: fx_publish(a, 1)), vm='fxp')], 3: d[5][0:2]})
    srd(a, SH, P_WS, SZ_H, None if WS_H == 0 else WS_H)
    g.step(3, {0: d[5][2:4], 1: d[5][4:6], 3: [fw] + d[6][0:2]}, needvm=['w2s'])
    g.step(4, {0: d[6][2:4], 1: d[6][4:6], 3: d[7][0:2]})
    return g, d

def capture_l(a, fn):
    return [l.strip() for l in capture(a, lambda: fn(a))]

def gemm1_tail(a, g, d, role):
    g = g.fork()
    pf = [item(PF_LOAD, vm='pf')]
    ex = {s_: {0: d[s_ + 2][2:4], 1: d[s_ + 2][4:6], 2: touch_item(s_ + OPT['lead']), 3: d[s_ + 3][0:2]} for s_ in range(5, 10)}
    bb = {}; nv = {}
    post = []
    def chunks(lines, n):
        k = (len(lines) + n - 1) // n
        return [item(lines[i * k:(i + 1) * k]) for i in range(n) if lines[i * k:(i + 1) * k]]
    if role == 'G2':
        fs = OPT['fwst']
        bb[fs] = fw_check; nv[fs] = ['pf']
        if fs == 5:
            ex[5][0] = [item(capture_l(a, g2_pre))] + pf + ex[5][0]
        else:
            ex[5][2] = ex[5][2] + [item(capture_l(a, g2_pre))]
            ex[fs][0] = pf + ex[fs][0]
        w = []
        for p in range(4): w += g2_w_items(p, p)
        slots = [(fs, 3)] + [(s_, kk) for s_ in range(fs + 1, 9) for kk in range(4)][:-1]
        for i, (s_, kk) in enumerate(slots):
            ex[s_][kk] = ex[s_][kk] + w[20 * i // len(slots):20 * (i + 1) // len(slots)]
        l01 = g2_wl_items(4, 0) + g2_wl_items(5, 1)
        ex[8][3] = l01[0:3]; ex[9][0] = l01[3:5]; ex[9][1] = l01[5:8]; ex[9][2] = l01[8:10]
        ex[9][3] = [item(capture_l(a, g2_fh_addr))]
    elif role == 'CV':
        ex[5][2] = ex[5][2] + [item(['s_sub_u32 s7, s%d, 192' % GID, 's_add_u32 s7, s7, s%d' % GID, 's_cmp_ge_u32 s%d, 192' % GID,
                                     's_cselect_b32 s7, s7, s%d' % GID, 's_cselect_b32 s%d, 1, 0' % CV_M] + capture_l(a, cv_pre)),
                               item(['s_mov_b32 exec_hi, 0', 'buffer_load_dword v246, v246, s[72:75], 0 offen', 's_mov_b64 exec, -1'], vm='touch2')]
        su = chunks(capture_l(a, cv_setup1), 8)
        ex[6][2] = su[0:2]; ex[6][0] = ex[6][0]; ex[7][2] = su[2:4]; ex[9][0] = su[4:6]; ex[9][1] = su[6:8]
        hd = cv_h_items()
        ex[7][3] = hd[0:2]; ex[8][0] = hd[2:4]; ex[8][1] = hd[4:6]; ex[8][2] = hd[6:8]
        ex[8][3] = pf + [item(l, lg='pad') for l in cv_pads()]
        nv[9] = ['cvh']
        fx = cv_fix()
        ex[9][3] = [item(fx[0], lg='fix'), item(capture_l(a, cv_try_u), needvm=['pf']), item(fx[1:], needlg=['fix'], lg='fix2')]
    ex[7][2] = [item(capture_l(a, fx_load), vm='fx')] + ex[7][2]
    ex[9][2] = ex[9][2] + [item(capture_l(a, fx_eval), needvm=['fx'])]
    for s_ in range(5, 10):
        if s_ == 5: stamp(a, 3)
        g.step(s_, ex[s_], before_barrier=bb.get(s_), needvm=nv.get(s_, ()))
    stamp(a, 4)
    if role == 'CV':
        if OPT['eprio']: a('s_setprio %d' % OPT['eprio'])
        for l in cv_g_reads(0, 0): a(l)
    elif OPT['gprio']:
        a('s_setprio %d' % OPT['gprio'])
    for sh in (1, 2):
        a('v_add_f32_dpp v217, v217, v217 quad_perm:%s row_mask:0xf bank_mask:0xf' % ('[1,0,3,2]' if sh == 1 else '[2,3,0,1]'))
        a('s_nop 1')
    a('v_add_f32_dpp v217, v217, v217 row_half_mirror row_mask:0xf bank_mask:0xf')
    a('s_mov_b32 s60, %s' % NLOG2E)
    a('s_mov_b32 s61, %s' % NLOG2E)
    a('v_mul_f32 v217, s60, v217')
    a('v_exp_f32 v217, v217')
    a('v_lshrrev_b32 v218, 3, v1')
    a('v_add_f32 v217, 1.0, v217')
    a('v_rcp_f32 v217, v217')
    a('v_lshlrev_b32 v218, 2, v218')
    srd(a, SX, P_WS, 8192, WS_G)
    a('s_mov_b32 exec_lo, 0x01010101')
    a('s_mov_b32 exec_hi, 0x01010101')
    store2(a, 'buffer_store_dword v217, v218, %s, s%d offen' % (s(SX, 4), GO))
    a('s_mov_b64 exec, -1')
    T = G1_FR
    for nt in range(2):
        for jp in range(2):
            G = G1_ACC + nt * 16 + 8 * jp
            U = G1_ACC + (2 + nt) * 16 + 8 * jp
            for i in range(0, 8, 2):
                a('v_pk_mul_f32 %s, %s, s[60:61]' % (v(T + i, 2), v(G + i, 2)))
            for i in range(0, 8, 2):
                a('v_exp_f32 v%d, v%d' % (T + i, T + i))
                a('v_exp_f32 v%d, v%d' % (T + i + 1, T + i + 1))
                a('v_pk_mul_f32 %s, %s, %s' % (v(G + i, 2), v(G + i, 2), v(U + i, 2)))
            for i in range(0, 8, 2):
                a('v_pk_add_f32 %s, %s, 1.0 op_sel_hi:[1,0]' % (v(T + i, 2), v(T + i, 2)))
            for i in range(8):
                a('v_rcp_f32 v%d, v%d' % (T + i, T + i))
            a('s_nop 0')
            for i in range(0, 8, 2):
                a('v_pk_mul_f32 %s, %s, %s' % (v(G + i, 2), v(G + i, 2), v(T + i, 2)))
            O = T + 16 + 8 * nt + 4 * jp
            for i in range(4):
                a('v_cvt_pk_bf16_f32 v%d, v%d, v%d' % (O + i, G + 2 * i, G + 2 * i + 1))
            store2(a, 'buffer_store_dwordx4 %s, v213, %s, s%d offen offset:%d' % (v(O, 4), s(SH, 4), HO, nt * 2048 + jp * 512))
    a('s_waitcnt vmcnt(0)')
    a('s_mov_b64 exec, 1')
    store2(a, 'buffer_store_dwordx2 v[250:251], v252, %s, s%d offen' % (s(SF, 4), S_F1))
    a('s_mov_b64 exec, -1')
    stamp(a, 5)
    if role == 'CV':
        L = a.newlabel('UOK')
        a('s_cmp_eq_u32 s%d, 1' % CV_T)
        a('s_cbranch_scc1 %s' % L)
        if OPT['fbar']: a('s_barrier')
        poll_check(a, PF_LOAD, 244, 11, sleep=2)
        cv_u_loads(a)
        a('s_waitcnt vmcnt(0)')
        a('s_branch K_conv')
        a.label(L)
        if OPT['fbar']: a('s_barrier')
    else:
        if OPT['fbar']: a('s_barrier')
        for it in post: g.emit(it)

UKR, UVR, UWR, UKU, UWU, UAC = 16, 60, 92, 108, 130, 138
def ut_pre(a):
    a('s_mul_i32 s11, s7, 6554')
    a('s_lshr_b32 s11, s11, 16')
    a('s_mul_i32 s69, s11, 10')
    a('s_sub_u32 s69, s7, s69')
    a('s_lshl_b32 s%d, s69, 5' % S_F2)
    a('s_add_u32 s%d, s%d, s11' % (S_F2, S_F2))
    a('s_lshl_b32 s%d, s%d, %d' % (S_F2, S_F2, OPT['fsu']))
    a('s_add_u32 s%d, s%d, %s' % (S_F2, S_F2, hex(F_U)))
    a('s_lshl_b32 s11, s11, 6')
    a('v_and_b32 v241, 0x38, v1')
    a('v_add_u32 v241, s11, v241')
    a('v_and_b32 v242, 7, v1')
    a('s_lshl_b32 s69, s69, 3')
    a('v_add_u32 v242, s69, v242')
    a('v_mul_u32_u24 v240, 1280, v241')
    a('v_lshl_add_u32 v240, v242, 4, v240')
    a('v_lshlrev_b32 v243, 15, v242')
    a('v_sub_u32 v241, 2040, v241')
    a('v_lshl_add_u32 v243, v241, 1, v243')
    a('v_subrev_u32 v241, 3840, v240')
    a('v_lshlrev_b32 v242, 6, v242')
def ut_loads(a):
    SA, SB, SC = 44, 48, 52
    srd(a, SA, P_K, SZ_ACT)
    srd(a, SB, P_V, SZ_ACT)
    srd(a, SC, P_SK, 640 * 8)
    a('s_movk_i32 s11, 5120')
    for r in range(8):
        a('buffer_load_dwordx4 %s, v240, %s, %s offen offset:%d' % (v(UKR + 12 + 4 * r, 4), s(SA, 4), '0' if r < 4 else 's11', 1280 * (r & 3)))
    for r in range(3):
        a('buffer_load_dwordx4 %s, v241, %s, 0 offen offset:%d' % (v(UKR + 4 * r, 4), s(SA, 4), 1280 * r))
    for i in range(4):
        a('buffer_load_dwordx4 %s, v242, %s, 0 offen offset:%d' % (v(UWR + 4 * i, 4), s(SC, 4), 16 * i))
    for r in range(8):
        a('buffer_load_dwordx4 %s, v240, %s, %s offen offset:%d' % (v(UVR + 4 * r, 4), s(SB, 4), '0' if r < 4 else 's11', 1280 * (r & 3)))
def ut_k(a):
    MASK = 65
    a('s_mov_b32 s%d, 0xffff0000' % MASK)
    for dw in range(4):
        for r in range(11):
            a('v_lshlrev_b32 v%d, 16, v%d' % (UKU + 2 * r, UKR + 4 * r + dw))
            a('v_and_b32 v%d, s%d, v%d' % (UKU + 2 * r + 1, MASK, UKR + 4 * r + dw))
        for ch in range(2):
            for t in range(4):
                src = UWR + 4 * dw + 2 * ch + (t >> 1)
                if t & 1:
                    a('v_and_b32 v%d, s%d, v%d' % (UWU + 2 * t + ch, MASK, src))
                else:
                    a('v_lshlrev_b32 v%d, 16, v%d' % (UWU + 2 * t + ch, src))
        A = UAC + 16 * dw
        for r in range(8):
            a('v_pk_mul_f32 %s, %s, %s' % (v(A + 2 * r, 2), v(UKU + 2 * r, 2), v(UWU + 6, 2)))
        for t in (2, 1, 0):
            for r in range(8):
                a('v_pk_fma_f32 %s, %s, %s, %s' % (v(A + 2 * r, 2), v(UKU + 2 * (r + 3 - t), 2), v(UWU + 2 * t, 2), v(A + 2 * r, 2)))
def ut_v(a):
    MASK, T = 65, 66
    srd(a, 72, P_WS, SZ_ACT, WS_UT)
    for dw in range(4):
        A = UAC + 16 * dw
        for r in range(8):
            a('v_lshlrev_b32 v%d, 16, v%d' % (UKU + 2 * r, UVR + 4 * r + dw))
            a('v_and_b32 v%d, s%d, v%d' % (UKU + 2 * r + 1, MASK, UVR + 4 * r + dw))
        for r in range(8):
            a('v_pk_mul_f32 %s, %s, %s' % (v(A + 2 * r, 2), v(A + 2 * r, 2), v(UKU + 2 * r, 2)))
        O = UWR + 8 * (dw & 1)
        for ch in range(2):
            for i in range(4):
                a('v_cvt_pk_bf16_f32 v%d, v%d, v%d' % (O + 4 * ch + i, A + 2 * (7 - 2 * i) + ch, A + 2 * (6 - 2 * i) + ch))
        for ch in range(2):
            a('s_mov_b32 s%d, %d' % (T, (2 * dw + ch) * 4096))
            a('buffer_store_dwordx4 %s, v243, s[72:75], s%d offen sc1' % (v(O + 4 * ch, 4), T))

CW = 13824
C_HA, C_HB, C_U = 0, 4640, 9280
C_EX = 2 * CW
RBC = CONV_BASE
CV_DO, CV_LB, CV_T, CV_T2, CV_W, CV_M = 66, 67, 68, 69, 9, 8
CV_D = 18
CA, CG, CF = 108, [140, 12], [172, 44]
VG, VF, VU, VXW, VXR = 228, 229, 233, 234, 235
def cv_pre(a):
    srd(a, 72, P_SSMK, SZ_ACT)
    a('s_lshl_b32 s11, s7, 2')
    a('s_load_dwordx2 s[%d:%d], s[%d:%d], s11' % (CV_D, CV_D + 1, P_SSMD, P_SSMD + 1))
    a('s_and_b32 s%d, s%d, 3' % (CV_W, S_W))
    a('s_xor_b32 s11, s%d, 1' % CV_M)
    a('s_lshr_b32 s%d, s%d, s11' % (CV_T, CV_W))
    a('s_lshl_b32 s%d, s7, 1' % CV_DO)
    a('s_add_u32 s%d, s%d, s%d' % (CV_DO, CV_DO, CV_T))
    a('s_lshl_b32 s%d, s%d, 12' % (CV_DO, CV_DO))
    a('s_mul_i32 s%d, s%d, %d' % (CV_LB, CV_T, CW))
    a('s_add_u32 s%d, s%d, %d' % (CV_LB, CV_LB, RBC))
    a('v_add_u32 v238, s%d, v237' % CV_DO)
    a('v_subrev_u32 v239, 2, v238')
    a('v_lshl_add_u32 v246, v1, 7, s%d' % CV_DO)
    a('s_lshr_b32 s11, s7, 5')
    a('s_lshl_b32 s11, s11, %d' % (5 + OPT['fsu']))
    a('s_add_u32 s11, s11, %s' % hex(F_U))
    a('v_min_u32 v248, 31, v1')
    a('v_lshl_add_u32 v248, v248, %d, s11' % OPT['fsu'])
    a('s_mov_b32 s%d, 0' % CV_T)
def cv_setup1(a):
    W, LB = CV_W, CV_LB
    a('s_mul_i32 s65, s7, 1639')
    a('s_lshr_b32 s65, s65, 16')
    a('s_mul_i32 s%d, s65, 40' % S_F2)
    a('s_sub_u32 s%d, s7, s%d' % (S_F2, S_F2))
    a('s_lshl_b32 s65, s65, 2')
    a('s_add_u32 s65, s65, s%d' % W)
    a('s_lshl_b32 s65, s65, 6')
    a('s_add_u32 s%d, s%d, s65' % (S_F2, S_F2))
    a('s_lshl_b32 s%d, s%d, %d' % (S_F2, S_F2, OPT['fsz']))
    a('s_add_u32 s%d, s%d, %s' % (S_F2, S_F2, hex(F_Z)))
    a('s_andn2_b32 s65, s%d, s%d' % (W, CV_M))
    a('s_and_b32 s65, s65, 1')
    a('s_lshl_b32 s65, s65, 8')
    a('s_add_u32 s65, s65, s%d' % LB)
    a('v_and_b32 v%d, 1, v1' % VG)
    a('v_xor_b32 v%d, 1, v%d' % (VG, VG))
    a('v_mul_u32_u24 v%d, %d, v%d' % (VG, C_HB - C_HA, VG))
    a('v_bfe_u32 v204, v1, 1, 3')
    a('v_lshl_add_u32 v%d, v204, 6, v%d' % (VG, VG))
    a('v_lshrrev_b32 v204, 4, v1')
    a('v_lshl_add_u32 v%d, v204, 4, v%d' % (VG, VG))
    a('s_add_u32 s69, s65, %d' % (C_HA + 64))
    a('v_add_u32 v%d, s69, v%d' % (VG, VG))
    a('v_and_b32 v205, 15, v1')
    a('v_lshlrev_b32 v205, 2, v205')
    a('v_lshlrev_b32 v%d, 4, v204' % VF)
    a('v_sub_u32 v%d, v%d, v205' % (VF, VF))
    a('s_add_u32 s69, s65, %d' % (C_U + 60))
    a('v_add_u32 v%d, s69, v%d' % (VF, VF))
    for i in range(1, 4):
        a('v_add_u32 v%d, %d, v%d' % (VF + i, 1024 * i, VF))
    a('v_lshl_add_u32 v205, v204, 7, v205')
    a('s_lshl_b32 s65, s%d, 10' % W)
    a('s_sub_u32 s65, %d, s65' % (RBC + C_U + 444 + 3072))
    a('v_sub_u32 v%d, s65, v205' % VU)
    a('s_mul_i32 s65, s%d, %d' % (CV_M, CW - 8192))
    a('s_add_u32 s65, s65, 8192')
    a('s_mul_i32 s65, s65, s%d' % W)
    a('s_xor_b32 s69, s%d, 1' % CV_M)
    a('s_mul_i32 s69, s69, %d' % C_EX)
    a('s_add_u32 s69, s69, %d' % RBC)
    a('s_add_u32 s65, s65, s69')
    a('v_add_u32 v%d, s65, v237' % VXW)
    a('s_lshl_b32 s65, s%d, 11' % W)
    a('s_add_u32 s69, s69, s65')
    a('v_add_u32 v%d, s69, v237' % VXR)
    a('s_lshl_b32 s%d, s7, 13' % CV_DO)
    a('s_add_u32 s%d, s%d, s65' % (CV_DO, CV_DO))
    for i in range(16):
        a('v_mov_b64 %s, 0' % v(CA + 2 * i, 2))
def cv_pads():
    return [['v_mov_b64 v[206:207], 0', 'v_lshl_add_u32 v247, v1, 3, s%d' % CV_LB, 'ds_write_b64 v247, v[206:207] offset:%d' % C_HA],
            ['ds_write_b64 v247, v[206:207] offset:%d' % C_HB],
            ['v_lshl_add_u32 v247, v1, 2, s%d' % CV_LB, 'ds_write_b32 v247, v206 offset:%d' % (C_U + 4096)]]
def cv_fix():
    R = CF[0]
    return [['v_mov_b32 v247, s%d' % CV_LB, 'ds_read_b128 %s, v247 offset:%d' % (v(R, 4), C_HA + 512)],
            'v_alignbit_b32 v%d, v%d, v%d, 16' % (R + 7, R + 3, R + 2),
            'v_alignbit_b32 v%d, v%d, v%d, 16' % (R + 6, R + 2, R + 1),
            'v_alignbit_b32 v%d, v%d, v%d, 16' % (R + 5, R + 1, R),
            'v_lshlrev_b32 v%d, 16, v%d' % (R + 4, R),
            'ds_write_b128 v247, %s offset:%d' % (v(R + 4, 4), C_HB + 512)]
def cv_h_items():
    it = []
    for (dst, vo) in ((C_HA + 512, 238), (C_HB + 512, 239)):
        for i in range(4):
            it.append(item('buffer_load_dwordx4 v%d, s[72:75], 0 offen offset:%d lds' % (vo, i * 1024),
                           pre=['s_add_u32 m0, s%d, %d' % (CV_LB, dst)] if i == 0 else [], vm='cvh'))
    return it
def cv_u_loads(a):
    srd(a, 48, P_WS, SZ_ACT, WS_UT)
    a('s_add_u32 m0, s%d, %d' % (CV_LB, C_U))
    a('s_nop 0')
    for i in range(4):
        a('buffer_load_dwordx4 v238, s[48:51], 0 offen offset:%d sc1 lds' % (i * 1024))
def cv_try_u(a):
    L = a.newlabel('UT')
    a('v_cmp_eq_u64 vcc, %s, v[244:245]' % NC)
    a('s_cmp_eq_u64 vcc, -1')
    a('s_cbranch_scc0 %s' % L)
    cv_u_loads(a)
    a('s_mov_b32 s%d, 1' % CV_T)
    a.label(L)
def cv_g_reads(j, b):
    return ['ds_read_b128 %s, v%d offset:%d' % (v(CG[b] + 4 * i, 4), VG, 64 * j + 512 * i) for i in range(8)]
def cv_f_reads(j, b):
    L = []
    for i in range(8):
        rb = 7 - i
        o = (512 * (rb & 1) + 64 * j) // 4
        L.append('ds_read2_b32 %s, v%d offset0:%d offset1:%d' % (v(CF[b] + 4 * i, 2), VF + (rb >> 1), o, o + 1))
        L.append('ds_read2_b32 %s, v%d offset0:%d offset1:%d' % (v(CF[b] + 4 * i + 2, 2), VF + (rb >> 1), o + 2, o + 3))
    return L

A_STRIDE = 6144
LDS_Q = [40960, 90112]
def chunk_addrs(a, dst, tmp, sbase):
    for i in range(3):
        a('v_add_u32 v%d, %d, v1' % (tmp, 64 * i))
        a('v_mul_u32_u24 v%d, 205, v%d' % (dst + i, tmp))
        a('v_lshrrev_b32 v%d, 11, v%d' % (dst + i, dst + i))
        a('v_mul_u32_u24 v%d, 1120, v%d' % (dst + i, dst + i))
        a('v_lshl_add_u32 v%d, v%d, 4, v%d' % (dst + i, tmp, dst + i))
        a('v_add_u32 v%d, s%d, v%d' % (dst + i, sbase, dst + i))
    a('v_lshrrev_b32 v%d, 5, v1' % tmp)
    a('v_lshl_add_u32 v%d, v%d, 30, v%d' % (dst + 2, tmp, dst + 2))
def lds_q_base(a, dst, w):
    a('s_lshr_b32 s%d, s%d, 1' % (dst, w))
    a('s_mul_i32 s%d, s%d, %d' % (dst, dst, LDS_Q[1] - LDS_Q[0] - 8192))
    a('s_lshl_b32 s11, s%d, 12' % w)
    a('s_add_u32 s%d, s%d, s11' % (dst, dst))
    a('s_add_u32 s%d, s%d, %d' % (dst, dst, LDS_Q[0]))
def aterm(a):
    W = CV_W
    RB, CB, T, T2 = 65, 66, 67, 68
    SQ, SZ, SG = 52, 44, 60
    a('s_setprio 0')
    a('s_lshl_b32 s%d, s3, 2' % RB)
    a('s_lshr_b32 s%d, s4, 3' % CB)
    a('s_add_u32 s%d, s%d, s%d' % (RB, RB, CB))
    a('s_and_b32 s%d, s4, 7' % CB)
    srd(a, SQ, P_Q, SZ_ACT)
    a('s_lshl_b32 s%d, s%d, 6' % (T, RB))
    a('s_lshl_b32 s%d, s%d, 4' % (T2, W))
    a('s_add_u32 s%d, s%d, s%d' % (T, T, T2))
    a('v_and_b32 v8, 15, v1')
    a('v_add_u32 v8, s%d, v8' % T)
    a('v_lshrrev_b32 v9, 4, v1')
    a('s_mul_i32 s%d, s%d, 1280' % (T, T))
    a('s_mul_i32 s%d, s%d, 160' % (T2, CB))
    a('s_add_u32 s%d, s%d, s%d' % (T, T, T2))
    chunk_addrs(a, 12, 10, T)
    lds_q_base(a, T2, W)
    for i in range(3):
        a('s_add_u32 m0, s%d, %d' % (T2, 1024 * i))
        a('s_nop 0')
        a('buffer_load_dwordx4 v%d, %s, 0 offen lds' % (12 + i, s(SQ, 4)))
    a('v_and_b32 v10, 15, v1')
    a('v_mul_u32_u24 v10, 160, v10')
    a('v_lshl_add_u32 v10, v9, 3, v10')
    a('v_add_u32 v10, s%d, v10' % T2)
    a('s_lshl_b32 s%d, s%d, 2' % (T, CB))
    a('s_lshr_b32 s%d, s%d, 3' % (T2, RB))
    a('s_add_u32 s%d, s%d, s%d' % (T, T, T2))
    a('s_lshl_b32 s%d, s%d, %d' % (T, T, 6 + OPT['fsz']))
    a('s_add_u32 s%d, s%d, %s' % (T, T, hex(F_Z)))
    a('v_lshl_add_u32 v25, v1, %d, s%d' % (OPT['fsz'], T))
    a('s_lshl_b32 s%d, s%d, 5' % (T, RB))
    a('s_add_u32 s%d, s%d, s%d' % (T, T, W))
    a('s_lshl_b32 s%d, s%d, %d' % (T, T, OPT['fsh'] + 1))
    a('v_and_b32 v24, 1, v1')
    a('v_lshl_add_u32 v24, v24, %d, s%d' % (OPT['fsh'], T))
    a('v_cmp_lt_u32 vcc, 39, v1')
    a('v_lshlrev_b32 v11, 14, v9')
    a('v_bfe_u32 v9, v1, 1, 3')
    a('v_cndmask_b32 v25, v25, v24, vcc')
    FL = 'buffer_load_dwordx2 v[26:27], v25, %s, 0 offen sc1' % s(SF, 4)
    a('v_lshl_add_u32 v11, v9, 4, v11')
    a('v_and_b32 v9, 1, v1')
    a('v_lshl_add_u32 v11, v9, 2, v11')
    a('s_mul_i32 s%d, s%d, %d' % (T, CB, 40 * 8192))
    a('s_lshl_b32 s%d, s%d, 8' % (T2, RB))
    a('s_add_u32 s%d, s%d, s%d' % (T, T, T2))
    a('s_and_b32 s%d, s%d, 1' % (T2, W))
    a('s_lshl_b32 s%d, s%d, 7' % (T2, T2))
    a('s_add_u32 s%d, s%d, s%d' % (T, T, T2))
    a('s_lshr_b32 s%d, s%d, 1' % (T2, W))
    a('s_lshl_b32 s%d, s%d, 3' % (T2, T2))
    a('s_add_u32 s%d, s%d, s%d' % (T, T, T2))
    a('v_add_u32 v11, s%d, v11' % T)
    a('v_lshlrev_b32 v8, 2, v8')
    srd(a, SG, P_WS, 8192, WS_G)
    a('s_mul_i32 s%d, s%d, %d' % (T, W, A_STRIDE))
    a('s_add_u32 s%d, s%d, %d' % (T, T, CONV_BASE))
    a('v_add_u32 v24, s%d, v237' % T)
    if OPT['ztrig'] >= 0:
        L, Dn = a.newlabel('TW'), a.newlabel('TWD')
        a('s_mov_b32 s11, 0x100000')
        a.label(L)
        a('ds_read_b32 v247, v254 offset:4')
        a('s_waitcnt lgkmcnt(0)')
        a('v_cmp_eq_u32 vcc, 1, v247')
        a('s_cbranch_vccnz %s' % Dn)
        a('s_sleep 2')
        a('s_sub_u32 s11, s11, 1')
        a('s_cbranch_scc0 %s' % L)
        a.label(Dn)
    poll(a, FL, 26, T2, sleep=OPT['zsl'])
    stamp(a, 3)
    ZR, A, ZU = 28, 40, 60
    a('buffer_load_dword v8, v8, %s, 0 offen sc1' % s(SG, 4))
    for mt in range(5):
        for h in range(2):
            a('s_mov_b32 s%d, %s' % (T, hex(65536 * mt + 8192 * h)))
            a('buffer_load_dword v%d, v11, %s, s%d offen sc1' % (ZR + 2 * mt + h, s(SZ, 4), T))
    a('s_mov_b32 s%d, 0xffff0000' % T)
    for mt in range(5):
        a('ds_read_b64 %s, v10 offset:%d' % (v(12 + 2 * mt, 2), 32 * mt))
    L, Dn = a.newlabel('CS'), a.newlabel('CSD')
    a('s_mov_b32 s11, 0x400000')
    a.label(L)
    a('ds_read_b32 v247, v254')
    a('s_waitcnt lgkmcnt(0)')
    a('v_cmp_le_u32 vcc, 8, v247')
    a('s_cbranch_vccnz %s' % Dn)
    a('s_sub_u32 s11, s11, 1')
    a('s_cbranch_scc0 %s' % L)
    a.label(Dn)
    for i in range(10):
        a('v_lshlrev_b32 v%d, 16, v%d' % (A + 2 * i, 12 + i))
        a('v_and_b32 v%d, s%d, v%d' % (A + 2 * i + 1, T, 12 + i))
    a('s_waitcnt vmcnt(10)')
    a('v_mov_b32 v9, v8')
    for i in range(10):
        a('v_pk_mul_f32 %s, %s, v[8:9]' % (v(A + 2 * i, 2), v(A + 2 * i, 2)))
    a('v_sub_f32 v8, 1.0, v8')
    a('v_sub_f32 v9, 1.0, v9')
    a('ds_write_b64 v24, v[8:9] offset:5120')
    for mt in range(5):
        a('s_waitcnt vmcnt(%d)' % (8 - 2 * mt))
        for h in range(2):
            i = 2 * mt + h
            a('v_lshlrev_b32 v%d, 16, v%d' % (ZU, ZR + i))
            a('v_and_b32 v%d, s%d, v%d' % (ZU + 1, T, ZR + i))
            a('v_pk_mul_f32 %s, %s, %s' % (v(A + 2 * i, 2), v(A + 2 * i, 2), v(ZU, 2)))
        a('ds_write_b128 v24, %s offset:%d' % (v(A + 4 * mt, 4), 1024 * mt))
    a('s_waitcnt lgkmcnt(0)')
    stamp_end(a)
    a('s_endpgm')

def conv(a):
    SZ, DO, T, W = 44, CV_DO, CV_T, CV_W
    a('s_setprio %d' % OPT['cprio'])
    for l in cv_f_reads(0, 0): a(l)
    srd(a, SZ, P_WS, SZ_ACT, WS_Z4)
    a('s_lshl_b32 s%d, s%d, 1' % (T, CV_M))
    stamp(a, 7)
    def it(b, nxt):
        a('s_waitcnt lgkmcnt(0)')
        i = 0
        for n in range(8):
            for aa in range(n + 1):
                acc = v(CA + 4 * n, 4)
                a('v_mfma_f32_16x16x32_bf16 %s, %s, %s, %s' % (acc, v(CG[b] + 4 * aa, 4), v(CF[b] + 4 * (n - aa), 4), acc))
                if i in nxt: a(nxt.pop(i))
                i += 1
    def rd(j, b):
        g_, f_ = cv_g_reads(j, b), cv_f_reads(j, b)
        L = []
        for i in range(8): L += [g_[i], f_[2 * i], f_[2 * i + 1]]
        return dict(enumerate(L))
    def flag():
        a('s_waitcnt vmcnt(0)')
        set_flag(a, S_F1)
        a('s_mov_b32 s%d, %s' % (S_F1, hex(OOB)))
        stamp(a, 6)
    a.label('CV_loop')
    it(0, rd(1, 1))
    nx = rd(2, 0)
    for k in range(5):
        nx[26 + k] = 'v_add_u32 v%d, 128, v%d' % (VG + k, VG + k)
    it(1, nx)
    a('s_sub_u32 s%d, s%d, 1' % (T, T))
    a('s_cbranch_scc0 CV_loop')
    it(0, rd(1, 1))
    nx = {}
    for n in range(8):
        nx[(n + 1) * (n + 2) // 2 - 1 + 9] = 'ds_write_b128 v%d, %s offset:%d' % (VXW, v(CA + 4 * n, 4), 1024 * n)
    it(1, nx)
    stamp(a, 8)
    for i in range(4):
        a('s_lshl_b32 s%d, s%d, 16' % (48 + i, CV_D + (i >> 1)) if not (i & 1) else 's_and_b32 s%d, s%d, 0xffff0000' % (48 + i, CV_D + (i >> 1)))
    a('s_nop 4')
    for i in sorted(nx): a(nx[i])
    a('s_waitcnt lgkmcnt(0)')
    a('s_mov_b64 exec, 1')
    a('ds_add_u32 v254, v253')
    a('s_mov_b64 exec, -1')
    L, Dn = a.newlabel('CS'), a.newlabel('CSD')
    a('s_mov_b32 s11, 0x400000')
    a.label(L)
    a('ds_read_b32 v247, v254')
    a('s_waitcnt lgkmcnt(0)')
    a('v_cmp_le_u32 vcc, 4, v247')
    a('s_cbranch_vccnz %s' % Dn)
    a('s_sub_u32 s11, s11, 1')
    a('s_cbranch_scc0 %s' % L)
    a.label(Dn)
    stamp(a, 9)
    a('s_mov_b32 s11, 0xffff0000')
    a('s_cmp_eq_u32 s%d, 1' % CV_M)
    a('s_cbranch_scc1 CV_epiB')
    P, UR, O = 12, 48, 72
    def finish(nch, reg):
        for un in range(nch // 2):
            for t in range(2):
                for hh in range(2):
                    for c in (2 * un, 2 * un + 1):
                        u = UR + 4 * c + 2 * t + hh
                        R = reg(c, t) + 2 * hh
                        a('v_and_b32 v%d, s11, v%d' % (68 + (c & 1), u))
                        a('v_lshlrev_b32 v%d, 16, v%d' % (u, u))
                        a('v_fmac_f32 v%d, s%d, v%d' % (R, 48 + c, 68 + (c & 1)))
                        a('v_fmac_f32 v%d, s%d, v%d' % (R + 1, 48 + c, u))
                    R0, R1 = reg(2 * un, t) + 2 * hh, reg(2 * un + 1, t) + 2 * hh
                    oo = O + 8 * un + 4 * t + 2 * hh
                    a('v_cvt_pk_bf16_f32 v%d, v%d, v%d' % (oo, R0, R1))
                    a('v_cvt_pk_bf16_f32 v%d, v%d, v%d' % (oo + 1, R0 + 1, R1 + 1))
                if un == 1 and t == 0: a('s_add_u32 s%d, s%d, 8192' % (DO, DO))
                a('buffer_store_dwordx4 %s, v237, %s, s%d offen offset:%d sc1' % (v(O + 8 * un + 4 * t, 4), s(SZ, 4), DO, t * 1024))
    def arrive2():
        a('s_mov_b64 exec, 1')
        a('ds_add_u32 v254, v253')
        a('s_mov_b64 exec, -1')
    def ureads(nch):
        for c in range(nch):
            for t in range(2):
                for hh in range(2):
                    a('ds_read_b32 v%d, v%d offset:%d' % (UR + 4 * c + 2 * t + hh, VU, c * CW + 512 * (1 - t) + 64 * (1 - hh)))
    for c in range(2):
        for t in range(2):
            for h in range(2):
                a('ds_read_b128 %s, v%d offset:%d' % (v(P + 16 * c + 8 * t + 4 * h, 4), VXR, (2 * c + h) * 8192 + t * 1024))
    ureads(2)
    a('s_waitcnt lgkmcnt(8)')
    for c in range(2):
        for t in range(2):
            R = P + 16 * c + 8 * t
            a('v_pk_add_f32 %s, %s, %s' % (v(R, 2), v(R, 2), v(R + 4, 2)))
            a('v_pk_add_f32 %s, %s, %s' % (v(R + 2, 2), v(R + 2, 2), v(R + 6, 2)))
    a('s_waitcnt lgkmcnt(0)')
    arrive2()
    finish(2, lambda c, t: P + 16 * c + 8 * t)
    stamp(a, 1)
    a('s_waitcnt vmcnt(0)')
    stamp(a, 2)
    set_flag(a, S_F2)
    a('s_branch K_aterm')
    a.label('CV_epiB')
    for c in range(4):
        for t in range(2):
            a('ds_read_b128 %s, v%d offset:%d' % (v(P + 8 * c + 4 * t, 4), VXR, c * CW + t * 1024))
    ureads(4)
    a('v_lshlrev_b32 v247, %d, v1' % OPT['fsz'])
    a('s_waitcnt lgkmcnt(0)')
    arrive2()
    finish(4, lambda c, t: P + 8 * c + 4 * t)
    stamp(a, 1)
    a('s_waitcnt vmcnt(0)')
    stamp(a, 2)
    a('s_mov_b64 exec, 3')
    a('buffer_store_dwordx2 v[250:251], v247, %s, s%d offen sc1' % (s(SF, 4), S_F2))
    a('s_mov_b64 exec, -1')
    a.label('K_aterm')
    aterm(a)

G2_SW = 72
G2_KB, G2_O, G2_T, G2_T2, G2_LB, G2_RB, G2_CB = 65, 66, 67, 68, 69, 8, 9
G2_ACC, G2_WB, G2_HB = 28, 108, 188
def g2_lds(r):
    return (49152 + r * 20480) if r < 2 else ((r - 2) * 20480)
def g2_ks(p, dst):
    L = ['s_add_u32 s%d, s%d, %d' % (dst, G2_KB, 4 * p),
         's_cmp_ge_u32 s%d, 54' % dst,
         's_cselect_b32 s%d, 54, 0' % G2_T,
         's_sub_u32 s%d, s%d, s%d' % (dst, dst, G2_T)]
    if p == 13:
        L += ['s_cmp_ge_u32 s%d, 2' % S_W, 's_cselect_b32 s%d, 60, s%d' % (dst, dst)]
    return L
def g2_w_items(p, slot, va=237):
    B = G2_WB + 20 * slot
    it = []
    for t in range(5):
        pre = g2_ks(p, G2_O) + ['s_mul_i32 s%d, s%d, 40960' % (G2_O, G2_O)] if t == 0 else []
        it.append(item('buffer_load_dwordx4 %s, v%d, %s, s%d offen offset:%d sc1' % (v(B + 4 * t, 4), va if t < 4 else va + 1, s(G2_SW, 4), G2_O, (t & 3) * 1024), pre, vm=('w', p)))
    return it
def g2_wl_items(p, r):
    it = []
    for t in range(5):
        pre = []
        if t == 0:
            pre = g2_ks(p, G2_O) + ['s_mul_i32 s%d, s%d, 40960' % (G2_O, G2_O), 's_add_u32 m0, s%d, %d' % (G2_LB, g2_lds(r))]
        if t == 4:
            pre = ['s_add_u32 m0, s%d, %d' % (G2_LB, g2_lds(r) + 4096)]
        it.append(item('buffer_load_dwordx4 v%d, %s, s%d offen offset:%d sc1 lds' % (237 if t < 4 else 238, s(G2_SW, 4), G2_O, (t & 3) * 1024), pre, vm=('wl', p)))
    return it
def g2_pre(a):
    RB, CB, T, T2 = G2_RB, G2_CB, G2_T, G2_T2
    a('s_lshl_b32 s%d, s3, 2' % RB)
    a('s_lshr_b32 s%d, s4, 3' % CB)
    a('s_add_u32 s%d, s%d, s%d' % (RB, RB, CB))
    a('s_and_b32 s%d, s4, 7' % CB)
    a('s_mul_i32 s%d, s%d, 5120' % (T, CB))
    a('s_add_u32 s%d, s%d, %s' % (T, T, hex(WS_W2P)))
    srd(a, G2_SW, P_WS, 53 * 40960 + 5120, 's%d' % T)
    if OPT['rot2']:
        a('s_and_b32 s%d, s%d, 3' % (T, RB))
        a('s_mul_i32 s%d, s%d, %d' % (T, T, 13 if OPT['rot2r'] else 0))
        a('s_mul_i32 s%d, s%d, 7' % (T2, CB))
        a('s_add_u32 s%d, s%d, s%d' % (T, T, T2))
        a('s_add_u32 s%d, s%d, s%d' % (T, T, S_W))
        a('s_cmp_ge_u32 s%d, 54' % T)
        a('s_cselect_b32 s%d, 54, 0' % T2)
        a('s_sub_u32 s%d, s%d, s%d' % (G2_KB, T, T2))
    else:
        a('s_mov_b32 s%d, s%d' % (G2_KB, S_W))
    a('s_mul_i32 s%d, s%d, 5120' % (G2_LB, S_W))
    a('v_add_u32 v238, 4096, v237')
    a('s_mul_i32 s%d, s%d, 5' % (T, CB))
    a('s_lshr_b32 s%d, s%d, 2' % (T, T))
    a('s_mul_i32 s%d, s%d, %d' % (T, T, 18 << OPT['fsw']))
    a('s_add_u32 s%d, s%d, %s' % (T, T, hex(F_W)))
    a('s_cmp_eq_u32 s%d, 0' % S_W)
    a('s_cselect_b32 s%d, s%d, %s' % (T, T, hex(OOB)))
    a('v_min_u32 v248, 35, v1')
    a('v_lshl_add_u32 v248, v248, %d, s%d' % (OPT['fsw'], T))

def g2_fh_addr(a):
    T = G2_T
    a('v_min_u32 v247, 13, v1')
    a('v_lshl_add_u32 v248, v247, 2, s%d' % G2_KB)
    a('v_subrev_u32 v247, 54, v248')
    a('v_min_u32 v248, v248, v247')
    a('s_lshl_b32 s%d, s%d, %d' % (T, G2_RB, 6 + OPT['fsh']))
    a('v_lshl_add_u32 v248, v248, %d, s%d' % (OPT['fsh'], T))

def gemm2(a):
    RB, CB, W = G2_RB, G2_CB, S_W
    SHh, SQ, SZ, SG, SO = 56, 52, 44, 60, 48
    O, T, T2 = G2_O, G2_T, G2_T2
    ACC, WB, HB = G2_ACC, G2_WB, G2_HB
    DH = 4
    OH, TH = 70, 71
    g = G1(a)
    FH_LOAD = 'buffer_load_dwordx2 v[26:27], v22, %s, 0 offen sc1' % s(SF, 4)
    FZ_LOAD = 'buffer_load_dwordx2 v[252:253], v25, %s, 0 offen sc1' % s(SF, 4)
    a('v_mov_b32 v22, v248')
    a('s_setprio 0')
    g.emit(item(FH_LOAD, vm='fh'))
    for it in g2_wl_items(6, 2) + g2_wl_items(7, 3): g.emit(it)
    a('v_mov_b32 v2, v237')
    a('v_mov_b32 v3, v238')
    a('s_mul_i32 s%d, s%d, %d' % (T, RB, 54 * 4096))
    if WS_H: a('s_add_u32 s%d, s%d, %s' % (T, T, hex(WS_H)))
    srd(a, SHh, P_WS, 54 * 4096, 's%d' % T)
    for j in range(4):
        a('s_xor_b32 s%d, s%d, %d' % (T, W, j))
        a('s_lshl_b32 s%d, s%d, 10' % (T, T))
        a('v_add_u32 v%d, s%d, v2' % (4 + j, T))
    a('v_add_u32 v24, s%d, v2' % G2_LB)
    a('v_add_u32 v23, %d, v24' % g2_lds(1))
    def late_setup(a):
        a('s_lshl_b32 s%d, s%d, 6' % (T, RB))
        a('s_lshl_b32 s%d, s%d, 4' % (T2, W))
        a('s_add_u32 s%d, s%d, s%d' % (T, T, T2))
        a('s_mul_i32 s%d, s%d, 1280' % (T, T))
        a('s_mul_i32 s%d, s%d, 160' % (T2, CB))
        a('s_add_u32 s%d, s%d, s%d' % (T, T, T2))
        chunk_addrs(a, 12, 10, T)
        lds_q_base(a, T2, W)
        a('v_add_u32 v15, s%d, v2' % T2)
        a('v_lshrrev_b32 v9, 4, v1')
        a('v_and_b32 v10, 15, v1')
        a('v_mul_u32_u24 v10, 160, v10')
        a('v_lshl_add_u32 v10, v9, 3, v10')
        a('v_add_u32 v10, s%d, v10' % T2)
        srd(a, SO, P_OUT, SZ_ACT)
        a('s_mul_i32 s%d, s%d, %d' % (T, W, A_STRIDE))
        a('s_add_u32 s%d, s%d, %d' % (T, T, CONV_BASE))
        a('v_add_u32 v11, s%d, v2' % T)
    stamp(a, 6)
    g.wait(vm=['fh'])
    a('v_cmp_eq_u64 s[76:77], %s, v[26:27]' % NC)
    order = [0, 1, 2, 3, 4, 8, 5, 9, 6, 10, 7, 11, 12, 13]
    slot = [0, 1, 2, 3, 2, 0, 2, 1, 2, 3, 2, 0, 1, 3]
    refill = {0: 8, 1: 9, 2: 4, 3: 10, 4: 5, 5: 11, 6: 6, 7: 12, 8: 7, 9: 13}
    slow = []
    def fh_check(bit):
        S, B = a.newlabel('FHS'), a.newlabel('FHB')
        slow.append((S, B, bit))
        return ['s_bitcmp1_b32 s76, %d' % bit, 's_cbranch_scc0 %s' % S, B + ':']
    def ks_lines(p, dst, tmp):
        L = ['s_add_u32 s%d, s%d, %d' % (dst, G2_KB, 4 * p), 's_sub_u32 s%d, s%d, 54' % (tmp, dst), 's_min_u32 s%d, s%d, s%d' % (dst, dst, tmp)]
        if p == 13: L += [['s_cmp_ge_u32 s%d, 2' % S_W, 's_cselect_b32 s%d, 60, s%d' % (dst, dst)]]
        return L
    def h_prep(r):
        return [fh_check(order[r])] + ks_lines(order[r], OH, TH) + [('s_lshl_b32 s%d, s%d, 12' % (OH, OH)) if not (OPT['xh'] and r >= 4) else 's_mov_b32 s%d, 0x7000000' % OH]
    def h_item(r, t):
        B = HB + 16 * (r % DH)
        return item('buffer_load_dwordx4 %s, v%d, %s, s%d offen%s' % (v(B + 4 * t, 4), 4 + t, s(SHh, 4), OH, '' if OPT['xsc'] else ' sc1'), vm=('h', r, t))
    for r in range(DH):
        for l in h_prep(r): g.emit(item(l))
        if r == 0: stamp(a, 7)
        for t in range(4): g.emit(h_item(r, t))
        if r == 1: late_setup(a)
    ZR = WB + 40
    GQ = WB
    ZU = WB + 20
    MASK = 71
    rbuf = [g2_lds(2), g2_lds(3), g2_lds(0)]
    for r in range(14):
        p = order[r]
        if r in (1, 3, 5, 7, 9, 11, 12, 13): stamp(a, (1, 3, 5, 7, 9, 11, 12, 13).index(r) + 2, 3)
        if r < 8: stamp(a, r + 1, 4)
        if r == 0 and OPT['stamp'] == 4: a('s_mov_b32 s98, s80')
        if r == 0: stamp(a, 1, 3)
        fill = {i: [] for i in range(20)}
        if r + DH < 14:
            for i, l in enumerate(h_prep(r + DH)): fill[min(i, 4) if i < 5 else 4].append(item(l))
            for j in range(4): fill[5 * j + 4].append(h_item(r + DH, j))
        free = [5, 6, 7, 8, 10, 11, 12, 13, 15, 16, 17, 18] if r + DH < 14 else list(range(20))
        extra = []
        if r - 1 in refill:
            pp = refill[r - 1]; Bs = WB + 20 * slot[r - 1]
            if pp >= 8:
                extra += [item(l) for l in ks_lines(pp, O, T)] + [item(('s_mul_i32 s%d, s%d, 40960' % (O, O)) if not OPT['xw'] else 's_mov_b32 s%d, 0x7000000' % O)]
                extra += [item('buffer_load_dwordx4 %s, v%d, %s, s%d offen offset:%d sc1' % (v(Bs + 4 * t, 4), 2 if t < 4 else 3, s(G2_SW, 4), O, (t & 3) * 1024), vm=('w', pp)) for t in range(5)]
            else:
                lb = g2_lds(pp - 4); ad = 24
                if pp == 5: ad, lb = 23, 0
                extra += [item('ds_read_b128 %s, v%d offset:%d' % (v(Bs + 4 * t, 4), ad, lb + t * 1024), lg=('wl', pp), needvm=[('wl', pp)]) for t in range(5)]
        if OPT['arf'] and r in (0, 3):
            extra += [item(FH_LOAD, vm='fh')]
        if OPT['arf'] and r in (3, 5):
            extra = [item('v_cmp_eq_u64 s[76:77], %s, v[26:27]' % NC, needvm=['fh'])] + extra
        if r == OPT['ztrig']:
            extra += [item('ds_write_b32 v254, v253 offset:4', lg='trig')]
        if r == 11:
            for j in range(1, 4):
                extra += [item(['s_xor_b32 s%d, s%d, %d' % (T, W, j), 's_mul_i32 s%d, s%d, 5120' % (T, T), 'v_add_u32 v%d, s%d, v2' % (4 + j, T)])]
        wr = []
        if r == 13:
            wr = ['ds_write_b128 v24, %s offset:%d' % (v(ACC + (j * 5 + mt) * 4, 4), rbuf[j - 1] + mt * 1024) for j in (1, 2, 3) for mt in range(5)]
            for i in range(9, 20): fill[i].append(item(wr[i - 9]))
        assert len(extra) <= len(free), (r, len(extra))
        for i, it in enumerate(extra): fill[free[i]].append(it)
        Bw = WB + 20 * slot[r]; Bh = HB + 16 * (r % DH)
        js = (0, 1, 2, 3) if r < 13 else (1, 2, 3, 0)
        i = 0
        for j in js:
            g.wait(vm=[('h', r, j), ('w', p)], lg=[('wl', p)])
            for mt in range(5):
                acc = v(ACC + (j * 5 + mt) * 4, 4)
                a('v_mfma_f32_16x16x32_bf16 %s, %s, %s, %s' % (acc, v(Bw + 4 * mt, 4), v(Bh + 4 * j, 4), '0' if r == 0 else acc))
                for it in fill[i]: g.emit(it)
                i += 1
    stamp(a, 8)
    for l in wr[11:]: a(l)
    a('s_waitcnt lgkmcnt(0)')
    a('s_barrier')
    stamp(a, 9)
    a('ds_read_b64 v[8:9], v11 offset:5120')
    def rd(m2):
        for j in range(1, 4):
            a('ds_read_b128 %s, v%d offset:%d' % (v(ACC + (j * 5 + m2) * 4, 4), 4 + j, rbuf[j - 1] + m2 * 1024))
        a('ds_read_b128 %s, v11 offset:%d' % (v(GQ + 4 * m2, 4), m2 * 1024))
    for m2 in range(3): rd(m2)
    for mt in range(5):
        if mt + 3 < 5: rd(mt + 3)
        a('s_waitcnt lgkmcnt(%d)' % (4 * min(3, 4 - mt)))
        A0 = ACC + 4 * mt
        for h in range(2):
            a('v_pk_add_f32 %s, %s, %s' % (v(A0 + 2 * h, 2), v(A0 + 2 * h, 2), v(A0 + 20 + 2 * h, 2)))
            a('v_pk_add_f32 %s, %s, %s' % (v(A0 + 40 + 2 * h, 2), v(A0 + 40 + 2 * h, 2), v(A0 + 60 + 2 * h, 2)))
        for h in range(2):
            a('v_pk_add_f32 %s, %s, %s' % (v(A0 + 2 * h, 2), v(A0 + 2 * h, 2), v(A0 + 40 + 2 * h, 2)))
        for h in range(2):
            a('v_pk_fma_f32 %s, %s, v[8:9], %s' % (v(A0 + 2 * h, 2), v(A0 + 2 * h, 2), v(GQ + 4 * mt + 2 * h, 2)))
        a('v_cvt_pk_bf16_f32 v%d, v%d, v%d' % (ZU + 2 * mt, A0, A0 + 1))
        a('v_cvt_pk_bf16_f32 v%d, v%d, v%d' % (ZU + 1 + 2 * mt, A0 + 2, A0 + 3))
    for mt in range(5):
        a('ds_write_b64 v10, %s offset:%d' % (v(ZU + 2 * mt, 2), 32 * mt))
    for i in range(3):
        a('ds_read_b128 %s, v15 offset:%d' % (v(16 + 4 * i, 4), 1024 * i))
    for i in range(3):
        a('s_waitcnt lgkmcnt(%d)' % (2 - i))
        a('buffer_store_dwordx4 %s, v%d, %s, 0 offen' % (v(16 + 4 * i, 4), 12 + i, s(SO, 4)))
    stamp_end(a)
    a('s_endpgm')
    for (S, B, bit) in slow:
        L = a.newlabel('SL')
        a.label(S)
        a('s_mov_b32 s11, 0x20000')
        a.label(L)
        if OPT['stamp'] == 4: a('s_add_u32 s98, s98, 100')
        if bit is None:
            a(FZ_LOAD)
            a('s_waitcnt vmcnt(0)')
            a('v_cmp_eq_u64 vcc, %s, v[252:253]' % NC)
            a('s_cmp_eq_u64 vcc, -1')
        else:
            a(FH_LOAD)
            a('s_waitcnt vmcnt(0)')
            a('v_cmp_eq_u64 s[76:77], %s, v[26:27]' % NC)
            a('s_bitcmp1_b32 s76, %d' % bit)
        a('s_cbranch_scc1 %s' % B)
        a('s_sleep %d' % OPT['fsl'])
        a('s_sub_u32 s11, s11, 1')
        a('s_cbranch_scc0 %s' % L)
        a('s_branch %s' % B)

def kernel(a, name):
    a.raw('.p2align 8')
    a.label(name)
    a('s_cmp_ge_u32 s2, 256')
    a('s_cbranch_scc1 K_exit')
    a('s_load_dwordx16 s[16:31], s[0:1], 0')
    a('s_load_dwordx8 s[32:39], s[0:1], 64')
    a('s_load_dwordx4 s[40:43], s[0:1], 96')
    a('s_memrealtime s[74:75]')
    stamp_begin(a)
    a('v_lshrrev_b32 v1, 6, v0')
    a('s_and_b32 s3, s2, 7')
    a('v_readfirstlane_b32 s%d, v1' % S_W)
    a('v_and_b32 v1, 63, v0')
    a('s_lshr_b32 s4, s2, 3')
    common_pre(a)
    a('s_getreg_b32 s%d, hwreg(HW_REG_XCC_ID)' % S_XCC)
    a('s_add_u32 s%d, s%d, 1' % (S_XCC, S_XCC))
    a('s_cmp_ge_u32 s4, 27')
    a('s_cbranch_scc1 K_prep')
    a('s_mov_b32 s8, s3')
    a('s_mov_b32 s9, s4')
    gemm1_pre(a)
    a('s_waitcnt lgkmcnt(0)')
    g, d = gemm1_head(a)
    a('s_cmp_lt_u32 s%d, 4' % S_W)
    a('s_cbranch_scc1 K_tail_g2')
    gemm1_tail(a, g, d, 'CV')
    a.label('K_conv')
    conv(a)
    a.label('K_prep')
    a('s_mul_i32 s8, s3, 5')
    a('s_add_u32 s8, s8, s4')
    a('s_sub_u32 s8, s8, 27')
    a('s_lshl_b32 s7, s8, 3')
    a('s_add_u32 s7, s7, s%d' % S_W)
    ut_pre(a)
    a('s_waitcnt lgkmcnt(0)')
    ut_loads(a)
    stamp(a, 1)
    flag_srd(a)
    srd(a, 72, P_DBG, 256)
    go_off(a)
    a(GO_LOAD)
    a('s_waitcnt vmcnt(9)')
    stamp(a, 2)
    ut_k(a)
    a('s_mov_b32 s69, 0x20000')
    a.label('K_sp_go')
    a('s_waitcnt vmcnt(0)')
    a('v_cmp_ne_u32 vcc, 0, v250')
    a('s_cbranch_vccnz K_sp_go2')
    a('s_sleep 4')
    a(GO_LOAD)
    a('s_sub_u32 s69, s69, 1')
    a('s_cbranch_scc0 K_sp_go')
    a.label('K_sp_go2')
    fx_publish(a, 0)
    ut_v(a)
    stamp(a, 3)
    a('s_waitcnt vmcnt(0)')
    set_flag(a, S_F2)
    go_sgpr(a)
    a('s_mov_b32 s%d, %s' % (S_F1, hex(OOB)))
    a('s_barrier')
    stamp(a, 5)
    a('s_cmp_lt_u32 s%d, 4' % S_W)
    a('s_cbranch_scc1 K_prep_g2')
    a('s_lshl_b32 s7, s8, 1')
    a('s_add_u32 s7, s7, 240')
    a('s_mov_b32 s%d, 1' % CV_M)
    gp = G1(a)
    cv_pre(a)
    for it in cv_h_items(): gp.emit(it)
    cv_setup1(a)
    for ls in cv_pads():
        for l in ls: a(l)
    poll(a, PF_LOAD, 244, 11, sleep=8)
    cv_u_loads(a)
    a('s_barrier')
    fx = cv_fix()
    for l in fx[0]: a(l)
    a('s_waitcnt lgkmcnt(0)')
    for l in fx[1:]: a(l)
    for l in cv_g_reads(0, 0): a(l)
    a('s_waitcnt vmcnt(0)')
    a('s_branch K_conv')
    a.label('K_prep_g2')
    g2_pre(a)
    a(PF_LOAD)
    a('s_waitcnt vmcnt(0)')
    fw_check(a)
    a('s_barrier')
    for p in range(4):
        for it in g2_w_items(p, p): gp.emit(it)
    for r in range(2):
        for it in g2_wl_items(4 + r, r): gp.emit(it)
    g2_fh_addr(a)
    a('s_branch K_gemm2')
    a.label('K_tail_g2')
    gemm1_tail(a, g, d, 'G2')
    a.label('K_gemm2')
    gemm2(a)
    a.label('K_exit')
    a('s_endpgm')

def main(out):
    hdr = open('cdna_kernels/%s.s.ref' % NAME).read().split('\n')
    head = [l for l in hdr if l.startswith(';') and '@launch' not in l and 'Override' not in l and 'grid=ceil' not in l]
    a = Asm()
    for l in head: a.raw(l)
    a.raw('; @launch grid=(256,1,1) block=(512,1,1) lds=%d' % LDS_TOTAL)
    a.raw('.amdgcn_target "amdgcn-amd-amdhsa--gfx950"')
    a.raw('.text')
    nm = NAME + '_kernel'
    a.raw('.globl %s' % nm)
    a.raw('.type %s,@function' % nm)
    kernel(a, nm)
    a.raw('.section .rodata,"a"')
    a.raw(kernel_desc(nm, 256))
    open(out, 'w').write(a.text())

if __name__ == '__main__':
    out = 'cdna_kernels/%s.s' % NAME
    for arg in sys.argv[1:]:
        if '=' in arg:
            k, val = arg.split('='); OPT[k] = int(val)
        else:
            out = arg
    main(out)
```

```python
import sys, copy
from asmlib import *

NAME = 'gated_mix__ssm_conv_h3__glu_gated_swiglu__prompt'
WS_H = 0
WS_W2P = 0x800000
WS_UT = 0xC00000
WS_Z4 = 0x1000000
WS_G = 0x1400000
WS_F = 0x1500000
F_H, F_U, F_W, F_X, F_Z = 0, 0x40000, 0x50000, 0x58000, 0x60000
F_SIZE = 0xA0000
FS = 7
SZ_ACT = 2048 * 640 * 2
SZ_W = 640 * 1728 * 2
SZ_H = 2048 * 1728 * 2
P_Q, P_K, P_V, P_SK, P_SSMK, P_SSMD, P_BX, P_W1, P_W3, P_W2, P_GW, P_OUT, P_DBG, P_WS = [16 + 2 * i for i in range(14)]
NLOG2E = '0xbfb8aa3b'
OPT = dict(probe=-1, rot2=1, stamp=0, prio=0, cprio=1, cflag=0, touch=0, nodma=0, tp=2, lead=3, rot2r=0, rot1=10, eprio=3, gprio=2, fsl=8, ebar=1, npost=0, allwait=0, npre=10, fbar=0, zr=10, fwst=7, local=1, wbl2=0, arf=1, xw=0, xh=0, xsc=0, xq=0, zsl=16, fsx=3, fsh=3, fsw=3, fsu=7, fsz=3, ztrig=5)
LDS_TOTAL = 163840
LDS_CNT = LDS_TOTAL - 32
SLOT = [0, 98304, 49152]
LDS_W2S = 147456
LDS_GW = 159744
CONV_BASE = 98304
S_W = 10
SF = 12
S_F1, S_F2 = 5, 6
S_XCC = 77
WS_DBG = 0x2000000
OOB = 0x1000000

def stamp(a, i, mode=1):
    if OPT['probe'] == i and mode == 1:
        a('s_memrealtime s[96:97]')
    if OPT['stamp'] == mode:
        a('s_memtime s[%d:%d]' % (80 + 2 * i, 81 + 2 * i))
def stamp_begin(a):
    if OPT['probe'] >= 0:
        a('s_memrealtime s[96:97]')
    if OPT['stamp']:
        a('s_memrealtime s[78:79]')
        for i in range(11): a('s_mov_b64 s[%d:%d], 0' % (80 + 2 * i, 81 + 2 * i))
        a('s_memtime s[80:81]')
def stamp_end(a):
    if OPT['probe'] >= 0:
        L = a.newlabel('PRB')
        if OPT['probe'] == 10:
            a('s_waitcnt vmcnt(0)')
            a('s_memrealtime s[96:97]')
        a('s_cmp_lg_u32 s10, 0')
        a('s_cbranch_scc1 %sx' % L)
        a('s_waitcnt lgkmcnt(0)')
        a('s_add_u32 s96, s96, 4000')
        a.label(L)
        a('s_sleep 1')
        a('s_memrealtime s[98:99]')
        a('s_waitcnt lgkmcnt(0)')
        a('s_sub_u32 s98, s98, s96')
        a('s_cmp_lt_i32 s98, 0')
        a('s_cbranch_scc1 %s' % L)
        a.label(L + 'x')
    if OPT['stamp']:
        a('s_waitcnt vmcnt(0) lgkmcnt(0)')
        a('s_memtime s[100:101]')
        a('s_memrealtime s[76:77]')
        srd(a, 44, P_WS, 0x100000, WS_DBG)
        a('s_lshl_b32 s5, s2, 3')
        a('s_add_u32 s5, s5, s10')
        a('s_lshl_b32 s5, s5, 6')
        a('s_waitcnt lgkmcnt(0)')
        a('v_mov_b32 v0, s78')
        a('v_mov_b32 v1, s76')
        for i in range(11): a('v_mov_b32 v%d, s%d' % (2 + i, 80 + 2 * i))
        a('v_mov_b32 v16, s5')
        a('s_mov_b64 exec, 1')
        for i in range(4):
            a('buffer_store_dwordx4 v[%d:%d], v16, s[44:47], 0 offen offset:%d' % (4 * i, 4 * i + 3, 16 * i))

def capture(a, fn):
    save = a.lines; a.lines = []
    fn()
    out = a.lines; a.lines = save
    return out

class Q:
    def __init__(self): self.q = []
    def push(self, tag, sure=True): self.q.append((tag, sure))
    def need(self, tags):
        idx = [i for i, (t, _) in enumerate(self.q) if t in tags]
        if not idx: return None
        last = max(idx)
        n = sum(1 for (_, sure) in self.q[last + 1:] if sure)
        self.q = self.q[last + 1:]
        return n
    def clear(self): self.q = []

NC = 's[0:1]'
def poll_check(a, loadline, vtmp, sc, sleep=2):
    L, D = a.newlabel('POLL'), a.newlabel('POLLD')
    a('s_mov_b32 s%d, 0x20000' % sc)
    a.label(L)
    a('v_cmp_eq_u64 vcc, %s, %s' % (NC, v(vtmp, 2)))
    a('s_cmp_eq_u64 vcc, -1')
    a('s_cbranch_scc1 %s' % D)
    a('s_sleep %d' % sleep)
    a(loadline)
    a('s_waitcnt vmcnt(0)')
    a('s_sub_u32 s%d, s%d, 1' % (sc, sc))
    a('s_cbranch_scc0 %s' % L)
    a.label(D)
def poll(a, loadline, vtmp, sc, sleep=2):
    a(loadline)
    a('s_waitcnt vmcnt(0)')
    poll_check(a, loadline, vtmp, sc, sleep)

GO_LOAD = 'buffer_load_dwordx2 v[250:251], v252, s[72:75], s11 offen sc1'
PF_LOAD = 'buffer_load_dwordx2 v[244:245], v248, s[%d:%d], 0 offen sc1' % (SF, SF + 3)

def set_flag(a, soff):
    a('s_mov_b64 exec, 1')
    a('buffer_store_dwordx2 v[250:251], v252, %s, s%d offen sc1' % (s(SF, 4), soff))
    a('s_mov_b64 exec, -1')

def fx_publish(a, wave):
    a('v_mov_b32 v240, v250')
    a('v_xor_b32 v241, s%d, v251' % S_XCC)
    a('s_lshl_b32 s11, s3, 5')
    a('s_add_u32 s11, s11, s4')
    a('s_lshl_b32 s11, s11, %d' % OPT['fsx'])
    a('s_add_u32 s11, s11, %s' % hex(F_X))
    a('s_cmp_eq_u32 s%d, %d' % (S_W, wave))
    a('s_cselect_b32 s11, s11, %s' % hex(OOB))
    a('s_mov_b64 exec, 1')
    a('buffer_store_dwordx2 v[240:241], v252, %s, s11 offen sc1' % s(SF, 4))
    a('s_mov_b64 exec, -1')
def fx_load(a):
    a('s_lshr_b32 s11, s%d, 1' % S_W)
    a('s_lshl_b32 s11, s11, 3')
    a('v_and_b32 v249, 7, v1')
    a('v_add_u32 v249, s11, v249')
    a('s_lshl_b32 s11, s3, %d' % (5 + OPT['fsx']))
    a('s_add_u32 s11, s11, %s' % hex(F_X))
    a('v_lshlrev_b32 v249, %d, v249' % OPT['fsx'])
    a('buffer_load_dwordx2 v[242:243], v249, %s, s11 offen sc1' % s(SF, 4))
def fx_eval(a):
    a('v_cmp_eq_u64 vcc, v[240:241], v[242:243]')
    a('s_cmp_eq_u64 vcc, -1')
    a('s_cselect_b32 s%d, %d, 0' % (S_XCC, 1 if OPT['local'] else 0))
def store2(a, line):
    L1, L2 = a.newlabel('SL1'), a.newlabel('SL2')
    a('s_cmp_eq_u32 s%d, 1' % S_XCC)
    a('s_cbranch_scc1 %s' % L1)
    a(line + ' sc1')
    a('s_branch %s' % L2)
    a.label(L1)
    a(line)
    a.label(L2)

def nonce_publish(a):
    L = a.newlabel('NP')
    a('s_or_b32 s11, s2, s%d' % S_W)
    a('s_cmp_lg_u32 s11, 0')
    a('s_cbranch_scc1 %s' % L)
    a('s_or_b32 s74, s74, 1')
    a('v_mov_b32 v250, s74')
    a('v_mov_b32 v251, s75')
    a('v_lshlrev_b32 v249, 7, v1')
    a('s_mov_b64 exec, 3')
    a('global_store_dwordx2 v249, v[250:251], s[%d:%d] sc1' % (P_DBG, P_DBG + 1))
    a('s_mov_b64 exec, -1')
    a.label(L)
def go_off(a):
    a('s_and_b32 s11, s4, 1')
    a('s_lshl_b32 s11, s11, 7')
def go_issue(a):
    srd(a, 72, P_DBG, 256)
    go_off(a)
    a('s_cmp_eq_u32 s%d, 0' % S_W)
    a('s_cselect_b32 s11, s11, %s' % hex(OOB))
    a(GO_LOAD)
def go_check(a):
    L, R, D = a.newlabel('GOC'), a.newlabel('GOR'), a.newlabel('GOD')
    a('s_cmp_lg_u32 s%d, 0' % S_W)
    a('s_cbranch_scc1 %s' % L)
    go_off(a)
    a('s_mov_b32 s69, 0x20000')
    a.label(R)
    a('v_cmp_ne_u32 vcc, 0, v250')
    a('s_cbranch_vccnz %s' % D)
    a('s_sleep 4')
    a(GO_LOAD)
    a('s_waitcnt vmcnt(0)')
    a('s_sub_u32 s69, s69, 1')
    a('s_cbranch_scc0 %s' % R)
    a.label(D)
    a('ds_write_b64 v254, v[250:251] offset:8')
    a('s_waitcnt lgkmcnt(0)')
    a.label(L)
GO_FETCH = 'ds_read_b64 v[250:251], v254 offset:8'
def go_sgpr(a):
    a('v_readfirstlane_b32 s0, v250')
    a('v_readfirstlane_b32 s1, v251')
def fw_check(a):
    D = a.newlabel('PFD')
    a('s_cmp_lg_u32 s%d, 0' % S_W)
    a('s_cbranch_scc1 %s' % D)
    poll_check(a, PF_LOAD, 244, 11, sleep=4)
    a.label(D)

def common_pre(a):
    a('v_mov_b32 v252, 0')
    a('v_mov_b32 v253, 1')
    a('v_mov_b32 v254, %d' % LDS_CNT)
    a('ds_write_b32 v254, v252')
    a('ds_write_b32 v254, v252 offset:4')
    a('ds_write_b32 v254, v252 offset:16')
    a('v_lshlrev_b32 v237, 4, v1')

def flag_srd(a):
    srd(a, SF, P_WS, F_SIZE, WS_F)

G1_FR, G1_ACC = 12, 44
SX, SW1, SW3, SH = 44, 48, 52, 56
OX, OW, LW, HO, GO = 60, 61, 62, 63, 64
GID, U0 = 70, 71

def gemm1_pre(a):
    RB, CB, W = 8, 9, S_W
    a('s_lshl_b32 s%d, s%d, 10' % (LW, W))
    a('v_lshrrev_b32 v13, 3, v1')
    a('s_lshl_b32 s11, s%d, 3' % W)
    a('v_add_u32 v13, s11, v13')
    a('v_bfe_u32 v14, v13, 1, 3')
    a('v_and_b32 v15, 7, v1')
    a('v_xor_b32 v14, v14, v15')
    a('v_lshlrev_b32 v14, 4, v14')
    a('v_mul_u32_u24 v2, 1280, v13')
    a('v_add_u32 v2, v2, v14')
    for i in range(1, 4):
        a('v_add_u32 v%d, %s, v2' % (2 + i, hex(i * 81920)))
    a('v_bfe_u32 v14, v13, 1, 1')
    a('v_lshlrev_b32 v14, 2, v14')
    a('v_xor_b32 v14, v14, v15')
    a('v_lshlrev_b32 v14, 4, v14')
    a('v_mul_u32_u24 v6, 3456, v13')
    a('v_add_u32 v6, v6, v14')
    if OPT['touch']:
        a('v_mul_u32_u24 v16, 205, v1')
        a('v_lshrrev_b32 v16, 11, v16')
        a('v_mul_u32_u24 v17, 10, v16')
        a('v_sub_u32 v17, v1, v17')
        a('s_mul_i32 s11, s%d, 10' % W)
        a('v_add_u32 v17, s11, v17')
        a('v_min_u32 v17, 74, v17')
        a('s_lshr_b32 s11, s4, 2')
        a('s_mul_i32 s11, s11, 43')
        a('v_add_u32 v18, s11, v17')
        a('v_min_u32 v18, 255, v18')
        a('v_mul_u32_u24 v18, 1280, v18')
        a('v_subrev_u32 v19, 43, v17')
        a('v_and_b32 v19, 15, v19')
        a('s_and_b32 s11, s4, 3')
        a('s_lshl_b32 s11, s11, 4')
        a('v_add_u32 v19, s11, v19')
        a('v_mul_u32_u24 v19, 3456, v19')
        a('v_cmp_gt_u32 vcc, 43, v17')
        a('v_mov_b32 v20, %d' % (64 * 3456))
        a('v_mov_b32 v21, 128')
        a('v_cndmask_b32 v242, v20, v21, vcc')
        a('v_cndmask_b32 v18, v19, v18, vcc')
        a('v_mul_u32_u24 v16, v16, v242')
        a('v_add_u32 v18, v18, v16')
    a('s_mul_i32 s%d, s%d, 27' % (GID, RB))
    a('s_add_u32 s%d, s%d, s%d' % (GID, GID, CB))
    a('s_lshr_b32 s65, s%d, 1' % W)
    a('s_and_b32 s66, s%d, 1' % W)
    a('s_lshl_b32 s67, s%d, 2' % RB)
    a('s_add_u32 s67, s67, s65')
    a('s_lshl_b32 s68, s%d, 1' % CB)
    a('s_add_u32 s68, s68, s66')
    a('s_lshl_b32 s%d, s67, 6' % S_F1)
    a('s_add_u32 s%d, s%d, s68' % (S_F1, S_F1))
    a('s_lshl_b32 s%d, s%d, %d' % (S_F1, S_F1, OPT['fsh']))

def touch_lines(lo, n):
    m = ((1 << n) - 1) << lo
    return ['s_mov_b32 exec_lo, %s' % hex(m & 0xffffffff), 's_mov_b32 exec_hi, %s' % hex(m >> 32),
            'global_load_dword v243, v[240:241], off', 's_mov_b64 exec, -1']

def gemm1_post_addr(a):
    W = S_W
    a('s_mul_i32 s%d, s67, 54' % HO)
    a('s_add_u32 s%d, s%d, s68' % (HO, HO))
    a('s_lshl_b32 s%d, s%d, 12' % (HO, HO))
    a('s_lshl_b32 s11, s65, 13')
    a('v_and_b32 v13, 31, v1')
    a('v_lshrrev_b32 v14, 5, v1')
    a('v_bfe_u32 v15, v1, 1, 3')
    a('v_xor_b32 v15, v15, v14')
    a('v_lshlrev_b32 v12, 7, v13')
    a('v_add_u32 v12, s11, v12')
    for kk in range(4):
        a('v_xor_b32 v%d, %d, v15' % (7 + kk, 2 * kk))
        a('v_lshl_add_u32 v%d, v%d, 4, v12' % (7 + kk, 7 + kk))
    a('v_bfe_u32 v11, v1, 2, 2')
    a('v_lshl_add_u32 v11, v14, 3, v11')
    a('v_lshlrev_b32 v11, 7, v11')
    a('v_bfe_u32 v12, v1, 3, 1')
    a('v_xor_b32 v12, s66, v12')
    a('v_lshl_add_u32 v11, v12, 6, v11')
    a('v_bfe_u32 v12, v1, 4, 1')
    a('v_lshl_add_u32 v11, v12, 5, v11')
    a('v_and_b32 v12, 3, v1')
    a('v_lshl_add_u32 v11, v12, 3, v11')
    a('v_add_u32 v11, 0x8000, v11')
    for i in range(5):
        a('v_add_u32 v%d, 0x18000, v%d' % (208 + i, 7 + i))
    a('v_bfe_u32 v12, v1, 4, 1')
    a('v_lshlrev_b32 v12, 10, v12')
    a('v_and_b32 v13, 15, v1')
    a('v_lshl_add_u32 v12, v13, 4, v12')
    a('v_lshl_add_u32 v213, v14, 8, v12')
    a('s_and_b32 s%d, s68, 7' % GO)
    a('s_lshl_b32 s69, s%d, 10' % GO)
    a('s_add_u32 s11, s11, s69')
    a('v_add_u32 v214, s11, v237')
    a('v_add_u32 v215, 0x18000, v214')
    a('s_and_b32 s69, s%d, 1' % GO)
    a('s_lshl_b32 s69, s69, 2')
    a('v_lshrrev_b32 v12, 4, v1')
    a('v_add_u32 v12, s69, v12')
    a('v_and_b32 v13, 7, v1')
    a('v_xor_b32 v12, v12, v13')
    a('v_lshlrev_b32 v216, 4, v12')
    a('v_add_u32 v216, %d, v216' % LDS_GW)
    if OPT['rot1']:
        a('s_lshl_b32 s69, s%d, 7' % KS0)
        a('v_add_u32 v216, s69, v216')
    a('v_mov_b32 v217, 0')
    a('s_lshl_b32 s%d, s%d, 5' % (GO, GO))
    a('s_lshl_b32 s69, s67, 8')
    a('s_add_u32 s%d, s%d, s69' % (GO, GO))
    a('s_cmp_lt_u32 s68, 8')
    a('s_cselect_b32 s%d, s%d, %s' % (GO, GO, hex(OOB)))
    a('v_lshrrev_b32 v12, 5, v1')
    a('v_bfe_u32 v13, v1, 2, 3')
    a('v_lshl_add_u32 v12, v12, 4, v13')
    a('v_lshlrev_b32 v12, 7, v12')
    a('v_and_b32 v13, 3, v1')
    a('v_lshl_add_u32 v12, v13, 3, v12')
    a('s_lshr_b32 s11, s%d, 2' % W)
    a('s_lshl_b32 s11, s11, 12')
    a('s_and_b32 s69, s%d, 3' % W)
    a('s_lshl_b32 s69, s69, 5')
    a('s_add_u32 s11, s11, s69')
    a('s_add_u32 s11, s11, %d' % LDS_W2S)
    a('v_add_u32 v236, s11, v12')

def item(lines, pre=(), vm=None, lg=None, needlg=(), needvm=()):
    if isinstance(lines, str): lines = [lines]
    if isinstance(pre, str): pre = [pre]
    return dict(pre=list(pre), lines=list(lines), vm=vm, lg=lg, needlg=set(needlg), needvm=set(needvm))

KS0 = 28
def g1_dma_items(stage):
    base = SLOT[stage % 3]
    it = []
    for m, S in ((0, SW1), (1, SW3)):
        pre = ['s_add_u32 m0, s%d, %s' % (LW, hex(base + 32768 + m * 8192))]
        if m == 0:
            if OPT['rot1']:
                pre = ['s_add_u32 s29, s%d, %d' % (KS0, stage), 's_cmp_ge_u32 s29, 10', 's_cselect_b32 s%d, 10, 0' % OW,
                       's_sub_u32 s29, s29, s%d' % OW, 's_mul_i32 s%d, s29, %d' % (OW, 64 * 3456)] + pre
            else:
                pre = ['s_mov_b32 s%d, %s' % (OW, hex(stage * 64 * 3456))] + pre
        it.append(item('buffer_load_dwordx4 v6, %s, s%d offen lds' % (s(S, 4), OW), pre, vm=('st', stage)))
    for i in range(4):
        pre = ['s_add_u32 m0, s%d, %s' % (LW, hex(base + i * 8192))]
        if i == 0:
            pre = [('s_lshl_b32 s%d, s29, 7' % OX) if OPT['rot1'] else ('s_movk_i32 s%d, %d' % (OX, stage * 128))] + pre
        it.append(item('buffer_load_dwordx4 v%d, %s, s%d offen lds' % (2 + i, s(SX, 4), OX), pre, vm=('st', stage)))
    if OPT['nodma'] and stage >= 3:
        it = []
    return it

class G1:
    def __init__(self, a):
        self.a = a; self.vq = Q(); self.lq = Q()
    def fork(self):
        g = G1(self.a); g.vq = copy.deepcopy(self.vq); g.lq = copy.deepcopy(self.lq); return g
    def wait(self, vm=(), lg=(), lgall=False):
        parts = []
        n = self.vq.need(set(vm)) if vm else None
        if n is not None: parts.append('vmcnt(%d)' % min(n, 63))
        if lgall:
            if self.lq.q: parts.append('lgkmcnt(0)')
            self.lq.clear()
        else:
            n = self.lq.need(set(lg)) if lg else None
            if n is not None: parts.append('lgkmcnt(%d)' % min(n, 15))
        if parts: self.a('s_waitcnt ' + ' '.join(parts))
    def emit(self, it, with_pre=True):
        a = self.a
        if with_pre and it['pre']:
            for l in it['pre']: a(l)
            if 'm0' in it['pre'][-1]: a('s_nop 0')
        if it['needlg'] or it['needvm']: self.wait(vm=it['needvm'], lg=it['needlg'])
        for l in it['lines']: a(l)
        if it['vm'] is not None: self.vq.push(it['vm'], sure=(it['vm'] != 'w2?'))
        if it['lg'] is not None: self.lq.push(it['lg'])
    def read_items(self, stage, kk):
        base = SLOT[stage % 3]; hi = base >= 98304
        off = base - (98304 if hi else 0)
        b = kk & 1
        B = G1_FR + 16 * b
        xa = (208 if hi else 7) + kk
        wa = 212 if hi else 11
        def w(m, h): return item('ds_read_b64_tr_b16 %s, v%d offset:%d' % (v(B + 8 + 4 * m + 2 * h, 2), wa, off + m * 8192 + kk * 2048 + h * 512), lg=('w', stage, kk, m))
        def x(nt): return item('ds_read_b128 %s, v%d offset:%d' % (v(B + 4 * nt, 4), xa, off + nt * 4096), lg=('x', stage, kk, nt))
        return [w(0, 0), w(0, 1), x(0), x(1), w(1, 0), w(1, 1)]
    def substep(self, sidx, kk, gaps):
        a = self.a
        B = G1_FR + 16 * (kk & 1)
        i = 0
        for m in range(2):
            for nt in range(2):
                g = gaps[i]
                if g and g[0]['pre']:
                    for l in g[0]['pre']: a(l)
                self.wait(lg=[('w', sidx, kk, m), ('x', sidx, kk, nt)])
                acc = v(G1_ACC + (m * 2 + nt) * 16, 16)
                a('v_mfma_f32_32x32x16_bf16 %s, %s, %s, %s' % (acc, v(B + 8 + 4 * m, 4), v(B + 4 * nt, 4), '0' if (sidx == 0 and kk == 0) else acc))
                for k, it in enumerate(g):
                    self.emit(it, with_pre=(k > 0))
                i += 1
    def step(self, sidx, ex, before_barrier=None, needvm=()):
        a = self.a
        a.comment('k-step %d' % sidx)
        if sidx < 9: stamp(a, sidx + 1, 2)
        base = SLOT[sidx % 3]; hi = base >= 98304
        for kk in range(4):
            if kk == 3:
                self.wait(vm=[('st', sidx + 1)] + list(needvm), lgall=True)
                if before_barrier: before_barrier(a)
                a('s_barrier')
            if kk < 3: r = self.read_items(sidx, kk + 1)
            elif sidx < 9: r = self.read_items(sidx + 1, 0)
            else: r = []
            e = list(ex.get(kk, []))
            if kk == 0:
                e = [item('ds_read_b128 v[220:223], v%d offset:%d' % (215 if hi else 214, base - (98304 if hi else 0)), lg='gx'),
                     item('ds_read_b128 v[224:227], v216 offset:%d' % (sidx * 128), lg='gx')] + e
            if kk == 2:
                e = e + [item(['v_dot2c_f32_bf16 v217, v%d, v%d' % (220 + i, 224 + i) for i in range(4)], needlg=['gx'])]
            h = (len(e) + 1) // 2
            if r: gaps = [r[0:3], r[3:6], e[:h], e[h:]]
            else:
                n4 = (len(e) + 3) // 4
                gaps = [e[i * n4:(i + 1) * n4] for i in range(4)]
            self.substep(sidx, kk, gaps)

def touch_item(stage):
    if not OPT['touch'] or stage > 9 or stage < OPT['tp']: return []
    lines = []
    if stage == 6:
        lines += ['v_mul_u32_u24 v218, 6, v242', 'v_add_co_u32 v240, vcc, v240, v218', 's_nop 1', 'v_addc_co_u32 v241, vcc, 0, v241, vcc']
    lines += touch_lines(10 * (stage % 6), 10)
    return [item(lines, vm='touch')]

def gemm1_head(a):
    RB, CB, W = 8, 9, S_W
    g = G1(a)
    nonce_publish(a)
    if OPT['rot1']:
        R = OPT['rot1']
        a('s_mul_i32 s11, s%d, %d' % (RB, 3 if R != 3 else 1))
        a('s_add_u32 s11, s11, s%d' % CB)
        a('s_mul_i32 s69, s11, %d' % ((2048 + R - 1) // R))
        a('s_lshr_b32 s69, s69, 11')
        a('s_mul_i32 s69, s69, %d' % R)
        a('s_sub_u32 s%d, s11, s69' % KS0)
        if R != 10: a('s_mul_i32 s%d, s%d, %d' % (KS0, KS0, 10 // R))
    a('s_mul_i32 s11, s%d, %d' % (RB, 256 * 1280))
    srd(a, SX, P_Q, 256 * 1280, 's11')
    a('s_lshl_b32 s11, s%d, 7' % CB)
    a('s_sub_u32 s69, %s, s11' % hex(SZ_W))
    srd(a, SW1, P_W1, 's69', 's11')
    srd(a, SW3, P_W3, 's69', 's11')
    if OPT['touch']:
        a('v_cmp_gt_u32 vcc, 59, v17')
        a('v_mov_b32 v20, s%d' % SW3); a('v_mov_b32 v21, s%d' % SW1)
        a('v_cndmask_b32 v240, v20, v21, vcc')
        a('v_mov_b32 v20, s%d' % (SW3 + 1)); a('v_mov_b32 v21, s%d' % (SW1 + 1))
        a('v_cndmask_b32 v241, v20, v21, vcc')
        a('v_cmp_gt_u32 vcc, 43, v17')
        a('v_mov_b32 v20, s%d' % SX); a('v_mov_b32 v21, s%d' % (SX + 1))
        a('v_cndmask_b32 v240, v240, v20, vcc')
        a('v_cndmask_b32 v241, v241, v21, vcc')
        a('v_add_co_u32 v240, vcc, v240, v18')
        a('s_nop 1')
        a('v_addc_co_u32 v241, vcc, 0, v241, vcc')
        g.emit(item(touch_lines(0, 10 * OPT['tp']), vm='touch'))
    for it in g1_dma_items(0): g.emit(it)
    stamp(a, 1)
    L = a.newlabel('GW')
    a('s_cmp_ge_u32 s%d, 3' % W)
    a('s_cbranch_scc1 %s' % L)
    srd(a, SH, P_GW, 1280)
    a('v_add_u32 v12, s%d, v237' % LW)
    a('v_subrev_u32 v13, 1280, v12')
    a('v_min_u32 v12, v12, v13')
    a('v_subrev_u32 v13, 1280, v12')
    a('v_min_u32 v12, v12, v13')
    a('s_add_u32 m0, s%d, %d' % (LW, LDS_GW))
    a('s_nop 0')
    a('buffer_load_dwordx4 v12, %s, 0 offen lds' % s(SH, 4))
    a.label(L)
    g.vq.push('gw', sure=False)
    gemm1_post_addr(a)
    flag_srd(a)
    srd(a, SH, P_W2, SZ_W)
    a('s_mul_i32 s11, s%d, 3641' % GID)
    a('s_lshr_b32 s11, s11, 16')
    a('s_mul_i32 s69, s11, 18')
    a('s_sub_u32 s69, s%d, s69' % GID)
    a('s_mul_i32 s69, s69, 3')
    a('s_lshr_b32 s72, s%d, 2' % W)
    a('s_add_u32 s69, s69, s72')
    a('s_cmp_ge_u32 s%d, 180' % GID)
    a('s_cselect_b32 s69, 60, s69')
    a('s_mul_i32 s%d, s69, 10' % U0)
    a('s_add_u32 s%d, s%d, s11' % (U0, U0))
    a('s_mul_i32 s69, s69, %d' % (32 * 1280))
    a('s_lshl_b32 s65, s11, 7')
    a('s_add_u32 s65, s65, s69')
    a('s_add_u32 s66, s65, %d' % (64 * 1280))
    a('s_cmp_lt_u32 s%d, 4' % W)
    a('s_cselect_b32 s66, s66, 0x7000000')
    a('s_and_b32 s67, s%d, 3' % W)
    a('s_lshl_b32 s67, s67, 10')
    a('s_add_u32 s67, s67, %d' % (LDS_W2S + 8192))
    a('s_cselect_b32 s67, s67, s67')
    a('v_lshrrev_b32 v12, 3, v1')
    a('s_and_b32 s69, s%d, 3' % W)
    a('s_lshl_b32 s69, s69, 3')
    a('v_add_u32 v12, s69, v12')
    a('v_mul_u32_u24 v12, 1280, v12')
    a('v_and_b32 v13, 7, v1')
    a('v_lshl_add_u32 v219, v13, 4, v12')
    L2 = a.newlabel('W2')
    w2l = [item('buffer_load_dwordx4 v219, %s, s65 offen lds' % s(SH, 4), pre='s_add_u32 m0, s%d, %d' % (LW, LDS_W2S), vm='w2'),
           item(['s_cmp_ge_u32 s%d, 4' % W, 's_cbranch_scc1 %s' % L2, 's_mov_b32 m0, s67', 's_nop 0',
                 'buffer_load_dwordx4 v219, %s, s66 offen lds' % s(SH, 4), L2 + ':'], vm='w2?')]
    a('s_barrier')
    for it in g1_dma_items(1): g.emit(it)
    g.wait(vm=[('st', 0), 'gw'])
    a('s_barrier')
    stamp(a, 2)
    if OPT['prio']:
        L = a.newlabel('PR')
        a('s_cmp_lt_u32 s%d, 4' % W)
        a('s_cbranch_scc1 %s' % L)
        a('s_setprio 1')
        a.label(L)
    for it in g.read_items(0, 0): g.emit(it)
    d = [g1_dma_items(i) for i in range(10)] + [[], [], []]
    ld = OPT['lead']
    t0 = []
    for st_ in range(OPT['tp'], ld): t0 += touch_item(st_)
    w2r = [item('ds_read_b64_tr_b16 v[228:229], v236', lg='w2f'), item('ds_read_b64_tr_b16 v[230:231], v236 offset:1024', lg='w2f'),
           item('ds_read_b64_tr_b16 v[232:233], v236 offset:8192', lg='w2f'), item('ds_read_b64_tr_b16 v[234:235], v236 offset:9216', lg='w2f')]
    w2s = [item('buffer_store_dwordx4 v[228:231], v237, %s, s11 offen sc1' % s(SH, 4),
                pre=['s_lshl_b32 s11, s%d, 2' % U0, 's_and_b32 s69, s%d, 3' % W, 's_add_u32 s11, s11, s69', 's_lshl_b32 s11, s11, 10'], vm='w2s', needlg=['w2f']),
           item('buffer_store_dwordx4 v[232:235], v237, %s, s11 offen sc1' % s(SH, 4),
                pre=['s_add_u32 s11, s11, %d' % (20 * 4096), 's_cmp_lt_u32 s%d, 4' % W, 's_cselect_b32 s11, s11, 0x7000000'], vm='w2s')]
    goi = item(capture_l(a, go_issue), vm='go')
    g.step(0, {0: w2l + [goi] + d[2][0:1], 1: d[2][1:4], 2: d[2][4:6], 3: d[3][0:2]})
    srd(a, SH, P_WS, SZ_W, WS_W2P)
    g.step(1, {0: d[3][2:4], 1: d[3][4:6], 3: [item(GO_FETCH, lg='go')] + w2r + d[4][0:2]}, before_barrier=go_check, needvm=['go', 'w2', 'w2?'])
    fw = item(['s_lshl_b32 s11, s%d, %d' % (GID, OPT['fsw']), 's_add_u32 s11, s11, %s' % hex(F_W), 's_cmp_eq_u32 s%d, 0' % W,
               's_cselect_b32 s11, s11, %s' % hex(OOB)] + capture_l(a, lambda a: set_flag(a, 11)), vm='fw')
    g.step(2, {0: w2s + d[4][2:4], 1: d[4][4:6], 2: [item(capture_l(a, go_sgpr), needlg=['go']), item(capture_l(a, lambda a: fx_publish(a, 1)), vm='fxp')], 3: d[5][0:2]})
    srd(a, SH, P_WS, SZ_H, None if WS_H == 0 else WS_H)
    g.step(3, {0: d[5][2:4], 1: d[5][4:6], 3: [fw] + d[6][0:2]}, needvm=['w2s'])
    g.step(4, {0: d[6][2:4], 1: d[6][4:6], 3: d[7][0:2]})
    return g, d

def capture_l(a, fn):
    return [l.strip() for l in capture(a, lambda: fn(a))]

def gemm1_tail(a, g, d, role):
    g = g.fork()
    pf = [item(PF_LOAD, vm='pf')]
    ex = {s_: {0: d[s_ + 2][2:4], 1: d[s_ + 2][4:6], 2: touch_item(s_ + OPT['lead']), 3: d[s_ + 3][0:2]} for s_ in range(5, 10)}
    bb = {}; nv = {}
    post = []
    def chunks(lines, n):
        k = (len(lines) + n - 1) // n
        return [item(lines[i * k:(i + 1) * k]) for i in range(n) if lines[i * k:(i + 1) * k]]
    if role == 'G2':
        fs = OPT['fwst']
        bb[fs] = fw_check; nv[fs] = ['pf']
        if fs == 5:
            ex[5][0] = [item(capture_l(a, g2_pre))] + pf + ex[5][0]
        else:
            ex[5][2] = ex[5][2] + [item(capture_l(a, g2_pre))]
            ex[fs][0] = pf + ex[fs][0]
        w = []
        for p in range(4): w += g2_w_items(p, p)
        slots = [(fs, 3)] + [(s_, kk) for s_ in range(fs + 1, 9) for kk in range(4)][:-1]
        for i, (s_, kk) in enumerate(slots):
            ex[s_][kk] = ex[s_][kk] + w[20 * i // len(slots):20 * (i + 1) // len(slots)]
        l01 = g2_wl_items(4, 0) + g2_wl_items(5, 1)
        ex[8][3] = l01[0:3]; ex[9][0] = l01[3:5]; ex[9][1] = l01[5:8]; ex[9][2] = l01[8:10]
        ex[9][3] = [item(capture_l(a, g2_fh_addr))]
    elif role == 'CV':
        ex[5][2] = ex[5][2] + [item(['s_sub_u32 s7, s%d, 192' % GID, 's_add_u32 s7, s7, s%d' % GID, 's_cmp_ge_u32 s%d, 192' % GID,
                                     's_cselect_b32 s7, s7, s%d' % GID, 's_cselect_b32 s%d, 1, 0' % CV_M] + capture_l(a, cv_pre)),
                               item(['s_mov_b32 exec_hi, 0', 'buffer_load_dword v246, v246, s[72:75], 0 offen', 's_mov_b64 exec, -1'], vm='touch2')]
        su = chunks(capture_l(a, cv_setup1), 8)
        ex[6][2] = su[0:2]; ex[6][0] = ex[6][0]; ex[7][2] = su[2:4]; ex[9][0] = su[4:6]; ex[9][1] = su[6:8]
        hd = cv_h_items()
        ex[7][3] = hd[0:2]; ex[8][0] = hd[2:4]; ex[8][1] = hd[4:6]; ex[8][2] = hd[6:8]
        ex[8][3] = pf + [item(l, lg='pad') for l in cv_pads()]
        nv[9] = ['cvh']
        fx = cv_fix()
        ex[9][3] = [item(fx[0], lg='fix'), item(capture_l(a, cv_try_u), needvm=['pf']), item(fx[1:], needlg=['fix'], lg='fix2')]
    ex[7][2] = [item(capture_l(a, fx_load), vm='fx')] + ex[7][2]
    ex[9][2] = ex[9][2] + [item(capture_l(a, fx_eval), needvm=['fx'])]
    for s_ in range(5, 10):
        if s_ == 5: stamp(a, 3)
        g.step(s_, ex[s_], before_barrier=bb.get(s_), needvm=nv.get(s_, ()))
    stamp(a, 4)
    if role == 'CV':
        if OPT['eprio']: a('s_setprio %d' % OPT['eprio'])
        for l in cv_g_reads(0, 0): a(l)
    elif OPT['gprio']:
        a('s_setprio %d' % OPT['gprio'])
    for sh in (1, 2):
        a('v_add_f32_dpp v217, v217, v217 quad_perm:%s row_mask:0xf bank_mask:0xf' % ('[1,0,3,2]' if sh == 1 else '[2,3,0,1]'))
        a('s_nop 1')
    a('v_add_f32_dpp v217, v217, v217 row_half_mirror row_mask:0xf bank_mask:0xf')
    a('s_mov_b32 s60, %s' % NLOG2E)
    a('s_mov_b32 s61, %s' % NLOG2E)
    a('v_mul_f32 v217, s60, v217')
    a('v_exp_f32 v217, v217')
    a('v_lshrrev_b32 v218, 3, v1')
    a('v_add_f32 v217, 1.0, v217')
    a('v_rcp_f32 v217, v217')
    a('v_lshlrev_b32 v218, 2, v218')
    srd(a, SX, P_WS, 8192, WS_G)
    a('s_mov_b32 exec_lo, 0x01010101')
    a('s_mov_b32 exec_hi, 0x01010101')
    store2(a, 'buffer_store_dword v217, v218, %s, s%d offen' % (s(SX, 4), GO))
    a('s_mov_b64 exec, -1')
    T = G1_FR
    for nt in range(2):
        for jp in range(2):
            G = G1_ACC + nt * 16 + 8 * jp
            U = G1_ACC + (2 + nt) * 16 + 8 * jp
            for i in range(0, 8, 2):
                a('v_pk_mul_f32 %s, %s, s[60:61]' % (v(T + i, 2), v(G + i, 2)))
            for i in range(0, 8, 2):
                a('v_exp_f32 v%d, v%d' % (T + i, T + i))
                a('v_exp_f32 v%d, v%d' % (T + i + 1, T + i + 1))
                a('v_pk_mul_f32 %s, %s, %s' % (v(G + i, 2), v(G + i, 2), v(U + i, 2)))
            for i in range(0, 8, 2):
                a('v_pk_add_f32 %s, %s, 1.0 op_sel_hi:[1,0]' % (v(T + i, 2), v(T + i, 2)))
            for i in range(8):
                a('v_rcp_f32 v%d, v%d' % (T + i, T + i))
            a('s_nop 0')
            for i in range(0, 8, 2):
                a('v_pk_mul_f32 %s, %s, %s' % (v(G + i, 2), v(G + i, 2), v(T + i, 2)))
            O = T + 16 + 8 * nt + 4 * jp
            for i in range(4):
                a('v_cvt_pk_bf16_f32 v%d, v%d, v%d' % (O + i, G + 2 * i, G + 2 * i + 1))
            store2(a, 'buffer_store_dwordx4 %s, v213, %s, s%d offen offset:%d' % (v(O, 4), s(SH, 4), HO, nt * 2048 + jp * 512))
    a('s_waitcnt vmcnt(0)')
    a('s_mov_b64 exec, 1')
    store2(a, 'buffer_store_dwordx2 v[250:251], v252, %s, s%d offen' % (s(SF, 4), S_F1))
    a('s_mov_b64 exec, -1')
    stamp(a, 5)
    if role == 'CV':
        L = a.newlabel('UOK')
        a('s_cmp_eq_u32 s%d, 1' % CV_T)
        a('s_cbranch_scc1 %s' % L)
        if OPT['fbar']: a('s_barrier')
        poll_check(a, PF_LOAD, 244, 11, sleep=2)
        cv_u_loads(a)
        a('s_waitcnt vmcnt(0)')
        a('s_branch K_conv')
        a.label(L)
        if OPT['fbar']: a('s_barrier')
    else:
        if OPT['fbar']: a('s_barrier')
        for it in post: g.emit(it)

UKR, UVR, UWR, UKU, UWU, UAC = 16, 60, 92, 108, 130, 138
def ut_pre(a):
    a('s_mul_i32 s11, s7, 6554')
    a('s_lshr_b32 s11, s11, 16')
    a('s_mul_i32 s69, s11, 10')
    a('s_sub_u32 s69, s7, s69')
    a('s_lshl_b32 s%d, s69, 5' % S_F2)
    a('s_add_u32 s%d, s%d, s11' % (S_F2, S_F2))
    a('s_lshl_b32 s%d, s%d, %d' % (S_F2, S_F2, OPT['fsu']))
    a('s_add_u32 s%d, s%d, %s' % (S_F2, S_F2, hex(F_U)))
    a('s_lshl_b32 s11, s11, 6')
    a('v_and_b32 v241, 0x38, v1')
    a('v_add_u32 v241, s11, v241')
    a('v_and_b32 v242, 7, v1')
    a('s_lshl_b32 s69, s69, 3')
    a('v_add_u32 v242, s69, v242')
    a('v_mul_u32_u24 v240, 1280, v241')
    a('v_lshl_add_u32 v240, v242, 4, v240')
    a('v_lshlrev_b32 v243, 15, v242')
    a('v_sub_u32 v241, 2040, v241')
    a('v_lshl_add_u32 v243, v241, 1, v243')
    a('v_subrev_u32 v241, 3840, v240')
    a('v_lshlrev_b32 v242, 6, v242')
def ut_loads(a):
    SA, SB, SC = 44, 48, 52
    srd(a, SA, P_K, SZ_ACT)
    srd(a, SB, P_V, SZ_ACT)
    srd(a, SC, P_SK, 640 * 8)
    a('s_movk_i32 s11, 5120')
    for r in range(8):
        a('buffer_load_dwordx4 %s, v240, %s, %s offen offset:%d' % (v(UKR + 12 + 4 * r, 4), s(SA, 4), '0' if r < 4 else 's11', 1280 * (r & 3)))
    for r in range(3):
        a('buffer_load_dwordx4 %s, v241, %s, 0 offen offset:%d' % (v(UKR + 4 * r, 4), s(SA, 4), 1280 * r))
    for i in range(4):
        a('buffer_load_dwordx4 %s, v242, %s, 0 offen offset:%d' % (v(UWR + 4 * i, 4), s(SC, 4), 16 * i))
    for r in range(8):
        a('buffer_load_dwordx4 %s, v240, %s, %s offen offset:%d' % (v(UVR + 4 * r, 4), s(SB, 4), '0' if r < 4 else 's11', 1280 * (r & 3)))
def ut_k(a):
    MASK = 65
    a('s_mov_b32 s%d, 0xffff0000' % MASK)
    for dw in range(4):
        for r in range(11):
            a('v_lshlrev_b32 v%d, 16, v%d' % (UKU + 2 * r, UKR + 4 * r + dw))
            a('v_and_b32 v%d, s%d, v%d' % (UKU + 2 * r + 1, MASK, UKR + 4 * r + dw))
        for ch in range(2):
            for t in range(4):
                src = UWR + 4 * dw + 2 * ch + (t >> 1)
                if t & 1:
                    a('v_and_b32 v%d, s%d, v%d' % (UWU + 2 * t + ch, MASK, src))
                else:
                    a('v_lshlrev_b32 v%d, 16, v%d' % (UWU + 2 * t + ch, src))
        A = UAC + 16 * dw
        for r in range(8):
            a('v_pk_mul_f32 %s, %s, %s' % (v(A + 2 * r, 2), v(UKU + 2 * r, 2), v(UWU + 6, 2)))
        for t in (2, 1, 0):
            for r in range(8):
                a('v_pk_fma_f32 %s, %s, %s, %s' % (v(A + 2 * r, 2), v(UKU + 2 * (r + 3 - t), 2), v(UWU + 2 * t, 2), v(A + 2 * r, 2)))
def ut_v(a):
    MASK, T = 65, 66
    srd(a, 72, P_WS, SZ_ACT, WS_UT)
    for dw in range(4):
        A = UAC + 16 * dw
        for r in range(8):
            a('v_lshlrev_b32 v%d, 16, v%d' % (UKU + 2 * r, UVR + 4 * r + dw))
            a('v_and_b32 v%d, s%d, v%d' % (UKU + 2 * r + 1, MASK, UVR + 4 * r + dw))
        for r in range(8):
            a('v_pk_mul_f32 %s, %s, %s' % (v(A + 2 * r, 2), v(A + 2 * r, 2), v(UKU + 2 * r, 2)))
        O = UWR + 8 * (dw & 1)
        for ch in range(2):
            for i in range(4):
                a('v_cvt_pk_bf16_f32 v%d, v%d, v%d' % (O + 4 * ch + i, A + 2 * (7 - 2 * i) + ch, A + 2 * (6 - 2 * i) + ch))
        for ch in range(2):
            a('s_mov_b32 s%d, %d' % (T, (2 * dw + ch) * 4096))
            a('buffer_store_dwordx4 %s, v243, s[72:75], s%d offen sc1' % (v(O + 4 * ch, 4), T))

CW = 13824
C_HA, C_HB, C_U = 0, 4640, 9280
C_EX = 2 * CW
RBC = CONV_BASE
CV_DO, CV_LB, CV_T, CV_T2, CV_W, CV_M = 66, 67, 68, 69, 9, 8
CV_D = 18
CA, CG, CF = 108, [140, 12], [172, 44]
VG, VF, VU, VXW, VXR = 228, 229, 233, 234, 235
def cv_pre(a):
    srd(a, 72, P_SSMK, SZ_ACT)
    a('s_lshl_b32 s11, s7, 2')
    a('s_load_dwordx2 s[%d:%d], s[%d:%d], s11' % (CV_D, CV_D + 1, P_SSMD, P_SSMD + 1))
    a('s_and_b32 s%d, s%d, 3' % (CV_W, S_W))
    a('s_xor_b32 s11, s%d, 1' % CV_M)
    a('s_lshr_b32 s%d, s%d, s11' % (CV_T, CV_W))
    a('s_lshl_b32 s%d, s7, 1' % CV_DO)
    a('s_add_u32 s%d, s%d, s%d' % (CV_DO, CV_DO, CV_T))
    a('s_lshl_b32 s%d, s%d, 12' % (CV_DO, CV_DO))
    a('s_mul_i32 s%d, s%d, %d' % (CV_LB, CV_T, CW))
    a('s_add_u32 s%d, s%d, %d' % (CV_LB, CV_LB, RBC))
    a('v_add_u32 v238, s%d, v237' % CV_DO)
    a('v_subrev_u32 v239, 2, v238')
    a('v_lshl_add_u32 v246, v1, 7, s%d' % CV_DO)
    a('s_lshr_b32 s11, s7, 5')
    a('s_lshl_b32 s11, s11, %d' % (5 + OPT['fsu']))
    a('s_add_u32 s11, s11, %s' % hex(F_U))
    a('v_min_u32 v248, 31, v1')
    a('v_lshl_add_u32 v248, v248, %d, s11' % OPT['fsu'])
    a('s_mov_b32 s%d, 0' % CV_T)
def cv_setup1(a):
    W, LB = CV_W, CV_LB
    a('s_mul_i32 s65, s7, 1639')
    a('s_lshr_b32 s65, s65, 16')
    a('s_mul_i32 s%d, s65, 40' % S_F2)
    a('s_sub_u32 s%d, s7, s%d' % (S_F2, S_F2))
    a('s_lshl_b32 s65, s65, 2')
    a('s_add_u32 s65, s65, s%d' % W)
    a('s_lshl_b32 s65, s65, 6')
    a('s_add_u32 s%d, s%d, s65' % (S_F2, S_F2))
    a('s_lshl_b32 s%d, s%d, %d' % (S_F2, S_F2, OPT['fsz']))
    a('s_add_u32 s%d, s%d, %s' % (S_F2, S_F2, hex(F_Z)))
    a('s_andn2_b32 s65, s%d, s%d' % (W, CV_M))
    a('s_and_b32 s65, s65, 1')
    a('s_lshl_b32 s65, s65, 8')
    a('s_add_u32 s65, s65, s%d' % LB)
    a('v_and_b32 v%d, 1, v1' % VG)
    a('v_xor_b32 v%d, 1, v%d' % (VG, VG))
    a('v_mul_u32_u24 v%d, %d, v%d' % (VG, C_HB - C_HA, VG))
    a('v_bfe_u32 v204, v1, 1, 3')
    a('v_lshl_add_u32 v%d, v204, 6, v%d' % (VG, VG))
    a('v_lshrrev_b32 v204, 4, v1')
    a('v_lshl_add_u32 v%d, v204, 4, v%d' % (VG, VG))
    a('s_add_u32 s69, s65, %d' % (C_HA + 64))
    a('v_add_u32 v%d, s69, v%d' % (VG, VG))
    a('v_and_b32 v205, 15, v1')
    a('v_lshlrev_b32 v205, 2, v205')
    a('v_lshlrev_b32 v%d, 4, v204' % VF)
    a('v_sub_u32 v%d, v%d, v205' % (VF, VF))
    a('s_add_u32 s69, s65, %d' % (C_U + 60))
    a('v_add_u32 v%d, s69, v%d' % (VF, VF))
    for i in range(1, 4):
        a('v_add_u32 v%d, %d, v%d' % (VF + i, 1024 * i, VF))
    a('v_lshl_add_u32 v205, v204, 7, v205')
    a('s_lshl_b32 s65, s%d, 10' % W)
    a('s_sub_u32 s65, %d, s65' % (RBC + C_U + 444 + 3072))
    a('v_sub_u32 v%d, s65, v205' % VU)
    a('s_mul_i32 s65, s%d, %d' % (CV_M, CW - 8192))
    a('s_add_u32 s65, s65, 8192')
    a('s_mul_i32 s65, s65, s%d' % W)
    a('s_xor_b32 s69, s%d, 1' % CV_M)
    a('s_mul_i32 s69, s69, %d' % C_EX)
    a('s_add_u32 s69, s69, %d' % RBC)
    a('s_add_u32 s65, s65, s69')
    a('v_add_u32 v%d, s65, v237' % VXW)
    a('s_lshl_b32 s65, s%d, 11' % W)
    a('s_add_u32 s69, s69, s65')
    a('v_add_u32 v%d, s69, v237' % VXR)
    a('s_lshl_b32 s%d, s7, 13' % CV_DO)
    a('s_add_u32 s%d, s%d, s65' % (CV_DO, CV_DO))
    for i in range(16):
        a('v_mov_b64 %s, 0' % v(CA + 2 * i, 2))
def cv_pads():
    return [['v_mov_b64 v[206:207], 0', 'v_lshl_add_u32 v247, v1, 3, s%d' % CV_LB, 'ds_write_b64 v247, v[206:207] offset:%d' % C_HA],
            ['ds_write_b64 v247, v[206:207] offset:%d' % C_HB],
            ['v_lshl_add_u32 v247, v1, 2, s%d' % CV_LB, 'ds_write_b32 v247, v206 offset:%d' % (C_U + 4096)]]
def cv_fix():
    R = CF[0]
    return [['v_mov_b32 v247, s%d' % CV_LB, 'ds_read_b128 %s, v247 offset:%d' % (v(R, 4), C_HA + 512)],
            'v_alignbit_b32 v%d, v%d, v%d, 16' % (R + 7, R + 3, R + 2),
            'v_alignbit_b32 v%d, v%d, v%d, 16' % (R + 6, R + 2, R + 1),
            'v_alignbit_b32 v%d, v%d, v%d, 16' % (R + 5, R + 1, R),
            'v_lshlrev_b32 v%d, 16, v%d' % (R + 4, R),
            'ds_write_b128 v247, %s offset:%d' % (v(R + 4, 4), C_HB + 512)]
def cv_h_items():
    it = []
    for (dst, vo) in ((C_HA + 512, 238), (C_HB + 512, 239)):
        for i in range(4):
            it.append(item('buffer_load_dwordx4 v%d, s[72:75], 0 offen offset:%d lds' % (vo, i * 1024),
                           pre=['s_add_u32 m0, s%d, %d' % (CV_LB, dst)] if i == 0 else [], vm='cvh'))
    return it
def cv_u_loads(a):
    srd(a, 48, P_WS, SZ_ACT, WS_UT)
    a('s_add_u32 m0, s%d, %d' % (CV_LB, C_U))
    a('s_nop 0')
    for i in range(4):
        a('buffer_load_dwordx4 v238, s[48:51], 0 offen offset:%d sc1 lds' % (i * 1024))
def cv_try_u(a):
    L = a.newlabel('UT')
    a('v_cmp_eq_u64 vcc, %s, v[244:245]' % NC)
    a('s_cmp_eq_u64 vcc, -1')
    a('s_cbranch_scc0 %s' % L)
    cv_u_loads(a)
    a('s_mov_b32 s%d, 1' % CV_T)
    a.label(L)
def cv_g_reads(j, b):
    return ['ds_read_b128 %s, v%d offset:%d' % (v(CG[b] + 4 * i, 4), VG, 64 * j + 512 * i) for i in range(8)]
def cv_f_reads(j, b):
    L = []
    for i in range(8):
        rb = 7 - i
        o = (512 * (rb & 1) + 64 * j) // 4
        L.append('ds_read2_b32 %s, v%d offset0:%d offset1:%d' % (v(CF[b] + 4 * i, 2), VF + (rb >> 1), o, o + 1))
        L.append('ds_read2_b32 %s, v%d offset0:%d offset1:%d' % (v(CF[b] + 4 * i + 2, 2), VF + (rb >> 1), o + 2, o + 3))
    return L

A_STRIDE = 6144
LDS_Q = [40960, 90112]
def chunk_addrs(a, dst, tmp, sbase):
    for i in range(3):
        a('v_add_u32 v%d, %d, v1' % (tmp, 64 * i))
        a('v_mul_u32_u24 v%d, 205, v%d' % (dst + i, tmp))
        a('v_lshrrev_b32 v%d, 11, v%d' % (dst + i, dst + i))
        a('v_mul_u32_u24 v%d, 1120, v%d' % (dst + i, dst + i))
        a('v_lshl_add_u32 v%d, v%d, 4, v%d' % (dst + i, tmp, dst + i))
        a('v_add_u32 v%d, s%d, v%d' % (dst + i, sbase, dst + i))
    a('v_lshrrev_b32 v%d, 5, v1' % tmp)
    a('v_lshl_add_u32 v%d, v%d, 30, v%d' % (dst + 2, tmp, dst + 2))
def lds_q_base(a, dst, w):
    a('s_lshr_b32 s%d, s%d, 1' % (dst, w))
    a('s_mul_i32 s%d, s%d, %d' % (dst, dst, LDS_Q[1] - LDS_Q[0] - 8192))
    a('s_lshl_b32 s11, s%d, 12' % w)
    a('s_add_u32 s%d, s%d, s11' % (dst, dst))
    a('s_add_u32 s%d, s%d, %d' % (dst, dst, LDS_Q[0]))
def aterm(a):
    W = CV_W
    RB, CB, T, T2 = 65, 66, 67, 68
    SQ, SZ, SG = 52, 44, 60
    a('s_setprio 0')
    a('s_lshl_b32 s%d, s3, 2' % RB)
    a('s_lshr_b32 s%d, s4, 3' % CB)
    a('s_add_u32 s%d, s%d, s%d' % (RB, RB, CB))
    a('s_and_b32 s%d, s4, 7' % CB)
    srd(a, SQ, P_Q, SZ_ACT)
    a('s_lshl_b32 s%d, s%d, 6' % (T, RB))
    a('s_lshl_b32 s%d, s%d, 4' % (T2, W))
    a('s_add_u32 s%d, s%d, s%d' % (T, T, T2))
    a('v_and_b32 v8, 15, v1')
    a('v_add_u32 v8, s%d, v8' % T)
    a('v_lshrrev_b32 v9, 4, v1')
    a('s_mul_i32 s%d, s%d, 1280' % (T, T))
    a('s_mul_i32 s%d, s%d, 160' % (T2, CB))
    a('s_add_u32 s%d, s%d, s%d' % (T, T, T2))
    chunk_addrs(a, 12, 10, T)
    lds_q_base(a, T2, W)
    for i in range(3):
        a('s_add_u32 m0, s%d, %d' % (T2, 1024 * i))
        a('s_nop 0')
        a('buffer_load_dwordx4 v%d, %s, 0 offen lds' % (12 + i, s(SQ, 4)))
    a('v_and_b32 v10, 15, v1')
    a('v_mul_u32_u24 v10, 160, v10')
    a('v_lshl_add_u32 v10, v9, 3, v10')
    a('v_add_u32 v10, s%d, v10' % T2)
    a('s_lshl_b32 s%d, s%d, 2' % (T, CB))
    a('s_lshr_b32 s%d, s%d, 3' % (T2, RB))
    a('s_add_u32 s%d, s%d, s%d' % (T, T, T2))
    a('s_lshl_b32 s%d, s%d, %d' % (T, T, 6 + OPT['fsz']))
    a('s_add_u32 s%d, s%d, %s' % (T, T, hex(F_Z)))
    a('v_lshl_add_u32 v25, v1, %d, s%d' % (OPT['fsz'], T))
    a('s_lshl_b32 s%d, s%d, 5' % (T, RB))
    a('s_add_u32 s%d, s%d, s%d' % (T, T, W))
    a('s_lshl_b32 s%d, s%d, %d' % (T, T, OPT['fsh'] + 1))
    a('v_and_b32 v24, 1, v1')
    a('v_lshl_add_u32 v24, v24, %d, s%d' % (OPT['fsh'], T))
    a('v_cmp_lt_u32 vcc, 39, v1')
    a('v_lshlrev_b32 v11, 14, v9')
    a('v_bfe_u32 v9, v1, 1, 3')
    a('v_cndmask_b32 v25, v25, v24, vcc')
    FL = 'buffer_load_dwordx2 v[26:27], v25, %s, 0 offen sc1' % s(SF, 4)
    a('v_lshl_add_u32 v11, v9, 4, v11')
    a('v_and_b32 v9, 1, v1')
    a('v_lshl_add_u32 v11, v9, 2, v11')
    a('s_mul_i32 s%d, s%d, %d' % (T, CB, 40 * 8192))
    a('s_lshl_b32 s%d, s%d, 8' % (T2, RB))
    a('s_add_u32 s%d, s%d, s%d' % (T, T, T2))
    a('s_and_b32 s%d, s%d, 1' % (T2, W))
    a('s_lshl_b32 s%d, s%d, 7' % (T2, T2))
    a('s_add_u32 s%d, s%d, s%d' % (T, T, T2))
    a('s_lshr_b32 s%d, s%d, 1' % (T2, W))
    a('s_lshl_b32 s%d, s%d, 3' % (T2, T2))
    a('s_add_u32 s%d, s%d, s%d' % (T, T, T2))
    a('v_add_u32 v11, s%d, v11' % T)
    a('v_lshlrev_b32 v8, 2, v8')
    srd(a, SG, P_WS, 8192, WS_G)
    a('s_mul_i32 s%d, s%d, %d' % (T, W, A_STRIDE))
    a('s_add_u32 s%d, s%d, %d' % (T, T, CONV_BASE))
    a('v_add_u32 v24, s%d, v237' % T)
    if OPT['ztrig'] >= 0:
        L, Dn = a.newlabel('TW'), a.newlabel('TWD')
        a('s_mov_b32 s11, 0x100000')
        a.label(L)
        a('ds_read_b32 v247, v254 offset:4')
        a('s_waitcnt lgkmcnt(0)')
        a('v_cmp_eq_u32 vcc, 1, v247')
        a('s_cbranch_vccnz %s' % Dn)
        a('s_sleep 2')
        a('s_sub_u32 s11, s11, 1')
        a('s_cbranch_scc0 %s' % L)
        a.label(Dn)
    poll(a, FL, 26, T2, sleep=OPT['zsl'])
    stamp(a, 3)
    ZR, A, ZU = 28, 40, 60
    a('buffer_load_dword v8, v8, %s, 0 offen sc1' % s(SG, 4))
    for mt in range(5):
        for h in range(2):
            a('s_mov_b32 s%d, %s' % (T, hex(65536 * mt + 8192 * h)))
            a('buffer_load_dword v%d, v11, %s, s%d offen sc1' % (ZR + 2 * mt + h, s(SZ, 4), T))
    a('s_mov_b32 s%d, 0xffff0000' % T)
    for mt in range(5):
        a('ds_read_b64 %s, v10 offset:%d' % (v(12 + 2 * mt, 2), 32 * mt))
    L, Dn = a.newlabel('CS'), a.newlabel('CSD')
    a('s_mov_b32 s11, 0x400000')
    a.label(L)
    a('ds_read_b32 v247, v254')
    a('s_waitcnt lgkmcnt(0)')
    a('v_cmp_le_u32 vcc, 8, v247')
    a('s_cbranch_vccnz %s' % Dn)
    a('s_sub_u32 s11, s11, 1')
    a('s_cbranch_scc0 %s' % L)
    a.label(Dn)
    for i in range(10):
        a('v_lshlrev_b32 v%d, 16, v%d' % (A + 2 * i, 12 + i))
        a('v_and_b32 v%d, s%d, v%d' % (A + 2 * i + 1, T, 12 + i))
    a('s_waitcnt vmcnt(10)')
    a('v_mov_b32 v9, v8')
    for i in range(10):
        a('v_pk_mul_f32 %s, %s, v[8:9]' % (v(A + 2 * i, 2), v(A + 2 * i, 2)))
    a('v_sub_f32 v8, 1.0, v8')
    a('v_sub_f32 v9, 1.0, v9')
    a('ds_write_b64 v24, v[8:9] offset:5120')
    for mt in range(5):
        a('s_waitcnt vmcnt(%d)' % (8 - 2 * mt))
        for h in range(2):
            i = 2 * mt + h
            a('v_lshlrev_b32 v%d, 16, v%d' % (ZU, ZR + i))
            a('v_and_b32 v%d, s%d, v%d' % (ZU + 1, T, ZR + i))
            a('v_pk_mul_f32 %s, %s, %s' % (v(A + 2 * i, 2), v(A + 2 * i, 2), v(ZU, 2)))
        a('ds_write_b128 v24, %s offset:%d' % (v(A + 4 * mt, 4), 1024 * mt))
    a('s_waitcnt lgkmcnt(0)')
    stamp_end(a)
    a('s_endpgm')

def conv(a):
    SZ, DO, T, W = 44, CV_DO, CV_T, CV_W
    a('s_setprio %d' % OPT['cprio'])
    for l in cv_f_reads(0, 0): a(l)
    srd(a, SZ, P_WS, SZ_ACT, WS_Z4)
    a('s_lshl_b32 s%d, s%d, 1' % (T, CV_M))
    stamp(a, 7)
    def it(b, nxt):
        a('s_waitcnt lgkmcnt(0)')
        i = 0
        for n in range(8):
            for aa in range(n + 1):
                acc = v(CA + 4 * n, 4)
                a('v_mfma_f32_16x16x32_bf16 %s, %s, %s, %s' % (acc, v(CG[b] + 4 * aa, 4), v(CF[b] + 4 * (n - aa), 4), acc))
                if i in nxt: a(nxt.pop(i))
                i += 1
    def rd(j, b):
        g_, f_ = cv_g_reads(j, b), cv_f_reads(j, b)
        L = []
        for i in range(8): L += [g_[i], f_[2 * i], f_[2 * i + 1]]
        return dict(enumerate(L))
    def flag():
        a('s_waitcnt vmcnt(0)')
        set_flag(a, S_F1)
        a('s_mov_b32 s%d, %s' % (S_F1, hex(OOB)))
        stamp(a, 6)
    a.label('CV_loop')
    it(0, rd(1, 1))
    nx = rd(2, 0)
    for k in range(5):
        nx[26 + k] = 'v_add_u32 v%d, 128, v%d' % (VG + k, VG + k)
    it(1, nx)
    a('s_sub_u32 s%d, s%d, 1' % (T, T))
    a('s_cbranch_scc0 CV_loop')
    it(0, rd(1, 1))
    nx = {}
    for n in range(8):
        nx[(n + 1) * (n + 2) // 2 - 1 + 9] = 'ds_write_b128 v%d, %s offset:%d' % (VXW, v(CA + 4 * n, 4), 1024 * n)
    it(1, nx)
    stamp(a, 8)
    for i in range(4):
        a('s_lshl_b32 s%d, s%d, 16' % (48 + i, CV_D + (i >> 1)) if not (i & 1) else 's_and_b32 s%d, s%d, 0xffff0000' % (48 + i, CV_D + (i >> 1)))
    a('s_nop 4')
    for i in sorted(nx): a(nx[i])
    a('s_waitcnt lgkmcnt(0)')
    a('s_mov_b64 exec, 1')
    a('ds_add_u32 v254, v253')
    a('s_mov_b64 exec, -1')
    L, Dn = a.newlabel('CS'), a.newlabel('CSD')
    a('s_mov_b32 s11, 0x400000')
    a.label(L)
    a('ds_read_b32 v247, v254')
    a('s_waitcnt lgkmcnt(0)')
    a('v_cmp_le_u32 vcc, 4, v247')
    a('s_cbranch_vccnz %s' % Dn)
    a('s_sub_u32 s11, s11, 1')
    a('s_cbranch_scc0 %s' % L)
    a.label(Dn)
    stamp(a, 9)
    a('s_mov_b32 s11, 0xffff0000')
    a('s_cmp_eq_u32 s%d, 1' % CV_M)
    a('s_cbranch_scc1 CV_epiB')
    P, UR, O = 12, 48, 72
    def finish(nch, reg):
        for un in range(nch // 2):
            for t in range(2):
                for hh in range(2):
                    for c in (2 * un, 2 * un + 1):
                        u = UR + 4 * c + 2 * t + hh
                        R = reg(c, t) + 2 * hh
                        a('v_and_b32 v%d, s11, v%d' % (68 + (c & 1), u))
                        a('v_lshlrev_b32 v%d, 16, v%d' % (u, u))
                        a('v_fmac_f32 v%d, s%d, v%d' % (R, 48 + c, 68 + (c & 1)))
                        a('v_fmac_f32 v%d, s%d, v%d' % (R + 1, 48 + c, u))
                    R0, R1 = reg(2 * un, t) + 2 * hh, reg(2 * un + 1, t) + 2 * hh
                    oo = O + 8 * un + 4 * t + 2 * hh
                    a('v_cvt_pk_bf16_f32 v%d, v%d, v%d' % (oo, R0, R1))
                    a('v_cvt_pk_bf16_f32 v%d, v%d, v%d' % (oo + 1, R0 + 1, R1 + 1))
                if un == 1 and t == 0: a('s_add_u32 s%d, s%d, 8192' % (DO, DO))
                a('buffer_store_dwordx4 %s, v237, %s, s%d offen offset:%d sc1' % (v(O + 8 * un + 4 * t, 4), s(SZ, 4), DO, t * 1024))
    def arrive2():
        a('s_mov_b64 exec, 1')
        a('ds_add_u32 v254, v253')
        a('s_mov_b64 exec, -1')
    def ureads(nch):
        for c in range(nch):
            for t in range(2):
                for hh in range(2):
                    a('ds_read_b32 v%d, v%d offset:%d' % (UR + 4 * c + 2 * t + hh, VU, c * CW + 512 * (1 - t) + 64 * (1 - hh)))
    for c in range(2):
        for t in range(2):
            for h in range(2):
                a('ds_read_b128 %s, v%d offset:%d' % (v(P + 16 * c + 8 * t + 4 * h, 4), VXR, (2 * c + h) * 8192 + t * 1024))
    ureads(2)
    a('s_waitcnt lgkmcnt(8)')
    for c in range(2):
        for t in range(2):
            R = P + 16 * c + 8 * t
            a('v_pk_add_f32 %s, %s, %s' % (v(R, 2), v(R, 2), v(R + 4, 2)))
            a('v_pk_add_f32 %s, %s, %s' % (v(R + 2, 2), v(R + 2, 2), v(R + 6, 2)))
    a('s_waitcnt lgkmcnt(0)')
    arrive2()
    finish(2, lambda c, t: P + 16 * c + 8 * t)
    stamp(a, 1)
    a('s_waitcnt vmcnt(0)')
    stamp(a, 2)
    set_flag(a, S_F2)
    a('s_branch K_aterm')
    a.label('CV_epiB')
    for c in range(4):
        for t in range(2):
            a('ds_read_b128 %s, v%d offset:%d' % (v(P + 8 * c + 4 * t, 4), VXR, c * CW + t * 1024))
    ureads(4)
    a('v_lshlrev_b32 v247, %d, v1' % OPT['fsz'])
    a('s_waitcnt lgkmcnt(0)')
    arrive2()
    finish(4, lambda c, t: P + 8 * c + 4 * t)
    stamp(a, 1)
    a('s_waitcnt vmcnt(0)')
    stamp(a, 2)
    a('s_mov_b64 exec, 3')
    a('buffer_store_dwordx2 v[250:251], v247, %s, s%d offen sc1' % (s(SF, 4), S_F2))
    a('s_mov_b64 exec, -1')
    a.label('K_aterm')
    aterm(a)

G2_SW = 72
G2_KB, G2_O, G2_T, G2_T2, G2_LB, G2_RB, G2_CB = 65, 66, 67, 68, 69, 8, 9
G2_ACC, G2_WB, G2_HB = 28, 108, 188
def g2_lds(r):
    return (49152 + r * 20480) if r < 2 else ((r - 2) * 20480)
def g2_ks(p, dst):
    L = ['s_add_u32 s%d, s%d, %d' % (dst, G2_KB, 4 * p),
         's_cmp_ge_u32 s%d, 54' % dst,
         's_cselect_b32 s%d, 54, 0' % G2_T,
         's_sub_u32 s%d, s%d, s%d' % (dst, dst, G2_T)]
    if p == 13:
        L += ['s_cmp_ge_u32 s%d, 2' % S_W, 's_cselect_b32 s%d, 60, s%d' % (dst, dst)]
    return L
def g2_w_items(p, slot, va=237):
    B = G2_WB + 20 * slot
    it = []
    for t in range(5):
        pre = g2_ks(p, G2_O) + ['s_mul_i32 s%d, s%d, 40960' % (G2_O, G2_O)] if t == 0 else []
        it.append(item('buffer_load_dwordx4 %s, v%d, %s, s%d offen offset:%d sc1' % (v(B + 4 * t, 4), va if t < 4 else va + 1, s(G2_SW, 4), G2_O, (t & 3) * 1024), pre, vm=('w', p)))
    return it
def g2_wl_items(p, r):
    it = []
    for t in range(5):
        pre = []
        if t == 0:
            pre = g2_ks(p, G2_O) + ['s_mul_i32 s%d, s%d, 40960' % (G2_O, G2_O), 's_add_u32 m0, s%d, %d' % (G2_LB, g2_lds(r))]
        if t == 4:
            pre = ['s_add_u32 m0, s%d, %d' % (G2_LB, g2_lds(r) + 4096)]
        it.append(item('buffer_load_dwordx4 v%d, %s, s%d offen offset:%d sc1 lds' % (237 if t < 4 else 238, s(G2_SW, 4), G2_O, (t & 3) * 1024), pre, vm=('wl', p)))
    return it
def g2_pre(a):
    RB, CB, T, T2 = G2_RB, G2_CB, G2_T, G2_T2
    a('s_lshl_b32 s%d, s3, 2' % RB)
    a('s_lshr_b32 s%d, s4, 3' % CB)
    a('s_add_u32 s%d, s%d, s%d' % (RB, RB, CB))
    a('s_and_b32 s%d, s4, 7' % CB)
    a('s_mul_i32 s%d, s%d, 5120' % (T, CB))
    a('s_add_u32 s%d, s%d, %s' % (T, T, hex(WS_W2P)))
    srd(a, G2_SW, P_WS, 53 * 40960 + 5120, 's%d' % T)
    if OPT['rot2']:
        a('s_and_b32 s%d, s%d, 3' % (T, RB))
        a('s_mul_i32 s%d, s%d, %d' % (T, T, 13 if OPT['rot2r'] else 0))
        a('s_mul_i32 s%d, s%d, 7' % (T2, CB))
        a('s_add_u32 s%d, s%d, s%d' % (T, T, T2))
        a('s_add_u32 s%d, s%d, s%d' % (T, T, S_W))
        a('s_cmp_ge_u32 s%d, 54' % T)
        a('s_cselect_b32 s%d, 54, 0' % T2)
        a('s_sub_u32 s%d, s%d, s%d' % (G2_KB, T, T2))
    else:
        a('s_mov_b32 s%d, s%d' % (G2_KB, S_W))
    a('s_mul_i32 s%d, s%d, 5120' % (G2_LB, S_W))
    a('v_add_u32 v238, 4096, v237')
    a('s_mul_i32 s%d, s%d, 5' % (T, CB))
    a('s_lshr_b32 s%d, s%d, 2' % (T, T))
    a('s_mul_i32 s%d, s%d, %d' % (T, T, 18 << OPT['fsw']))
    a('s_add_u32 s%d, s%d, %s' % (T, T, hex(F_W)))
    a('s_cmp_eq_u32 s%d, 0' % S_W)
    a('s_cselect_b32 s%d, s%d, %s' % (T, T, hex(OOB)))
    a('v_min_u32 v248, 35, v1')
    a('v_lshl_add_u32 v248, v248, %d, s%d' % (OPT['fsw'], T))

def g2_fh_addr(a):
    T = G2_T
    a('v_min_u32 v247, 13, v1')
    a('v_lshl_add_u32 v248, v247, 2, s%d' % G2_KB)
    a('v_subrev_u32 v247, 54, v248')
    a('v_min_u32 v248, v248, v247')
    a('s_lshl_b32 s%d, s%d, %d' % (T, G2_RB, 6 + OPT['fsh']))
    a('v_lshl_add_u32 v248, v248, %d, s%d' % (OPT['fsh'], T))

def gemm2(a):
    RB, CB, W = G2_RB, G2_CB, S_W
    SHh, SQ, SZ, SG, SO = 56, 52, 44, 60, 48
    O, T, T2 = G2_O, G2_T, G2_T2
    ACC, WB, HB = G2_ACC, G2_WB, G2_HB
    DH = 4
    OH, TH = 70, 71
    g = G1(a)
    FH_LOAD = 'buffer_load_dwordx2 v[26:27], v22, %s, 0 offen sc1' % s(SF, 4)
    FZ_LOAD = 'buffer_load_dwordx2 v[252:253], v25, %s, 0 offen sc1' % s(SF, 4)
    a('v_mov_b32 v22, v248')
    a('s_setprio 0')
    g.emit(item(FH_LOAD, vm='fh'))
    for it in g2_wl_items(6, 2) + g2_wl_items(7, 3): g.emit(it)
    a('v_mov_b32 v2, v237')
    a('v_mov_b32 v3, v238')
    a('s_mul_i32 s%d, s%d, %d' % (T, RB, 54 * 4096))
    if WS_H: a('s_add_u32 s%d, s%d, %s' % (T, T, hex(WS_H)))
    srd(a, SHh, P_WS, 54 * 4096, 's%d' % T)
    for j in range(4):
        a('s_xor_b32 s%d, s%d, %d' % (T, W, j))
        a('s_lshl_b32 s%d, s%d, 10' % (T, T))
        a('v_add_u32 v%d, s%d, v2' % (4 + j, T))
    a('v_add_u32 v24, s%d, v2' % G2_LB)
    a('v_add_u32 v23, %d, v24' % g2_lds(1))
    def late_setup(a):
        a('s_lshl_b32 s%d, s%d, 6' % (T, RB))
        a('s_lshl_b32 s%d, s%d, 4' % (T2, W))
        a('s_add_u32 s%d, s%d, s%d' % (T, T, T2))
        a('s_mul_i32 s%d, s%d, 1280' % (T, T))
        a('s_mul_i32 s%d, s%d, 160' % (T2, CB))
        a('s_add_u32 s%d, s%d, s%d' % (T, T, T2))
        chunk_addrs(a, 12, 10, T)
        lds_q_base(a, T2, W)
        a('v_add_u32 v15, s%d, v2' % T2)
        a('v_lshrrev_b32 v9, 4, v1')
        a('v_and_b32 v10, 15, v1')
        a('v_mul_u32_u24 v10, 160, v10')
        a('v_lshl_add_u32 v10, v9, 3, v10')
        a('v_add_u32 v10, s%d, v10' % T2)
        srd(a, SO, P_OUT, SZ_ACT)
        a('s_mul_i32 s%d, s%d, %d' % (T, W, A_STRIDE))
        a('s_add_u32 s%d, s%d, %d' % (T, T, CONV_BASE))
        a('v_add_u32 v11, s%d, v2' % T)
    stamp(a, 6)
    g.wait(vm=['fh'])
    a('v_cmp_eq_u64 s[76:77], %s, v[26:27]' % NC)
    order = [0, 1, 2, 3, 4, 8, 5, 9, 6, 10, 7, 11, 12, 13]
    slot = [0, 1, 2, 3, 2, 0, 2, 1, 2, 3, 2, 0, 1, 3]
    refill = {0: 8, 1: 9, 2: 4, 3: 10, 4: 5, 5: 11, 6: 6, 7: 12, 8: 7, 9: 13}
    slow = []
    def fh_check(bit):
        S, B = a.newlabel('FHS'), a.newlabel('FHB')
        slow.append((S, B, bit))
        return ['s_bitcmp1_b32 s76, %d' % bit, 's_cbranch_scc0 %s' % S, B + ':']
    def ks_lines(p, dst, tmp):
        L = ['s_add_u32 s%d, s%d, %d' % (dst, G2_KB, 4 * p), 's_sub_u32 s%d, s%d, 54' % (tmp, dst), 's_min_u32 s%d, s%d, s%d' % (dst, dst, tmp)]
        if p == 13: L += [['s_cmp_ge_u32 s%d, 2' % S_W, 's_cselect_b32 s%d, 60, s%d' % (dst, dst)]]
        return L
    def h_prep(r):
        return [fh_check(order[r])] + ks_lines(order[r], OH, TH) + [('s_lshl_b32 s%d, s%d, 12' % (OH, OH)) if not (OPT['xh'] and r >= 4) else 's_mov_b32 s%d, 0x7000000' % OH]
    def h_item(r, t):
        B = HB + 16 * (r % DH)
        return item('buffer_load_dwordx4 %s, v%d, %s, s%d offen%s' % (v(B + 4 * t, 4), 4 + t, s(SHh, 4), OH, '' if OPT['xsc'] else ' sc1'), vm=('h', r, t))
    for r in range(DH):
        for l in h_prep(r): g.emit(item(l))
        if r == 0: stamp(a, 7)
        for t in range(4): g.emit(h_item(r, t))
        if r == 1: late_setup(a)
    ZR = WB + 40
    GQ = WB
    ZU = WB + 20
    MASK = 71
    rbuf = [g2_lds(2), g2_lds(3), g2_lds(0)]
    for r in range(14):
        p = order[r]
        if r in (1, 3, 5, 7, 9, 11, 12, 13): stamp(a, (1, 3, 5, 7, 9, 11, 12, 13).index(r) + 2, 3)
        if r < 8: stamp(a, r + 1, 4)
        if r == 0 and OPT['stamp'] == 4: a('s_mov_b32 s98, s80')
        if r == 0: stamp(a, 1, 3)
        fill = {i: [] for i in range(20)}
        if r + DH < 14:
            for i, l in enumerate(h_prep(r + DH)): fill[min(i, 4) if i < 5 else 4].append(item(l))
            for j in range(4): fill[5 * j + 4].append(h_item(r + DH, j))
        free = [5, 6, 7, 8, 10, 11, 12, 13, 15, 16, 17, 18] if r + DH < 14 else list(range(20))
        extra = []
        if r - 1 in refill:
            pp = refill[r - 1]; Bs = WB + 20 * slot[r - 1]
            if pp >= 8:
                extra += [item(l) for l in ks_lines(pp, O, T)] + [item(('s_mul_i32 s%d, s%d, 40960' % (O, O)) if not OPT['xw'] else 's_mov_b32 s%d, 0x7000000' % O)]
                extra += [item('buffer_load_dwordx4 %s, v%d, %s, s%d offen offset:%d sc1' % (v(Bs + 4 * t, 4), 2 if t < 4 else 3, s(G2_SW, 4), O, (t & 3) * 1024), vm=('w', pp)) for t in range(5)]
            else:
                lb = g2_lds(pp - 4); ad = 24
                if pp == 5: ad, lb = 23, 0
                extra += [item('ds_read_b128 %s, v%d offset:%d' % (v(Bs + 4 * t, 4), ad, lb + t * 1024), lg=('wl', pp), needvm=[('wl', pp)]) for t in range(5)]
        if OPT['arf'] and r in (0, 3):
            extra += [item(FH_LOAD, vm='fh')]
        if OPT['arf'] and r in (3, 5):
            extra = [item('v_cmp_eq_u64 s[76:77], %s, v[26:27]' % NC, needvm=['fh'])] + extra
        if r == OPT['ztrig']:
            extra += [item('ds_write_b32 v254, v253 offset:4', lg='trig')]
        if r == 11:
            for j in range(1, 4):
                extra += [item(['s_xor_b32 s%d, s%d, %d' % (T, W, j), 's_mul_i32 s%d, s%d, 5120' % (T, T), 'v_add_u32 v%d, s%d, v2' % (4 + j, T)])]
        wr = []
        if r == 13:
            wr = ['ds_write_b128 v24, %s offset:%d' % (v(ACC + (j * 5 + mt) * 4, 4), rbuf[j - 1] + mt * 1024) for j in (1, 2, 3) for mt in range(5)]
            for i in range(9, 20): fill[i].append(item(wr[i - 9]))
        assert len(extra) <= len(free), (r, len(extra))
        for i, it in enumerate(extra): fill[free[i]].append(it)
        Bw = WB + 20 * slot[r]; Bh = HB + 16 * (r % DH)
        js = (0, 1, 2, 3) if r < 13 else (1, 2, 3, 0)
        i = 0
        for j in js:
            g.wait(vm=[('h', r, j), ('w', p)], lg=[('wl', p)])
            for mt in range(5):
                acc = v(ACC + (j * 5 + mt) * 4, 4)
                a('v_mfma_f32_16x16x32_bf16 %s, %s, %s, %s' % (acc, v(Bw + 4 * mt, 4), v(Bh + 4 * j, 4), '0' if r == 0 else acc))
                for it in fill[i]: g.emit(it)
                i += 1
    stamp(a, 8)
    for l in wr[11:]: a(l)
    a('s_waitcnt lgkmcnt(0)')
    a('s_barrier')
    stamp(a, 9)
    a('ds_read_b64 v[8:9], v11 offset:5120')
    def rd(m2):
        for j in range(1, 4):
            a('ds_read_b128 %s, v%d offset:%d' % (v(ACC + (j * 5 + m2) * 4, 4), 4 + j, rbuf[j - 1] + m2 * 1024))
        a('ds_read_b128 %s, v11 offset:%d' % (v(GQ + 4 * m2, 4), m2 * 1024))
    for m2 in range(3): rd(m2)
    for mt in range(5):
        if mt + 3 < 5: rd(mt + 3)
        a('s_waitcnt lgkmcnt(%d)' % (4 * min(3, 4 - mt)))
        A0 = ACC + 4 * mt
        for h in range(2):
            a('v_pk_add_f32 %s, %s, %s' % (v(A0 + 2 * h, 2), v(A0 + 2 * h, 2), v(A0 + 20 + 2 * h, 2)))
            a('v_pk_add_f32 %s, %s, %s' % (v(A0 + 40 + 2 * h, 2), v(A0 + 40 + 2 * h, 2), v(A0 + 60 + 2 * h, 2)))
        for h in range(2):
            a('v_pk_add_f32 %s, %s, %s' % (v(A0 + 2 * h, 2), v(A0 + 2 * h, 2), v(A0 + 40 + 2 * h, 2)))
        for h in range(2):
            a('v_pk_fma_f32 %s, %s, v[8:9], %s' % (v(A0 + 2 * h, 2), v(A0 + 2 * h, 2), v(GQ + 4 * mt + 2 * h, 2)))
        a('v_cvt_pk_bf16_f32 v%d, v%d, v%d' % (ZU + 2 * mt, A0, A0 + 1))
        a('v_cvt_pk_bf16_f32 v%d, v%d, v%d' % (ZU + 1 + 2 * mt, A0 + 2, A0 + 3))
    for mt in range(5):
        a('ds_write_b64 v10, %s offset:%d' % (v(ZU + 2 * mt, 2), 32 * mt))
    for i in range(3):
        a('ds_read_b128 %s, v15 offset:%d' % (v(16 + 4 * i, 4), 1024 * i))
    for i in range(3):
        a('s_waitcnt lgkmcnt(%d)' % (2 - i))
        a('buffer_store_dwordx4 %s, v%d, %s, 0 offen' % (v(16 + 4 * i, 4), 12 + i, s(SO, 4)))
    stamp_end(a)
    a('s_endpgm')
    for (S, B, bit) in slow:
        L = a.newlabel('SL')
        a.label(S)
        a('s_mov_b32 s11, 0x20000')
        a.label(L)
        if OPT['stamp'] == 4: a('s_add_u32 s98, s98, 100')
        if bit is None:
            a(FZ_LOAD)
            a('s_waitcnt vmcnt(0)')
            a('v_cmp_eq_u64 vcc, %s, v[252:253]' % NC)
            a('s_cmp_eq_u64 vcc, -1')
        else:
            a(FH_LOAD)
            a('s_waitcnt vmcnt(0)')
            a('v_cmp_eq_u64 s[76:77], %s, v[26:27]' % NC)
            a('s_bitcmp1_b32 s76, %d' % bit)
        a('s_cbranch_scc1 %s' % B)
        a('s_sleep %d' % OPT['fsl'])
        a('s_sub_u32 s11, s11, 1')
        a('s_cbranch_scc0 %s' % L)
        a('s_branch %s' % B)

def kernel(a, name):
    a.raw('.p2align 8')
    a.label(name)
    a('s_cmp_ge_u32 s2, 256')
    a('s_cbranch_scc1 K_exit')
    a('s_load_dwordx16 s[16:31], s[0:1], 0')
    a('s_load_dwordx8 s[32:39], s[0:1], 64')
    a('s_load_dwordx4 s[40:43], s[0:1], 96')
    a('s_memrealtime s[74:75]')
    stamp_begin(a)
    a('v_lshrrev_b32 v1, 6, v0')
    a('s_and_b32 s3, s2, 7')
    a('v_readfirstlane_b32 s%d, v1' % S_W)
    a('v_and_b32 v1, 63, v0')
    a('s_lshr_b32 s4, s2, 3')
    common_pre(a)
    a('s_getreg_b32 s%d, hwreg(HW_REG_XCC_ID)' % S_XCC)
    a('s_add_u32 s%d, s%d, 1' % (S_XCC, S_XCC))
    a('s_cmp_ge_u32 s4, 27')
    a('s_cbranch_scc1 K_prep')
    a('s_mov_b32 s8, s3')
    a('s_mov_b32 s9, s4')
    gemm1_pre(a)
    a('s_waitcnt lgkmcnt(0)')
    g, d = gemm1_head(a)
    a('s_cmp_lt_u32 s%d, 4' % S_W)
    a('s_cbranch_scc1 K_tail_g2')
    gemm1_tail(a, g, d, 'CV')
    a.label('K_conv')
    conv(a)
    a.label('K_prep')
    a('s_mul_i32 s8, s3, 5')
    a('s_add_u32 s8, s8, s4')
    a('s_sub_u32 s8, s8, 27')
    a('s_lshl_b32 s7, s8, 3')
    a('s_add_u32 s7, s7, s%d' % S_W)
    ut_pre(a)
    a('s_waitcnt lgkmcnt(0)')
    ut_loads(a)
    stamp(a, 1)
    flag_srd(a)
    srd(a, 72, P_DBG, 256)
    go_off(a)
    a(GO_LOAD)
    a('s_waitcnt vmcnt(9)')
    stamp(a, 2)
    ut_k(a)
    a('s_mov_b32 s69, 0x20000')
    a.label('K_sp_go')
    a('s_waitcnt vmcnt(0)')
    a('v_cmp_ne_u32 vcc, 0, v250')
    a('s_cbranch_vccnz K_sp_go2')
    a('s_sleep 4')
    a(GO_LOAD)
    a('s_sub_u32 s69, s69, 1')
    a('s_cbranch_scc0 K_sp_go')
    a.label('K_sp_go2')
    fx_publish(a, 0)
    ut_v(a)
    stamp(a, 3)
    a('s_waitcnt vmcnt(0)')
    set_flag(a, S_F2)
    go_sgpr(a)
    a('s_mov_b32 s%d, %s' % (S_F1, hex(OOB)))
    a('s_barrier')
    stamp(a, 5)
    a('s_cmp_lt_u32 s%d, 4' % S_W)
    a('s_cbranch_scc1 K_prep_g2')
    a('s_lshl_b32 s7, s8, 1')
    a('s_add_u32 s7, s7, 240')
    a('s_mov_b32 s%d, 1' % CV_M)
    gp = G1(a)
    cv_pre(a)
    for it in cv_h_items(): gp.emit(it)
    cv_setup1(a)
    for ls in cv_pads():
        for l in ls: a(l)
    poll(a, PF_LOAD, 244, 11, sleep=8)
    cv_u_loads(a)
    a('s_barrier')
    fx = cv_fix()
    for l in fx[0]: a(l)
    a('s_waitcnt lgkmcnt(0)')
    for l in fx[1:]: a(l)
    for l in cv_g_reads(0, 0): a(l)
    a('s_waitcnt vmcnt(0)')
    a('s_branch K_conv')
    a.label('K_prep_g2')
    g2_pre(a)
    a(PF_LOAD)
    a('s_waitcnt vmcnt(0)')
    fw_check(a)
    a('s_barrier')
    for p in range(4):
        for it in g2_w_items(p, p): gp.emit(it)
    for r in range(2):
        for it in g2_wl_items(4 + r, r): gp.emit(it)
    g2_fh_addr(a)
    a('s_branch K_gemm2')
    a.label('K_tail_g2')
    gemm1_tail(a, g, d, 'G2')
    a.label('K_gemm2')
    gemm2(a)
    a.label('K_exit')
    a('s_endpgm')

def main(out):
    hdr = open('cdna_kernels/%s.s.ref' % NAME).read().split('\n')
    head = [l for l in hdr if l.startswith(';') and '@launch' not in l and 'Override' not in l and 'grid=ceil' not in l]
    a = Asm()
    for l in head: a.raw(l)
    a.raw('; @launch grid=(256,1,1) block=(512,1,1) lds=%d' % LDS_TOTAL)
    a.raw('.amdgcn_target "amdgcn-amd-amdhsa--gfx950"')
    a.raw('.text')
    nm = NAME + '_kernel'
    a.raw('.globl %s' % nm)
    a.raw('.type %s,@function' % nm)
    kernel(a, nm)
    a.raw('.section .rodata,"a"')
    a.raw(kernel_desc(nm, 256))
    open(out, 'w').write(a.text())

if __name__ == '__main__':
    out = 'cdna_kernels/%s.s' % NAME
    for arg in sys.argv[1:]:
        if '=' in arg:
            k, val = arg.split('='); OPT[k] = int(val)
        else:
            out = arg
    main(out)
```

```python
import sys, copy
from asmlib import *

NAME = 'gated_mix__ssm_conv_h3__glu_gated_swiglu__prompt'
WS_H = 0
WS_W2P = 0x800000
WS_UT = 0xC00000
WS_Z4 = 0x1000000
WS_G = 0x1400000
WS_F = 0x1500000
F_H, F_U, F_W, F_Z = 0, 0x40000, 0x50000, 0x60000
F_SIZE = 0xA0000
FS = 7
SZ_ACT = 2048 * 640 * 2
SZ_W = 640 * 1728 * 2
SZ_H = 2048 * 1728 * 2
P_Q, P_K, P_V, P_SK, P_SSMK, P_SSMD, P_BX, P_W1, P_W3, P_W2, P_GW, P_OUT, P_DBG, P_WS = [16 + 2 * i for i in range(14)]
NLOG2E = '0xbfb8aa3b'
OPT = dict(probe=-1, pwg=-1, rot2=1, stamp=0, prio=0, cprio=1, cflag=0, touch=0, nodma=0, tp=2, lead=3, rot2r=0, rot1=10, eprio=3, gprio=3, fsl=8, ebar=1, npost=0, allwait=0)
LDS_TOTAL = 163840
LDS_CNT = LDS_TOTAL - 32
SLOT = [0, 98304, 49152]
LDS_W2S = 147456
LDS_GW = 159744
CONV_BASE = 98304
S_W = 10
SF = 12
S_F1, S_F2 = 5, 6
WS_DBG = 0x2000000
OOB = 0x1000000

def stamp(a, i, mode=1):
    if OPT['probe'] == i and mode == 1:
        a('s_memrealtime s[96:97]')
    if OPT['stamp'] == mode:
        a('s_memtime s[%d:%d]' % (80 + 2 * i, 81 + 2 * i))
def stamp_begin(a):
    if OPT['probe'] >= 0:
        a('s_memrealtime s[96:97]')
    if OPT['stamp']:
        a('s_memrealtime s[78:79]')
        for i in range(11): a('s_mov_b64 s[%d:%d], 0' % (80 + 2 * i, 81 + 2 * i))
        a('s_memtime s[80:81]')
def stamp_end(a):
    if OPT['probe'] >= 0:
        L = a.newlabel('PRB')
        if OPT['probe'] == 10:
            a('s_waitcnt vmcnt(0)')
            a('s_memrealtime s[96:97]')
        a('s_cmp_lg_u32 s10, 0')
        a('s_cbranch_scc1 %sx' % L)
        if OPT['pwg'] >= 0:
            a('s_cmp_lg_u32 s2, %d' % OPT['pwg'])
            a('s_cbranch_scc1 %sx' % L)
        a('s_waitcnt lgkmcnt(0)')
        a('s_add_u32 s96, s96, 4000')
        a.label(L)
        a('s_sleep 1')
        a('s_memrealtime s[98:99]')
        a('s_waitcnt lgkmcnt(0)')
        a('s_sub_u32 s98, s98, s96')
        a('s_cmp_lt_i32 s98, 0')
        a('s_cbranch_scc1 %s' % L)
        a.label(L + 'x')
    if OPT['stamp']:
        a('s_waitcnt vmcnt(0) lgkmcnt(0)')
        a('s_memtime s[100:101]')
        a('s_memrealtime s[76:77]')
        srd(a, 44, P_WS, 0x100000, WS_DBG)
        a('s_lshl_b32 s5, s2, 3')
        a('s_add_u32 s5, s5, s10')
        a('s_lshl_b32 s5, s5, 6')
        a('s_waitcnt lgkmcnt(0)')
        a('v_mov_b32 v0, s78')
        a('v_mov_b32 v1, s76')
        for i in range(11): a('v_mov_b32 v%d, s%d' % (2 + i, 80 + 2 * i))
        a('v_mov_b32 v16, s5')
        a('s_mov_b64 exec, 1')
        for i in range(4):
            a('buffer_store_dwordx4 v[%d:%d], v16, s[44:47], 0 offen offset:%d' % (4 * i, 4 * i + 3, 16 * i))

def capture(a, fn):
    save = a.lines; a.lines = []
    fn()
    out = a.lines; a.lines = save
    return out

class Q:
    def __init__(self): self.q = []
    def push(self, tag, sure=True): self.q.append((tag, sure))
    def need(self, tags):
        idx = [i for i, (t, _) in enumerate(self.q) if t in tags]
        if not idx: return None
        last = max(idx)
        n = sum(1 for (_, sure) in self.q[last + 1:] if sure)
        self.q = self.q[last + 1:]
        return n
    def clear(self): self.q = []

NC = 's[0:1]'
def poll_check(a, loadline, vtmp, sc, sleep=2):
    L, D = a.newlabel('POLL'), a.newlabel('POLLD')
    a('s_mov_b32 s%d, 0x20000' % sc)
    a.label(L)
    a('v_cmp_eq_u64 vcc, %s, %s' % (NC, v(vtmp, 2)))
    a('s_cmp_eq_u64 vcc, -1')
    a('s_cbranch_scc1 %s' % D)
    a('s_sleep %d' % sleep)
    a(loadline)
    a('s_waitcnt vmcnt(0)')
    a('s_sub_u32 s%d, s%d, 1' % (sc, sc))
    a('s_cbranch_scc0 %s' % L)
    a.label(D)
def poll(a, loadline, vtmp, sc, sleep=2):
    a(loadline)
    a('s_waitcnt vmcnt(0)')
    poll_check(a, loadline, vtmp, sc, sleep)

GO_LOAD = 'buffer_load_dwordx2 v[250:251], v252, s[72:75], s11 offen sc1'
PF_LOAD = 'buffer_load_dwordx2 v[244:245], v248, s[%d:%d], 0 offen sc1' % (SF, SF + 3)

def set_flag(a, soff):
    a('s_mov_b64 exec, 1')
    a('buffer_store_dwordx2 v[250:251], v252, %s, s%d offen sc1' % (s(SF, 4), soff))
    a('s_mov_b64 exec, -1')

def nonce_publish(a):
    L = a.newlabel('NP')
    a('s_or_b32 s11, s2, s%d' % S_W)
    a('s_cmp_lg_u32 s11, 0')
    a('s_cbranch_scc1 %s' % L)
    a('s_or_b32 s74, s74, 1')
    a('v_mov_b32 v250, s74')
    a('v_mov_b32 v251, s75')
    a('v_lshlrev_b32 v249, 7, v1')
    a('s_mov_b64 exec, 3')
    a('global_store_dwordx2 v249, v[250:251], s[%d:%d] sc1' % (P_DBG, P_DBG + 1))
    a('s_mov_b64 exec, -1')
    a.label(L)
def go_off(a):
    a('s_and_b32 s11, s4, 1')
    a('s_lshl_b32 s11, s11, 7')
def go_issue(a):
    srd(a, 72, P_DBG, 256)
    go_off(a)
    a('s_cmp_eq_u32 s%d, 0' % S_W)
    a('s_cselect_b32 s11, s11, %s' % hex(OOB))
    a(GO_LOAD)
def go_check(a):
    L, R, D = a.newlabel('GOC'), a.newlabel('GOR'), a.newlabel('GOD')
    a('s_cmp_lg_u32 s%d, 0' % S_W)
    a('s_cbranch_scc1 %s' % L)
    go_off(a)
    a('s_mov_b32 s69, 0x20000')
    a.label(R)
    a('v_cmp_ne_u32 vcc, 0, v250')
    a('s_cbranch_vccnz %s' % D)
    a('s_sleep 4')
    a(GO_LOAD)
    a('s_waitcnt vmcnt(0)')
    a('s_sub_u32 s69, s69, 1')
    a('s_cbranch_scc0 %s' % R)
    a.label(D)
    a('ds_write_b64 v254, v[250:251] offset:8')
    a('s_waitcnt lgkmcnt(0)')
    a.label(L)
GO_FETCH = 'ds_read_b64 v[250:251], v254 offset:8'
def go_sgpr(a):
    a('v_readfirstlane_b32 s0, v250')
    a('v_readfirstlane_b32 s1, v251')
def fw_check(a):
    D = a.newlabel('PFD')
    a('s_cmp_lg_u32 s%d, 0' % S_W)
    a('s_cbranch_scc1 %s' % D)
    poll_check(a, PF_LOAD, 244, 11, sleep=4)
    a.label(D)

def common_pre(a):
    a('v_mov_b32 v252, 0')
    a('v_mov_b32 v253, 1')
    a('v_mov_b32 v254, %d' % LDS_CNT)
    a('ds_write_b32 v254, v252')
    a('ds_write_b32 v254, v252 offset:4')
    a('ds_write_b32 v254, v252 offset:16')
    a('v_lshlrev_b32 v237, 4, v1')

def flag_srd(a):
    srd(a, SF, P_WS, F_SIZE, WS_F)

G1_FR, G1_ACC = 12, 44
SX, SW1, SW3, SH = 44, 48, 52, 56
OX, OW, LW, HO, GO = 60, 61, 62, 63, 64
GID, U0 = 70, 71

def gemm1_pre(a):
    RB, CB, W = 8, 9, S_W
    a('s_lshl_b32 s%d, s%d, 10' % (LW, W))
    a('v_lshrrev_b32 v13, 3, v1')
    a('s_lshl_b32 s11, s%d, 3' % W)
    a('v_add_u32 v13, s11, v13')
    a('v_bfe_u32 v14, v13, 1, 3')
    a('v_and_b32 v15, 7, v1')
    a('v_xor_b32 v14, v14, v15')
    a('v_lshlrev_b32 v14, 4, v14')
    a('v_mul_u32_u24 v2, 1280, v13')
    a('v_add_u32 v2, v2, v14')
    for i in range(1, 4):
        a('v_add_u32 v%d, %s, v2' % (2 + i, hex(i * 81920)))
    a('v_bfe_u32 v14, v13, 1, 1')
    a('v_lshlrev_b32 v14, 2, v14')
    a('v_xor_b32 v14, v14, v15')
    a('v_lshlrev_b32 v14, 4, v14')
    a('v_mul_u32_u24 v6, 3456, v13')
    a('v_add_u32 v6, v6, v14')
    if OPT['touch']:
        a('v_mul_u32_u24 v16, 205, v1')
        a('v_lshrrev_b32 v16, 11, v16')
        a('v_mul_u32_u24 v17, 10, v16')
        a('v_sub_u32 v17, v1, v17')
        a('s_mul_i32 s11, s%d, 10' % W)
        a('v_add_u32 v17, s11, v17')
        a('v_min_u32 v17, 74, v17')
        a('s_lshr_b32 s11, s4, 2')
        a('s_mul_i32 s11, s11, 43')
        a('v_add_u32 v18, s11, v17')
        a('v_min_u32 v18, 255, v18')
        a('v_mul_u32_u24 v18, 1280, v18')
        a('v_subrev_u32 v19, 43, v17')
        a('v_and_b32 v19, 15, v19')
        a('s_and_b32 s11, s4, 3')
        a('s_lshl_b32 s11, s11, 4')
        a('v_add_u32 v19, s11, v19')
        a('v_mul_u32_u24 v19, 3456, v19')
        a('v_cmp_gt_u32 vcc, 43, v17')
        a('v_mov_b32 v20, %d' % (64 * 3456))
        a('v_mov_b32 v21, 128')
        a('v_cndmask_b32 v242, v20, v21, vcc')
        a('v_cndmask_b32 v18, v19, v18, vcc')
        a('v_mul_u32_u24 v16, v16, v242')
        a('v_add_u32 v18, v18, v16')
    a('s_mul_i32 s%d, s%d, 27' % (GID, RB))
    a('s_add_u32 s%d, s%d, s%d' % (GID, GID, CB))
    a('s_lshr_b32 s65, s%d, 1' % W)
    a('s_and_b32 s66, s%d, 1' % W)
    a('s_lshl_b32 s67, s%d, 2' % RB)
    a('s_add_u32 s67, s67, s65')
    a('s_lshl_b32 s68, s%d, 1' % CB)
    a('s_add_u32 s68, s68, s66')
    a('s_lshl_b32 s%d, s67, 6' % S_F1)
    a('s_add_u32 s%d, s%d, s68' % (S_F1, S_F1))
    a('s_lshl_b32 s%d, s%d, %d' % (S_F1, S_F1, FS))

def touch_lines(lo, n):
    m = ((1 << n) - 1) << lo
    return ['s_mov_b32 exec_lo, %s' % hex(m & 0xffffffff), 's_mov_b32 exec_hi, %s' % hex(m >> 32),
            'global_load_dword v243, v[240:241], off', 's_mov_b64 exec, -1']

def gemm1_post_addr(a):
    W = S_W
    a('s_mul_i32 s%d, s67, 54' % HO)
    a('s_add_u32 s%d, s%d, s68' % (HO, HO))
    a('s_lshl_b32 s%d, s%d, 12' % (HO, HO))
    a('s_lshl_b32 s11, s65, 13')
    a('v_and_b32 v13, 31, v1')
    a('v_lshrrev_b32 v14, 5, v1')
    a('v_bfe_u32 v15, v1, 1, 3')
    a('v_xor_b32 v15, v15, v14')
    a('v_lshlrev_b32 v12, 7, v13')
    a('v_add_u32 v12, s11, v12')
    for kk in range(4):
        a('v_xor_b32 v%d, %d, v15' % (7 + kk, 2 * kk))
        a('v_lshl_add_u32 v%d, v%d, 4, v12' % (7 + kk, 7 + kk))
    a('v_bfe_u32 v11, v1, 2, 2')
    a('v_lshl_add_u32 v11, v14, 3, v11')
    a('v_lshlrev_b32 v11, 7, v11')
    a('v_bfe_u32 v12, v1, 3, 1')
    a('v_xor_b32 v12, s66, v12')
    a('v_lshl_add_u32 v11, v12, 6, v11')
    a('v_bfe_u32 v12, v1, 4, 1')
    a('v_lshl_add_u32 v11, v12, 5, v11')
    a('v_and_b32 v12, 3, v1')
    a('v_lshl_add_u32 v11, v12, 3, v11')
    a('v_add_u32 v11, 0x8000, v11')
    for i in range(5):
        a('v_add_u32 v%d, 0x18000, v%d' % (208 + i, 7 + i))
    a('v_bfe_u32 v12, v1, 4, 1')
    a('v_lshlrev_b32 v12, 10, v12')
    a('v_and_b32 v13, 15, v1')
    a('v_lshl_add_u32 v12, v13, 4, v12')
    a('v_lshl_add_u32 v213, v14, 8, v12')
    a('s_and_b32 s%d, s68, 7' % GO)
    a('s_lshl_b32 s69, s%d, 10' % GO)
    a('s_add_u32 s11, s11, s69')
    a('v_add_u32 v214, s11, v237')
    a('v_add_u32 v215, 0x18000, v214')
    a('s_and_b32 s69, s%d, 1' % GO)
    a('s_lshl_b32 s69, s69, 2')
    a('v_lshrrev_b32 v12, 4, v1')
    a('v_add_u32 v12, s69, v12')
    a('v_and_b32 v13, 7, v1')
    a('v_xor_b32 v12, v12, v13')
    a('v_lshlrev_b32 v216, 4, v12')
    a('v_add_u32 v216, %d, v216' % LDS_GW)
    if OPT['rot1']:
        a('s_lshl_b32 s69, s%d, 7' % KS0)
        a('v_add_u32 v216, s69, v216')
    a('v_mov_b32 v217, 0')
    a('s_lshl_b32 s%d, s%d, 5' % (GO, GO))
    a('s_lshl_b32 s69, s67, 8')
    a('s_add_u32 s%d, s%d, s69' % (GO, GO))
    a('s_cmp_lt_u32 s68, 8')
    a('s_cselect_b32 s%d, s%d, %s' % (GO, GO, hex(OOB)))
    a('v_lshrrev_b32 v12, 5, v1')
    a('v_bfe_u32 v13, v1, 2, 3')
    a('v_lshl_add_u32 v12, v12, 4, v13')
    a('v_lshlrev_b32 v12, 7, v12')
    a('v_and_b32 v13, 3, v1')
    a('v_lshl_add_u32 v12, v13, 3, v12')
    a('s_lshr_b32 s11, s%d, 2' % W)
    a('s_lshl_b32 s11, s11, 12')
    a('s_and_b32 s69, s%d, 3' % W)
    a('s_lshl_b32 s69, s69, 5')
    a('s_add_u32 s11, s11, s69')
    a('s_add_u32 s11, s11, %d' % LDS_W2S)
    a('v_add_u32 v236, s11, v12')

def item(lines, pre=(), vm=None, lg=None, needlg=(), needvm=()):
    if isinstance(lines, str): lines = [lines]
    if isinstance(pre, str): pre = [pre]
    return dict(pre=list(pre), lines=list(lines), vm=vm, lg=lg, needlg=set(needlg), needvm=set(needvm))

KS0 = 28
def g1_dma_items(stage):
    base = SLOT[stage % 3]
    it = []
    for m, S in ((0, SW1), (1, SW3)):
        pre = ['s_add_u32 m0, s%d, %s' % (LW, hex(base + 32768 + m * 8192))]
        if m == 0:
            if OPT['rot1']:
                pre = ['s_add_u32 s29, s%d, %d' % (KS0, stage), 's_cmp_ge_u32 s29, 10', 's_cselect_b32 s%d, 10, 0' % OW,
                       's_sub_u32 s29, s29, s%d' % OW, 's_mul_i32 s%d, s29, %d' % (OW, 64 * 3456)] + pre
            else:
                pre = ['s_mov_b32 s%d, %s' % (OW, hex(stage * 64 * 3456))] + pre
        it.append(item('buffer_load_dwordx4 v6, %s, s%d offen lds' % (s(S, 4), OW), pre, vm=('st', stage)))
    for i in range(4):
        pre = ['s_add_u32 m0, s%d, %s' % (LW, hex(base + i * 8192))]
        if i == 0:
            pre = [('s_lshl_b32 s%d, s29, 7' % OX) if OPT['rot1'] else ('s_movk_i32 s%d, %d' % (OX, stage * 128))] + pre
        it.append(item('buffer_load_dwordx4 v%d, %s, s%d offen lds' % (2 + i, s(SX, 4), OX), pre, vm=('st', stage)))
    if OPT['nodma'] and stage >= 3:
        it = []
    return it

class G1:
    def __init__(self, a):
        self.a = a; self.vq = Q(); self.lq = Q()
    def fork(self):
        g = G1(self.a); g.vq = copy.deepcopy(self.vq); g.lq = copy.deepcopy(self.lq); return g
    def wait(self, vm=(), lg=(), lgall=False):
        parts = []
        n = self.vq.need(set(vm)) if vm else None
        if n is not None: parts.append('vmcnt(%d)' % min(n, 63))
        if lgall:
            if self.lq.q: parts.append('lgkmcnt(0)')
            self.lq.clear()
        else:
            n = self.lq.need(set(lg)) if lg else None
            if n is not None: parts.append('lgkmcnt(%d)' % min(n, 15))
        if parts: self.a('s_waitcnt ' + ' '.join(parts))
    def emit(self, it, with_pre=True):
        a = self.a
        if with_pre and it['pre']:
            for l in it['pre']: a(l)
            if 'm0' in it['pre'][-1]: a('s_nop 0')
        if it['needlg'] or it['needvm']: self.wait(vm=it['needvm'], lg=it['needlg'])
        for l in it['lines']: a(l)
        if it['vm'] is not None: self.vq.push(it['vm'], sure=(it['vm'] != 'w2?'))
        if it['lg'] is not None: self.lq.push(it['lg'])
    def read_items(self, stage, kk):
        base = SLOT[stage % 3]; hi = base >= 98304
        off = base - (98304 if hi else 0)
        b = kk & 1
        B = G1_FR + 16 * b
        xa = (208 if hi else 7) + kk
        wa = 212 if hi else 11
        def w(m, h): return item('ds_read_b64_tr_b16 %s, v%d offset:%d' % (v(B + 8 + 4 * m + 2 * h, 2), wa, off + m * 8192 + kk * 2048 + h * 512), lg=('w', stage, kk, m))
        def x(nt): return item('ds_read_b128 %s, v%d offset:%d' % (v(B + 4 * nt, 4), xa, off + nt * 4096), lg=('x', stage, kk, nt))
        return [w(0, 0), w(0, 1), x(0), x(1), w(1, 0), w(1, 1)]
    def substep(self, sidx, kk, gaps):
        a = self.a
        B = G1_FR + 16 * (kk & 1)
        i = 0
        for m in range(2):
            for nt in range(2):
                g = gaps[i]
                if g and g[0]['pre']:
                    for l in g[0]['pre']: a(l)
                self.wait(lg=[('w', sidx, kk, m), ('x', sidx, kk, nt)])
                acc = v(G1_ACC + (m * 2 + nt) * 16, 16)
                a('v_mfma_f32_32x32x16_bf16 %s, %s, %s, %s' % (acc, v(B + 8 + 4 * m, 4), v(B + 4 * nt, 4), '0' if (sidx == 0 and kk == 0) else acc))
                for k, it in enumerate(g):
                    self.emit(it, with_pre=(k > 0))
                i += 1
    def step(self, sidx, ex, before_barrier=None, needvm=()):
        a = self.a
        a.comment('k-step %d' % sidx)
        if sidx < 9: stamp(a, sidx + 1, 2)
        base = SLOT[sidx % 3]; hi = base >= 98304
        for kk in range(4):
            if kk == 3:
                self.wait(vm=[('st', sidx + 1)] + list(needvm), lgall=True)
                if before_barrier: before_barrier(a)
                a('s_barrier')
            if kk < 3: r = self.read_items(sidx, kk + 1)
            elif sidx < 9: r = self.read_items(sidx + 1, 0)
            else: r = []
            e = list(ex.get(kk, []))
            if kk == 0:
                e = [item('ds_read_b128 v[220:223], v%d offset:%d' % (215 if hi else 214, base - (98304 if hi else 0)), lg='gx'),
                     item('ds_read_b128 v[224:227], v216 offset:%d' % (sidx * 128), lg='gx')] + e
            if kk == 2:
                e = e + [item(['v_dot2c_f32_bf16 v217, v%d, v%d' % (220 + i, 224 + i) for i in range(4)], needlg=['gx'])]
            h = (len(e) + 1) // 2
            if r: gaps = [r[0:3], r[3:6], e[:h], e[h:]]
            else:
                n4 = (len(e) + 3) // 4
                gaps = [e[i * n4:(i + 1) * n4] for i in range(4)]
            self.substep(sidx, kk, gaps)

def touch_item(stage):
    if not OPT['touch'] or stage > 9 or stage < OPT['tp']: return []
    lines = []
    if stage == 6:
        lines += ['v_mul_u32_u24 v218, 6, v242', 'v_add_co_u32 v240, vcc, v240, v218', 's_nop 1', 'v_addc_co_u32 v241, vcc, 0, v241, vcc']
    lines += touch_lines(10 * (stage % 6), 10)
    return [item(lines, vm='touch')]

def gemm1_head(a):
    RB, CB, W = 8, 9, S_W
    g = G1(a)
    nonce_publish(a)
    if OPT['rot1']:
        R = OPT['rot1']
        a('s_mul_i32 s11, s%d, %d' % (RB, 3 if R != 3 else 1))
        a('s_add_u32 s11, s11, s%d' % CB)
        a('s_mul_i32 s69, s11, %d' % ((2048 + R - 1) // R))
        a('s_lshr_b32 s69, s69, 11')
        a('s_mul_i32 s69, s69, %d' % R)
        a('s_sub_u32 s%d, s11, s69' % KS0)
        if R != 10: a('s_mul_i32 s%d, s%d, %d' % (KS0, KS0, 10 // R))
    a('s_mul_i32 s11, s%d, %d' % (RB, 256 * 1280))
    srd(a, SX, P_Q, 256 * 1280, 's11')
    a('s_lshl_b32 s11, s%d, 7' % CB)
    a('s_sub_u32 s69, %s, s11' % hex(SZ_W))
    srd(a, SW1, P_W1, 's69', 's11')
    srd(a, SW3, P_W3, 's69', 's11')
    if OPT['touch']:
        a('v_cmp_gt_u32 vcc, 59, v17')
        a('v_mov_b32 v20, s%d' % SW3); a('v_mov_b32 v21, s%d' % SW1)
        a('v_cndmask_b32 v240, v20, v21, vcc')
        a('v_mov_b32 v20, s%d' % (SW3 + 1)); a('v_mov_b32 v21, s%d' % (SW1 + 1))
        a('v_cndmask_b32 v241, v20, v21, vcc')
        a('v_cmp_gt_u32 vcc, 43, v17')
        a('v_mov_b32 v20, s%d' % SX); a('v_mov_b32 v21, s%d' % (SX + 1))
        a('v_cndmask_b32 v240, v240, v20, vcc')
        a('v_cndmask_b32 v241, v241, v21, vcc')
        a('v_add_co_u32 v240, vcc, v240, v18')
        a('s_nop 1')
        a('v_addc_co_u32 v241, vcc, 0, v241, vcc')
        g.emit(item(touch_lines(0, 10 * OPT['tp']), vm='touch'))
    for it in g1_dma_items(0): g.emit(it)
    stamp(a, 1)
    L = a.newlabel('GW')
    a('s_cmp_ge_u32 s%d, 3' % W)
    a('s_cbranch_scc1 %s' % L)
    srd(a, SH, P_GW, 1280)
    a('v_add_u32 v12, s%d, v237' % LW)
    a('v_subrev_u32 v13, 1280, v12')
    a('v_min_u32 v12, v12, v13')
    a('v_subrev_u32 v13, 1280, v12')
    a('v_min_u32 v12, v12, v13')
    a('s_add_u32 m0, s%d, %d' % (LW, LDS_GW))
    a('s_nop 0')
    a('buffer_load_dwordx4 v12, %s, 0 offen lds' % s(SH, 4))
    a.label(L)
    g.vq.push('gw', sure=False)
    gemm1_post_addr(a)
    flag_srd(a)
    srd(a, SH, P_W2, SZ_W)
    a('s_mul_i32 s11, s%d, 3641' % GID)
    a('s_lshr_b32 s11, s11, 16')
    a('s_mul_i32 s69, s11, 18')
    a('s_sub_u32 s69, s%d, s69' % GID)
    a('s_mul_i32 s69, s69, 3')
    a('s_lshr_b32 s72, s%d, 2' % W)
    a('s_add_u32 s69, s69, s72')
    a('s_cmp_ge_u32 s%d, 180' % GID)
    a('s_cselect_b32 s69, 60, s69')
    a('s_mul_i32 s%d, s69, 10' % U0)
    a('s_add_u32 s%d, s%d, s11' % (U0, U0))
    a('s_mul_i32 s69, s69, %d' % (32 * 1280))
    a('s_lshl_b32 s65, s11, 7')
    a('s_add_u32 s65, s65, s69')
    a('s_add_u32 s66, s65, %d' % (64 * 1280))
    a('s_cmp_lt_u32 s%d, 4' % W)
    a('s_cselect_b32 s66, s66, 0x7000000')
    a('s_and_b32 s67, s%d, 3' % W)
    a('s_lshl_b32 s67, s67, 10')
    a('s_add_u32 s67, s67, %d' % (LDS_W2S + 8192))
    a('s_cselect_b32 s67, s67, s67')
    a('v_lshrrev_b32 v12, 3, v1')
    a('s_and_b32 s69, s%d, 3' % W)
    a('s_lshl_b32 s69, s69, 3')
    a('v_add_u32 v12, s69, v12')
    a('v_mul_u32_u24 v12, 1280, v12')
    a('v_and_b32 v13, 7, v1')
    a('v_lshl_add_u32 v219, v13, 4, v12')
    L2 = a.newlabel('W2')
    w2l = [item('buffer_load_dwordx4 v219, %s, s65 offen lds' % s(SH, 4), pre='s_add_u32 m0, s%d, %d' % (LW, LDS_W2S), vm='w2'),
           item(['s_cmp_ge_u32 s%d, 4' % W, 's_cbranch_scc1 %s' % L2, 's_mov_b32 m0, s67', 's_nop 0',
                 'buffer_load_dwordx4 v219, %s, s66 offen lds' % s(SH, 4), L2 + ':'], vm='w2?')]
    a('s_barrier')
    for it in g1_dma_items(1): g.emit(it)
    g.wait(vm=[('st', 0), 'gw'])
    a('s_barrier')
    stamp(a, 2)
    if OPT['prio']:
        L = a.newlabel('PR')
        a('s_cmp_lt_u32 s%d, 4' % W)
        a('s_cbranch_scc1 %s' % L)
        a('s_setprio 1')
        a.label(L)
    for it in g.read_items(0, 0): g.emit(it)
    d = [g1_dma_items(i) for i in range(10)] + [[], [], []]
    ld = OPT['lead']
    t0 = []
    for st_ in range(OPT['tp'], ld): t0 += touch_item(st_)
    w2r = [item('ds_read_b64_tr_b16 v[228:229], v236', lg='w2f'), item('ds_read_b64_tr_b16 v[230:231], v236 offset:1024', lg='w2f'),
           item('ds_read_b64_tr_b16 v[232:233], v236 offset:8192', lg='w2f'), item('ds_read_b64_tr_b16 v[234:235], v236 offset:9216', lg='w2f')]
    w2s = [item('buffer_store_dwordx4 v[228:231], v237, %s, s11 offen sc1' % s(SH, 4),
                pre=['s_lshl_b32 s11, s%d, 2' % U0, 's_and_b32 s69, s%d, 3' % W, 's_add_u32 s11, s11, s69', 's_lshl_b32 s11, s11, 10'], vm='w2s', needlg=['w2f']),
           item('buffer_store_dwordx4 v[232:235], v237, %s, s11 offen sc1' % s(SH, 4),
                pre=['s_add_u32 s11, s11, %d' % (20 * 4096), 's_cmp_lt_u32 s%d, 4' % W, 's_cselect_b32 s11, s11, 0x7000000'], vm='w2s')]
    goi = item(capture_l(a, go_issue), vm='go')
    g.step(0, {0: w2l + [goi] + d[2][0:1], 1: d[2][1:4], 2: d[2][4:6], 3: d[3][0:2]})
    srd(a, SH, P_WS, SZ_W, WS_W2P)
    g.step(1, {0: d[3][2:4], 1: d[3][4:6], 3: [item(GO_FETCH, lg='go')] + w2r + d[4][0:2]}, before_barrier=go_check, needvm=['go', 'w2', 'w2?'])
    fw = item(['s_lshl_b32 s11, s%d, %d' % (GID, FS), 's_add_u32 s11, s11, %s' % hex(F_W), 's_cmp_eq_u32 s%d, 0' % W,
               's_cselect_b32 s11, s11, %s' % hex(OOB)] + capture_l(a, lambda a: set_flag(a, 11)), vm='fw')
    g.step(2, {0: w2s + d[4][2:4], 1: d[4][4:6], 2: [item(capture_l(a, go_sgpr), needlg=['go'])], 3: d[5][0:2]})
    srd(a, SH, P_WS, SZ_H, None if WS_H == 0 else WS_H)
    g.step(3, {0: d[5][2:4], 1: d[5][4:6], 3: [fw] + d[6][0:2]}, needvm=['w2s'])
    g.step(4, {0: d[6][2:4], 1: d[6][4:6], 3: d[7][0:2]})
    return g, d

def capture_l(a, fn):
    return [l.strip() for l in capture(a, lambda: fn(a))]

def gemm1_tail(a, g, d, role):
    g = g.fork()
    pf = [item(PF_LOAD, vm='pf')]
    ex = {s_: {0: d[s_ + 2][2:4], 1: d[s_ + 2][4:6], 2: touch_item(s_ + OPT['lead']), 3: d[s_ + 3][0:2]} for s_ in range(5, 10)}
    bb = {}; nv = {}
    post = []
    def chunks(lines, n):
        k = (len(lines) + n - 1) // n
        return [item(lines[i * k:(i + 1) * k]) for i in range(n) if lines[i * k:(i + 1) * k]]
    if role == 'G2':
        ex[6][0] = pf + ex[6][0]
        bb[6] = fw_check; nv[6] = ['pf']
        ex[5][2] = ex[5][2] + [item(capture_l(a, g2_pre))]
        w = []
        for p in range(4): w += g2_w_items(p, p)
        plan = [(6, 3, 1), (7, 0, 1), (7, 1, 1), (7, 2, 3), (7, 3, 3), (8, 0, 3), (8, 1, 4), (8, 2, 4)]
        k = 0
        for (s_, kk, n) in plan:
            ex[s_][kk] = ex[s_][kk] + w[k:k + n]; k += n
        assert k == 20
        l01 = g2_wl_items(4, 0) + g2_wl_items(5, 1)
        ex[8][3] = l01[0:3]; ex[9][0] = l01[3:5]; ex[9][1] = l01[5:8]; ex[9][2] = l01[8:10]
        post = g2_wl_items(6, 2) + g2_wl_items(7, 3)
    elif role == 'CV':
        ex[5][2] = ex[5][2] + [item(['s_sub_u32 s7, s%d, 192' % GID, 's_add_u32 s7, s7, s%d' % GID, 's_cmp_ge_u32 s%d, 192' % GID,
                                     's_cselect_b32 s7, s7, s%d' % GID, 's_cselect_b32 s%d, 1, 0' % CV_M] + capture_l(a, cv_pre)),
                               item(['s_mov_b32 exec_hi, 0', 'buffer_load_dword v246, v246, s[72:75], 0 offen', 's_mov_b64 exec, -1'], vm='touch2')]
        su = chunks(capture_l(a, cv_setup1), 8)
        ex[6][2] = su[0:2]; ex[6][0] = ex[6][0]; ex[7][2] = su[2:4]; ex[9][0] = su[4:6]; ex[9][1] = su[6:8]
        hd = cv_h_items()
        ex[7][3] = hd[0:2]; ex[8][0] = hd[2:4]; ex[8][1] = hd[4:6]; ex[8][2] = hd[6:8]
        ex[8][3] = pf + [item(l, lg='pad') for l in cv_pads()]
        nv[9] = ['cvh']
        fx = cv_fix()
        ex[9][3] = [item(fx[0], lg='fix'), item(capture_l(a, cv_try_u), needvm=['pf']), item(fx[1:], needlg=['fix'], lg='fix2')]
    for s_ in range(5, 10):
        if s_ == 5: stamp(a, 3)
        g.step(s_, ex[s_], before_barrier=bb.get(s_), needvm=nv.get(s_, ()))
    stamp(a, 4)
    if role == 'CV':
        if OPT['eprio']: a('s_setprio %d' % OPT['eprio'])
        for l in cv_g_reads(0, 0): a(l)
    elif OPT['gprio']:
        a('s_setprio %d' % OPT['gprio'])
    for sh in (1, 2):
        a('v_add_f32_dpp v217, v217, v217 quad_perm:%s row_mask:0xf bank_mask:0xf' % ('[1,0,3,2]' if sh == 1 else '[2,3,0,1]'))
        a('s_nop 1')
    a('v_add_f32_dpp v217, v217, v217 row_half_mirror row_mask:0xf bank_mask:0xf')
    a('s_mov_b32 s60, %s' % NLOG2E)
    a('s_mov_b32 s61, %s' % NLOG2E)
    a('v_mul_f32 v217, s60, v217')
    a('v_exp_f32 v217, v217')
    a('v_lshrrev_b32 v218, 3, v1')
    a('v_add_f32 v217, 1.0, v217')
    a('v_rcp_f32 v217, v217')
    a('v_lshlrev_b32 v218, 2, v218')
    srd(a, SX, P_WS, 8192, WS_G)
    a('s_mov_b32 exec_lo, 0x01010101')
    a('s_mov_b32 exec_hi, 0x01010101')
    a('buffer_store_dword v217, v218, %s, s%d offen sc1' % (s(SX, 4), GO))
    a('s_mov_b64 exec, -1')
    T = G1_FR
    for nt in range(2):
        for jp in range(2):
            G = G1_ACC + nt * 16 + 8 * jp
            U = G1_ACC + (2 + nt) * 16 + 8 * jp
            for i in range(0, 8, 2):
                a('v_pk_mul_f32 %s, %s, s[60:61]' % (v(T + i, 2), v(G + i, 2)))
            for i in range(0, 8, 2):
                a('v_exp_f32 v%d, v%d' % (T + i, T + i))
                a('v_exp_f32 v%d, v%d' % (T + i + 1, T + i + 1))
                a('v_pk_mul_f32 %s, %s, %s' % (v(G + i, 2), v(G + i, 2), v(U + i, 2)))
            for i in range(0, 8, 2):
                a('v_pk_add_f32 %s, %s, 1.0 op_sel_hi:[1,0]' % (v(T + i, 2), v(T + i, 2)))
            for i in range(8):
                a('v_rcp_f32 v%d, v%d' % (T + i, T + i))
            a('s_nop 0')
            for i in range(0, 8, 2):
                a('v_pk_mul_f32 %s, %s, %s' % (v(G + i, 2), v(G + i, 2), v(T + i, 2)))
            O = T + 16 + 8 * nt + 4 * jp
            for i in range(4):
                a('v_cvt_pk_bf16_f32 v%d, v%d, v%d' % (O + i, G + 2 * i, G + 2 * i + 1))
            a('buffer_store_dwordx4 %s, v213, %s, s%d offen offset:%d sc1' % (v(O, 4), s(SH, 4), HO, nt * 2048 + jp * 512))
    if OPT['ebar']: a('s_barrier')
    if role == 'CV':
        L = a.newlabel('UOK')
        a('s_cmp_eq_u32 s%d, 1' % CV_T)
        a('s_cbranch_scc1 %s' % L)
        a('s_waitcnt vmcnt(0)')
        set_flag(a, S_F1)
        poll_check(a, PF_LOAD, 244, 11, sleep=2)
        cv_u_loads(a)
        a('s_waitcnt vmcnt(0)')
        a.label(L)
        a('s_waitcnt vmcnt(5)')
        stamp(a, 5)
    else:
        n = OPT['npost']
        for it in post[:n]: g.emit(it)
        a('s_waitcnt vmcnt(%d)' % len(post[:n]))
        set_flag(a, S_F1)
        stamp(a, 5)
        for it in post[n:]: g.emit(it)

UKR, UVR, UWR, UKU, UWU, UAC = 16, 60, 92, 108, 130, 138
def ut_pre(a):
    a('s_mul_i32 s11, s7, 6554')
    a('s_lshr_b32 s11, s11, 16')
    a('s_mul_i32 s69, s11, 10')
    a('s_sub_u32 s69, s7, s69')
    a('s_lshl_b32 s%d, s69, 5' % S_F2)
    a('s_add_u32 s%d, s%d, s11' % (S_F2, S_F2))
    a('s_lshl_b32 s%d, s%d, %d' % (S_F2, S_F2, FS))
    a('s_add_u32 s%d, s%d, %s' % (S_F2, S_F2, hex(F_U)))
    a('s_lshl_b32 s11, s11, 6')
    a('v_and_b32 v241, 0x38, v1')
    a('v_add_u32 v241, s11, v241')
    a('v_and_b32 v242, 7, v1')
    a('s_lshl_b32 s69, s69, 3')
    a('v_add_u32 v242, s69, v242')
    a('v_mul_u32_u24 v240, 1280, v241')
    a('v_lshl_add_u32 v240, v242, 4, v240')
    a('v_lshlrev_b32 v243, 15, v242')
    a('v_sub_u32 v241, 2040, v241')
    a('v_lshl_add_u32 v243, v241, 1, v243')
    a('v_subrev_u32 v241, 3840, v240')
    a('v_lshlrev_b32 v242, 6, v242')
def ut_loads(a):
    SA, SB, SC = 44, 48, 52
    srd(a, SA, P_K, SZ_ACT)
    srd(a, SB, P_V, SZ_ACT)
    srd(a, SC, P_SK, 640 * 8)
    a('s_movk_i32 s11, 5120')
    for r in range(8):
        a('buffer_load_dwordx4 %s, v240, %s, %s offen offset:%d' % (v(UKR + 12 + 4 * r, 4), s(SA, 4), '0' if r < 4 else 's11', 1280 * (r & 3)))
    for r in range(3):
        a('buffer_load_dwordx4 %s, v241, %s, 0 offen offset:%d' % (v(UKR + 4 * r, 4), s(SA, 4), 1280 * r))
    for i in range(4):
        a('buffer_load_dwordx4 %s, v242, %s, 0 offen offset:%d' % (v(UWR + 4 * i, 4), s(SC, 4), 16 * i))
    for r in range(8):
        a('buffer_load_dwordx4 %s, v240, %s, %s offen offset:%d' % (v(UVR + 4 * r, 4), s(SB, 4), '0' if r < 4 else 's11', 1280 * (r & 3)))
def ut_k(a):
    MASK = 65
    a('s_mov_b32 s%d, 0xffff0000' % MASK)
    for dw in range(4):
        for r in range(11):
            a('v_lshlrev_b32 v%d, 16, v%d' % (UKU + 2 * r, UKR + 4 * r + dw))
            a('v_and_b32 v%d, s%d, v%d' % (UKU + 2 * r + 1, MASK, UKR + 4 * r + dw))
        for ch in range(2):
            for t in range(4):
                src = UWR + 4 * dw + 2 * ch + (t >> 1)
                if t & 1:
                    a('v_and_b32 v%d, s%d, v%d' % (UWU + 2 * t + ch, MASK, src))
                else:
                    a('v_lshlrev_b32 v%d, 16, v%d' % (UWU + 2 * t + ch, src))
        A = UAC + 16 * dw
        for r in range(8):
            a('v_pk_mul_f32 %s, %s, %s' % (v(A + 2 * r, 2), v(UKU + 2 * r, 2), v(UWU + 6, 2)))
        for t in (2, 1, 0):
            for r in range(8):
                a('v_pk_fma_f32 %s, %s, %s, %s' % (v(A + 2 * r, 2), v(UKU + 2 * (r + 3 - t), 2), v(UWU + 2 * t, 2), v(A + 2 * r, 2)))
def ut_v(a):
    MASK, T = 65, 66
    srd(a, 72, P_WS, SZ_ACT, WS_UT)
    for dw in range(4):
        A = UAC + 16 * dw
        for r in range(8):
            a('v_lshlrev_b32 v%d, 16, v%d' % (UKU + 2 * r, UVR + 4 * r + dw))
            a('v_and_b32 v%d, s%d, v%d' % (UKU + 2 * r + 1, MASK, UVR + 4 * r + dw))
        for r in range(8):
            a('v_pk_mul_f32 %s, %s, %s' % (v(A + 2 * r, 2), v(A + 2 * r, 2), v(UKU + 2 * r, 2)))
        O = UWR + 8 * (dw & 1)
        for ch in range(2):
            for i in range(4):
                a('v_cvt_pk_bf16_f32 v%d, v%d, v%d' % (O + 4 * ch + i, A + 2 * (7 - 2 * i) + ch, A + 2 * (6 - 2 * i) + ch))
        for ch in range(2):
            a('s_mov_b32 s%d, %d' % (T, (2 * dw + ch) * 4096))
            a('buffer_store_dwordx4 %s, v243, s[72:75], s%d offen sc1' % (v(O + 4 * ch, 4), T))

CW = 13824
C_HA, C_HB, C_U = 0, 4640, 9280
C_EX = 2 * CW
RBC = CONV_BASE
CV_DO, CV_LB, CV_T, CV_T2, CV_W, CV_M = 66, 67, 68, 69, 9, 8
CV_D = 18
CA, CG, CF = 108, [140, 12], [172, 44]
VG, VF, VU, VXW, VXR = 228, 229, 233, 234, 235
def cv_pre(a):
    srd(a, 72, P_SSMK, SZ_ACT)
    a('s_lshl_b32 s11, s7, 2')
    a('s_load_dwordx2 s[%d:%d], s[%d:%d], s11' % (CV_D, CV_D + 1, P_SSMD, P_SSMD + 1))
    a('s_and_b32 s%d, s%d, 3' % (CV_W, S_W))
    a('s_xor_b32 s11, s%d, 1' % CV_M)
    a('s_lshr_b32 s%d, s%d, s11' % (CV_T, CV_W))
    a('s_lshl_b32 s%d, s7, 1' % CV_DO)
    a('s_add_u32 s%d, s%d, s%d' % (CV_DO, CV_DO, CV_T))
    a('s_lshl_b32 s%d, s%d, 12' % (CV_DO, CV_DO))
    a('s_mul_i32 s%d, s%d, %d' % (CV_LB, CV_T, CW))
    a('s_add_u32 s%d, s%d, %d' % (CV_LB, CV_LB, RBC))
    a('v_add_u32 v238, s%d, v237' % CV_DO)
    a('v_subrev_u32 v239, 2, v238')
    a('v_lshl_add_u32 v246, v1, 7, s%d' % CV_DO)
    a('s_lshr_b32 s11, s7, 5')
    a('s_lshl_b32 s11, s11, %d' % (5 + FS))
    a('s_add_u32 s11, s11, %s' % hex(F_U))
    a('v_min_u32 v248, 31, v1')
    a('v_lshl_add_u32 v248, v248, %d, s11' % FS)
    a('s_mov_b32 s%d, 0' % CV_T)
def cv_setup1(a):
    W, LB = CV_W, CV_LB
    a('s_mul_i32 s65, s7, 1639')
    a('s_lshr_b32 s65, s65, 16')
    a('s_mul_i32 s%d, s65, 40' % S_F2)
    a('s_sub_u32 s%d, s7, s%d' % (S_F2, S_F2))
    a('s_lshl_b32 s65, s65, 2')
    a('s_add_u32 s65, s65, s%d' % W)
    a('s_lshl_b32 s65, s65, 6')
    a('s_add_u32 s%d, s%d, s65' % (S_F2, S_F2))
    a('s_lshl_b32 s%d, s%d, %d' % (S_F2, S_F2, FS))
    a('s_add_u32 s%d, s%d, %s' % (S_F2, S_F2, hex(F_Z)))
    a('s_andn2_b32 s65, s%d, s%d' % (W, CV_M))
    a('s_and_b32 s65, s65, 1')
    a('s_lshl_b32 s65, s65, 8')
    a('s_add_u32 s65, s65, s%d' % LB)
    a('v_and_b32 v%d, 1, v1' % VG)
    a('v_xor_b32 v%d, 1, v%d' % (VG, VG))
    a('v_mul_u32_u24 v%d, %d, v%d' % (VG, C_HB - C_HA, VG))
    a('v_bfe_u32 v204, v1, 1, 3')
    a('v_lshl_add_u32 v%d, v204, 6, v%d' % (VG, VG))
    a('v_lshrrev_b32 v204, 4, v1')
    a('v_lshl_add_u32 v%d, v204, 4, v%d' % (VG, VG))
    a('s_add_u32 s69, s65, %d' % (C_HA + 64))
    a('v_add_u32 v%d, s69, v%d' % (VG, VG))
    a('v_and_b32 v205, 15, v1')
    a('v_lshlrev_b32 v205, 2, v205')
    a('v_lshlrev_b32 v%d, 4, v204' % VF)
    a('v_sub_u32 v%d, v%d, v205' % (VF, VF))
    a('s_add_u32 s69, s65, %d' % (C_U + 60))
    a('v_add_u32 v%d, s69, v%d' % (VF, VF))
    for i in range(1, 4):
        a('v_add_u32 v%d, %d, v%d' % (VF + i, 1024 * i, VF))
    a('v_lshl_add_u32 v205, v204, 7, v205')
    a('s_lshl_b32 s65, s%d, 10' % W)
    a('s_sub_u32 s65, %d, s65' % (RBC + C_U + 444 + 3072))
    a('v_sub_u32 v%d, s65, v205' % VU)
    a('s_mul_i32 s65, s%d, %d' % (CV_M, CW - 8192))
    a('s_add_u32 s65, s65, 8192')
    a('s_mul_i32 s65, s65, s%d' % W)
    a('s_xor_b32 s69, s%d, 1' % CV_M)
    a('s_mul_i32 s69, s69, %d' % C_EX)
    a('s_add_u32 s69, s69, %d' % RBC)
    a('s_add_u32 s65, s65, s69')
    a('v_add_u32 v%d, s65, v237' % VXW)
    a('s_lshl_b32 s65, s%d, 11' % W)
    a('s_add_u32 s69, s69, s65')
    a('v_add_u32 v%d, s69, v237' % VXR)
    a('s_lshl_b32 s%d, s7, 13' % CV_DO)
    a('s_add_u32 s%d, s%d, s65' % (CV_DO, CV_DO))
    for i in range(16):
        a('v_mov_b64 %s, 0' % v(CA + 2 * i, 2))
def cv_pads():
    return [['v_mov_b64 v[206:207], 0', 'v_lshl_add_u32 v247, v1, 3, s%d' % CV_LB, 'ds_write_b64 v247, v[206:207] offset:%d' % C_HA],
            ['ds_write_b64 v247, v[206:207] offset:%d' % C_HB],
            ['v_lshl_add_u32 v247, v1, 2, s%d' % CV_LB, 'ds_write_b32 v247, v206 offset:%d' % (C_U + 4096)]]
def cv_fix():
    R = CF[0]
    return [['v_mov_b32 v247, s%d' % CV_LB, 'ds_read_b128 %s, v247 offset:%d' % (v(R, 4), C_HA + 512)],
            'v_alignbit_b32 v%d, v%d, v%d, 16' % (R + 7, R + 3, R + 2),
            'v_alignbit_b32 v%d, v%d, v%d, 16' % (R + 6, R + 2, R + 1),
            'v_alignbit_b32 v%d, v%d, v%d, 16' % (R + 5, R + 1, R),
            'v_lshlrev_b32 v%d, 16, v%d' % (R + 4, R),
            'ds_write_b128 v247, %s offset:%d' % (v(R + 4, 4), C_HB + 512)]
def cv_h_items():
    it = []
    for (dst, vo) in ((C_HA + 512, 238), (C_HB + 512, 239)):
        for i in range(4):
            it.append(item('buffer_load_dwordx4 v%d, s[72:75], 0 offen offset:%d lds' % (vo, i * 1024),
                           pre=['s_add_u32 m0, s%d, %d' % (CV_LB, dst)] if i == 0 else [], vm='cvh'))
    return it
def cv_u_loads(a):
    srd(a, 48, P_WS, SZ_ACT, WS_UT)
    a('s_add_u32 m0, s%d, %d' % (CV_LB, C_U))
    a('s_nop 0')
    for i in range(4):
        a('buffer_load_dwordx4 v238, s[48:51], 0 offen offset:%d sc1 lds' % (i * 1024))
def cv_try_u(a):
    L = a.newlabel('UT')
    a('v_cmp_eq_u64 vcc, %s, v[244:245]' % NC)
    a('s_cmp_eq_u64 vcc, -1')
    a('s_cbranch_scc0 %s' % L)
    cv_u_loads(a)
    a('s_mov_b32 s%d, 1' % CV_T)
    a.label(L)
def cv_g_reads(j, b):
    return ['ds_read_b128 %s, v%d offset:%d' % (v(CG[b] + 4 * i, 4), VG, 64 * j + 512 * i) for i in range(8)]
def cv_f_reads(j, b):
    L = []
    for i in range(8):
        rb = 7 - i
        o = (512 * (rb & 1) + 64 * j) // 4
        L.append('ds_read2_b32 %s, v%d offset0:%d offset1:%d' % (v(CF[b] + 4 * i, 2), VF + (rb >> 1), o, o + 1))
        L.append('ds_read2_b32 %s, v%d offset0:%d offset1:%d' % (v(CF[b] + 4 * i + 2, 2), VF + (rb >> 1), o + 2, o + 3))
    return L

def conv(a):
    SZ, DO, T, W = 44, CV_DO, CV_T, CV_W
    a('s_setprio %d' % OPT['cprio'])
    for l in cv_f_reads(0, 0): a(l)
    srd(a, SZ, P_WS, SZ_ACT, WS_Z4)
    a('s_lshl_b32 s%d, s%d, 1' % (T, CV_M))
    stamp(a, 7)
    def it(b, nxt):
        a('s_waitcnt lgkmcnt(0)')
        i = 0
        for n in range(8):
            for aa in range(n + 1):
                acc = v(CA + 4 * n, 4)
                a('v_mfma_f32_16x16x32_bf16 %s, %s, %s, %s' % (acc, v(CG[b] + 4 * aa, 4), v(CF[b] + 4 * (n - aa), 4), acc))
                if i in nxt: a(nxt.pop(i))
                i += 1
    def rd(j, b):
        g_, f_ = cv_g_reads(j, b), cv_f_reads(j, b)
        L = []
        for i in range(8): L += [g_[i], f_[2 * i], f_[2 * i + 1]]
        return dict(enumerate(L))
    def flag():
        a('s_waitcnt vmcnt(0)')
        set_flag(a, S_F1)
        a('s_mov_b32 s%d, %s' % (S_F1, hex(OOB)))
        stamp(a, 6)
    if OPT['cflag'] == 0: flag()
    a.label('CV_loop')
    it(0, rd(1, 1))
    if OPT['cflag'] == 1: flag()
    nx = rd(2, 0)
    for k in range(5):
        nx[26 + k] = 'v_add_u32 v%d, 128, v%d' % (VG + k, VG + k)
    it(1, nx)
    a('s_sub_u32 s%d, s%d, 1' % (T, T))
    a('s_cbranch_scc0 CV_loop')
    it(0, rd(1, 1))
    nx = {}
    for n in range(8):
        nx[(n + 1) * (n + 2) // 2 - 1 + 9] = 'ds_write_b128 v%d, %s offset:%d' % (VXW, v(CA + 4 * n, 4), 1024 * n)
    it(1, nx)
    stamp(a, 8)
    for i in range(4):
        a('s_lshl_b32 s%d, s%d, 16' % (48 + i, CV_D + (i >> 1)) if not (i & 1) else 's_and_b32 s%d, s%d, 0xffff0000' % (48 + i, CV_D + (i >> 1)))
    a('s_nop 4')
    for i in sorted(nx): a(nx[i])
    a('s_waitcnt lgkmcnt(0)')
    a('s_mov_b64 exec, 1')
    a('ds_add_u32 v254, v253')
    a('s_mov_b64 exec, -1')
    L, Dn = a.newlabel('CS'), a.newlabel('CSD')
    a('s_mov_b32 s11, 0x400000')
    a.label(L)
    a('ds_read_b32 v247, v254')
    a('s_waitcnt lgkmcnt(0)')
    a('v_cmp_eq_u32 vcc, 4, v247')
    a('s_cbranch_vccnz %s' % Dn)
    a('s_sub_u32 s11, s11, 1')
    a('s_cbranch_scc0 %s' % L)
    a.label(Dn)
    stamp(a, 9)
    a('s_mov_b32 s11, 0xffff0000')
    a('s_cmp_eq_u32 s%d, 1' % CV_M)
    a('s_cbranch_scc1 CV_epiB')
    P, UR, O = 12, 48, 72
    def finish(nch, reg):
        for un in range(nch // 2):
            for t in range(2):
                for hh in range(2):
                    for c in (2 * un, 2 * un + 1):
                        u = UR + 4 * c + 2 * t + hh
                        R = reg(c, t) + 2 * hh
                        a('v_and_b32 v%d, s11, v%d' % (68 + (c & 1), u))
                        a('v_lshlrev_b32 v%d, 16, v%d' % (u, u))
                        a('v_fmac_f32 v%d, s%d, v%d' % (R, 48 + c, 68 + (c & 1)))
                        a('v_fmac_f32 v%d, s%d, v%d' % (R + 1, 48 + c, u))
                    R0, R1 = reg(2 * un, t) + 2 * hh, reg(2 * un + 1, t) + 2 * hh
                    oo = O + 8 * un + 4 * t + 2 * hh
                    a('v_cvt_pk_bf16_f32 v%d, v%d, v%d' % (oo, R0, R1))
                    a('v_cvt_pk_bf16_f32 v%d, v%d, v%d' % (oo + 1, R0 + 1, R1 + 1))
                if un == 1 and t == 0: a('s_add_u32 s%d, s%d, 8192' % (DO, DO))
                a('buffer_store_dwordx4 %s, v237, %s, s%d offen offset:%d sc1' % (v(O + 8 * un + 4 * t, 4), s(SZ, 4), DO, t * 1024))
    def ureads(nch):
        for c in range(nch):
            for t in range(2):
                for hh in range(2):
                    a('ds_read_b32 v%d, v%d offset:%d' % (UR + 4 * c + 2 * t + hh, VU, c * CW + 512 * (1 - t) + 64 * (1 - hh)))
    for c in range(2):
        for t in range(2):
            for h in range(2):
                a('ds_read_b128 %s, v%d offset:%d' % (v(P + 16 * c + 8 * t + 4 * h, 4), VXR, (2 * c + h) * 8192 + t * 1024))
    ureads(2)
    a('s_waitcnt lgkmcnt(8)')
    for c in range(2):
        for t in range(2):
            R = P + 16 * c + 8 * t
            a('v_pk_add_f32 %s, %s, %s' % (v(R, 2), v(R, 2), v(R + 4, 2)))
            a('v_pk_add_f32 %s, %s, %s' % (v(R + 2, 2), v(R + 2, 2), v(R + 6, 2)))
    a('s_waitcnt lgkmcnt(0)')
    finish(2, lambda c, t: P + 16 * c + 8 * t)
    stamp(a, 1)
    a('s_waitcnt vmcnt(0)')
    stamp(a, 2)
    set_flag(a, S_F2)
    stamp_end(a)
    a('s_endpgm')
    a.label('CV_epiB')
    for c in range(4):
        for t in range(2):
            a('ds_read_b128 %s, v%d offset:%d' % (v(P + 8 * c + 4 * t, 4), VXR, c * CW + t * 1024))
    ureads(4)
    a('v_lshlrev_b32 v247, %d, v1' % FS)
    a('s_waitcnt lgkmcnt(0)')
    finish(4, lambda c, t: P + 8 * c + 4 * t)
    stamp(a, 1)
    a('s_waitcnt vmcnt(0)')
    stamp(a, 2)
    a('s_mov_b64 exec, 3')
    a('buffer_store_dwordx2 v[250:251], v247, %s, s%d offen sc1' % (s(SF, 4), S_F2))
    a('s_mov_b64 exec, -1')
    stamp_end(a)
    a('s_endpgm')

G2_SW = 72
G2_KB, G2_O, G2_T, G2_T2, G2_LB, G2_RB, G2_CB = 65, 66, 67, 68, 69, 8, 9
G2_ACC, G2_WB, G2_HB = 28, 108, 188
def g2_lds(r):
    return (49152 + r * 20480) if r < 2 else ((r - 2) * 20480)
def g2_ks(p, dst):
    L = ['s_add_u32 s%d, s%d, %d' % (dst, G2_KB, 4 * p),
         's_cmp_ge_u32 s%d, 54' % dst,
         's_cselect_b32 s%d, 54, 0' % G2_T,
         's_sub_u32 s%d, s%d, s%d' % (dst, dst, G2_T)]
    if p == 13:
        L += ['s_cmp_ge_u32 s%d, 2' % S_W, 's_cselect_b32 s%d, 60, s%d' % (dst, dst)]
    return L
def g2_w_items(p, slot, va=237):
    B = G2_WB + 20 * slot
    it = []
    for t in range(5):
        pre = g2_ks(p, G2_O) + ['s_mul_i32 s%d, s%d, 40960' % (G2_O, G2_O)] if t == 0 else []
        it.append(item('buffer_load_dwordx4 %s, v%d, %s, s%d offen offset:%d sc1' % (v(B + 4 * t, 4), va if t < 4 else va + 1, s(G2_SW, 4), G2_O, (t & 3) * 1024), pre, vm=('w', p)))
    return it
def g2_wl_items(p, r):
    it = []
    for t in range(5):
        pre = []
        if t == 0:
            pre = g2_ks(p, G2_O) + ['s_mul_i32 s%d, s%d, 40960' % (G2_O, G2_O), 's_add_u32 m0, s%d, %d' % (G2_LB, g2_lds(r))]
        if t == 4:
            pre = ['s_add_u32 m0, s%d, %d' % (G2_LB, g2_lds(r) + 4096)]
        it.append(item('buffer_load_dwordx4 v%d, %s, s%d offen offset:%d sc1 lds' % (237 if t < 4 else 238, s(G2_SW, 4), G2_O, (t & 3) * 1024), pre, vm=('wl', p)))
    return it
def g2_pre(a):
    RB, CB, T, T2 = G2_RB, G2_CB, G2_T, G2_T2
    a('s_lshl_b32 s%d, s3, 2' % RB)
    a('s_lshr_b32 s%d, s4, 3' % CB)
    a('s_add_u32 s%d, s%d, s%d' % (RB, RB, CB))
    a('s_and_b32 s%d, s4, 7' % CB)
    a('s_mul_i32 s%d, s%d, 5120' % (T, CB))
    a('s_add_u32 s%d, s%d, %s' % (T, T, hex(WS_W2P)))
    srd(a, G2_SW, P_WS, 53 * 40960 + 5120, 's%d' % T)
    if OPT['rot2']:
        a('s_and_b32 s%d, s%d, 3' % (T, RB))
        a('s_mul_i32 s%d, s%d, %d' % (T, T, 13 if OPT['rot2r'] else 0))
        a('s_mul_i32 s%d, s%d, 7' % (T2, CB))
        a('s_add_u32 s%d, s%d, s%d' % (T, T, T2))
        a('s_add_u32 s%d, s%d, s%d' % (T, T, S_W))
        a('s_cmp_ge_u32 s%d, 54' % T)
        a('s_cselect_b32 s%d, 54, 0' % T2)
        a('s_sub_u32 s%d, s%d, s%d' % (G2_KB, T, T2))
    else:
        a('s_mov_b32 s%d, s%d' % (G2_KB, S_W))
    a('s_mul_i32 s%d, s%d, 5120' % (G2_LB, S_W))
    a('v_add_u32 v238, 4096, v237')
    a('s_mul_i32 s%d, s%d, 5' % (T, CB))
    a('s_lshr_b32 s%d, s%d, 2' % (T, T))
    a('s_mul_i32 s%d, s%d, %d' % (T, T, 18 << FS))
    a('s_add_u32 s%d, s%d, %s' % (T, T, hex(F_W)))
    a('s_cmp_eq_u32 s%d, 0' % S_W)
    a('s_cselect_b32 s%d, s%d, %s' % (T, T, hex(OOB)))
    a('v_min_u32 v248, 35, v1')
    a('v_lshl_add_u32 v248, v248, %d, s%d' % (FS, T))

def gemm2(a):
    RB, CB, W = G2_RB, G2_CB, S_W
    SHh, SQ, SZ, SG, SO = 56, 52, 44, 60, 48
    O, T, T2 = G2_O, G2_T, G2_T2
    ACC, WB, HB = G2_ACC, G2_WB, G2_HB
    DH = 4
    a('s_setprio 0')
    a('v_mov_b32 v2, v237')
    a('v_mov_b32 v3, v238')
    a('v_min_u32 v23, 13, v1')
    a('v_lshl_add_u32 v22, v23, 2, s%d' % G2_KB)
    a('v_subrev_u32 v23, 54, v22')
    a('v_min_u32 v22, v22, v23')
    a('s_lshl_b32 s%d, s%d, 1' % (T, W))
    a('v_and_b32 v23, 1, v1')
    a('v_add_u32 v23, s%d, v23' % T)
    a('v_cmp_lt_u32 vcc, 13, v1')
    a('s_lshl_b32 s%d, s%d, %d' % (T, RB, 6 + FS))
    a('s_nop 0')
    a('v_cndmask_b32 v22, v22, v23, vcc')
    a('v_lshl_add_u32 v22, v22, %d, s%d' % (FS, T))
    FH_LOAD = 'buffer_load_dwordx2 v[26:27], v22, %s, 0 offen sc1' % s(SF, 4)
    a('s_mul_i32 s%d, s%d, %d' % (T, RB, 54 * 4096))
    if WS_H: a('s_add_u32 s%d, s%d, %s' % (T, T, hex(WS_H)))
    srd(a, SHh, P_WS, 54 * 4096, 's%d' % T)
    srd(a, SQ, P_Q, SZ_ACT)
    a('s_lshl_b32 s%d, s%d, 6' % (T, RB))
    a('s_lshl_b32 s%d, s%d, 4' % (T2, W))
    a('s_add_u32 s%d, s%d, s%d' % (T, T, T2))
    a('v_and_b32 v8, 15, v1')
    a('v_add_u32 v8, s%d, v8' % T)
    a('v_lshrrev_b32 v9, 4, v1')
    a('v_mul_u32_u24 v10, 1280, v8')
    a('v_lshl_add_u32 v10, v9, 3, v10')
    a('s_mul_i32 s%d, s%d, 160' % (T, CB))
    a('v_add_u32 v10, s%d, v10' % T)
    for mt in range(5):
        a('buffer_load_dwordx2 %s, v10, %s, 0 offen offset:%d' % (v(12 + 2 * mt, 2), s(SQ, 4), 32 * mt))
    a('v_lshlrev_b32 v11, 14, v9')
    a('v_bfe_u32 v23, v1, 1, 3')
    a('v_lshl_add_u32 v11, v23, 4, v11')
    a('v_and_b32 v23, 1, v1')
    a('v_lshl_add_u32 v11, v23, 2, v11')
    a('s_mul_i32 s%d, s%d, %d' % (T, CB, 40 * 8192))
    a('s_lshl_b32 s%d, s%d, 8' % (T2, RB))
    a('s_add_u32 s%d, s%d, s%d' % (T, T, T2))
    a('s_and_b32 s%d, s%d, 1' % (T2, W))
    a('s_lshl_b32 s%d, s%d, 7' % (T2, T2))
    a('s_add_u32 s%d, s%d, s%d' % (T, T, T2))
    a('s_lshr_b32 s%d, s%d, 1' % (T2, W))
    a('s_lshl_b32 s%d, s%d, 3' % (T2, T2))
    a('s_add_u32 s%d, s%d, s%d' % (T, T, T2))
    a('v_add_u32 v11, s%d, v11' % T)
    a('v_lshlrev_b32 v8, 2, v8')
    srd(a, SZ, P_WS, SZ_ACT, WS_Z4)
    srd(a, SG, P_WS, 8192, WS_G)
    srd(a, SO, P_OUT, SZ_ACT)
    for j in range(4):
        a('s_xor_b32 s%d, s%d, %d' % (T, W, j))
        a('s_lshl_b32 s%d, s%d, 10' % (T, T))
        a('v_add_u32 v%d, s%d, v2' % (4 + j, T))
    a('v_add_u32 v24, s%d, v2' % G2_LB)
    a('s_lshl_b32 s%d, s%d, 2' % (T, CB))
    a('s_lshr_b32 s%d, s%d, 3' % (T2, RB))
    a('s_add_u32 s%d, s%d, s%d' % (T, T, T2))
    a('s_lshl_b32 s%d, s%d, %d' % (T, T, 6 + FS))
    a('s_add_u32 s%d, s%d, %s' % (T, T, hex(F_Z)))
    a('v_min_u32 v25, 39, v1')
    a('v_lshl_add_u32 v25, v25, %d, s%d' % (FS, T))
    FZ_LOAD = 'buffer_load_dwordx2 v[26:27], v25, %s, 0 offen sc1' % s(SF, 4)
    stamp(a, 6)
    a('s_mov_b64 s[76:77], 0')
    order = [0, 1, 2, 3, 4, 5, 8, 9, 6, 7, 10, 11, 12, 13]
    slot = [0, 1, 2, 3, 2, 3, 0, 1, 2, 3, 0, 1, 2, 3]
    refill = {0: ('g', 8), 1: ('g', 9), 2: ('l', 4), 3: ('l', 5), 4: ('l', 6), 5: ('l', 7), 6: ('g', 10), 7: ('g', 11), 8: ('g', 12), 9: ('g', 13)}
    g = G1(a)
    OH = 70
    def fh_check(reg):
        L, D = a.newlabel('FH'), a.newlabel('FHD')
        a('s_bitcmp1_b32 s76, %d' % reg)
        a('s_cbranch_scc1 %s' % D)
        a('s_mov_b32 s%d, 0x20000' % T2)
        a.label(L)
        a(FH_LOAD)
        a('s_waitcnt vmcnt(0)')
        a('v_cmp_eq_u64 s[76:77], %s, v[26:27]' % NC)
        a('s_bitcmp1_b32 s76, %d' % reg)
        a('s_cbranch_scc1 %s' % D)
        a('s_sleep %d' % OPT['fsl'])
        a('s_sub_u32 s%d, s%d, 1' % (T2, T2))
        a('s_cbranch_scc0 %s' % L)
        a.label(D)
    def h_prep(r):
        fh_check(order[r])
        for l in g2_ks(order[r], OH): a(l)
        a('s_lshl_b32 s%d, s%d, 12' % (OH, OH))
    def h_item(r, t):
        B = HB + 16 * (r % DH)
        return item('buffer_load_dwordx4 %s, v%d, %s, s%d offen sc1' % (v(B + 4 * t, 4), 4 + t, s(SHh, 4), OH), vm=('h', r, t))
    if OPT['allwait']:
        for p in range(16): fh_check(p)
    for r in range(DH):
        h_prep(r)
        if r == 0: stamp(a, 7)
        for t in range(4): g.emit(h_item(r, t))
    ZR = WB
    DT = WB + 20
    rbuf = [g2_lds(2), g2_lds(3), g2_lds(0)]
    for r in range(14):
        p = order[r]
        if r in (1, 3, 5, 7, 9, 11, 12, 13): stamp(a, (1, 3, 5, 7, 9, 11, 12, 13).index(r) + 2, 3)
        if r == 0: stamp(a, 1, 3)
        if r + DH < 14: h_prep(r + DH)
        if r == 12:
            g.wait(vm=['fz'])
            poll_check(a, FZ_LOAD, 26, T2, sleep=1)
            for mt in range(5):
                for h in range(2):
                    g.emit(item('buffer_load_dword v%d, v11, %s, s%d offen sc1' % (ZR + 2 * mt + h, s(SZ, 4), T), 's_mov_b32 s%d, %s' % (T, hex(65536 * mt + 8192 * h)), vm='x'))
        Bw = WB + 20 * slot[r]; Bh = HB + 16 * (r % DH)
        js = (0, 1, 2, 3) if r < 13 else (1, 2, 3, 0)
        wr = ['ds_write_b128 v24, %s offset:%d' % (v(ACC + (j * 5 + mt) * 4, 4), rbuf[j - 1] + mt * 1024) for j in (1, 2, 3) for mt in range(5)]
        i = 0
        for j in js:
            g.wait(vm=[('h', r, j), ('w', p)], lg=[('wl', p)])
            for mt in range(5):
                acc = v(ACC + (j * 5 + mt) * 4, 4)
                a('v_mfma_f32_16x16x32_bf16 %s, %s, %s, %s' % (acc, v(Bw + 4 * mt, 4), v(Bh + 4 * j, 4), '0' if r == 0 else acc))
                if r == 13 and i >= 9: a(wr[i - 9])
                i += 1
            if r + DH < 14: g.emit(h_item(r + DH, j))
        if r == 13:
            stamp(a, 8)
            for j in range(1, 4):
                a('s_xor_b32 s%d, s%d, %d' % (T, W, j))
                a('s_mul_i32 s%d, s%d, 5120' % (T, T))
                a('v_add_u32 v%d, s%d, v2' % (4 + j, T))
            for l in wr[11:]: a(l)
        if r == 10:
            fh_check(14)
            fh_check(15)
            g.emit(item('buffer_load_dword v9, v8, %s, 0 offen sc1' % s(SG, 4), vm='x'))
            g.emit(item(FZ_LOAD, vm='fz'))
        if r in refill:
            kind, pp = refill[r]
            if kind == 'g':
                for it in g2_w_items(pp, slot[r], va=2): g.emit(it)
            else:
                lb = g2_lds(pp - 4)
                if lb + 4096 > 65535:
                    a('v_add_u32 v23, %d, v24' % lb); ad, lb = 23, 0
                else: ad = 24
                for t in range(5):
                    g.emit(item('ds_read_b128 %s, v%d offset:%d' % (v(Bw + 4 * t, 4), ad, lb + t * 1024), lg=('wl', pp)))
    a('s_mov_b32 s%d, 0xffff0000' % T)
    a('s_waitcnt vmcnt(0)')
    for mt in range(5):
        for h in range(2):
            qq, z = 12 + 2 * mt + h, ZR + 2 * mt + h
            d = DT + 4 * mt + 2 * h
            a('v_lshlrev_b32 v%d, 16, v%d' % (d, qq))
            a('v_and_b32 v%d, s%d, v%d' % (d + 1, T, qq))
            a('v_lshlrev_b32 v%d, 16, v%d' % (qq, z))
            a('v_and_b32 v%d, s%d, v%d' % (z, T, z))
            a('v_mul_f32 v%d, v%d, v%d' % (d, d, qq))
            a('v_mul_f32 v%d, v%d, v%d' % (d + 1, d + 1, z))
        if mt == 1:
            a('s_waitcnt lgkmcnt(0)')
            a('s_barrier')
            stamp(a, 9)
            for m2 in range(5):
                for j in range(1, 4):
                    a('ds_read_b128 %s, v%d offset:%d' % (v(ACC + (j * 5 + m2) * 4, 4), 4 + j, rbuf[j - 1] + m2 * 1024))
    for i in range(20):
        a('v_mul_f32 v%d, v9, v%d' % (DT + i, DT + i))
    a('v_sub_f32 v9, 1.0, v9')
    for mt in range(5):
        a('s_waitcnt lgkmcnt(%d)' % (3 * (4 - mt)))
        A0 = ACC + 4 * mt
        for h in range(2):
            a('v_pk_add_f32 %s, %s, %s' % (v(A0 + 2 * h, 2), v(A0 + 2 * h, 2), v(A0 + 20 + 2 * h, 2)))
            a('v_pk_add_f32 %s, %s, %s' % (v(A0 + 40 + 2 * h, 2), v(A0 + 40 + 2 * h, 2), v(A0 + 60 + 2 * h, 2)))
        for h in range(2):
            a('v_pk_add_f32 %s, %s, %s' % (v(A0 + 2 * h, 2), v(A0 + 2 * h, 2), v(A0 + 40 + 2 * h, 2)))
        for i in range(4):
            a('v_fmac_f32 v%d, v9, v%d' % (DT + 4 * mt + i, A0 + i))
        a('v_cvt_pk_bf16_f32 v%d, v%d, v%d' % (12 + 2 * mt, DT + 4 * mt, DT + 4 * mt + 1))
        a('v_cvt_pk_bf16_f32 v%d, v%d, v%d' % (13 + 2 * mt, DT + 4 * mt + 2, DT + 4 * mt + 3))
        a('buffer_store_dwordx2 %s, v10, %s, 0 offen offset:%d' % (v(12 + 2 * mt, 2), s(SO, 4), 32 * mt))
    stamp_end(a)
    a('s_endpgm')

def kernel(a, name):
    a.raw('.p2align 8')
    a.label(name)
    a('s_cmp_ge_u32 s2, 256')
    a('s_cbranch_scc1 K_exit')
    a('s_load_dwordx16 s[16:31], s[0:1], 0')
    a('s_load_dwordx8 s[32:39], s[0:1], 64')
    a('s_load_dwordx4 s[40:43], s[0:1], 96')
    a('s_memrealtime s[74:75]')
    stamp_begin(a)
    a('v_lshrrev_b32 v1, 6, v0')
    a('s_and_b32 s3, s2, 7')
    a('v_readfirstlane_b32 s%d, v1' % S_W)
    a('v_and_b32 v1, 63, v0')
    a('s_lshr_b32 s4, s2, 3')
    common_pre(a)
    a('s_and_b32 s65, s3, 3')
    a('s_lshr_b32 s66, s3, 2')
    a('s_cmp_eq_u32 s65, 3')
    a('s_cselect_b32 s67, 24, 28')
    a('s_cmp_ge_u32 s4, s67')
    a('s_cbranch_scc1 K_prep')
    a('s_lshl_b32 s8, s66, 2')
    a('s_and_b32 s9, s4, 3')
    a('s_add_u32 s8, s8, s9')
    a('s_mul_i32 s9, s65, 7')
    a('s_lshr_b32 s11, s4, 2')
    a('s_add_u32 s9, s9, s11')
    gemm1_pre(a)
    a('s_waitcnt lgkmcnt(0)')
    g, d = gemm1_head(a)
    a('s_cmp_lt_u32 s%d, 4' % S_W)
    a('s_cbranch_scc1 K_tail_g2')
    gemm1_tail(a, g, d, 'CV')
    a.label('K_conv')
    conv(a)
    a.label('K_prep')
    a('s_mul_i32 s8, s66, 3')
    a('s_add_u32 s8, s8, s65')
    a('s_lshl_b32 s8, s8, 2')
    a('s_lshl_b32 s9, s66, 3')
    a('s_add_u32 s9, s9, 24')
    a('s_cmp_eq_u32 s65, 3')
    a('s_cselect_b32 s8, s9, s8')
    a('s_add_u32 s8, s8, s4')
    a('s_sub_u32 s8, s8, s67')
    a('s_lshl_b32 s7, s8, 3')
    a('s_add_u32 s7, s7, s%d' % S_W)
    ut_pre(a)
    a('s_waitcnt lgkmcnt(0)')
    ut_loads(a)
    stamp(a, 1)
    flag_srd(a)
    a('s_waitcnt vmcnt(8)')
    stamp(a, 2)
    ut_k(a)
    a('s_waitcnt vmcnt(0)')
    ut_v(a)
    stamp(a, 3)
    srd(a, 72, P_DBG, 256)
    go_off(a)
    a('s_mov_b32 s69, 0x20000')
    a.label('K_sp_go')
    a(GO_LOAD)
    a('s_waitcnt vmcnt(0)')
    a('v_cmp_ne_u32 vcc, 0, v250')
    a('s_cbranch_vccnz K_sp_go2')
    a('s_sleep 4')
    a('s_sub_u32 s69, s69, 1')
    a('s_cbranch_scc0 K_sp_go')
    a.label('K_sp_go2')
    set_flag(a, S_F2)
    go_sgpr(a)
    a('s_mov_b32 s%d, %s' % (S_F1, hex(OOB)))
    a('s_barrier')
    stamp(a, 5)
    a('s_cmp_lt_u32 s%d, 4' % S_W)
    a('s_cbranch_scc1 K_prep_g2')
    a('s_lshl_b32 s7, s8, 1')
    a('s_add_u32 s7, s7, 240')
    a('s_mov_b32 s%d, 1' % CV_M)
    gp = G1(a)
    cv_pre(a)
    for it in cv_h_items(): gp.emit(it)
    cv_setup1(a)
    for ls in cv_pads():
        for l in ls: a(l)
    poll(a, PF_LOAD, 244, 11, sleep=8)
    cv_u_loads(a)
    a('s_barrier')
    fx = cv_fix()
    for l in fx[0]: a(l)
    a('s_waitcnt lgkmcnt(0)')
    for l in fx[1:]: a(l)
    for l in cv_g_reads(0, 0): a(l)
    a('s_waitcnt vmcnt(0)')
    a('s_branch K_conv')
    a.label('K_prep_g2')
    g2_pre(a)
    a(PF_LOAD)
    a('s_waitcnt vmcnt(0)')
    fw_check(a)
    a('s_barrier')
    for p in range(4):
        for it in g2_w_items(p, p): gp.emit(it)
    for r in range(4):
        for it in g2_wl_items(4 + r, r): gp.emit(it)
    a('s_branch K_gemm2')
    a.label('K_tail_g2')
    gemm1_tail(a, g, d, 'G2')
    a.label('K_gemm2')
    gemm2(a)
    a.label('K_exit')
    a('s_endpgm')

def main(out):
    hdr = open('cdna_kernels/%s.s.ref' % NAME).read().split('\n')
    head = [l for l in hdr if l.startswith(';') and '@launch' not in l and 'Override' not in l and 'grid=ceil' not in l]
    a = Asm()
    for l in head: a.raw(l)
    a.raw('; @launch grid=(256,1,1) block=(512,1,1) lds=%d' % LDS_TOTAL)
    a.raw('.amdgcn_target "amdgcn-amd-amdhsa--gfx950"')
    a.raw('.text')
    nm = NAME + '_kernel'
    a.raw('.globl %s' % nm)
    a.raw('.type %s,@function' % nm)
    kernel(a, nm)
    a.raw('.section .rodata,"a"')
    a.raw(kernel_desc(nm, 256))
    open(out, 'w').write(a.text())

if __name__ == '__main__':
    out = 'cdna_kernels/%s.s' % NAME
    for arg in sys.argv[1:]:
        if '=' in arg:
            k, val = arg.split('='); OPT[k] = int(val)
        else:
            out = arg
    main(out)
```

```python
import sys, copy
from asmlib import *

NAME = 'gated_mix__ssm_conv_h3__glu_gated_swiglu__prompt'
WS_H = 0
WS_W2P = 0x800000
WS_UT = 0xC00000
WS_Z4 = 0x1000000
WS_G = 0x1400000
WS_F = 0x1500000
F_H, F_U, F_W, F_X, F_Z = 0, 0x40000, 0x50000, 0x58000, 0x60000
F_SIZE = 0xA0000
FS = 7
SZ_ACT = 2048 * 640 * 2
SZ_W = 640 * 1728 * 2
SZ_H = 2048 * 1728 * 2
P_Q, P_K, P_V, P_SK, P_SSMK, P_SSMD, P_BX, P_W1, P_W3, P_W2, P_GW, P_OUT, P_DBG, P_WS = [16 + 2 * i for i in range(14)]
NLOG2E = '0xbfb8aa3b'
OPT = dict(probe=-1, pwg=-1, rot2=1, stamp=0, prio=0, cprio=1, cflag=0, touch=0, nodma=0, tp=2, lead=3, rot2r=0, rot1=10, eprio=3, gprio=2, fsl=8, ebar=1, npost=0, allwait=0, npre=10, fbar=0, zr=10, fwst=7, local=1, wbl2=0, arf=1, xw=0, xh=0, xsc=0, xq=0, zsl=16, fsx=3, fsh=3, fsw=3, fsu=7, fsz=3, ztrig=5)
LDS_TOTAL = 163840
LDS_CNT = LDS_TOTAL - 32
SLOT = [0, 98304, 49152]
LDS_W2S = 147456
LDS_GW = 159744
CONV_BASE = 98304
S_W = 10
SF = 12
S_F1, S_F2 = 5, 6
S_XCC = 77
WS_DBG = 0x2000000
OOB = 0x1000000

def stamp(a, i, mode=1):
    if OPT['probe'] == i and mode == 1:
        a('s_memrealtime s[96:97]')
    if OPT['stamp'] == mode:
        a('s_memtime s[%d:%d]' % (80 + 2 * i, 81 + 2 * i))
def stamp_begin(a):
    if OPT['probe'] >= 0:
        a('s_memrealtime s[96:97]')
    if OPT['stamp']:
        a('s_memrealtime s[78:79]')
        for i in range(11): a('s_mov_b64 s[%d:%d], 0' % (80 + 2 * i, 81 + 2 * i))
        a('s_memtime s[80:81]')
def stamp_end(a):
    if OPT['probe'] >= 0:
        L = a.newlabel('PRB')
        if OPT['probe'] == 10:
            a('s_waitcnt vmcnt(0)')
            a('s_memrealtime s[96:97]')
        a('s_cmp_lg_u32 s10, 0')
        a('s_cbranch_scc1 %sx' % L)
        if OPT['pwg'] >= 0:
            a('s_cmp_lg_u32 s2, %d' % OPT['pwg'])
            a('s_cbranch_scc1 %sx' % L)
        a('s_waitcnt lgkmcnt(0)')
        a('s_add_u32 s96, s96, 4000')
        a.label(L)
        a('s_sleep 1')
        a('s_memrealtime s[98:99]')
        a('s_waitcnt lgkmcnt(0)')
        a('s_sub_u32 s98, s98, s96')
        a('s_cmp_lt_i32 s98, 0')
        a('s_cbranch_scc1 %s' % L)
        a.label(L + 'x')
    if OPT['stamp']:
        a('s_waitcnt vmcnt(0) lgkmcnt(0)')
        a('s_memtime s[100:101]')
        a('s_memrealtime s[76:77]')
        srd(a, 44, P_WS, 0x100000, WS_DBG)
        a('s_lshl_b32 s5, s2, 3')
        a('s_add_u32 s5, s5, s10')
        a('s_lshl_b32 s5, s5, 6')
        a('s_waitcnt lgkmcnt(0)')
        a('v_mov_b32 v0, s78')
        a('v_mov_b32 v1, s76')
        for i in range(11): a('v_mov_b32 v%d, s%d' % (2 + i, 80 + 2 * i))
        a('v_mov_b32 v16, s5')
        a('s_mov_b64 exec, 1')
        for i in range(4):
            a('buffer_store_dwordx4 v[%d:%d], v16, s[44:47], 0 offen offset:%d' % (4 * i, 4 * i + 3, 16 * i))

def capture(a, fn):
    save = a.lines; a.lines = []
    fn()
    out = a.lines; a.lines = save
    return out

class Q:
    def __init__(self): self.q = []
    def push(self, tag, sure=True): self.q.append((tag, sure))
    def need(self, tags):
        idx = [i for i, (t, _) in enumerate(self.q) if t in tags]
        if not idx: return None
        last = max(idx)
        n = sum(1 for (_, sure) in self.q[last + 1:] if sure)
        self.q = self.q[last + 1:]
        return n
    def clear(self): self.q = []

NC = 's[0:1]'
def poll_check(a, loadline, vtmp, sc, sleep=2):
    L, D = a.newlabel('POLL'), a.newlabel('POLLD')
    a('s_mov_b32 s%d, 0x20000' % sc)
    a.label(L)
    a('v_cmp_eq_u64 vcc, %s, %s' % (NC, v(vtmp, 2)))
    a('s_cmp_eq_u64 vcc, -1')
    a('s_cbranch_scc1 %s' % D)
    a('s_sleep %d' % sleep)
    a(loadline)
    a('s_waitcnt vmcnt(0)')
    a('s_sub_u32 s%d, s%d, 1' % (sc, sc))
    a('s_cbranch_scc0 %s' % L)
    a.label(D)
def poll(a, loadline, vtmp, sc, sleep=2):
    a(loadline)
    a('s_waitcnt vmcnt(0)')
    poll_check(a, loadline, vtmp, sc, sleep)

GO_LOAD = 'buffer_load_dwordx2 v[250:251], v252, s[72:75], s11 offen sc1'
PF_LOAD = 'buffer_load_dwordx2 v[244:245], v248, s[%d:%d], 0 offen sc1' % (SF, SF + 3)

def set_flag(a, soff):
    a('s_mov_b64 exec, 1')
    a('buffer_store_dwordx2 v[250:251], v252, %s, s%d offen sc1' % (s(SF, 4), soff))
    a('s_mov_b64 exec, -1')

def fx_publish(a, wave):
    a('v_mov_b32 v240, v250')
    a('v_xor_b32 v241, s%d, v251' % S_XCC)
    a('s_lshl_b32 s11, s3, 5')
    a('s_add_u32 s11, s11, s4')
    a('s_lshl_b32 s11, s11, %d' % OPT['fsx'])
    a('s_add_u32 s11, s11, %s' % hex(F_X))
    a('s_cmp_eq_u32 s%d, %d' % (S_W, wave))
    a('s_cselect_b32 s11, s11, %s' % hex(OOB))
    a('s_mov_b64 exec, 1')
    a('buffer_store_dwordx2 v[240:241], v252, %s, s11 offen sc1' % s(SF, 4))
    a('s_mov_b64 exec, -1')
def fx_load(a):
    a('s_lshr_b32 s11, s%d, 1' % S_W)
    a('s_lshl_b32 s11, s11, 3')
    a('v_and_b32 v249, 7, v1')
    a('v_add_u32 v249, s11, v249')
    a('s_lshl_b32 s11, s3, %d' % (5 + OPT['fsx']))
    a('s_add_u32 s11, s11, %s' % hex(F_X))
    a('v_lshlrev_b32 v249, %d, v249' % OPT['fsx'])
    a('buffer_load_dwordx2 v[242:243], v249, %s, s11 offen sc1' % s(SF, 4))
def fx_eval(a):
    a('v_cmp_eq_u64 vcc, v[240:241], v[242:243]')
    a('s_cmp_eq_u64 vcc, -1')
    a('s_cselect_b32 s%d, %d, 0' % (S_XCC, 1 if OPT['local'] else 0))
def store2(a, line):
    L1, L2 = a.newlabel('SL1'), a.newlabel('SL2')
    a('s_cmp_eq_u32 s%d, 1' % S_XCC)
    a('s_cbranch_scc1 %s' % L1)
    a(line + ' sc1')
    a('s_branch %s' % L2)
    a.label(L1)
    a(line)
    a.label(L2)

def nonce_publish(a):
    L = a.newlabel('NP')
    a('s_or_b32 s11, s2, s%d' % S_W)
    a('s_cmp_lg_u32 s11, 0')
    a('s_cbranch_scc1 %s' % L)
    a('s_or_b32 s74, s74, 1')
    a('v_mov_b32 v250, s74')
    a('v_mov_b32 v251, s75')
    a('v_lshlrev_b32 v249, 7, v1')
    a('s_mov_b64 exec, 3')
    a('global_store_dwordx2 v249, v[250:251], s[%d:%d] sc1' % (P_DBG, P_DBG + 1))
    a('s_mov_b64 exec, -1')
    a.label(L)
def go_off(a):
    a('s_and_b32 s11, s4, 1')
    a('s_lshl_b32 s11, s11, 7')
def go_issue(a):
    srd(a, 72, P_DBG, 256)
    go_off(a)
    a('s_cmp_eq_u32 s%d, 0' % S_W)
    a('s_cselect_b32 s11, s11, %s' % hex(OOB))
    a(GO_LOAD)
def go_check(a):
    L, R, D = a.newlabel('GOC'), a.newlabel('GOR'), a.newlabel('GOD')
    a('s_cmp_lg_u32 s%d, 0' % S_W)
    a('s_cbranch_scc1 %s' % L)
    go_off(a)
    a('s_mov_b32 s69, 0x20000')
    a.label(R)
    a('v_cmp_ne_u32 vcc, 0, v250')
    a('s_cbranch_vccnz %s' % D)
    a('s_sleep 4')
    a(GO_LOAD)
    a('s_waitcnt vmcnt(0)')
    a('s_sub_u32 s69, s69, 1')
    a('s_cbranch_scc0 %s' % R)
    a.label(D)
    a('ds_write_b64 v254, v[250:251] offset:8')
    a('s_waitcnt lgkmcnt(0)')
    a.label(L)
GO_FETCH = 'ds_read_b64 v[250:251], v254 offset:8'
def go_sgpr(a):
    a('v_readfirstlane_b32 s0, v250')
    a('v_readfirstlane_b32 s1, v251')
def fw_check(a):
    D = a.newlabel('PFD')
    a('s_cmp_lg_u32 s%d, 0' % S_W)
    a('s_cbranch_scc1 %s' % D)
    poll_check(a, PF_LOAD, 244, 11, sleep=4)
    a.label(D)

def common_pre(a):
    a('v_mov_b32 v252, 0')
    a('v_mov_b32 v253, 1')
    a('v_mov_b32 v254, %d' % LDS_CNT)
    a('ds_write_b32 v254, v252')
    a('ds_write_b32 v254, v252 offset:4')
    a('ds_write_b32 v254, v252 offset:16')
    a('v_lshlrev_b32 v237, 4, v1')

def flag_srd(a):
    srd(a, SF, P_WS, F_SIZE, WS_F)

G1_FR, G1_ACC = 12, 44
SX, SW1, SW3, SH = 44, 48, 52, 56
OX, OW, LW, HO, GO = 60, 61, 62, 63, 64
GID, U0 = 70, 71

def gemm1_pre(a):
    RB, CB, W = 8, 9, S_W
    a('s_lshl_b32 s%d, s%d, 10' % (LW, W))
    a('v_lshrrev_b32 v13, 3, v1')
    a('s_lshl_b32 s11, s%d, 3' % W)
    a('v_add_u32 v13, s11, v13')
    a('v_bfe_u32 v14, v13, 1, 3')
    a('v_and_b32 v15, 7, v1')
    a('v_xor_b32 v14, v14, v15')
    a('v_lshlrev_b32 v14, 4, v14')
    a('v_mul_u32_u24 v2, 1280, v13')
    a('v_add_u32 v2, v2, v14')
    for i in range(1, 4):
        a('v_add_u32 v%d, %s, v2' % (2 + i, hex(i * 81920)))
    a('v_bfe_u32 v14, v13, 1, 1')
    a('v_lshlrev_b32 v14, 2, v14')
    a('v_xor_b32 v14, v14, v15')
    a('v_lshlrev_b32 v14, 4, v14')
    a('v_mul_u32_u24 v6, 3456, v13')
    a('v_add_u32 v6, v6, v14')
    if OPT['touch']:
        a('v_mul_u32_u24 v16, 205, v1')
        a('v_lshrrev_b32 v16, 11, v16')
        a('v_mul_u32_u24 v17, 10, v16')
        a('v_sub_u32 v17, v1, v17')
        a('s_mul_i32 s11, s%d, 10' % W)
        a('v_add_u32 v17, s11, v17')
        a('v_min_u32 v17, 74, v17')
        a('s_lshr_b32 s11, s4, 2')
        a('s_mul_i32 s11, s11, 43')
        a('v_add_u32 v18, s11, v17')
        a('v_min_u32 v18, 255, v18')
        a('v_mul_u32_u24 v18, 1280, v18')
        a('v_subrev_u32 v19, 43, v17')
        a('v_and_b32 v19, 15, v19')
        a('s_and_b32 s11, s4, 3')
        a('s_lshl_b32 s11, s11, 4')
        a('v_add_u32 v19, s11, v19')
        a('v_mul_u32_u24 v19, 3456, v19')
        a('v_cmp_gt_u32 vcc, 43, v17')
        a('v_mov_b32 v20, %d' % (64 * 3456))
        a('v_mov_b32 v21, 128')
        a('v_cndmask_b32 v242, v20, v21, vcc')
        a('v_cndmask_b32 v18, v19, v18, vcc')
        a('v_mul_u32_u24 v16, v16, v242')
        a('v_add_u32 v18, v18, v16')
    a('s_mul_i32 s%d, s%d, 27' % (GID, RB))
    a('s_add_u32 s%d, s%d, s%d' % (GID, GID, CB))
    a('s_lshr_b32 s65, s%d, 1' % W)
    a('s_and_b32 s66, s%d, 1' % W)
    a('s_lshl_b32 s67, s%d, 2' % RB)
    a('s_add_u32 s67, s67, s65')
    a('s_lshl_b32 s68, s%d, 1' % CB)
    a('s_add_u32 s68, s68, s66')
    a('s_lshl_b32 s%d, s67, 6' % S_F1)
    a('s_add_u32 s%d, s%d, s68' % (S_F1, S_F1))
    a('s_lshl_b32 s%d, s%d, %d' % (S_F1, S_F1, OPT['fsh']))

def touch_lines(lo, n):
    m = ((1 << n) - 1) << lo
    return ['s_mov_b32 exec_lo, %s' % hex(m & 0xffffffff), 's_mov_b32 exec_hi, %s' % hex(m >> 32),
            'global_load_dword v243, v[240:241], off', 's_mov_b64 exec, -1']

def gemm1_post_addr(a):
    W = S_W
    a('s_mul_i32 s%d, s67, 54' % HO)
    a('s_add_u32 s%d, s%d, s68' % (HO, HO))
    a('s_lshl_b32 s%d, s%d, 12' % (HO, HO))
    a('s_lshl_b32 s11, s65, 13')
    a('v_and_b32 v13, 31, v1')
    a('v_lshrrev_b32 v14, 5, v1')
    a('v_bfe_u32 v15, v1, 1, 3')
    a('v_xor_b32 v15, v15, v14')
    a('v_lshlrev_b32 v12, 7, v13')
    a('v_add_u32 v12, s11, v12')
    for kk in range(4):
        a('v_xor_b32 v%d, %d, v15' % (7 + kk, 2 * kk))
        a('v_lshl_add_u32 v%d, v%d, 4, v12' % (7 + kk, 7 + kk))
    a('v_bfe_u32 v11, v1, 2, 2')
    a('v_lshl_add_u32 v11, v14, 3, v11')
    a('v_lshlrev_b32 v11, 7, v11')
    a('v_bfe_u32 v12, v1, 3, 1')
    a('v_xor_b32 v12, s66, v12')
    a('v_lshl_add_u32 v11, v12, 6, v11')
    a('v_bfe_u32 v12, v1, 4, 1')
    a('v_lshl_add_u32 v11, v12, 5, v11')
    a('v_and_b32 v12, 3, v1')
    a('v_lshl_add_u32 v11, v12, 3, v11')
    a('v_add_u32 v11, 0x8000, v11')
    for i in range(5):
        a('v_add_u32 v%d, 0x18000, v%d' % (208 + i, 7 + i))
    a('v_bfe_u32 v12, v1, 4, 1')
    a('v_lshlrev_b32 v12, 10, v12')
    a('v_and_b32 v13, 15, v1')
    a('v_lshl_add_u32 v12, v13, 4, v12')
    a('v_lshl_add_u32 v213, v14, 8, v12')
    a('s_and_b32 s%d, s68, 7' % GO)
    a('s_lshl_b32 s69, s%d, 10' % GO)
    a('s_add_u32 s11, s11, s69')
    a('v_add_u32 v214, s11, v237')
    a('v_add_u32 v215, 0x18000, v214')
    a('s_and_b32 s69, s%d, 1' % GO)
    a('s_lshl_b32 s69, s69, 2')
    a('v_lshrrev_b32 v12, 4, v1')
    a('v_add_u32 v12, s69, v12')
    a('v_and_b32 v13, 7, v1')
    a('v_xor_b32 v12, v12, v13')
    a('v_lshlrev_b32 v216, 4, v12')
    a('v_add_u32 v216, %d, v216' % LDS_GW)
    if OPT['rot1']:
        a('s_lshl_b32 s69, s%d, 7' % KS0)
        a('v_add_u32 v216, s69, v216')
    a('v_mov_b32 v217, 0')
    a('s_lshl_b32 s%d, s%d, 5' % (GO, GO))
    a('s_lshl_b32 s69, s67, 8')
    a('s_add_u32 s%d, s%d, s69' % (GO, GO))
    a('s_cmp_lt_u32 s68, 8')
    a('s_cselect_b32 s%d, s%d, %s' % (GO, GO, hex(OOB)))
    a('v_lshrrev_b32 v12, 5, v1')
    a('v_bfe_u32 v13, v1, 2, 3')
    a('v_lshl_add_u32 v12, v12, 4, v13')
    a('v_lshlrev_b32 v12, 7, v12')
    a('v_and_b32 v13, 3, v1')
    a('v_lshl_add_u32 v12, v13, 3, v12')
    a('s_lshr_b32 s11, s%d, 2' % W)
    a('s_lshl_b32 s11, s11, 12')
    a('s_and_b32 s69, s%d, 3' % W)
    a('s_lshl_b32 s69, s69, 5')
    a('s_add_u32 s11, s11, s69')
    a('s_add_u32 s11, s11, %d' % LDS_W2S)
    a('v_add_u32 v236, s11, v12')

def item(lines, pre=(), vm=None, lg=None, needlg=(), needvm=()):
    if isinstance(lines, str): lines = [lines]
    if isinstance(pre, str): pre = [pre]
    return dict(pre=list(pre), lines=list(lines), vm=vm, lg=lg, needlg=set(needlg), needvm=set(needvm))

KS0 = 28
def g1_dma_items(stage):
    base = SLOT[stage % 3]
    it = []
    for m, S in ((0, SW1), (1, SW3)):
        pre = ['s_add_u32 m0, s%d, %s' % (LW, hex(base + 32768 + m * 8192))]
        if m == 0:
            if OPT['rot1']:
                pre = ['s_add_u32 s29, s%d, %d' % (KS0, stage), 's_cmp_ge_u32 s29, 10', 's_cselect_b32 s%d, 10, 0' % OW,
                       's_sub_u32 s29, s29, s%d' % OW, 's_mul_i32 s%d, s29, %d' % (OW, 64 * 3456)] + pre
            else:
                pre = ['s_mov_b32 s%d, %s' % (OW, hex(stage * 64 * 3456))] + pre
        it.append(item('buffer_load_dwordx4 v6, %s, s%d offen lds' % (s(S, 4), OW), pre, vm=('st', stage)))
    for i in range(4):
        pre = ['s_add_u32 m0, s%d, %s' % (LW, hex(base + i * 8192))]
        if i == 0:
            pre = [('s_lshl_b32 s%d, s29, 7' % OX) if OPT['rot1'] else ('s_movk_i32 s%d, %d' % (OX, stage * 128))] + pre
        it.append(item('buffer_load_dwordx4 v%d, %s, s%d offen lds' % (2 + i, s(SX, 4), OX), pre, vm=('st', stage)))
    if OPT['nodma'] and stage >= 3:
        it = []
    return it

class G1:
    def __init__(self, a):
        self.a = a; self.vq = Q(); self.lq = Q()
    def fork(self):
        g = G1(self.a); g.vq = copy.deepcopy(self.vq); g.lq = copy.deepcopy(self.lq); return g
    def wait(self, vm=(), lg=(), lgall=False):
        parts = []
        n = self.vq.need(set(vm)) if vm else None
        if n is not None: parts.append('vmcnt(%d)' % min(n, 63))
        if lgall:
            if self.lq.q: parts.append('lgkmcnt(0)')
            self.lq.clear()
        else:
            n = self.lq.need(set(lg)) if lg else None
            if n is not None: parts.append('lgkmcnt(%d)' % min(n, 15))
        if parts: self.a('s_waitcnt ' + ' '.join(parts))
    def emit(self, it, with_pre=True):
        a = self.a
        if with_pre and it['pre']:
            for l in it['pre']: a(l)
            if 'm0' in it['pre'][-1]: a('s_nop 0')
        if it['needlg'] or it['needvm']: self.wait(vm=it['needvm'], lg=it['needlg'])
        for l in it['lines']: a(l)
        if it['vm'] is not None: self.vq.push(it['vm'], sure=(it['vm'] != 'w2?'))
        if it['lg'] is not None: self.lq.push(it['lg'])
    def read_items(self, stage, kk):
        base = SLOT[stage % 3]; hi = base >= 98304
        off = base - (98304 if hi else 0)
        b = kk & 1
        B = G1_FR + 16 * b
        xa = (208 if hi else 7) + kk
        wa = 212 if hi else 11
        def w(m, h): return item('ds_read_b64_tr_b16 %s, v%d offset:%d' % (v(B + 8 + 4 * m + 2 * h, 2), wa, off + m * 8192 + kk * 2048 + h * 512), lg=('w', stage, kk, m))
        def x(nt): return item('ds_read_b128 %s, v%d offset:%d' % (v(B + 4 * nt, 4), xa, off + nt * 4096), lg=('x', stage, kk, nt))
        return [w(0, 0), w(0, 1), x(0), x(1), w(1, 0), w(1, 1)]
    def substep(self, sidx, kk, gaps):
        a = self.a
        B = G1_FR + 16 * (kk & 1)
        i = 0
        for m in range(2):
            for nt in range(2):
                g = gaps[i]
                if g and g[0]['pre']:
                    for l in g[0]['pre']: a(l)
                self.wait(lg=[('w', sidx, kk, m), ('x', sidx, kk, nt)])
                acc = v(G1_ACC + (m * 2 + nt) * 16, 16)
                a('v_mfma_f32_32x32x16_bf16 %s, %s, %s, %s' % (acc, v(B + 8 + 4 * m, 4), v(B + 4 * nt, 4), '0' if (sidx == 0 and kk == 0) else acc))
                for k, it in enumerate(g):
                    self.emit(it, with_pre=(k > 0))
                i += 1
    def step(self, sidx, ex, before_barrier=None, needvm=()):
        a = self.a
        a.comment('k-step %d' % sidx)
        if sidx < 9: stamp(a, sidx + 1, 2)
        base = SLOT[sidx % 3]; hi = base >= 98304
        for kk in range(4):
            if kk == 3:
                self.wait(vm=[('st', sidx + 1)] + list(needvm), lgall=True)
                if before_barrier: before_barrier(a)
                a('s_barrier')
            if kk < 3: r = self.read_items(sidx, kk + 1)
            elif sidx < 9: r = self.read_items(sidx + 1, 0)
            else: r = []
            e = list(ex.get(kk, []))
            if kk == 0:
                e = [item('ds_read_b128 v[220:223], v%d offset:%d' % (215 if hi else 214, base - (98304 if hi else 0)), lg='gx'),
                     item('ds_read_b128 v[224:227], v216 offset:%d' % (sidx * 128), lg='gx')] + e
            if kk == 2:
                e = e + [item(['v_dot2c_f32_bf16 v217, v%d, v%d' % (220 + i, 224 + i) for i in range(4)], needlg=['gx'])]
            h = (len(e) + 1) // 2
            if r: gaps = [r[0:3], r[3:6], e[:h], e[h:]]
            else:
                n4 = (len(e) + 3) // 4
                gaps = [e[i * n4:(i + 1) * n4] for i in range(4)]
            self.substep(sidx, kk, gaps)

def touch_item(stage):
    if not OPT['touch'] or stage > 9 or stage < OPT['tp']: return []
    lines = []
    if stage == 6:
        lines += ['v_mul_u32_u24 v218, 6, v242', 'v_add_co_u32 v240, vcc, v240, v218', 's_nop 1', 'v_addc_co_u32 v241, vcc, 0, v241, vcc']
    lines += touch_lines(10 * (stage % 6), 10)
    return [item(lines, vm='touch')]

def gemm1_head(a):
    RB, CB, W = 8, 9, S_W
    g = G1(a)
    nonce_publish(a)
    if OPT['rot1']:
        R = OPT['rot1']
        a('s_mul_i32 s11, s%d, %d' % (RB, 3 if R != 3 else 1))
        a('s_add_u32 s11, s11, s%d' % CB)
        a('s_mul_i32 s69, s11, %d' % ((2048 + R - 1) // R))
        a('s_lshr_b32 s69, s69, 11')
        a('s_mul_i32 s69, s69, %d' % R)
        a('s_sub_u32 s%d, s11, s69' % KS0)
        if R != 10: a('s_mul_i32 s%d, s%d, %d' % (KS0, KS0, 10 // R))
    a('s_mul_i32 s11, s%d, %d' % (RB, 256 * 1280))
    srd(a, SX, P_Q, 256 * 1280, 's11')
    a('s_lshl_b32 s11, s%d, 7' % CB)
    a('s_sub_u32 s69, %s, s11' % hex(SZ_W))
    srd(a, SW1, P_W1, 's69', 's11')
    srd(a, SW3, P_W3, 's69', 's11')
    if OPT['touch']:
        a('v_cmp_gt_u32 vcc, 59, v17')
        a('v_mov_b32 v20, s%d' % SW3); a('v_mov_b32 v21, s%d' % SW1)
        a('v_cndmask_b32 v240, v20, v21, vcc')
        a('v_mov_b32 v20, s%d' % (SW3 + 1)); a('v_mov_b32 v21, s%d' % (SW1 + 1))
        a('v_cndmask_b32 v241, v20, v21, vcc')
        a('v_cmp_gt_u32 vcc, 43, v17')
        a('v_mov_b32 v20, s%d' % SX); a('v_mov_b32 v21, s%d' % (SX + 1))
        a('v_cndmask_b32 v240, v240, v20, vcc')
        a('v_cndmask_b32 v241, v241, v21, vcc')
        a('v_add_co_u32 v240, vcc, v240, v18')
        a('s_nop 1')
        a('v_addc_co_u32 v241, vcc, 0, v241, vcc')
        g.emit(item(touch_lines(0, 10 * OPT['tp']), vm='touch'))
    for it in g1_dma_items(0): g.emit(it)
    stamp(a, 1)
    L = a.newlabel('GW')
    a('s_cmp_ge_u32 s%d, 3' % W)
    a('s_cbranch_scc1 %s' % L)
    srd(a, SH, P_GW, 1280)
    a('v_add_u32 v12, s%d, v237' % LW)
    a('v_subrev_u32 v13, 1280, v12')
    a('v_min_u32 v12, v12, v13')
    a('v_subrev_u32 v13, 1280, v12')
    a('v_min_u32 v12, v12, v13')
    a('s_add_u32 m0, s%d, %d' % (LW, LDS_GW))
    a('s_nop 0')
    a('buffer_load_dwordx4 v12, %s, 0 offen lds' % s(SH, 4))
    a.label(L)
    g.vq.push('gw', sure=False)
    gemm1_post_addr(a)
    flag_srd(a)
    srd(a, SH, P_W2, SZ_W)
    a('s_mul_i32 s11, s%d, 3641' % GID)
    a('s_lshr_b32 s11, s11, 16')
    a('s_mul_i32 s69, s11, 18')
    a('s_sub_u32 s69, s%d, s69' % GID)
    a('s_mul_i32 s69, s69, 3')
    a('s_lshr_b32 s72, s%d, 2' % W)
    a('s_add_u32 s69, s69, s72')
    a('s_cmp_ge_u32 s%d, 180' % GID)
    a('s_cselect_b32 s69, 60, s69')
    a('s_mul_i32 s%d, s69, 10' % U0)
    a('s_add_u32 s%d, s%d, s11' % (U0, U0))
    a('s_mul_i32 s69, s69, %d' % (32 * 1280))
    a('s_lshl_b32 s65, s11, 7')
    a('s_add_u32 s65, s65, s69')
    a('s_add_u32 s66, s65, %d' % (64 * 1280))
    a('s_cmp_lt_u32 s%d, 4' % W)
    a('s_cselect_b32 s66, s66, 0x7000000')
    a('s_and_b32 s67, s%d, 3' % W)
    a('s_lshl_b32 s67, s67, 10')
    a('s_add_u32 s67, s67, %d' % (LDS_W2S + 8192))
    a('s_cselect_b32 s67, s67, s67')
    a('v_lshrrev_b32 v12, 3, v1')
    a('s_and_b32 s69, s%d, 3' % W)
    a('s_lshl_b32 s69, s69, 3')
    a('v_add_u32 v12, s69, v12')
    a('v_mul_u32_u24 v12, 1280, v12')
    a('v_and_b32 v13, 7, v1')
    a('v_lshl_add_u32 v219, v13, 4, v12')
    L2 = a.newlabel('W2')
    w2l = [item('buffer_load_dwordx4 v219, %s, s65 offen lds' % s(SH, 4), pre='s_add_u32 m0, s%d, %d' % (LW, LDS_W2S), vm='w2'),
           item(['s_cmp_ge_u32 s%d, 4' % W, 's_cbranch_scc1 %s' % L2, 's_mov_b32 m0, s67', 's_nop 0',
                 'buffer_load_dwordx4 v219, %s, s66 offen lds' % s(SH, 4), L2 + ':'], vm='w2?')]
    a('s_barrier')
    for it in g1_dma_items(1): g.emit(it)
    g.wait(vm=[('st', 0), 'gw'])
    a('s_barrier')
    stamp(a, 2)
    if OPT['prio']:
        L = a.newlabel('PR')
        a('s_cmp_lt_u32 s%d, 4' % W)
        a('s_cbranch_scc1 %s' % L)
        a('s_setprio 1')
        a.label(L)
    for it in g.read_items(0, 0): g.emit(it)
    d = [g1_dma_items(i) for i in range(10)] + [[], [], []]
    ld = OPT['lead']
    t0 = []
    for st_ in range(OPT['tp'], ld): t0 += touch_item(st_)
    w2r = [item('ds_read_b64_tr_b16 v[228:229], v236', lg='w2f'), item('ds_read_b64_tr_b16 v[230:231], v236 offset:1024', lg='w2f'),
           item('ds_read_b64_tr_b16 v[232:233], v236 offset:8192', lg='w2f'), item('ds_read_b64_tr_b16 v[234:235], v236 offset:9216', lg='w2f')]
    w2s = [item('buffer_store_dwordx4 v[228:231], v237, %s, s11 offen sc1' % s(SH, 4),
                pre=['s_lshl_b32 s11, s%d, 2' % U0, 's_and_b32 s69, s%d, 3' % W, 's_add_u32 s11, s11, s69', 's_lshl_b32 s11, s11, 10'], vm='w2s', needlg=['w2f']),
           item('buffer_store_dwordx4 v[232:235], v237, %s, s11 offen sc1' % s(SH, 4),
                pre=['s_add_u32 s11, s11, %d' % (20 * 4096), 's_cmp_lt_u32 s%d, 4' % W, 's_cselect_b32 s11, s11, 0x7000000'], vm='w2s')]
    goi = item(capture_l(a, go_issue), vm='go')
    g.step(0, {0: w2l + [goi] + d[2][0:1], 1: d[2][1:4], 2: d[2][4:6], 3: d[3][0:2]})
    srd(a, SH, P_WS, SZ_W, WS_W2P)
    g.step(1, {0: d[3][2:4], 1: d[3][4:6], 3: [item(GO_FETCH, lg='go')] + w2r + d[4][0:2]}, before_barrier=go_check, needvm=['go', 'w2', 'w2?'])
    fw = item(['s_lshl_b32 s11, s%d, %d' % (GID, OPT['fsw']), 's_add_u32 s11, s11, %s' % hex(F_W), 's_cmp_eq_u32 s%d, 0' % W,
               's_cselect_b32 s11, s11, %s' % hex(OOB)] + capture_l(a, lambda a: set_flag(a, 11)), vm='fw')
    g.step(2, {0: w2s + d[4][2:4], 1: d[4][4:6], 2: [item(capture_l(a, go_sgpr), needlg=['go']), item(capture_l(a, lambda a: fx_publish(a, 1)), vm='fxp')], 3: d[5][0:2]})
    srd(a, SH, P_WS, SZ_H, None if WS_H == 0 else WS_H)
    g.step(3, {0: d[5][2:4], 1: d[5][4:6], 3: [fw] + d[6][0:2]}, needvm=['w2s'])
    g.step(4, {0: d[6][2:4], 1: d[6][4:6], 3: d[7][0:2]})
    return g, d

def capture_l(a, fn):
    return [l.strip() for l in capture(a, lambda: fn(a))]

def gemm1_tail(a, g, d, role):
    g = g.fork()
    pf = [item(PF_LOAD, vm='pf')]
    ex = {s_: {0: d[s_ + 2][2:4], 1: d[s_ + 2][4:6], 2: touch_item(s_ + OPT['lead']), 3: d[s_ + 3][0:2]} for s_ in range(5, 10)}
    bb = {}; nv = {}
    post = []
    def chunks(lines, n):
        k = (len(lines) + n - 1) // n
        return [item(lines[i * k:(i + 1) * k]) for i in range(n) if lines[i * k:(i + 1) * k]]
    if role == 'G2':
        fs = OPT['fwst']
        bb[fs] = fw_check; nv[fs] = ['pf']
        if fs == 5:
            ex[5][0] = [item(capture_l(a, g2_pre))] + pf + ex[5][0]
        else:
            ex[5][2] = ex[5][2] + [item(capture_l(a, g2_pre))]
            ex[fs][0] = pf + ex[fs][0]
        w = []
        for p in range(4): w += g2_w_items(p, p)
        slots = [(fs, 3)] + [(s_, kk) for s_ in range(fs + 1, 9) for kk in range(4)][:-1]
        for i, (s_, kk) in enumerate(slots):
            ex[s_][kk] = ex[s_][kk] + w[20 * i // len(slots):20 * (i + 1) // len(slots)]
        l01 = g2_wl_items(4, 0) + g2_wl_items(5, 1)
        ex[8][3] = l01[0:3]; ex[9][0] = l01[3:5]; ex[9][1] = l01[5:8]; ex[9][2] = l01[8:10]
        ex[9][3] = [item(capture_l(a, g2_fh_addr))]
    elif role == 'CV':
        ex[5][2] = ex[5][2] + [item(['s_sub_u32 s7, s%d, 192' % GID, 's_add_u32 s7, s7, s%d' % GID, 's_cmp_ge_u32 s%d, 192' % GID,
                                     's_cselect_b32 s7, s7, s%d' % GID, 's_cselect_b32 s%d, 1, 0' % CV_M] + capture_l(a, cv_pre)),
                               item(['s_mov_b32 exec_hi, 0', 'buffer_load_dword v246, v246, s[72:75], 0 offen', 's_mov_b64 exec, -1'], vm='touch2')]
        su = chunks(capture_l(a, cv_setup1), 8)
        ex[6][2] = su[0:2]; ex[6][0] = ex[6][0]; ex[7][2] = su[2:4]; ex[9][0] = su[4:6]; ex[9][1] = su[6:8]
        hd = cv_h_items()
        ex[7][3] = hd[0:2]; ex[8][0] = hd[2:4]; ex[8][1] = hd[4:6]; ex[8][2] = hd[6:8]
        ex[8][3] = pf + [item(l, lg='pad') for l in cv_pads()]
        nv[9] = ['cvh']
        fx = cv_fix()
        ex[9][3] = [item(fx[0], lg='fix'), item(capture_l(a, cv_try_u), needvm=['pf']), item(fx[1:], needlg=['fix'], lg='fix2')]
    ex[7][2] = [item(capture_l(a, fx_load), vm='fx')] + ex[7][2]
    ex[9][2] = ex[9][2] + [item(capture_l(a, fx_eval), needvm=['fx'])]
    for s_ in range(5, 10):
        if s_ == 5: stamp(a, 3)
        g.step(s_, ex[s_], before_barrier=bb.get(s_), needvm=nv.get(s_, ()))
    stamp(a, 4)
    if role == 'CV':
        if OPT['eprio']: a('s_setprio %d' % OPT['eprio'])
        for l in cv_g_reads(0, 0): a(l)
    elif OPT['gprio']:
        a('s_setprio %d' % OPT['gprio'])
    for sh in (1, 2):
        a('v_add_f32_dpp v217, v217, v217 quad_perm:%s row_mask:0xf bank_mask:0xf' % ('[1,0,3,2]' if sh == 1 else '[2,3,0,1]'))
        a('s_nop 1')
    a('v_add_f32_dpp v217, v217, v217 row_half_mirror row_mask:0xf bank_mask:0xf')
    a('s_mov_b32 s60, %s' % NLOG2E)
    a('s_mov_b32 s61, %s' % NLOG2E)
    a('v_mul_f32 v217, s60, v217')
    a('v_exp_f32 v217, v217')
    a('v_lshrrev_b32 v218, 3, v1')
    a('v_add_f32 v217, 1.0, v217')
    a('v_rcp_f32 v217, v217')
    a('v_lshlrev_b32 v218, 2, v218')
    srd(a, SX, P_WS, 8192, WS_G)
    a('s_mov_b32 exec_lo, 0x01010101')
    a('s_mov_b32 exec_hi, 0x01010101')
    store2(a, 'buffer_store_dword v217, v218, %s, s%d offen' % (s(SX, 4), GO))
    a('s_mov_b64 exec, -1')
    T = G1_FR
    for nt in range(2):
        for jp in range(2):
            G = G1_ACC + nt * 16 + 8 * jp
            U = G1_ACC + (2 + nt) * 16 + 8 * jp
            for i in range(0, 8, 2):
                a('v_pk_mul_f32 %s, %s, s[60:61]' % (v(T + i, 2), v(G + i, 2)))
            for i in range(0, 8, 2):
                a('v_exp_f32 v%d, v%d' % (T + i, T + i))
                a('v_exp_f32 v%d, v%d' % (T + i + 1, T + i + 1))
                a('v_pk_mul_f32 %s, %s, %s' % (v(G + i, 2), v(G + i, 2), v(U + i, 2)))
            for i in range(0, 8, 2):
                a('v_pk_add_f32 %s, %s, 1.0 op_sel_hi:[1,0]' % (v(T + i, 2), v(T + i, 2)))
            for i in range(8):
                a('v_rcp_f32 v%d, v%d' % (T + i, T + i))
            a('s_nop 0')
            for i in range(0, 8, 2):
                a('v_pk_mul_f32 %s, %s, %s' % (v(G + i, 2), v(G + i, 2), v(T + i, 2)))
            O = T + 16 + 8 * nt + 4 * jp
            for i in range(4):
                a('v_cvt_pk_bf16_f32 v%d, v%d, v%d' % (O + i, G + 2 * i, G + 2 * i + 1))
            store2(a, 'buffer_store_dwordx4 %s, v213, %s, s%d offen offset:%d' % (v(O, 4), s(SH, 4), HO, nt * 2048 + jp * 512))
    a('s_waitcnt vmcnt(0)')
    a('s_mov_b64 exec, 1')
    store2(a, 'buffer_store_dwordx2 v[250:251], v252, %s, s%d offen' % (s(SF, 4), S_F1))
    a('s_mov_b64 exec, -1')
    stamp(a, 5)
    if role == 'CV':
        L = a.newlabel('UOK')
        a('s_cmp_eq_u32 s%d, 1' % CV_T)
        a('s_cbranch_scc1 %s' % L)
        if OPT['fbar']: a('s_barrier')
        poll_check(a, PF_LOAD, 244, 11, sleep=2)
        cv_u_loads(a)
        a('s_waitcnt vmcnt(0)')
        a('s_branch K_conv')
        a.label(L)
        if OPT['fbar']: a('s_barrier')
    else:
        if OPT['fbar']: a('s_barrier')
        for it in post: g.emit(it)

UKR, UVR, UWR, UKU, UWU, UAC = 16, 60, 92, 108, 130, 138
def ut_pre(a):
    a('s_mul_i32 s11, s7, 6554')
    a('s_lshr_b32 s11, s11, 16')
    a('s_mul_i32 s69, s11, 10')
    a('s_sub_u32 s69, s7, s69')
    a('s_lshl_b32 s%d, s69, 5' % S_F2)
    a('s_add_u32 s%d, s%d, s11' % (S_F2, S_F2))
    a('s_lshl_b32 s%d, s%d, %d' % (S_F2, S_F2, OPT['fsu']))
    a('s_add_u32 s%d, s%d, %s' % (S_F2, S_F2, hex(F_U)))
    a('s_lshl_b32 s11, s11, 6')
    a('v_and_b32 v241, 0x38, v1')
    a('v_add_u32 v241, s11, v241')
    a('v_and_b32 v242, 7, v1')
    a('s_lshl_b32 s69, s69, 3')
    a('v_add_u32 v242, s69, v242')
    a('v_mul_u32_u24 v240, 1280, v241')
    a('v_lshl_add_u32 v240, v242, 4, v240')
    a('v_lshlrev_b32 v243, 15, v242')
    a('v_sub_u32 v241, 2040, v241')
    a('v_lshl_add_u32 v243, v241, 1, v243')
    a('v_subrev_u32 v241, 3840, v240')
    a('v_lshlrev_b32 v242, 6, v242')
def ut_loads(a):
    SA, SB, SC = 44, 48, 52
    srd(a, SA, P_K, SZ_ACT)
    srd(a, SB, P_V, SZ_ACT)
    srd(a, SC, P_SK, 640 * 8)
    a('s_movk_i32 s11, 5120')
    for r in range(8):
        a('buffer_load_dwordx4 %s, v240, %s, %s offen offset:%d' % (v(UKR + 12 + 4 * r, 4), s(SA, 4), '0' if r < 4 else 's11', 1280 * (r & 3)))
    for r in range(3):
        a('buffer_load_dwordx4 %s, v241, %s, 0 offen offset:%d' % (v(UKR + 4 * r, 4), s(SA, 4), 1280 * r))
    for i in range(4):
        a('buffer_load_dwordx4 %s, v242, %s, 0 offen offset:%d' % (v(UWR + 4 * i, 4), s(SC, 4), 16 * i))
    for r in range(8):
        a('buffer_load_dwordx4 %s, v240, %s, %s offen offset:%d' % (v(UVR + 4 * r, 4), s(SB, 4), '0' if r < 4 else 's11', 1280 * (r & 3)))
def ut_k(a):
    MASK = 65
    a('s_mov_b32 s%d, 0xffff0000' % MASK)
    for dw in range(4):
        for r in range(11):
            a('v_lshlrev_b32 v%d, 16, v%d' % (UKU + 2 * r, UKR + 4 * r + dw))
            a('v_and_b32 v%d, s%d, v%d' % (UKU + 2 * r + 1, MASK, UKR + 4 * r + dw))
        for ch in range(2):
            for t in range(4):
                src = UWR + 4 * dw + 2 * ch + (t >> 1)
                if t & 1:
                    a('v_and_b32 v%d, s%d, v%d' % (UWU + 2 * t + ch, MASK, src))
                else:
                    a('v_lshlrev_b32 v%d, 16, v%d' % (UWU + 2 * t + ch, src))
        A = UAC + 16 * dw
        for r in range(8):
            a('v_pk_mul_f32 %s, %s, %s' % (v(A + 2 * r, 2), v(UKU + 2 * r, 2), v(UWU + 6, 2)))
        for t in (2, 1, 0):
            for r in range(8):
                a('v_pk_fma_f32 %s, %s, %s, %s' % (v(A + 2 * r, 2), v(UKU + 2 * (r + 3 - t), 2), v(UWU + 2 * t, 2), v(A + 2 * r, 2)))
def ut_v(a):
    MASK, T = 65, 66
    srd(a, 72, P_WS, SZ_ACT, WS_UT)
    for dw in range(4):
        A = UAC + 16 * dw
        for r in range(8):
            a('v_lshlrev_b32 v%d, 16, v%d' % (UKU + 2 * r, UVR + 4 * r + dw))
            a('v_and_b32 v%d, s%d, v%d' % (UKU + 2 * r + 1, MASK, UVR + 4 * r + dw))
        for r in range(8):
            a('v_pk_mul_f32 %s, %s, %s' % (v(A + 2 * r, 2), v(A + 2 * r, 2), v(UKU + 2 * r, 2)))
        O = UWR + 8 * (dw & 1)
        for ch in range(2):
            for i in range(4):
                a('v_cvt_pk_bf16_f32 v%d, v%d, v%d' % (O + 4 * ch + i, A + 2 * (7 - 2 * i) + ch, A + 2 * (6 - 2 * i) + ch))
        for ch in range(2):
            a('s_mov_b32 s%d, %d' % (T, (2 * dw + ch) * 4096))
            a('buffer_store_dwordx4 %s, v243, s[72:75], s%d offen sc1' % (v(O + 4 * ch, 4), T))

CW = 13824
C_HA, C_HB, C_U = 0, 4640, 9280
C_EX = 2 * CW
RBC = CONV_BASE
CV_DO, CV_LB, CV_T, CV_T2, CV_W, CV_M = 66, 67, 68, 69, 9, 8
CV_D = 18
CA, CG, CF = 108, [140, 12], [172, 44]
VG, VF, VU, VXW, VXR = 228, 229, 233, 234, 235
def cv_pre(a):
    srd(a, 72, P_SSMK, SZ_ACT)
    a('s_lshl_b32 s11, s7, 2')
    a('s_load_dwordx2 s[%d:%d], s[%d:%d], s11' % (CV_D, CV_D + 1, P_SSMD, P_SSMD + 1))
    a('s_and_b32 s%d, s%d, 3' % (CV_W, S_W))
    a('s_xor_b32 s11, s%d, 1' % CV_M)
    a('s_lshr_b32 s%d, s%d, s11' % (CV_T, CV_W))
    a('s_lshl_b32 s%d, s7, 1' % CV_DO)
    a('s_add_u32 s%d, s%d, s%d' % (CV_DO, CV_DO, CV_T))
    a('s_lshl_b32 s%d, s%d, 12' % (CV_DO, CV_DO))
    a('s_mul_i32 s%d, s%d, %d' % (CV_LB, CV_T, CW))
    a('s_add_u32 s%d, s%d, %d' % (CV_LB, CV_LB, RBC))
    a('v_add_u32 v238, s%d, v237' % CV_DO)
    a('v_subrev_u32 v239, 2, v238')
    a('v_lshl_add_u32 v246, v1, 7, s%d' % CV_DO)
    a('s_lshr_b32 s11, s7, 5')
    a('s_lshl_b32 s11, s11, %d' % (5 + OPT['fsu']))
    a('s_add_u32 s11, s11, %s' % hex(F_U))
    a('v_min_u32 v248, 31, v1')
    a('v_lshl_add_u32 v248, v248, %d, s11' % OPT['fsu'])
    a('s_mov_b32 s%d, 0' % CV_T)
def cv_setup1(a):
    W, LB = CV_W, CV_LB
    a('s_mul_i32 s65, s7, 1639')
    a('s_lshr_b32 s65, s65, 16')
    a('s_mul_i32 s%d, s65, 40' % S_F2)
    a('s_sub_u32 s%d, s7, s%d' % (S_F2, S_F2))
    a('s_lshl_b32 s65, s65, 2')
    a('s_add_u32 s65, s65, s%d' % W)
    a('s_lshl_b32 s65, s65, 6')
    a('s_add_u32 s%d, s%d, s65' % (S_F2, S_F2))
    a('s_lshl_b32 s%d, s%d, %d' % (S_F2, S_F2, OPT['fsz']))
    a('s_add_u32 s%d, s%d, %s' % (S_F2, S_F2, hex(F_Z)))
    a('s_andn2_b32 s65, s%d, s%d' % (W, CV_M))
    a('s_and_b32 s65, s65, 1')
    a('s_lshl_b32 s65, s65, 8')
    a('s_add_u32 s65, s65, s%d' % LB)
    a('v_and_b32 v%d, 1, v1' % VG)
    a('v_xor_b32 v%d, 1, v%d' % (VG, VG))
    a('v_mul_u32_u24 v%d, %d, v%d' % (VG, C_HB - C_HA, VG))
    a('v_bfe_u32 v204, v1, 1, 3')
    a('v_lshl_add_u32 v%d, v204, 6, v%d' % (VG, VG))
    a('v_lshrrev_b32 v204, 4, v1')
    a('v_lshl_add_u32 v%d, v204, 4, v%d' % (VG, VG))
    a('s_add_u32 s69, s65, %d' % (C_HA + 64))
    a('v_add_u32 v%d, s69, v%d' % (VG, VG))
    a('v_and_b32 v205, 15, v1')
    a('v_lshlrev_b32 v205, 2, v205')
    a('v_lshlrev_b32 v%d, 4, v204' % VF)
    a('v_sub_u32 v%d, v%d, v205' % (VF, VF))
    a('s_add_u32 s69, s65, %d' % (C_U + 60))
    a('v_add_u32 v%d, s69, v%d' % (VF, VF))
    for i in range(1, 4):
        a('v_add_u32 v%d, %d, v%d' % (VF + i, 1024 * i, VF))
    a('v_lshl_add_u32 v205, v204, 7, v205')
    a('s_lshl_b32 s65, s%d, 10' % W)
    a('s_sub_u32 s65, %d, s65' % (RBC + C_U + 444 + 3072))
    a('v_sub_u32 v%d, s65, v205' % VU)
    a('s_mul_i32 s65, s%d, %d' % (CV_M, CW - 8192))
    a('s_add_u32 s65, s65, 8192')
    a('s_mul_i32 s65, s65, s%d' % W)
    a('s_xor_b32 s69, s%d, 1' % CV_M)
    a('s_mul_i32 s69, s69, %d' % C_EX)
    a('s_add_u32 s69, s69, %d' % RBC)
    a('s_add_u32 s65, s65, s69')
    a('v_add_u32 v%d, s65, v237' % VXW)
    a('s_lshl_b32 s65, s%d, 11' % W)
    a('s_add_u32 s69, s69, s65')
    a('v_add_u32 v%d, s69, v237' % VXR)
    a('s_lshl_b32 s%d, s7, 13' % CV_DO)
    a('s_add_u32 s%d, s%d, s65' % (CV_DO, CV_DO))
    for i in range(16):
        a('v_mov_b64 %s, 0' % v(CA + 2 * i, 2))
def cv_pads():
    return [['v_mov_b64 v[206:207], 0', 'v_lshl_add_u32 v247, v1, 3, s%d' % CV_LB, 'ds_write_b64 v247, v[206:207] offset:%d' % C_HA],
            ['ds_write_b64 v247, v[206:207] offset:%d' % C_HB],
            ['v_lshl_add_u32 v247, v1, 2, s%d' % CV_LB, 'ds_write_b32 v247, v206 offset:%d' % (C_U + 4096)]]
def cv_fix():
    R = CF[0]
    return [['v_mov_b32 v247, s%d' % CV_LB, 'ds_read_b128 %s, v247 offset:%d' % (v(R, 4), C_HA + 512)],
            'v_alignbit_b32 v%d, v%d, v%d, 16' % (R + 7, R + 3, R + 2),
            'v_alignbit_b32 v%d, v%d, v%d, 16' % (R + 6, R + 2, R + 1),
            'v_alignbit_b32 v%d, v%d, v%d, 16' % (R + 5, R + 1, R),
            'v_lshlrev_b32 v%d, 16, v%d' % (R + 4, R),
            'ds_write_b128 v247, %s offset:%d' % (v(R + 4, 4), C_HB + 512)]
def cv_h_items():
    it = []
    for (dst, vo) in ((C_HA + 512, 238), (C_HB + 512, 239)):
        for i in range(4):
            it.append(item('buffer_load_dwordx4 v%d, s[72:75], 0 offen offset:%d lds' % (vo, i * 1024),
                           pre=['s_add_u32 m0, s%d, %d' % (CV_LB, dst)] if i == 0 else [], vm='cvh'))
    return it
def cv_u_loads(a):
    srd(a, 48, P_WS, SZ_ACT, WS_UT)
    a('s_add_u32 m0, s%d, %d' % (CV_LB, C_U))
    a('s_nop 0')
    for i in range(4):
        a('buffer_load_dwordx4 v238, s[48:51], 0 offen offset:%d sc1 lds' % (i * 1024))
def cv_try_u(a):
    L = a.newlabel('UT')
    a('v_cmp_eq_u64 vcc, %s, v[244:245]' % NC)
    a('s_cmp_eq_u64 vcc, -1')
    a('s_cbranch_scc0 %s' % L)
    cv_u_loads(a)
    a('s_mov_b32 s%d, 1' % CV_T)
    a.label(L)
def cv_g_reads(j, b):
    return ['ds_read_b128 %s, v%d offset:%d' % (v(CG[b] + 4 * i, 4), VG, 64 * j + 512 * i) for i in range(8)]
def cv_f_reads(j, b):
    L = []
    for i in range(8):
        rb = 7 - i
        o = (512 * (rb & 1) + 64 * j) // 4
        L.append('ds_read2_b32 %s, v%d offset0:%d offset1:%d' % (v(CF[b] + 4 * i, 2), VF + (rb >> 1), o, o + 1))
        L.append('ds_read2_b32 %s, v%d offset0:%d offset1:%d' % (v(CF[b] + 4 * i + 2, 2), VF + (rb >> 1), o + 2, o + 3))
    return L

A_STRIDE = 6144
LDS_Q = [40960, 90112]
def chunk_addrs(a, dst, tmp, sbase):
    for i in range(3):
        a('v_add_u32 v%d, %d, v1' % (tmp, 64 * i))
        a('v_mul_u32_u24 v%d, 205, v%d' % (dst + i, tmp))
        a('v_lshrrev_b32 v%d, 11, v%d' % (dst + i, dst + i))
        a('v_mul_u32_u24 v%d, 1120, v%d' % (dst + i, dst + i))
        a('v_lshl_add_u32 v%d, v%d, 4, v%d' % (dst + i, tmp, dst + i))
        a('v_add_u32 v%d, s%d, v%d' % (dst + i, sbase, dst + i))
    a('v_lshrrev_b32 v%d, 5, v1' % tmp)
    a('v_lshl_add_u32 v%d, v%d, 30, v%d' % (dst + 2, tmp, dst + 2))
def lds_q_base(a, dst, w):
    a('s_lshr_b32 s%d, s%d, 1' % (dst, w))
    a('s_mul_i32 s%d, s%d, %d' % (dst, dst, LDS_Q[1] - LDS_Q[0] - 8192))
    a('s_lshl_b32 s11, s%d, 12' % w)
    a('s_add_u32 s%d, s%d, s11' % (dst, dst))
    a('s_add_u32 s%d, s%d, %d' % (dst, dst, LDS_Q[0]))
def aterm(a):
    W = CV_W
    RB, CB, T, T2 = 65, 66, 67, 68
    SQ, SZ, SG = 52, 44, 60
    a('s_setprio 0')
    a('s_lshl_b32 s%d, s3, 2' % RB)
    a('s_lshr_b32 s%d, s4, 3' % CB)
    a('s_add_u32 s%d, s%d, s%d' % (RB, RB, CB))
    a('s_and_b32 s%d, s4, 7' % CB)
    srd(a, SQ, P_Q, SZ_ACT)
    a('s_lshl_b32 s%d, s%d, 6' % (T, RB))
    a('s_lshl_b32 s%d, s%d, 4' % (T2, W))
    a('s_add_u32 s%d, s%d, s%d' % (T, T, T2))
    a('v_and_b32 v8, 15, v1')
    a('v_add_u32 v8, s%d, v8' % T)
    a('v_lshrrev_b32 v9, 4, v1')
    a('s_mul_i32 s%d, s%d, 1280' % (T, T))
    a('s_mul_i32 s%d, s%d, 160' % (T2, CB))
    a('s_add_u32 s%d, s%d, s%d' % (T, T, T2))
    chunk_addrs(a, 12, 10, T)
    lds_q_base(a, T2, W)
    for i in range(3):
        a('s_add_u32 m0, s%d, %d' % (T2, 1024 * i))
        a('s_nop 0')
        a('buffer_load_dwordx4 v%d, %s, 0 offen lds' % (12 + i, s(SQ, 4)))
    a('v_and_b32 v10, 15, v1')
    a('v_mul_u32_u24 v10, 160, v10')
    a('v_lshl_add_u32 v10, v9, 3, v10')
    a('v_add_u32 v10, s%d, v10' % T2)
    a('s_lshl_b32 s%d, s%d, 2' % (T, CB))
    a('s_lshr_b32 s%d, s%d, 3' % (T2, RB))
    a('s_add_u32 s%d, s%d, s%d' % (T, T, T2))
    a('s_lshl_b32 s%d, s%d, %d' % (T, T, 6 + OPT['fsz']))
    a('s_add_u32 s%d, s%d, %s' % (T, T, hex(F_Z)))
    a('v_lshl_add_u32 v25, v1, %d, s%d' % (OPT['fsz'], T))
    a('s_lshl_b32 s%d, s%d, 5' % (T, RB))
    a('s_add_u32 s%d, s%d, s%d' % (T, T, W))
    a('s_lshl_b32 s%d, s%d, %d' % (T, T, OPT['fsh'] + 1))
    a('v_and_b32 v24, 1, v1')
    a('v_lshl_add_u32 v24, v24, %d, s%d' % (OPT['fsh'], T))
    a('v_cmp_lt_u32 vcc, 39, v1')
    a('v_lshlrev_b32 v11, 14, v9')
    a('v_bfe_u32 v9, v1, 1, 3')
    a('v_cndmask_b32 v25, v25, v24, vcc')
    FL = 'buffer_load_dwordx2 v[26:27], v25, %s, 0 offen sc1' % s(SF, 4)
    a('v_lshl_add_u32 v11, v9, 4, v11')
    a('v_and_b32 v9, 1, v1')
    a('v_lshl_add_u32 v11, v9, 2, v11')
    a('s_mul_i32 s%d, s%d, %d' % (T, CB, 40 * 8192))
    a('s_lshl_b32 s%d, s%d, 8' % (T2, RB))
    a('s_add_u32 s%d, s%d, s%d' % (T, T, T2))
    a('s_and_b32 s%d, s%d, 1' % (T2, W))
    a('s_lshl_b32 s%d, s%d, 7' % (T2, T2))
    a('s_add_u32 s%d, s%d, s%d' % (T, T, T2))
    a('s_lshr_b32 s%d, s%d, 1' % (T2, W))
    a('s_lshl_b32 s%d, s%d, 3' % (T2, T2))
    a('s_add_u32 s%d, s%d, s%d' % (T, T, T2))
    a('v_add_u32 v11, s%d, v11' % T)
    a('v_lshlrev_b32 v8, 2, v8')
    srd(a, SG, P_WS, 8192, WS_G)
    a('s_mul_i32 s%d, s%d, %d' % (T, W, A_STRIDE))
    a('s_add_u32 s%d, s%d, %d' % (T, T, CONV_BASE))
    a('v_add_u32 v24, s%d, v237' % T)
    if OPT['ztrig'] >= 0:
        L, Dn = a.newlabel('TW'), a.newlabel('TWD')
        a('s_mov_b32 s11, 0x100000')
        a.label(L)
        a('ds_read_b32 v247, v254 offset:4')
        a('s_waitcnt lgkmcnt(0)')
        a('v_cmp_eq_u32 vcc, 1, v247')
        a('s_cbranch_vccnz %s' % Dn)
        a('s_sleep 2')
        a('s_sub_u32 s11, s11, 1')
        a('s_cbranch_scc0 %s' % L)
        a.label(Dn)
    poll(a, FL, 26, T2, sleep=OPT['zsl'])
    stamp(a, 3)
    ZR, A, ZU = 28, 40, 60
    a('buffer_load_dword v8, v8, %s, 0 offen sc1' % s(SG, 4))
    for mt in range(5):
        for h in range(2):
            a('s_mov_b32 s%d, %s' % (T, hex(65536 * mt + 8192 * h)))
            a('buffer_load_dword v%d, v11, %s, s%d offen sc1' % (ZR + 2 * mt + h, s(SZ, 4), T))
    a('s_mov_b32 s%d, 0xffff0000' % T)
    for mt in range(5):
        a('ds_read_b64 %s, v10 offset:%d' % (v(12 + 2 * mt, 2), 32 * mt))
    L, Dn = a.newlabel('CS'), a.newlabel('CSD')
    a('s_mov_b32 s11, 0x400000')
    a.label(L)
    a('ds_read_b32 v247, v254')
    a('s_waitcnt lgkmcnt(0)')
    a('v_cmp_le_u32 vcc, 8, v247')
    a('s_cbranch_vccnz %s' % Dn)
    a('s_sub_u32 s11, s11, 1')
    a('s_cbranch_scc0 %s' % L)
    a.label(Dn)
    for i in range(10):
        a('v_lshlrev_b32 v%d, 16, v%d' % (A + 2 * i, 12 + i))
        a('v_and_b32 v%d, s%d, v%d' % (A + 2 * i + 1, T, 12 + i))
    a('s_waitcnt vmcnt(10)')
    a('v_mov_b32 v9, v8')
    for i in range(10):
        a('v_pk_mul_f32 %s, %s, v[8:9]' % (v(A + 2 * i, 2), v(A + 2 * i, 2)))
    a('v_sub_f32 v8, 1.0, v8')
    a('v_sub_f32 v9, 1.0, v9')
    a('ds_write_b64 v24, v[8:9] offset:5120')
    for mt in range(5):
        a('s_waitcnt vmcnt(%d)' % (8 - 2 * mt))
        for h in range(2):
            i = 2 * mt + h
            a('v_lshlrev_b32 v%d, 16, v%d' % (ZU, ZR + i))
            a('v_and_b32 v%d, s%d, v%d' % (ZU + 1, T, ZR + i))
            a('v_pk_mul_f32 %s, %s, %s' % (v(A + 2 * i, 2), v(A + 2 * i, 2), v(ZU, 2)))
        a('ds_write_b128 v24, %s offset:%d' % (v(A + 4 * mt, 4), 1024 * mt))
    a('s_waitcnt lgkmcnt(0)')
    stamp_end(a)
    a('s_endpgm')

def conv(a):
    SZ, DO, T, W = 44, CV_DO, CV_T, CV_W
    a('s_setprio %d' % OPT['cprio'])
    for l in cv_f_reads(0, 0): a(l)
    srd(a, SZ, P_WS, SZ_ACT, WS_Z4)
    a('s_lshl_b32 s%d, s%d, 1' % (T, CV_M))
    stamp(a, 7)
    def it(b, nxt):
        a('s_waitcnt lgkmcnt(0)')
        i = 0
        for n in range(8):
            for aa in range(n + 1):
                acc = v(CA + 4 * n, 4)
                a('v_mfma_f32_16x16x32_bf16 %s, %s, %s, %s' % (acc, v(CG[b] + 4 * aa, 4), v(CF[b] + 4 * (n - aa), 4), acc))
                if i in nxt: a(nxt.pop(i))
                i += 1
    def rd(j, b):
        g_, f_ = cv_g_reads(j, b), cv_f_reads(j, b)
        L = []
        for i in range(8): L += [g_[i], f_[2 * i], f_[2 * i + 1]]
        return dict(enumerate(L))
    def flag():
        a('s_waitcnt vmcnt(0)')
        set_flag(a, S_F1)
        a('s_mov_b32 s%d, %s' % (S_F1, hex(OOB)))
        stamp(a, 6)
    a.label('CV_loop')
    it(0, rd(1, 1))
    nx = rd(2, 0)
    for k in range(5):
        nx[26 + k] = 'v_add_u32 v%d, 128, v%d' % (VG + k, VG + k)
    it(1, nx)
    a('s_sub_u32 s%d, s%d, 1' % (T, T))
    a('s_cbranch_scc0 CV_loop')
    it(0, rd(1, 1))
    nx = {}
    for n in range(8):
        nx[(n + 1) * (n + 2) // 2 - 1 + 9] = 'ds_write_b128 v%d, %s offset:%d' % (VXW, v(CA + 4 * n, 4), 1024 * n)
    it(1, nx)
    stamp(a, 8)
    for i in range(4):
        a('s_lshl_b32 s%d, s%d, 16' % (48 + i, CV_D + (i >> 1)) if not (i & 1) else 's_and_b32 s%d, s%d, 0xffff0000' % (48 + i, CV_D + (i >> 1)))
    a('s_nop 4')
    for i in sorted(nx): a(nx[i])
    a('s_waitcnt lgkmcnt(0)')
    a('s_mov_b64 exec, 1')
    a('ds_add_u32 v254, v253')
    a('s_mov_b64 exec, -1')
    L, Dn = a.newlabel('CS'), a.newlabel('CSD')
    a('s_mov_b32 s11, 0x400000')
    a.label(L)
    a('ds_read_b32 v247, v254')
    a('s_waitcnt lgkmcnt(0)')
    a('v_cmp_le_u32 vcc, 4, v247')
    a('s_cbranch_vccnz %s' % Dn)
    a('s_sub_u32 s11, s11, 1')
    a('s_cbranch_scc0 %s' % L)
    a.label(Dn)
    stamp(a, 9)
    a('s_mov_b32 s11, 0xffff0000')
    a('s_cmp_eq_u32 s%d, 1' % CV_M)
    a('s_cbranch_scc1 CV_epiB')
    P, UR, O = 12, 48, 72
    def finish(nch, reg):
        for un in range(nch // 2):
            for t in range(2):
                for hh in range(2):
                    for c in (2 * un, 2 * un + 1):
                        u = UR + 4 * c + 2 * t + hh
                        R = reg(c, t) + 2 * hh
                        a('v_and_b32 v%d, s11, v%d' % (68 + (c & 1), u))
                        a('v_lshlrev_b32 v%d, 16, v%d' % (u, u))
                        a('v_fmac_f32 v%d, s%d, v%d' % (R, 48 + c, 68 + (c & 1)))
                        a('v_fmac_f32 v%d, s%d, v%d' % (R + 1, 48 + c, u))
                    R0, R1 = reg(2 * un, t) + 2 * hh, reg(2 * un + 1, t) + 2 * hh
                    oo = O + 8 * un + 4 * t + 2 * hh
                    a('v_cvt_pk_bf16_f32 v%d, v%d, v%d' % (oo, R0, R1))
                    a('v_cvt_pk_bf16_f32 v%d, v%d, v%d' % (oo + 1, R0 + 1, R1 + 1))
                if un == 1 and t == 0: a('s_add_u32 s%d, s%d, 8192' % (DO, DO))
                a('buffer_store_dwordx4 %s, v237, %s, s%d offen offset:%d sc1' % (v(O + 8 * un + 4 * t, 4), s(SZ, 4), DO, t * 1024))
    def arrive2():
        a('s_mov_b64 exec, 1')
        a('ds_add_u32 v254, v253')
        a('s_mov_b64 exec, -1')
    def ureads(nch):
        for c in range(nch):
            for t in range(2):
                for hh in range(2):
                    a('ds_read_b32 v%d, v%d offset:%d' % (UR + 4 * c + 2 * t + hh, VU, c * CW + 512 * (1 - t) + 64 * (1 - hh)))
    for c in range(2):
        for t in range(2):
            for h in range(2):
                a('ds_read_b128 %s, v%d offset:%d' % (v(P + 16 * c + 8 * t + 4 * h, 4), VXR, (2 * c + h) * 8192 + t * 1024))
    ureads(2)
    a('s_waitcnt lgkmcnt(8)')
    for c in range(2):
        for t in range(2):
            R = P + 16 * c + 8 * t
            a('v_pk_add_f32 %s, %s, %s' % (v(R, 2), v(R, 2), v(R + 4, 2)))
            a('v_pk_add_f32 %s, %s, %s' % (v(R + 2, 2), v(R + 2, 2), v(R + 6, 2)))
    a('s_waitcnt lgkmcnt(0)')
    arrive2()
    finish(2, lambda c, t: P + 16 * c + 8 * t)
    stamp(a, 1)
    a('s_waitcnt vmcnt(0)')
    stamp(a, 2)
    set_flag(a, S_F2)
    a('s_branch K_aterm')
    a.label('CV_epiB')
    for c in range(4):
        for t in range(2):
            a('ds_read_b128 %s, v%d offset:%d' % (v(P + 8 * c + 4 * t, 4), VXR, c * CW + t * 1024))
    ureads(4)
    a('v_lshlrev_b32 v247, %d, v1' % OPT['fsz'])
    a('s_waitcnt lgkmcnt(0)')
    arrive2()
    finish(4, lambda c, t: P + 8 * c + 4 * t)
    stamp(a, 1)
    a('s_waitcnt vmcnt(0)')
    stamp(a, 2)
    a('s_mov_b64 exec, 3')
    a('buffer_store_dwordx2 v[250:251], v247, %s, s%d offen sc1' % (s(SF, 4), S_F2))
    a('s_mov_b64 exec, -1')
    a.label('K_aterm')
    aterm(a)

G2_SW = 72
G2_KB, G2_O, G2_T, G2_T2, G2_LB, G2_RB, G2_CB = 65, 66, 67, 68, 69, 8, 9
G2_ACC, G2_WB, G2_HB = 28, 108, 188
def g2_lds(r):
    return (49152 + r * 20480) if r < 2 else ((r - 2) * 20480)
def g2_ks(p, dst):
    L = ['s_add_u32 s%d, s%d, %d' % (dst, G2_KB, 4 * p),
         's_cmp_ge_u32 s%d, 54' % dst,
         's_cselect_b32 s%d, 54, 0' % G2_T,
         's_sub_u32 s%d, s%d, s%d' % (dst, dst, G2_T)]
    if p == 13:
        L += ['s_cmp_ge_u32 s%d, 2' % S_W, 's_cselect_b32 s%d, 60, s%d' % (dst, dst)]
    return L
def g2_w_items(p, slot, va=237):
    B = G2_WB + 20 * slot
    it = []
    for t in range(5):
        pre = g2_ks(p, G2_O) + ['s_mul_i32 s%d, s%d, 40960' % (G2_O, G2_O)] if t == 0 else []
        it.append(item('buffer_load_dwordx4 %s, v%d, %s, s%d offen offset:%d sc1' % (v(B + 4 * t, 4), va if t < 4 else va + 1, s(G2_SW, 4), G2_O, (t & 3) * 1024), pre, vm=('w', p)))
    return it
def g2_wl_items(p, r):
    it = []
    for t in range(5):
        pre = []
        if t == 0:
            pre = g2_ks(p, G2_O) + ['s_mul_i32 s%d, s%d, 40960' % (G2_O, G2_O), 's_add_u32 m0, s%d, %d' % (G2_LB, g2_lds(r))]
        if t == 4:
            pre = ['s_add_u32 m0, s%d, %d' % (G2_LB, g2_lds(r) + 4096)]
        it.append(item('buffer_load_dwordx4 v%d, %s, s%d offen offset:%d sc1 lds' % (237 if t < 4 else 238, s(G2_SW, 4), G2_O, (t & 3) * 1024), pre, vm=('wl', p)))
    return it
def g2_pre(a):
    RB, CB, T, T2 = G2_RB, G2_CB, G2_T, G2_T2
    a('s_lshl_b32 s%d, s3, 2' % RB)
    a('s_lshr_b32 s%d, s4, 3' % CB)
    a('s_add_u32 s%d, s%d, s%d' % (RB, RB, CB))
    a('s_and_b32 s%d, s4, 7' % CB)
    a('s_mul_i32 s%d, s%d, 5120' % (T, CB))
    a('s_add_u32 s%d, s%d, %s' % (T, T, hex(WS_W2P)))
    srd(a, G2_SW, P_WS, 53 * 40960 + 5120, 's%d' % T)
    if OPT['rot2']:
        a('s_and_b32 s%d, s%d, 3' % (T, RB))
        a('s_mul_i32 s%d, s%d, %d' % (T, T, 13 if OPT['rot2r'] else 0))
        a('s_mul_i32 s%d, s%d, 7' % (T2, CB))
        a('s_add_u32 s%d, s%d, s%d' % (T, T, T2))
        a('s_add_u32 s%d, s%d, s%d' % (T, T, S_W))
        a('s_cmp_ge_u32 s%d, 54' % T)
        a('s_cselect_b32 s%d, 54, 0' % T2)
        a('s_sub_u32 s%d, s%d, s%d' % (G2_KB, T, T2))
    else:
        a('s_mov_b32 s%d, s%d' % (G2_KB, S_W))
    a('s_mul_i32 s%d, s%d, 5120' % (G2_LB, S_W))
    a('v_add_u32 v238, 4096, v237')
    a('s_mul_i32 s%d, s%d, 5' % (T, CB))
    a('s_lshr_b32 s%d, s%d, 2' % (T, T))
    a('s_mul_i32 s%d, s%d, %d' % (T, T, 18 << OPT['fsw']))
    a('s_add_u32 s%d, s%d, %s' % (T, T, hex(F_W)))
    a('s_cmp_eq_u32 s%d, 0' % S_W)
    a('s_cselect_b32 s%d, s%d, %s' % (T, T, hex(OOB)))
    a('v_min_u32 v248, 35, v1')
    a('v_lshl_add_u32 v248, v248, %d, s%d' % (OPT['fsw'], T))

def g2_fh_addr(a):
    T = G2_T
    a('v_min_u32 v247, 13, v1')
    a('v_lshl_add_u32 v248, v247, 2, s%d' % G2_KB)
    a('v_subrev_u32 v247, 54, v248')
    a('v_min_u32 v248, v248, v247')
    a('s_lshl_b32 s%d, s%d, %d' % (T, G2_RB, 6 + OPT['fsh']))
    a('v_lshl_add_u32 v248, v248, %d, s%d' % (OPT['fsh'], T))

def gemm2(a):
    RB, CB, W = G2_RB, G2_CB, S_W
    SHh, SQ, SZ, SG, SO = 56, 52, 44, 60, 48
    O, T, T2 = G2_O, G2_T, G2_T2
    ACC, WB, HB = G2_ACC, G2_WB, G2_HB
    DH = 4
    OH, TH = 70, 71
    g = G1(a)
    FH_LOAD = 'buffer_load_dwordx2 v[26:27], v22, %s, 0 offen sc1' % s(SF, 4)
    FZ_LOAD = 'buffer_load_dwordx2 v[252:253], v25, %s, 0 offen sc1' % s(SF, 4)
    a('v_mov_b32 v22, v248')
    a('s_setprio 0')
    g.emit(item(FH_LOAD, vm='fh'))
    for it in g2_wl_items(6, 2) + g2_wl_items(7, 3): g.emit(it)
    a('v_mov_b32 v2, v237')
    a('v_mov_b32 v3, v238')
    a('s_mul_i32 s%d, s%d, %d' % (T, RB, 54 * 4096))
    if WS_H: a('s_add_u32 s%d, s%d, %s' % (T, T, hex(WS_H)))
    srd(a, SHh, P_WS, 54 * 4096, 's%d' % T)
    for j in range(4):
        a('s_xor_b32 s%d, s%d, %d' % (T, W, j))
        a('s_lshl_b32 s%d, s%d, 10' % (T, T))
        a('v_add_u32 v%d, s%d, v2' % (4 + j, T))
    a('v_add_u32 v24, s%d, v2' % G2_LB)
    a('v_add_u32 v23, %d, v24' % g2_lds(1))
    def late_setup(a):
        a('s_lshl_b32 s%d, s%d, 6' % (T, RB))
        a('s_lshl_b32 s%d, s%d, 4' % (T2, W))
        a('s_add_u32 s%d, s%d, s%d' % (T, T, T2))
        a('s_mul_i32 s%d, s%d, 1280' % (T, T))
        a('s_mul_i32 s%d, s%d, 160' % (T2, CB))
        a('s_add_u32 s%d, s%d, s%d' % (T, T, T2))
        chunk_addrs(a, 12, 10, T)
        lds_q_base(a, T2, W)
        a('v_add_u32 v15, s%d, v2' % T2)
        a('v_lshrrev_b32 v9, 4, v1')
        a('v_and_b32 v10, 15, v1')
        a('v_mul_u32_u24 v10, 160, v10')
        a('v_lshl_add_u32 v10, v9, 3, v10')
        a('v_add_u32 v10, s%d, v10' % T2)
        srd(a, SO, P_OUT, SZ_ACT)
        a('s_mul_i32 s%d, s%d, %d' % (T, W, A_STRIDE))
        a('s_add_u32 s%d, s%d, %d' % (T, T, CONV_BASE))
        a('v_add_u32 v11, s%d, v2' % T)
    stamp(a, 6)
    g.wait(vm=['fh'])
    a('v_cmp_eq_u64 s[76:77], %s, v[26:27]' % NC)
    order = [0, 1, 2, 3, 4, 8, 5, 9, 6, 10, 7, 11, 12, 13]
    slot = [0, 1, 2, 3, 2, 0, 2, 1, 2, 3, 2, 0, 1, 3]
    refill = {0: 8, 1: 9, 2: 4, 3: 10, 4: 5, 5: 11, 6: 6, 7: 12, 8: 7, 9: 13}
    slow = []
    def fh_check(bit):
        S, B = a.newlabel('FHS'), a.newlabel('FHB')
        slow.append((S, B, bit))
        return ['s_bitcmp1_b32 s76, %d' % bit, 's_cbranch_scc0 %s' % S, B + ':']
    def ks_lines(p, dst, tmp):
        L = ['s_add_u32 s%d, s%d, %d' % (dst, G2_KB, 4 * p), 's_sub_u32 s%d, s%d, 54' % (tmp, dst), 's_min_u32 s%d, s%d, s%d' % (dst, dst, tmp)]
        if p == 13: L += [['s_cmp_ge_u32 s%d, 2' % S_W, 's_cselect_b32 s%d, 60, s%d' % (dst, dst)]]
        return L
    def h_prep(r):
        return [fh_check(order[r])] + ks_lines(order[r], OH, TH) + [('s_lshl_b32 s%d, s%d, 12' % (OH, OH)) if not (OPT['xh'] and r >= 4) else 's_mov_b32 s%d, 0x7000000' % OH]
    def h_item(r, t):
        B = HB + 16 * (r % DH)
        return item('buffer_load_dwordx4 %s, v%d, %s, s%d offen%s' % (v(B + 4 * t, 4), 4 + t, s(SHh, 4), OH, '' if OPT['xsc'] else ' sc1'), vm=('h', r, t))
    for r in range(DH):
        for l in h_prep(r): g.emit(item(l))
        if r == 0: stamp(a, 7)
        for t in range(4): g.emit(h_item(r, t))
        if r == 1: late_setup(a)
    ZR = WB + 40
    GQ = WB
    ZU = WB + 20
    MASK = 71
    rbuf = [g2_lds(2), g2_lds(3), g2_lds(0)]
    for r in range(14):
        p = order[r]
        if r in (1, 3, 5, 7, 9, 11, 12, 13): stamp(a, (1, 3, 5, 7, 9, 11, 12, 13).index(r) + 2, 3)
        if r < 8: stamp(a, r + 1, 4)
        if r == 0 and OPT['stamp'] == 4: a('s_mov_b32 s98, s80')
        if r == 0: stamp(a, 1, 3)
        fill = {i: [] for i in range(20)}
        if r + DH < 14:
            for i, l in enumerate(h_prep(r + DH)): fill[min(i, 4) if i < 5 else 4].append(item(l))
            for j in range(4): fill[5 * j + 4].append(h_item(r + DH, j))
        free = [5, 6, 7, 8, 10, 11, 12, 13, 15, 16, 17, 18] if r + DH < 14 else list(range(20))
        extra = []
        if r - 1 in refill:
            pp = refill[r - 1]; Bs = WB + 20 * slot[r - 1]
            if pp >= 8:
                extra += [item(l) for l in ks_lines(pp, O, T)] + [item(('s_mul_i32 s%d, s%d, 40960' % (O, O)) if not OPT['xw'] else 's_mov_b32 s%d, 0x7000000' % O)]
                extra += [item('buffer_load_dwordx4 %s, v%d, %s, s%d offen offset:%d sc1' % (v(Bs + 4 * t, 4), 2 if t < 4 else 3, s(G2_SW, 4), O, (t & 3) * 1024), vm=('w', pp)) for t in range(5)]
            else:
                lb = g2_lds(pp - 4); ad = 24
                if pp == 5: ad, lb = 23, 0
                extra += [item('ds_read_b128 %s, v%d offset:%d' % (v(Bs + 4 * t, 4), ad, lb + t * 1024), lg=('wl', pp), needvm=[('wl', pp)]) for t in range(5)]
        if OPT['arf'] and r in (0, 3):
            extra += [item(FH_LOAD, vm='fh')]
        if OPT['arf'] and r in (3, 5):
            extra = [item('v_cmp_eq_u64 s[76:77], %s, v[26:27]' % NC, needvm=['fh'])] + extra
        if r == OPT['ztrig']:
            extra += [item('ds_write_b32 v254, v253 offset:4', lg='trig')]
        if r == 11:
            for j in range(1, 4):
                extra += [item(['s_xor_b32 s%d, s%d, %d' % (T, W, j), 's_mul_i32 s%d, s%d, 5120' % (T, T), 'v_add_u32 v%d, s%d, v2' % (4 + j, T)])]
        wr = []
        if r == 13:
            wr = ['ds_write_b128 v24, %s offset:%d' % (v(ACC + (j * 5 + mt) * 4, 4), rbuf[j - 1] + mt * 1024) for j in (1, 2, 3) for mt in range(5)]
            for i in range(9, 20): fill[i].append(item(wr[i - 9]))
        assert len(extra) <= len(free), (r, len(extra))
        for i, it in enumerate(extra): fill[free[i]].append(it)
        Bw = WB + 20 * slot[r]; Bh = HB + 16 * (r % DH)
        js = (0, 1, 2, 3) if r < 13 else (1, 2, 3, 0)
        i = 0
        for j in js:
            g.wait(vm=[('h', r, j), ('w', p)], lg=[('wl', p)])
            for mt in range(5):
                acc = v(ACC + (j * 5 + mt) * 4, 4)
                a('v_mfma_f32_16x16x32_bf16 %s, %s, %s, %s' % (acc, v(Bw + 4 * mt, 4), v(Bh + 4 * j, 4), '0' if r == 0 else acc))
                for it in fill[i]: g.emit(it)
                i += 1
    stamp(a, 8)
    for l in wr[11:]: a(l)
    a('s_waitcnt lgkmcnt(0)')
    a('s_barrier')
    stamp(a, 9)
    a('ds_read_b64 v[8:9], v11 offset:5120')
    def rd(m2):
        for j in range(1, 4):
            a('ds_read_b128 %s, v%d offset:%d' % (v(ACC + (j * 5 + m2) * 4, 4), 4 + j, rbuf[j - 1] + m2 * 1024))
        a('ds_read_b128 %s, v11 offset:%d' % (v(GQ + 4 * m2, 4), m2 * 1024))
    for m2 in range(3): rd(m2)
    for mt in range(5):
        if mt + 3 < 5: rd(mt + 3)
        a('s_waitcnt lgkmcnt(%d)' % (4 * min(3, 4 - mt)))
        A0 = ACC + 4 * mt
        for h in range(2):
            a('v_pk_add_f32 %s, %s, %s' % (v(A0 + 2 * h, 2), v(A0 + 2 * h, 2), v(A0 + 20 + 2 * h, 2)))
            a('v_pk_add_f32 %s, %s, %s' % (v(A0 + 40 + 2 * h, 2), v(A0 + 40 + 2 * h, 2), v(A0 + 60 + 2 * h, 2)))
        for h in range(2):
            a('v_pk_add_f32 %s, %s, %s' % (v(A0 + 2 * h, 2), v(A0 + 2 * h, 2), v(A0 + 40 + 2 * h, 2)))
        for h in range(2):
            a('v_pk_fma_f32 %s, %s, v[8:9], %s' % (v(A0 + 2 * h, 2), v(A0 + 2 * h, 2), v(GQ + 4 * mt + 2 * h, 2)))
        a('v_cvt_pk_bf16_f32 v%d, v%d, v%d' % (ZU + 2 * mt, A0, A0 + 1))
        a('v_cvt_pk_bf16_f32 v%d, v%d, v%d' % (ZU + 1 + 2 * mt, A0 + 2, A0 + 3))
    for mt in range(5):
        a('ds_write_b64 v10, %s offset:%d' % (v(ZU + 2 * mt, 2), 32 * mt))
    for i in range(3):
        a('ds_read_b128 %s, v15 offset:%d' % (v(16 + 4 * i, 4), 1024 * i))
    for i in range(3):
        a('s_waitcnt lgkmcnt(%d)' % (2 - i))
        a('buffer_store_dwordx4 %s, v%d, %s, 0 offen' % (v(16 + 4 * i, 4), 12 + i, s(SO, 4)))
    stamp_end(a)
    a('s_endpgm')
    for (S, B, bit) in slow:
        L = a.newlabel('SL')
        a.label(S)
        a('s_mov_b32 s11, 0x20000')
        a.label(L)
        if OPT['stamp'] == 4: a('s_add_u32 s98, s98, 100')
        if bit is None:
            a(FZ_LOAD)
            a('s_waitcnt vmcnt(0)')
            a('v_cmp_eq_u64 vcc, %s, v[252:253]' % NC)
            a('s_cmp_eq_u64 vcc, -1')
        else:
            a(FH_LOAD)
            a('s_waitcnt vmcnt(0)')
            a('v_cmp_eq_u64 s[76:77], %s, v[26:27]' % NC)
            a('s_bitcmp1_b32 s76, %d' % bit)
        a('s_cbranch_scc1 %s' % B)
        a('s_sleep %d' % OPT['fsl'])
        a('s_sub_u32 s11, s11, 1')
        a('s_cbranch_scc0 %s' % L)
        a('s_branch %s' % B)

def kernel(a, name):
    a.raw('.p2align 8')
    a.label(name)
    a('s_cmp_ge_u32 s2, 256')
    a('s_cbranch_scc1 K_exit')
    a('s_load_dwordx16 s[16:31], s[0:1], 0')
    a('s_load_dwordx8 s[32:39], s[0:1], 64')
    a('s_load_dwordx4 s[40:43], s[0:1], 96')
    a('s_memrealtime s[74:75]')
    stamp_begin(a)
    a('v_lshrrev_b32 v1, 6, v0')
    a('s_and_b32 s3, s2, 7')
    a('v_readfirstlane_b32 s%d, v1' % S_W)
    a('v_and_b32 v1, 63, v0')
    a('s_lshr_b32 s4, s2, 3')
    common_pre(a)
    a('s_getreg_b32 s%d, hwreg(HW_REG_XCC_ID)' % S_XCC)
    a('s_add_u32 s%d, s%d, 1' % (S_XCC, S_XCC))
    a('s_cmp_ge_u32 s4, 27')
    a('s_cbranch_scc1 K_prep')
    a('s_mov_b32 s8, s3')
    a('s_mov_b32 s9, s4')
    gemm1_pre(a)
    a('s_waitcnt lgkmcnt(0)')
    g, d = gemm1_head(a)
    a('s_cmp_lt_u32 s%d, 4' % S_W)
    a('s_cbranch_scc1 K_tail_g2')
    gemm1_tail(a, g, d, 'CV')
    a.label('K_conv')
    conv(a)
    a.label('K_prep')
    a('s_mul_i32 s8, s3, 5')
    a('s_add_u32 s8, s8, s4')
    a('s_sub_u32 s8, s8, 27')
    a('s_lshl_b32 s7, s8, 3')
    a('s_add_u32 s7, s7, s%d' % S_W)
    ut_pre(a)
    a('s_waitcnt lgkmcnt(0)')
    ut_loads(a)
    stamp(a, 1)
    flag_srd(a)
    srd(a, 72, P_DBG, 256)
    go_off(a)
    a(GO_LOAD)
    a('s_waitcnt vmcnt(9)')
    stamp(a, 2)
    ut_k(a)
    a('s_mov_b32 s69, 0x20000')
    a.label('K_sp_go')
    a('s_waitcnt vmcnt(0)')
    a('v_cmp_ne_u32 vcc, 0, v250')
    a('s_cbranch_vccnz K_sp_go2')
    a('s_sleep 4')
    a(GO_LOAD)
    a('s_sub_u32 s69, s69, 1')
    a('s_cbranch_scc0 K_sp_go')
    a.label('K_sp_go2')
    fx_publish(a, 0)
    ut_v(a)
    stamp(a, 3)
    a('s_waitcnt vmcnt(0)')
    set_flag(a, S_F2)
    go_sgpr(a)
    a('s_mov_b32 s%d, %s' % (S_F1, hex(OOB)))
    a('s_barrier')
    stamp(a, 5)
    a('s_cmp_lt_u32 s%d, 4' % S_W)
    a('s_cbranch_scc1 K_prep_g2')
    a('s_lshl_b32 s7, s8, 1')
    a('s_add_u32 s7, s7, 240')
    a('s_mov_b32 s%d, 1' % CV_M)
    gp = G1(a)
    cv_pre(a)
    for it in cv_h_items(): gp.emit(it)
    cv_setup1(a)
    for ls in cv_pads():
        for l in ls: a(l)
    poll(a, PF_LOAD, 244, 11, sleep=8)
    cv_u_loads(a)
    a('s_barrier')
    fx = cv_fix()
    for l in fx[0]: a(l)
    a('s_waitcnt lgkmcnt(0)')
    for l in fx[1:]: a(l)
    for l in cv_g_reads(0, 0): a(l)
    a('s_waitcnt vmcnt(0)')
    a('s_branch K_conv')
    a.label('K_prep_g2')
    g2_pre(a)
    a(PF_LOAD)
    a('s_waitcnt vmcnt(0)')
    fw_check(a)
    a('s_barrier')
    for p in range(4):
        for it in g2_w_items(p, p): gp.emit(it)
    for r in range(2):
        for it in g2_wl_items(4 + r, r): gp.emit(it)
    g2_fh_addr(a)
    a('s_branch K_gemm2')
    a.label('K_tail_g2')
    gemm1_tail(a, g, d, 'G2')
    a.label('K_gemm2')
    gemm2(a)
    a.label('K_exit')
    a('s_endpgm')

def main(out):
    hdr = open('cdna_kernels/%s.s.ref' % NAME).read().split('\n')
    head = [l for l in hdr if l.startswith(';') and '@launch' not in l and 'Override' not in l and 'grid=ceil' not in l]
    a = Asm()
    for l in head: a.raw(l)
    a.raw('; @launch grid=(256,1,1) block=(512,1,1) lds=%d' % LDS_TOTAL)
    a.raw('.amdgcn_target "amdgcn-amd-amdhsa--gfx950"')
    a.raw('.text')
    nm = NAME + '_kernel'
    a.raw('.globl %s' % nm)
    a.raw('.type %s,@function' % nm)
    kernel(a, nm)
    a.raw('.section .rodata,"a"')
    a.raw(kernel_desc(nm, 256))
    open(out, 'w').write(a.text())

if __name__ == '__main__':
    out = 'cdna_kernels/%s.s' % NAME
    for arg in sys.argv[1:]:
        if '=' in arg:
            k, val = arg.split('='); OPT[k] = int(val)
        else:
            out = arg
    main(out)
```

```python
import sys, copy
from asmlib import *

NAME = 'gated_mix__ssm_conv_h3__glu_gated_swiglu__prompt'
WS_H = 0
WS_W2P = 0x800000
WS_UT = 0xC00000
WS_Z4 = 0x1000000
WS_G = 0x1400000
WS_F = 0x1500000
F_H, F_U, F_W, F_X, F_Z = 0, 0x40000, 0x50000, 0x58000, 0x60000
F_SIZE = 0xA0000
FS = 7
SZ_ACT = 2048 * 640 * 2
SZ_W = 640 * 1728 * 2
SZ_H = 2048 * 1728 * 2
P_Q, P_K, P_V, P_SK, P_SSMK, P_SSMD, P_BX, P_W1, P_W3, P_W2, P_GW, P_OUT, P_DBG, P_WS = [16 + 2 * i for i in range(14)]
NLOG2E = '0xbfb8aa3b'
OPT = dict(probe=-1, pc=0, pwg=-1, rot2=1, stamp=0, prio=0, cprio=1, cflag=0, touch=0, nodma=0, tp=2, lead=3, rot2r=0, rot1=10, eprio=3, gprio=2, fsl=8, ebar=1, npost=0, allwait=0, npre=10, fbar=0, zr=10, fwst=7, local=1, wbl2=0, arf=1, xw=0, xh=0, xsc=0, xq=0, zsl=16, fsx=3, fsh=3, fsw=3, fsu=7, fsz=3, ztrig=5)
LDS_TOTAL = 163840
LDS_CNT = LDS_TOTAL - 32
SLOT = [0, 98304, 49152]
LDS_W2S = 147456
LDS_GW = 159744
CONV_BASE = 98304
S_W = 10
SF = 12
S_F1, S_F2 = 5, 6
S_XCC = 77
WS_DBG = 0x2000000
OOB = 0x1000000

def stamp(a, i, mode=1):
    if OPT['probe'] == i + 100 * (mode - 1):
        a('s_memrealtime s[96:97]' if not OPT['pc'] else 's_memtime s[92:93]')
    if OPT['stamp'] == mode:
        a('s_memtime s[%d:%d]' % (80 + 2 * i, 81 + 2 * i))
def stamp_begin(a):
    if OPT['probe'] >= 0:
        a('s_memrealtime s[96:97]')
        a('s_memtime s[94:95]')
        a('s_memtime s[92:93]')
    if OPT['stamp']:
        a('s_memrealtime s[78:79]')
        for i in range(11): a('s_mov_b64 s[%d:%d], 0' % (80 + 2 * i, 81 + 2 * i))
        a('s_memtime s[80:81]')
def stamp_end(a):
    if OPT['probe'] >= 0:
        L = a.newlabel('PRB')
        if OPT['probe'] == 10:
            a('s_waitcnt vmcnt(0)')
            a('s_memrealtime s[96:97]')
        a('s_cmp_lg_u32 s10, 0')
        a('s_cbranch_scc1 %sx' % L)
        if OPT['pwg'] >= 0:
            a('s_cmp_lg_u32 s2, %d' % OPT['pwg'])
            a('s_cbranch_scc1 %sx' % L)
        a('s_waitcnt lgkmcnt(0)')
        a('s_add_u32 s96, s96, 4000')
        if OPT['pc']:
            a('s_sub_u32 s92, s92, s94')
            a('s_lshr_b32 s92, s92, 4')
            a('s_add_u32 s96, s96, s92')
        a.label(L)
        a('s_sleep 1')
        a('s_memrealtime s[98:99]')
        a('s_waitcnt lgkmcnt(0)')
        a('s_sub_u32 s98, s98, s96')
        a('s_cmp_lt_i32 s98, 0')
        a('s_cbranch_scc1 %s' % L)
        a.label(L + 'x')
    if OPT['stamp']:
        a('s_waitcnt vmcnt(0) lgkmcnt(0)')
        a('s_memtime s[100:101]')
        a('s_memrealtime s[76:77]')
        srd(a, 44, P_WS, 0x100000, WS_DBG)
        a('s_lshl_b32 s5, s2, 3')
        a('s_add_u32 s5, s5, s10')
        a('s_lshl_b32 s5, s5, 6')
        a('s_waitcnt lgkmcnt(0)')
        a('v_mov_b32 v0, s78')
        a('v_mov_b32 v1, s76')
        for i in range(11): a('v_mov_b32 v%d, s%d' % (2 + i, 80 + 2 * i))
        a('v_mov_b32 v16, s5')
        a('s_mov_b64 exec, 1')
        for i in range(4):
            a('buffer_store_dwordx4 v[%d:%d], v16, s[44:47], 0 offen offset:%d' % (4 * i, 4 * i + 3, 16 * i))

def capture(a, fn):
    save = a.lines; a.lines = []
    fn()
    out = a.lines; a.lines = save
    return out

class Q:
    def __init__(self): self.q = []
    def push(self, tag, sure=True): self.q.append((tag, sure))
    def need(self, tags):
        idx = [i for i, (t, _) in enumerate(self.q) if t in tags]
        if not idx: return None
        last = max(idx)
        n = sum(1 for (_, sure) in self.q[last + 1:] if sure)
        self.q = self.q[last + 1:]
        return n
    def clear(self): self.q = []

NC = 's[0:1]'
def poll_check(a, loadline, vtmp, sc, sleep=2):
    L, D = a.newlabel('POLL'), a.newlabel('POLLD')
    a('s_mov_b32 s%d, 0x20000' % sc)
    a.label(L)
    a('v_cmp_eq_u64 vcc, %s, %s' % (NC, v(vtmp, 2)))
    a('s_cmp_eq_u64 vcc, -1')
    a('s_cbranch_scc1 %s' % D)
    a('s_sleep %d' % sleep)
    a(loadline)
    a('s_waitcnt vmcnt(0)')
    a('s_sub_u32 s%d, s%d, 1' % (sc, sc))
    a('s_cbranch_scc0 %s' % L)
    a.label(D)
def poll(a, loadline, vtmp, sc, sleep=2):
    a(loadline)
    a('s_waitcnt vmcnt(0)')
    poll_check(a, loadline, vtmp, sc, sleep)

GO_LOAD = 'buffer_load_dwordx2 v[250:251], v252, s[72:75], s11 offen sc1'
PF_LOAD = 'buffer_load_dwordx2 v[244:245], v248, s[%d:%d], 0 offen sc1' % (SF, SF + 3)

def set_flag(a, soff):
    a('s_mov_b64 exec, 1')
    a('buffer_store_dwordx2 v[250:251], v252, %s, s%d offen sc1' % (s(SF, 4), soff))
    a('s_mov_b64 exec, -1')

def fx_publish(a, wave):
    a('v_mov_b32 v240, v250')
    a('v_xor_b32 v241, s%d, v251' % S_XCC)
    a('s_lshl_b32 s11, s3, 5')
    a('s_add_u32 s11, s11, s4')
    a('s_lshl_b32 s11, s11, %d' % OPT['fsx'])
    a('s_add_u32 s11, s11, %s' % hex(F_X))
    a('s_cmp_eq_u32 s%d, %d' % (S_W, wave))
    a('s_cselect_b32 s11, s11, %s' % hex(OOB))
    a('s_mov_b64 exec, 1')
    a('buffer_store_dwordx2 v[240:241], v252, %s, s11 offen sc1' % s(SF, 4))
    a('s_mov_b64 exec, -1')
def fx_load(a):
    a('s_lshr_b32 s11, s%d, 1' % S_W)
    a('s_lshl_b32 s11, s11, 3')
    a('v_and_b32 v249, 7, v1')
    a('v_add_u32 v249, s11, v249')
    a('s_lshl_b32 s11, s3, %d' % (5 + OPT['fsx']))
    a('s_add_u32 s11, s11, %s' % hex(F_X))
    a('v_lshlrev_b32 v249, %d, v249' % OPT['fsx'])
    a('buffer_load_dwordx2 v[242:243], v249, %s, s11 offen sc1' % s(SF, 4))
def fx_eval(a):
    a('v_cmp_eq_u64 vcc, v[240:241], v[242:243]')
    a('s_cmp_eq_u64 vcc, -1')
    a('s_cselect_b32 s%d, %d, 0' % (S_XCC, 1 if OPT['local'] else 0))
def store2(a, line):
    L1, L2 = a.newlabel('SL1'), a.newlabel('SL2')
    a('s_cmp_eq_u32 s%d, 1' % S_XCC)
    a('s_cbranch_scc1 %s' % L1)
    a(line + ' sc1')
    a('s_branch %s' % L2)
    a.label(L1)
    a(line)
    a.label(L2)

def nonce_publish(a):
    L = a.newlabel('NP')
    a('s_or_b32 s11, s2, s%d' % S_W)
    a('s_cmp_lg_u32 s11, 0')
    a('s_cbranch_scc1 %s' % L)
    a('s_or_b32 s74, s74, 1')
    a('v_mov_b32 v250, s74')
    a('v_mov_b32 v251, s75')
    a('v_lshlrev_b32 v249, 7, v1')
    a('s_mov_b64 exec, 3')
    a('global_store_dwordx2 v249, v[250:251], s[%d:%d] sc1' % (P_DBG, P_DBG + 1))
    a('s_mov_b64 exec, -1')
    a.label(L)
def go_off(a):
    a('s_and_b32 s11, s4, 1')
    a('s_lshl_b32 s11, s11, 7')
def go_issue(a):
    srd(a, 72, P_DBG, 256)
    go_off(a)
    a('s_cmp_eq_u32 s%d, 0' % S_W)
    a('s_cselect_b32 s11, s11, %s' % hex(OOB))
    a(GO_LOAD)
def go_check(a):
    L, R, D = a.newlabel('GOC'), a.newlabel('GOR'), a.newlabel('GOD')
    a('s_cmp_lg_u32 s%d, 0' % S_W)
    a('s_cbranch_scc1 %s' % L)
    go_off(a)
    a('s_mov_b32 s69, 0x20000')
    a.label(R)
    a('v_cmp_ne_u32 vcc, 0, v250')
    a('s_cbranch_vccnz %s' % D)
    a('s_sleep 4')
    a(GO_LOAD)
    a('s_waitcnt vmcnt(0)')
    a('s_sub_u32 s69, s69, 1')
    a('s_cbranch_scc0 %s' % R)
    a.label(D)
    a('ds_write_b64 v254, v[250:251] offset:8')
    a('s_waitcnt lgkmcnt(0)')
    a.label(L)
GO_FETCH = 'ds_read_b64 v[250:251], v254 offset:8'
def go_sgpr(a):
    a('v_readfirstlane_b32 s0, v250')
    a('v_readfirstlane_b32 s1, v251')
def fw_check(a):
    D = a.newlabel('PFD')
    a('s_cmp_lg_u32 s%d, 0' % S_W)
    a('s_cbranch_scc1 %s' % D)
    poll_check(a, PF_LOAD, 244, 11, sleep=4)
    a.label(D)

def common_pre(a):
    a('v_mov_b32 v252, 0')
    a('v_mov_b32 v253, 1')
    a('v_mov_b32 v254, %d' % LDS_CNT)
    a('ds_write_b32 v254, v252')
    a('ds_write_b32 v254, v252 offset:4')
    a('ds_write_b32 v254, v252 offset:16')
    a('v_lshlrev_b32 v237, 4, v1')

def flag_srd(a):
    srd(a, SF, P_WS, F_SIZE, WS_F)

G1_FR, G1_ACC = 12, 44
SX, SW1, SW3, SH = 44, 48, 52, 56
OX, OW, LW, HO, GO = 60, 61, 62, 63, 64
GID, U0 = 70, 71

def gemm1_pre(a):
    RB, CB, W = 8, 9, S_W
    a('s_lshl_b32 s%d, s%d, 10' % (LW, W))
    a('v_lshrrev_b32 v13, 3, v1')
    a('s_lshl_b32 s11, s%d, 3' % W)
    a('v_add_u32 v13, s11, v13')
    a('v_bfe_u32 v14, v13, 1, 3')
    a('v_and_b32 v15, 7, v1')
    a('v_xor_b32 v14, v14, v15')
    a('v_lshlrev_b32 v14, 4, v14')
    a('v_mul_u32_u24 v2, 1280, v13')
    a('v_add_u32 v2, v2, v14')
    for i in range(1, 4):
        a('v_add_u32 v%d, %s, v2' % (2 + i, hex(i * 81920)))
    a('v_bfe_u32 v14, v13, 1, 1')
    a('v_lshlrev_b32 v14, 2, v14')
    a('v_xor_b32 v14, v14, v15')
    a('v_lshlrev_b32 v14, 4, v14')
    a('v_mul_u32_u24 v6, 3456, v13')
    a('v_add_u32 v6, v6, v14')
    if OPT['touch']:
        a('v_mul_u32_u24 v16, 205, v1')
        a('v_lshrrev_b32 v16, 11, v16')
        a('v_mul_u32_u24 v17, 10, v16')
        a('v_sub_u32 v17, v1, v17')
        a('s_mul_i32 s11, s%d, 10' % W)
        a('v_add_u32 v17, s11, v17')
        a('v_min_u32 v17, 74, v17')
        a('s_lshr_b32 s11, s4, 2')
        a('s_mul_i32 s11, s11, 43')
        a('v_add_u32 v18, s11, v17')
        a('v_min_u32 v18, 255, v18')
        a('v_mul_u32_u24 v18, 1280, v18')
        a('v_subrev_u32 v19, 43, v17')
        a('v_and_b32 v19, 15, v19')
        a('s_and_b32 s11, s4, 3')
        a('s_lshl_b32 s11, s11, 4')
        a('v_add_u32 v19, s11, v19')
        a('v_mul_u32_u24 v19, 3456, v19')
        a('v_cmp_gt_u32 vcc, 43, v17')
        a('v_mov_b32 v20, %d' % (64 * 3456))
        a('v_mov_b32 v21, 128')
        a('v_cndmask_b32 v242, v20, v21, vcc')
        a('v_cndmask_b32 v18, v19, v18, vcc')
        a('v_mul_u32_u24 v16, v16, v242')
        a('v_add_u32 v18, v18, v16')
    a('s_mul_i32 s%d, s%d, 27' % (GID, RB))
    a('s_add_u32 s%d, s%d, s%d' % (GID, GID, CB))
    a('s_lshr_b32 s65, s%d, 1' % W)
    a('s_and_b32 s66, s%d, 1' % W)
    a('s_lshl_b32 s67, s%d, 2' % RB)
    a('s_add_u32 s67, s67, s65')
    a('s_lshl_b32 s68, s%d, 1' % CB)
    a('s_add_u32 s68, s68, s66')
    a('s_lshl_b32 s%d, s67, 6' % S_F1)
    a('s_add_u32 s%d, s%d, s68' % (S_F1, S_F1))
    a('s_lshl_b32 s%d, s%d, %d' % (S_F1, S_F1, OPT['fsh']))

def touch_lines(lo, n):
    m = ((1 << n) - 1) << lo
    return ['s_mov_b32 exec_lo, %s' % hex(m & 0xffffffff), 's_mov_b32 exec_hi, %s' % hex(m >> 32),
            'global_load_dword v243, v[240:241], off', 's_mov_b64 exec, -1']

def gemm1_post_addr(a):
    W = S_W
    a('s_mul_i32 s%d, s67, 54' % HO)
    a('s_add_u32 s%d, s%d, s68' % (HO, HO))
    a('s_lshl_b32 s%d, s%d, 12' % (HO, HO))
    a('s_lshl_b32 s11, s65, 13')
    a('v_and_b32 v13, 31, v1')
    a('v_lshrrev_b32 v14, 5, v1')
    a('v_bfe_u32 v15, v1, 1, 3')
    a('v_xor_b32 v15, v15, v14')
    a('v_lshlrev_b32 v12, 7, v13')
    a('v_add_u32 v12, s11, v12')
    for kk in range(4):
        a('v_xor_b32 v%d, %d, v15' % (7 + kk, 2 * kk))
        a('v_lshl_add_u32 v%d, v%d, 4, v12' % (7 + kk, 7 + kk))
    a('v_bfe_u32 v11, v1, 2, 2')
    a('v_lshl_add_u32 v11, v14, 3, v11')
    a('v_lshlrev_b32 v11, 7, v11')
    a('v_bfe_u32 v12, v1, 3, 1')
    a('v_xor_b32 v12, s66, v12')
    a('v_lshl_add_u32 v11, v12, 6, v11')
    a('v_bfe_u32 v12, v1, 4, 1')
    a('v_lshl_add_u32 v11, v12, 5, v11')
    a('v_and_b32 v12, 3, v1')
    a('v_lshl_add_u32 v11, v12, 3, v11')
    a('v_add_u32 v11, 0x8000, v11')
    for i in range(5):
        a('v_add_u32 v%d, 0x18000, v%d' % (208 + i, 7 + i))
    a('v_bfe_u32 v12, v1, 4, 1')
    a('v_lshlrev_b32 v12, 10, v12')
    a('v_and_b32 v13, 15, v1')
    a('v_lshl_add_u32 v12, v13, 4, v12')
    a('v_lshl_add_u32 v213, v14, 8, v12')
    a('s_and_b32 s%d, s68, 7' % GO)
    a('s_lshl_b32 s69, s%d, 10' % GO)
    a('s_add_u32 s11, s11, s69')
    a('v_add_u32 v214, s11, v237')
    a('v_add_u32 v215, 0x18000, v214')
    a('s_and_b32 s69, s%d, 1' % GO)
    a('s_lshl_b32 s69, s69, 2')
    a('v_lshrrev_b32 v12, 4, v1')
    a('v_add_u32 v12, s69, v12')
    a('v_and_b32 v13, 7, v1')
    a('v_xor_b32 v12, v12, v13')
    a('v_lshlrev_b32 v216, 4, v12')
    a('v_add_u32 v216, %d, v216' % LDS_GW)
    if OPT['rot1']:
        a('s_lshl_b32 s69, s%d, 7' % KS0)
        a('v_add_u32 v216, s69, v216')
    a('v_mov_b32 v217, 0')
    a('s_lshl_b32 s%d, s%d, 5' % (GO, GO))
    a('s_lshl_b32 s69, s67, 8')
    a('s_add_u32 s%d, s%d, s69' % (GO, GO))
    a('s_cmp_lt_u32 s68, 8')
    a('s_cselect_b32 s%d, s%d, %s' % (GO, GO, hex(OOB)))
    a('v_lshrrev_b32 v12, 5, v1')
    a('v_bfe_u32 v13, v1, 2, 3')
    a('v_lshl_add_u32 v12, v12, 4, v13')
    a('v_lshlrev_b32 v12, 7, v12')
    a('v_and_b32 v13, 3, v1')
    a('v_lshl_add_u32 v12, v13, 3, v12')
    a('s_lshr_b32 s11, s%d, 2' % W)
    a('s_lshl_b32 s11, s11, 12')
    a('s_and_b32 s69, s%d, 3' % W)
    a('s_lshl_b32 s69, s69, 5')
    a('s_add_u32 s11, s11, s69')
    a('s_add_u32 s11, s11, %d' % LDS_W2S)
    a('v_add_u32 v236, s11, v12')

def item(lines, pre=(), vm=None, lg=None, needlg=(), needvm=()):
    if isinstance(lines, str): lines = [lines]
    if isinstance(pre, str): pre = [pre]
    return dict(pre=list(pre), lines=list(lines), vm=vm, lg=lg, needlg=set(needlg), needvm=set(needvm))

KS0 = 28
def g1_dma_items(stage):
    base = SLOT[stage % 3]
    it = []
    for m, S in ((0, SW1), (1, SW3)):
        pre = ['s_add_u32 m0, s%d, %s' % (LW, hex(base + 32768 + m * 8192))]
        if m == 0:
            if OPT['rot1']:
                pre = ['s_add_u32 s29, s%d, %d' % (KS0, stage), 's_cmp_ge_u32 s29, 10', 's_cselect_b32 s%d, 10, 0' % OW,
                       's_sub_u32 s29, s29, s%d' % OW, 's_mul_i32 s%d, s29, %d' % (OW, 64 * 3456)] + pre
            else:
                pre = ['s_mov_b32 s%d, %s' % (OW, hex(stage * 64 * 3456))] + pre
        it.append(item('buffer_load_dwordx4 v6, %s, s%d offen lds' % (s(S, 4), OW), pre, vm=('st', stage)))
    for i in range(4):
        pre = ['s_add_u32 m0, s%d, %s' % (LW, hex(base + i * 8192))]
        if i == 0:
            pre = [('s_lshl_b32 s%d, s29, 7' % OX) if OPT['rot1'] else ('s_movk_i32 s%d, %d' % (OX, stage * 128))] + pre
        it.append(item('buffer_load_dwordx4 v%d, %s, s%d offen lds' % (2 + i, s(SX, 4), OX), pre, vm=('st', stage)))
    if OPT['nodma'] and stage >= 3:
        it = []
    return it

class G1:
    def __init__(self, a):
        self.a = a; self.vq = Q(); self.lq = Q()
    def fork(self):
        g = G1(self.a); g.vq = copy.deepcopy(self.vq); g.lq = copy.deepcopy(self.lq); return g
    def wait(self, vm=(), lg=(), lgall=False):
        parts = []
        n = self.vq.need(set(vm)) if vm else None
        if n is not None: parts.append('vmcnt(%d)' % min(n, 63))
        if lgall:
            if self.lq.q: parts.append('lgkmcnt(0)')
            self.lq.clear()
        else:
            n = self.lq.need(set(lg)) if lg else None
            if n is not None: parts.append('lgkmcnt(%d)' % min(n, 15))
        if parts: self.a('s_waitcnt ' + ' '.join(parts))
    def emit(self, it, with_pre=True):
        a = self.a
        if with_pre and it['pre']:
            for l in it['pre']: a(l)
            if 'm0' in it['pre'][-1]: a('s_nop 0')
        if it['needlg'] or it['needvm']: self.wait(vm=it['needvm'], lg=it['needlg'])
        for l in it['lines']: a(l)
        if it['vm'] is not None: self.vq.push(it['vm'], sure=(it['vm'] != 'w2?'))
        if it['lg'] is not None: self.lq.push(it['lg'])
    def read_items(self, stage, kk):
        base = SLOT[stage % 3]; hi = base >= 98304
        off = base - (98304 if hi else 0)
        b = kk & 1
        B = G1_FR + 16 * b
        xa = (208 if hi else 7) + kk
        wa = 212 if hi else 11
        def w(m, h): return item('ds_read_b64_tr_b16 %s, v%d offset:%d' % (v(B + 8 + 4 * m + 2 * h, 2), wa, off + m * 8192 + kk * 2048 + h * 512), lg=('w', stage, kk, m))
        def x(nt): return item('ds_read_b128 %s, v%d offset:%d' % (v(B + 4 * nt, 4), xa, off + nt * 4096), lg=('x', stage, kk, nt))
        return [w(0, 0), w(0, 1), x(0), x(1), w(1, 0), w(1, 1)]
    def substep(self, sidx, kk, gaps):
        a = self.a
        B = G1_FR + 16 * (kk & 1)
        i = 0
        for m in range(2):
            for nt in range(2):
                g = gaps[i]
                if g and g[0]['pre']:
                    for l in g[0]['pre']: a(l)
                self.wait(lg=[('w', sidx, kk, m), ('x', sidx, kk, nt)])
                acc = v(G1_ACC + (m * 2 + nt) * 16, 16)
                a('v_mfma_f32_32x32x16_bf16 %s, %s, %s, %s' % (acc, v(B + 8 + 4 * m, 4), v(B + 4 * nt, 4), '0' if (sidx == 0 and kk == 0) else acc))
                for k, it in enumerate(g):
                    self.emit(it, with_pre=(k > 0))
                i += 1
    def step(self, sidx, ex, before_barrier=None, needvm=()):
        a = self.a
        a.comment('k-step %d' % sidx)
        if sidx < 9 or OPT['probe'] >= 0: stamp(a, sidx + 1, 2)
        base = SLOT[sidx % 3]; hi = base >= 98304
        for kk in range(4):
            if kk == 3:
                self.wait(vm=[('st', sidx + 1)] + list(needvm), lgall=True)
                if before_barrier: before_barrier(a)
                a('s_barrier')
            if kk < 3: r = self.read_items(sidx, kk + 1)
            elif sidx < 9: r = self.read_items(sidx + 1, 0)
            else: r = []
            e = list(ex.get(kk, []))
            if kk == 0:
                e = [item('ds_read_b128 v[220:223], v%d offset:%d' % (215 if hi else 214, base - (98304 if hi else 0)), lg='gx'),
                     item('ds_read_b128 v[224:227], v216 offset:%d' % (sidx * 128), lg='gx')] + e
            if kk == 2:
                e = e + [item(['v_dot2c_f32_bf16 v217, v%d, v%d' % (220 + i, 224 + i) for i in range(4)], needlg=['gx'])]
            h = (len(e) + 1) // 2
            if r: gaps = [r[0:3], r[3:6], e[:h], e[h:]]
            else:
                n4 = (len(e) + 3) // 4
                gaps = [e[i * n4:(i + 1) * n4] for i in range(4)]
            self.substep(sidx, kk, gaps)

def touch_item(stage):
    if not OPT['touch'] or stage > 9 or stage < OPT['tp']: return []
    lines = []
    if stage == 6:
        lines += ['v_mul_u32_u24 v218, 6, v242', 'v_add_co_u32 v240, vcc, v240, v218', 's_nop 1', 'v_addc_co_u32 v241, vcc, 0, v241, vcc']
    lines += touch_lines(10 * (stage % 6), 10)
    return [item(lines, vm='touch')]

def gemm1_head(a):
    RB, CB, W = 8, 9, S_W
    g = G1(a)
    nonce_publish(a)
    if OPT['rot1']:
        R = OPT['rot1']
        a('s_mul_i32 s11, s%d, %d' % (RB, 3 if R != 3 else 1))
        a('s_add_u32 s11, s11, s%d' % CB)
        a('s_mul_i32 s69, s11, %d' % ((2048 + R - 1) // R))
        a('s_lshr_b32 s69, s69, 11')
        a('s_mul_i32 s69, s69, %d' % R)
        a('s_sub_u32 s%d, s11, s69' % KS0)
        if R != 10: a('s_mul_i32 s%d, s%d, %d' % (KS0, KS0, 10 // R))
    a('s_mul_i32 s11, s%d, %d' % (RB, 256 * 1280))
    srd(a, SX, P_Q, 256 * 1280, 's11')
    a('s_lshl_b32 s11, s%d, 7' % CB)
    a('s_sub_u32 s69, %s, s11' % hex(SZ_W))
    srd(a, SW1, P_W1, 's69', 's11')
    srd(a, SW3, P_W3, 's69', 's11')
    if OPT['touch']:
        a('v_cmp_gt_u32 vcc, 59, v17')
        a('v_mov_b32 v20, s%d' % SW3); a('v_mov_b32 v21, s%d' % SW1)
        a('v_cndmask_b32 v240, v20, v21, vcc')
        a('v_mov_b32 v20, s%d' % (SW3 + 1)); a('v_mov_b32 v21, s%d' % (SW1 + 1))
        a('v_cndmask_b32 v241, v20, v21, vcc')
        a('v_cmp_gt_u32 vcc, 43, v17')
        a('v_mov_b32 v20, s%d' % SX); a('v_mov_b32 v21, s%d' % (SX + 1))
        a('v_cndmask_b32 v240, v240, v20, vcc')
        a('v_cndmask_b32 v241, v241, v21, vcc')
        a('v_add_co_u32 v240, vcc, v240, v18')
        a('s_nop 1')
        a('v_addc_co_u32 v241, vcc, 0, v241, vcc')
        g.emit(item(touch_lines(0, 10 * OPT['tp']), vm='touch'))
    for it in g1_dma_items(0): g.emit(it)
    stamp(a, 1)
    L = a.newlabel('GW')
    a('s_cmp_ge_u32 s%d, 3' % W)
    a('s_cbranch_scc1 %s' % L)
    srd(a, SH, P_GW, 1280)
    a('v_add_u32 v12, s%d, v237' % LW)
    a('v_subrev_u32 v13, 1280, v12')
    a('v_min_u32 v12, v12, v13')
    a('v_subrev_u32 v13, 1280, v12')
    a('v_min_u32 v12, v12, v13')
    a('s_add_u32 m0, s%d, %d' % (LW, LDS_GW))
    a('s_nop 0')
    a('buffer_load_dwordx4 v12, %s, 0 offen lds' % s(SH, 4))
    a.label(L)
    g.vq.push('gw', sure=False)
    gemm1_post_addr(a)
    flag_srd(a)
    srd(a, SH, P_W2, SZ_W)
    a('s_mul_i32 s11, s%d, 3641' % GID)
    a('s_lshr_b32 s11, s11, 16')
    a('s_mul_i32 s69, s11, 18')
    a('s_sub_u32 s69, s%d, s69' % GID)
    a('s_mul_i32 s69, s69, 3')
    a('s_lshr_b32 s72, s%d, 2' % W)
    a('s_add_u32 s69, s69, s72')
    a('s_cmp_ge_u32 s%d, 180' % GID)
    a('s_cselect_b32 s69, 60, s69')
    a('s_mul_i32 s%d, s69, 10' % U0)
    a('s_add_u32 s%d, s%d, s11' % (U0, U0))
    a('s_mul_i32 s69, s69, %d' % (32 * 1280))
    a('s_lshl_b32 s65, s11, 7')
    a('s_add_u32 s65, s65, s69')
    a('s_add_u32 s66, s65, %d' % (64 * 1280))
    a('s_cmp_lt_u32 s%d, 4' % W)
    a('s_cselect_b32 s66, s66, 0x7000000')
    a('s_and_b32 s67, s%d, 3' % W)
    a('s_lshl_b32 s67, s67, 10')
    a('s_add_u32 s67, s67, %d' % (LDS_W2S + 8192))
    a('s_cselect_b32 s67, s67, s67')
    a('v_lshrrev_b32 v12, 3, v1')
    a('s_and_b32 s69, s%d, 3' % W)
    a('s_lshl_b32 s69, s69, 3')
    a('v_add_u32 v12, s69, v12')
    a('v_mul_u32_u24 v12, 1280, v12')
    a('v_and_b32 v13, 7, v1')
    a('v_lshl_add_u32 v219, v13, 4, v12')
    L2 = a.newlabel('W2')
    w2l = [item('buffer_load_dwordx4 v219, %s, s65 offen lds' % s(SH, 4), pre='s_add_u32 m0, s%d, %d' % (LW, LDS_W2S), vm='w2'),
           item(['s_cmp_ge_u32 s%d, 4' % W, 's_cbranch_scc1 %s' % L2, 's_mov_b32 m0, s67', 's_nop 0',
                 'buffer_load_dwordx4 v219, %s, s66 offen lds' % s(SH, 4), L2 + ':'], vm='w2?')]
    a('s_barrier')
    for it in g1_dma_items(1): g.emit(it)
    g.wait(vm=[('st', 0), 'gw'])
    a('s_barrier')
    stamp(a, 2)
    if OPT['prio']:
        L = a.newlabel('PR')
        a('s_cmp_lt_u32 s%d, 4' % W)
        a('s_cbranch_scc1 %s' % L)
        a('s_setprio 1')
        a.label(L)
    for it in g.read_items(0, 0): g.emit(it)
    d = [g1_dma_items(i) for i in range(10)] + [[], [], []]
    ld = OPT['lead']
    t0 = []
    for st_ in range(OPT['tp'], ld): t0 += touch_item(st_)
    w2r = [item('ds_read_b64_tr_b16 v[228:229], v236', lg='w2f'), item('ds_read_b64_tr_b16 v[230:231], v236 offset:1024', lg='w2f'),
           item('ds_read_b64_tr_b16 v[232:233], v236 offset:8192', lg='w2f'), item('ds_read_b64_tr_b16 v[234:235], v236 offset:9216', lg='w2f')]
    w2s = [item('buffer_store_dwordx4 v[228:231], v237, %s, s11 offen sc1' % s(SH, 4),
                pre=['s_lshl_b32 s11, s%d, 2' % U0, 's_and_b32 s69, s%d, 3' % W, 's_add_u32 s11, s11, s69', 's_lshl_b32 s11, s11, 10'], vm='w2s', needlg=['w2f']),
           item('buffer_store_dwordx4 v[232:235], v237, %s, s11 offen sc1' % s(SH, 4),
                pre=['s_add_u32 s11, s11, %d' % (20 * 4096), 's_cmp_lt_u32 s%d, 4' % W, 's_cselect_b32 s11, s11, 0x7000000'], vm='w2s')]
    goi = item(capture_l(a, go_issue), vm='go')
    g.step(0, {0: w2l + [goi] + d[2][0:1], 1: d[2][1:4], 2: d[2][4:6], 3: d[3][0:2]})
    srd(a, SH, P_WS, SZ_W, WS_W2P)
    g.step(1, {0: d[3][2:4], 1: d[3][4:6], 3: [item(GO_FETCH, lg='go')] + w2r + d[4][0:2]}, before_barrier=go_check, needvm=['go', 'w2', 'w2?'])
    fw = item(['s_lshl_b32 s11, s%d, %d' % (GID, OPT['fsw']), 's_add_u32 s11, s11, %s' % hex(F_W), 's_cmp_eq_u32 s%d, 0' % W,
               's_cselect_b32 s11, s11, %s' % hex(OOB)] + capture_l(a, lambda a: set_flag(a, 11)), vm='fw')
    g.step(2, {0: w2s + d[4][2:4], 1: d[4][4:6], 2: [item(capture_l(a, go_sgpr), needlg=['go']), item(capture_l(a, lambda a: fx_publish(a, 1)), vm='fxp')], 3: d[5][0:2]})
    srd(a, SH, P_WS, SZ_H, None if WS_H == 0 else WS_H)
    g.step(3, {0: d[5][2:4], 1: d[5][4:6], 3: [fw] + d[6][0:2]}, needvm=['w2s'])
    g.step(4, {0: d[6][2:4], 1: d[6][4:6], 3: d[7][0:2]})
    return g, d

def capture_l(a, fn):
    return [l.strip() for l in capture(a, lambda: fn(a))]

def gemm1_tail(a, g, d, role):
    g = g.fork()
    pf = [item(PF_LOAD, vm='pf')]
    ex = {s_: {0: d[s_ + 2][2:4], 1: d[s_ + 2][4:6], 2: touch_item(s_ + OPT['lead']), 3: d[s_ + 3][0:2]} for s_ in range(5, 10)}
    bb = {}; nv = {}
    post = []
    def chunks(lines, n):
        k = (len(lines) + n - 1) // n
        return [item(lines[i * k:(i + 1) * k]) for i in range(n) if lines[i * k:(i + 1) * k]]
    if role == 'G2':
        fs = OPT['fwst']
        bb[fs] = fw_check; nv[fs] = ['pf']
        if fs == 5:
            ex[5][0] = [item(capture_l(a, g2_pre))] + pf + ex[5][0]
        else:
            ex[5][2] = ex[5][2] + [item(capture_l(a, g2_pre))]
            ex[fs][0] = pf + ex[fs][0]
        w = []
        for p in range(4): w += g2_w_items(p, p)
        slots = [(fs, 3)] + [(s_, kk) for s_ in range(fs + 1, 9) for kk in range(4)][:-1]
        for i, (s_, kk) in enumerate(slots):
            ex[s_][kk] = ex[s_][kk] + w[20 * i // len(slots):20 * (i + 1) // len(slots)]
        l01 = g2_wl_items(4, 0) + g2_wl_items(5, 1)
        ex[8][3] = l01[0:3]; ex[9][0] = l01[3:5]; ex[9][1] = l01[5:8]; ex[9][2] = l01[8:10]
        ex[9][3] = [item(capture_l(a, g2_fh_addr))]
    elif role == 'CV':
        ex[5][2] = ex[5][2] + [item(['s_sub_u32 s7, s%d, 192' % GID, 's_add_u32 s7, s7, s%d' % GID, 's_cmp_ge_u32 s%d, 192' % GID,
                                     's_cselect_b32 s7, s7, s%d' % GID, 's_cselect_b32 s%d, 1, 0' % CV_M] + capture_l(a, cv_pre)),
                               item(['s_mov_b32 exec_hi, 0', 'buffer_load_dword v246, v246, s[72:75], 0 offen', 's_mov_b64 exec, -1'], vm='touch2')]
        su = chunks(capture_l(a, cv_setup1), 8)
        ex[6][2] = su[0:2]; ex[6][0] = ex[6][0]; ex[7][2] = su[2:4]; ex[9][0] = su[4:6]; ex[9][1] = su[6:8]
        hd = cv_h_items()
        ex[7][3] = hd[0:2]; ex[8][0] = hd[2:4]; ex[8][1] = hd[4:6]; ex[8][2] = hd[6:8]
        ex[8][3] = pf + [item(l, lg='pad') for l in cv_pads()]
        nv[9] = ['cvh']
        fx = cv_fix()
        ex[9][3] = [item(fx[0], lg='fix'), item(capture_l(a, cv_try_u), needvm=['pf']), item(fx[1:], needlg=['fix'], lg='fix2')]
    ex[7][2] = [item(capture_l(a, fx_load), vm='fx')] + ex[7][2]
    ex[9][2] = ex[9][2] + [item(capture_l(a, fx_eval), needvm=['fx'])]
    for s_ in range(5, 10):
        if s_ == 5: stamp(a, 3)
        g.step(s_, ex[s_], before_barrier=bb.get(s_), needvm=nv.get(s_, ()))
    stamp(a, 4)
    if role == 'CV':
        if OPT['eprio']: a('s_setprio %d' % OPT['eprio'])
        for l in cv_g_reads(0, 0): a(l)
    elif OPT['gprio']:
        a('s_setprio %d' % OPT['gprio'])
    for sh in (1, 2):
        a('v_add_f32_dpp v217, v217, v217 quad_perm:%s row_mask:0xf bank_mask:0xf' % ('[1,0,3,2]' if sh == 1 else '[2,3,0,1]'))
        a('s_nop 1')
    a('v_add_f32_dpp v217, v217, v217 row_half_mirror row_mask:0xf bank_mask:0xf')
    a('s_mov_b32 s60, %s' % NLOG2E)
    a('s_mov_b32 s61, %s' % NLOG2E)
    a('v_mul_f32 v217, s60, v217')
    a('v_exp_f32 v217, v217')
    a('v_lshrrev_b32 v218, 3, v1')
    a('v_add_f32 v217, 1.0, v217')
    a('v_rcp_f32 v217, v217')
    a('v_lshlrev_b32 v218, 2, v218')
    srd(a, SX, P_WS, 8192, WS_G)
    a('s_mov_b32 exec_lo, 0x01010101')
    a('s_mov_b32 exec_hi, 0x01010101')
    store2(a, 'buffer_store_dword v217, v218, %s, s%d offen' % (s(SX, 4), GO))
    a('s_mov_b64 exec, -1')
    T = G1_FR
    for nt in range(2):
        for jp in range(2):
            G = G1_ACC + nt * 16 + 8 * jp
            U = G1_ACC + (2 + nt) * 16 + 8 * jp
            for i in range(0, 8, 2):
                a('v_pk_mul_f32 %s, %s, s[60:61]' % (v(T + i, 2), v(G + i, 2)))
            for i in range(0, 8, 2):
                a('v_exp_f32 v%d, v%d' % (T + i, T + i))
                a('v_exp_f32 v%d, v%d' % (T + i + 1, T + i + 1))
                a('v_pk_mul_f32 %s, %s, %s' % (v(G + i, 2), v(G + i, 2), v(U + i, 2)))
            for i in range(0, 8, 2):
                a('v_pk_add_f32 %s, %s, 1.0 op_sel_hi:[1,0]' % (v(T + i, 2), v(T + i, 2)))
            for i in range(8):
                a('v_rcp_f32 v%d, v%d' % (T + i, T + i))
            a('s_nop 0')
            for i in range(0, 8, 2):
                a('v_pk_mul_f32 %s, %s, %s' % (v(G + i, 2), v(G + i, 2), v(T + i, 2)))
            O = T + 16 + 8 * nt + 4 * jp
            for i in range(4):
                a('v_cvt_pk_bf16_f32 v%d, v%d, v%d' % (O + i, G + 2 * i, G + 2 * i + 1))
            store2(a, 'buffer_store_dwordx4 %s, v213, %s, s%d offen offset:%d' % (v(O, 4), s(SH, 4), HO, nt * 2048 + jp * 512))
    a('s_waitcnt vmcnt(0)')
    a('s_mov_b64 exec, 1')
    store2(a, 'buffer_store_dwordx2 v[250:251], v252, %s, s%d offen' % (s(SF, 4), S_F1))
    a('s_mov_b64 exec, -1')
    stamp(a, 5)
    if role == 'CV':
        L = a.newlabel('UOK')
        a('s_cmp_eq_u32 s%d, 1' % CV_T)
        a('s_cbranch_scc1 %s' % L)
        if OPT['fbar']: a('s_barrier')
        poll_check(a, PF_LOAD, 244, 11, sleep=2)
        cv_u_loads(a)
        a('s_waitcnt vmcnt(0)')
        a('s_branch K_conv')
        a.label(L)
        if OPT['fbar']: a('s_barrier')
    else:
        if OPT['fbar']: a('s_barrier')
        for it in post: g.emit(it)

UKR, UVR, UWR, UKU, UWU, UAC = 16, 60, 92, 108, 130, 138
def ut_pre(a):
    a('s_mul_i32 s11, s7, 6554')
    a('s_lshr_b32 s11, s11, 16')
    a('s_mul_i32 s69, s11, 10')
    a('s_sub_u32 s69, s7, s69')
    a('s_lshl_b32 s%d, s69, 5' % S_F2)
    a('s_add_u32 s%d, s%d, s11' % (S_F2, S_F2))
    a('s_lshl_b32 s%d, s%d, %d' % (S_F2, S_F2, OPT['fsu']))
    a('s_add_u32 s%d, s%d, %s' % (S_F2, S_F2, hex(F_U)))
    a('s_lshl_b32 s11, s11, 6')
    a('v_and_b32 v241, 0x38, v1')
    a('v_add_u32 v241, s11, v241')
    a('v_and_b32 v242, 7, v1')
    a('s_lshl_b32 s69, s69, 3')
    a('v_add_u32 v242, s69, v242')
    a('v_mul_u32_u24 v240, 1280, v241')
    a('v_lshl_add_u32 v240, v242, 4, v240')
    a('v_lshlrev_b32 v243, 15, v242')
    a('v_sub_u32 v241, 2040, v241')
    a('v_lshl_add_u32 v243, v241, 1, v243')
    a('v_subrev_u32 v241, 3840, v240')
    a('v_lshlrev_b32 v242, 6, v242')
def ut_loads(a):
    SA, SB, SC = 44, 48, 52
    srd(a, SA, P_K, SZ_ACT)
    srd(a, SB, P_V, SZ_ACT)
    srd(a, SC, P_SK, 640 * 8)
    a('s_movk_i32 s11, 5120')
    for r in range(8):
        a('buffer_load_dwordx4 %s, v240, %s, %s offen offset:%d' % (v(UKR + 12 + 4 * r, 4), s(SA, 4), '0' if r < 4 else 's11', 1280 * (r & 3)))
    for r in range(3):
        a('buffer_load_dwordx4 %s, v241, %s, 0 offen offset:%d' % (v(UKR + 4 * r, 4), s(SA, 4), 1280 * r))
    for i in range(4):
        a('buffer_load_dwordx4 %s, v242, %s, 0 offen offset:%d' % (v(UWR + 4 * i, 4), s(SC, 4), 16 * i))
    for r in range(8):
        a('buffer_load_dwordx4 %s, v240, %s, %s offen offset:%d' % (v(UVR + 4 * r, 4), s(SB, 4), '0' if r < 4 else 's11', 1280 * (r & 3)))
def ut_k(a):
    MASK = 65
    a('s_mov_b32 s%d, 0xffff0000' % MASK)
    for dw in range(4):
        for r in range(11):
            a('v_lshlrev_b32 v%d, 16, v%d' % (UKU + 2 * r, UKR + 4 * r + dw))
            a('v_and_b32 v%d, s%d, v%d' % (UKU + 2 * r + 1, MASK, UKR + 4 * r + dw))
        for ch in range(2):
            for t in range(4):
                src = UWR + 4 * dw + 2 * ch + (t >> 1)
                if t & 1:
                    a('v_and_b32 v%d, s%d, v%d' % (UWU + 2 * t + ch, MASK, src))
                else:
                    a('v_lshlrev_b32 v%d, 16, v%d' % (UWU + 2 * t + ch, src))
        A = UAC + 16 * dw
        for r in range(8):
            a('v_pk_mul_f32 %s, %s, %s' % (v(A + 2 * r, 2), v(UKU + 2 * r, 2), v(UWU + 6, 2)))
        for t in (2, 1, 0):
            for r in range(8):
                a('v_pk_fma_f32 %s, %s, %s, %s' % (v(A + 2 * r, 2), v(UKU + 2 * (r + 3 - t), 2), v(UWU + 2 * t, 2), v(A + 2 * r, 2)))
def ut_v(a):
    MASK, T = 65, 66
    srd(a, 72, P_WS, SZ_ACT, WS_UT)
    for dw in range(4):
        A = UAC + 16 * dw
        for r in range(8):
            a('v_lshlrev_b32 v%d, 16, v%d' % (UKU + 2 * r, UVR + 4 * r + dw))
            a('v_and_b32 v%d, s%d, v%d' % (UKU + 2 * r + 1, MASK, UVR + 4 * r + dw))
        for r in range(8):
            a('v_pk_mul_f32 %s, %s, %s' % (v(A + 2 * r, 2), v(A + 2 * r, 2), v(UKU + 2 * r, 2)))
        O = UWR + 8 * (dw & 1)
        for ch in range(2):
            for i in range(4):
                a('v_cvt_pk_bf16_f32 v%d, v%d, v%d' % (O + 4 * ch + i, A + 2 * (7 - 2 * i) + ch, A + 2 * (6 - 2 * i) + ch))
        for ch in range(2):
            a('s_mov_b32 s%d, %d' % (T, (2 * dw + ch) * 4096))
            a('buffer_store_dwordx4 %s, v243, s[72:75], s%d offen sc1' % (v(O + 4 * ch, 4), T))

CW = 13824
C_HA, C_HB, C_U = 0, 4640, 9280
C_EX = 2 * CW
RBC = CONV_BASE
CV_DO, CV_LB, CV_T, CV_T2, CV_W, CV_M = 66, 67, 68, 69, 9, 8
CV_D = 18
CA, CG, CF = 108, [140, 12], [172, 44]
VG, VF, VU, VXW, VXR = 228, 229, 233, 234, 235
def cv_pre(a):
    srd(a, 72, P_SSMK, SZ_ACT)
    a('s_lshl_b32 s11, s7, 2')
    a('s_load_dwordx2 s[%d:%d], s[%d:%d], s11' % (CV_D, CV_D + 1, P_SSMD, P_SSMD + 1))
    a('s_and_b32 s%d, s%d, 3' % (CV_W, S_W))
    a('s_xor_b32 s11, s%d, 1' % CV_M)
    a('s_lshr_b32 s%d, s%d, s11' % (CV_T, CV_W))
    a('s_lshl_b32 s%d, s7, 1' % CV_DO)
    a('s_add_u32 s%d, s%d, s%d' % (CV_DO, CV_DO, CV_T))
    a('s_lshl_b32 s%d, s%d, 12' % (CV_DO, CV_DO))
    a('s_mul_i32 s%d, s%d, %d' % (CV_LB, CV_T, CW))
    a('s_add_u32 s%d, s%d, %d' % (CV_LB, CV_LB, RBC))
    a('v_add_u32 v238, s%d, v237' % CV_DO)
    a('v_subrev_u32 v239, 2, v238')
    a('v_lshl_add_u32 v246, v1, 7, s%d' % CV_DO)
    a('s_lshr_b32 s11, s7, 5')
    a('s_lshl_b32 s11, s11, %d' % (5 + OPT['fsu']))
    a('s_add_u32 s11, s11, %s' % hex(F_U))
    a('v_min_u32 v248, 31, v1')
    a('v_lshl_add_u32 v248, v248, %d, s11' % OPT['fsu'])
    a('s_mov_b32 s%d, 0' % CV_T)
def cv_setup1(a):
    W, LB = CV_W, CV_LB
    a('s_mul_i32 s65, s7, 1639')
    a('s_lshr_b32 s65, s65, 16')
    a('s_mul_i32 s%d, s65, 40' % S_F2)
    a('s_sub_u32 s%d, s7, s%d' % (S_F2, S_F2))
    a('s_lshl_b32 s65, s65, 2')
    a('s_add_u32 s65, s65, s%d' % W)
    a('s_lshl_b32 s65, s65, 6')
    a('s_add_u32 s%d, s%d, s65' % (S_F2, S_F2))
    a('s_lshl_b32 s%d, s%d, %d' % (S_F2, S_F2, OPT['fsz']))
    a('s_add_u32 s%d, s%d, %s' % (S_F2, S_F2, hex(F_Z)))
    a('s_andn2_b32 s65, s%d, s%d' % (W, CV_M))
    a('s_and_b32 s65, s65, 1')
    a('s_lshl_b32 s65, s65, 8')
    a('s_add_u32 s65, s65, s%d' % LB)
    a('v_and_b32 v%d, 1, v1' % VG)
    a('v_xor_b32 v%d, 1, v%d' % (VG, VG))
    a('v_mul_u32_u24 v%d, %d, v%d' % (VG, C_HB - C_HA, VG))
    a('v_bfe_u32 v204, v1, 1, 3')
    a('v_lshl_add_u32 v%d, v204, 6, v%d' % (VG, VG))
    a('v_lshrrev_b32 v204, 4, v1')
    a('v_lshl_add_u32 v%d, v204, 4, v%d' % (VG, VG))
    a('s_add_u32 s69, s65, %d' % (C_HA + 64))
    a('v_add_u32 v%d, s69, v%d' % (VG, VG))
    a('v_and_b32 v205, 15, v1')
    a('v_lshlrev_b32 v205, 2, v205')
    a('v_lshlrev_b32 v%d, 4, v204' % VF)
    a('v_sub_u32 v%d, v%d, v205' % (VF, VF))
    a('s_add_u32 s69, s65, %d' % (C_U + 60))
    a('v_add_u32 v%d, s69, v%d' % (VF, VF))
    for i in range(1, 4):
        a('v_add_u32 v%d, %d, v%d' % (VF + i, 1024 * i, VF))
    a('v_lshl_add_u32 v205, v204, 7, v205')
    a('s_lshl_b32 s65, s%d, 10' % W)
    a('s_sub_u32 s65, %d, s65' % (RBC + C_U + 444 + 3072))
    a('v_sub_u32 v%d, s65, v205' % VU)
    a('s_mul_i32 s65, s%d, %d' % (CV_M, CW - 8192))
    a('s_add_u32 s65, s65, 8192')
    a('s_mul_i32 s65, s65, s%d' % W)
    a('s_xor_b32 s69, s%d, 1' % CV_M)
    a('s_mul_i32 s69, s69, %d' % C_EX)
    a('s_add_u32 s69, s69, %d' % RBC)
    a('s_add_u32 s65, s65, s69')
    a('v_add_u32 v%d, s65, v237' % VXW)
    a('s_lshl_b32 s65, s%d, 11' % W)
    a('s_add_u32 s69, s69, s65')
    a('v_add_u32 v%d, s69, v237' % VXR)
    a('s_lshl_b32 s%d, s7, 13' % CV_DO)
    a('s_add_u32 s%d, s%d, s65' % (CV_DO, CV_DO))
    for i in range(16):
        a('v_mov_b64 %s, 0' % v(CA + 2 * i, 2))
def cv_pads():
    return [['v_mov_b64 v[206:207], 0', 'v_lshl_add_u32 v247, v1, 3, s%d' % CV_LB, 'ds_write_b64 v247, v[206:207] offset:%d' % C_HA],
            ['ds_write_b64 v247, v[206:207] offset:%d' % C_HB],
            ['v_lshl_add_u32 v247, v1, 2, s%d' % CV_LB, 'ds_write_b32 v247, v206 offset:%d' % (C_U + 4096)]]
def cv_fix():
    R = CF[0]
    return [['v_mov_b32 v247, s%d' % CV_LB, 'ds_read_b128 %s, v247 offset:%d' % (v(R, 4), C_HA + 512)],
            'v_alignbit_b32 v%d, v%d, v%d, 16' % (R + 7, R + 3, R + 2),
            'v_alignbit_b32 v%d, v%d, v%d, 16' % (R + 6, R + 2, R + 1),
            'v_alignbit_b32 v%d, v%d, v%d, 16' % (R + 5, R + 1, R),
            'v_lshlrev_b32 v%d, 16, v%d' % (R + 4, R),
            'ds_write_b128 v247, %s offset:%d' % (v(R + 4, 4), C_HB + 512)]
def cv_h_items():
    it = []
    for (dst, vo) in ((C_HA + 512, 238), (C_HB + 512, 239)):
        for i in range(4):
            it.append(item('buffer_load_dwordx4 v%d, s[72:75], 0 offen offset:%d lds' % (vo, i * 1024),
                           pre=['s_add_u32 m0, s%d, %d' % (CV_LB, dst)] if i == 0 else [], vm='cvh'))
    return it
def cv_u_loads(a):
    srd(a, 48, P_WS, SZ_ACT, WS_UT)
    a('s_add_u32 m0, s%d, %d' % (CV_LB, C_U))
    a('s_nop 0')
    for i in range(4):
        a('buffer_load_dwordx4 v238, s[48:51], 0 offen offset:%d sc1 lds' % (i * 1024))
def cv_try_u(a):
    L = a.newlabel('UT')
    a('v_cmp_eq_u64 vcc, %s, v[244:245]' % NC)
    a('s_cmp_eq_u64 vcc, -1')
    a('s_cbranch_scc0 %s' % L)
    cv_u_loads(a)
    a('s_mov_b32 s%d, 1' % CV_T)
    a.label(L)
def cv_g_reads(j, b):
    return ['ds_read_b128 %s, v%d offset:%d' % (v(CG[b] + 4 * i, 4), VG, 64 * j + 512 * i) for i in range(8)]
def cv_f_reads(j, b):
    L = []
    for i in range(8):
        rb = 7 - i
        o = (512 * (rb & 1) + 64 * j) // 4
        L.append('ds_read2_b32 %s, v%d offset0:%d offset1:%d' % (v(CF[b] + 4 * i, 2), VF + (rb >> 1), o, o + 1))
        L.append('ds_read2_b32 %s, v%d offset0:%d offset1:%d' % (v(CF[b] + 4 * i + 2, 2), VF + (rb >> 1), o + 2, o + 3))
    return L

A_STRIDE = 6144
LDS_Q = [40960, 90112]
def chunk_addrs(a, dst, tmp, sbase):
    for i in range(3):
        a('v_add_u32 v%d, %d, v1' % (tmp, 64 * i))
        a('v_mul_u32_u24 v%d, 205, v%d' % (dst + i, tmp))
        a('v_lshrrev_b32 v%d, 11, v%d' % (dst + i, dst + i))
        a('v_mul_u32_u24 v%d, 1120, v%d' % (dst + i, dst + i))
        a('v_lshl_add_u32 v%d, v%d, 4, v%d' % (dst + i, tmp, dst + i))
        a('v_add_u32 v%d, s%d, v%d' % (dst + i, sbase, dst + i))
    a('v_lshrrev_b32 v%d, 5, v1' % tmp)
    a('v_lshl_add_u32 v%d, v%d, 30, v%d' % (dst + 2, tmp, dst + 2))
def lds_q_base(a, dst, w):
    a('s_lshr_b32 s%d, s%d, 1' % (dst, w))
    a('s_mul_i32 s%d, s%d, %d' % (dst, dst, LDS_Q[1] - LDS_Q[0] - 8192))
    a('s_lshl_b32 s11, s%d, 12' % w)
    a('s_add_u32 s%d, s%d, s11' % (dst, dst))
    a('s_add_u32 s%d, s%d, %d' % (dst, dst, LDS_Q[0]))
def aterm(a):
    W = CV_W
    RB, CB, T, T2 = 65, 66, 67, 68
    SQ, SZ, SG = 52, 44, 60
    a('s_setprio 0')
    a('s_lshl_b32 s%d, s3, 2' % RB)
    a('s_lshr_b32 s%d, s4, 3' % CB)
    a('s_add_u32 s%d, s%d, s%d' % (RB, RB, CB))
    a('s_and_b32 s%d, s4, 7' % CB)
    srd(a, SQ, P_Q, SZ_ACT)
    a('s_lshl_b32 s%d, s%d, 6' % (T, RB))
    a('s_lshl_b32 s%d, s%d, 4' % (T2, W))
    a('s_add_u32 s%d, s%d, s%d' % (T, T, T2))
    a('v_and_b32 v8, 15, v1')
    a('v_add_u32 v8, s%d, v8' % T)
    a('v_lshrrev_b32 v9, 4, v1')
    a('s_mul_i32 s%d, s%d, 1280' % (T, T))
    a('s_mul_i32 s%d, s%d, 160' % (T2, CB))
    a('s_add_u32 s%d, s%d, s%d' % (T, T, T2))
    chunk_addrs(a, 12, 10, T)
    lds_q_base(a, T2, W)
    for i in range(3):
        a('s_add_u32 m0, s%d, %d' % (T2, 1024 * i))
        a('s_nop 0')
        a('buffer_load_dwordx4 v%d, %s, 0 offen lds' % (12 + i, s(SQ, 4)))
    a('v_and_b32 v10, 15, v1')
    a('v_mul_u32_u24 v10, 160, v10')
    a('v_lshl_add_u32 v10, v9, 3, v10')
    a('v_add_u32 v10, s%d, v10' % T2)
    a('s_lshl_b32 s%d, s%d, 2' % (T, CB))
    a('s_lshr_b32 s%d, s%d, 3' % (T2, RB))
    a('s_add_u32 s%d, s%d, s%d' % (T, T, T2))
    a('s_lshl_b32 s%d, s%d, %d' % (T, T, 6 + OPT['fsz']))
    a('s_add_u32 s%d, s%d, %s' % (T, T, hex(F_Z)))
    a('v_lshl_add_u32 v25, v1, %d, s%d' % (OPT['fsz'], T))
    a('s_lshl_b32 s%d, s%d, 5' % (T, RB))
    a('s_add_u32 s%d, s%d, s%d' % (T, T, W))
    a('s_lshl_b32 s%d, s%d, %d' % (T, T, OPT['fsh'] + 1))
    a('v_and_b32 v24, 1, v1')
    a('v_lshl_add_u32 v24, v24, %d, s%d' % (OPT['fsh'], T))
    a('v_cmp_lt_u32 vcc, 39, v1')
    a('v_lshlrev_b32 v11, 14, v9')
    a('v_bfe_u32 v9, v1, 1, 3')
    a('v_cndmask_b32 v25, v25, v24, vcc')
    FL = 'buffer_load_dwordx2 v[26:27], v25, %s, 0 offen sc1' % s(SF, 4)
    a('v_lshl_add_u32 v11, v9, 4, v11')
    a('v_and_b32 v9, 1, v1')
    a('v_lshl_add_u32 v11, v9, 2, v11')
    a('s_mul_i32 s%d, s%d, %d' % (T, CB, 40 * 8192))
    a('s_lshl_b32 s%d, s%d, 8' % (T2, RB))
    a('s_add_u32 s%d, s%d, s%d' % (T, T, T2))
    a('s_and_b32 s%d, s%d, 1' % (T2, W))
    a('s_lshl_b32 s%d, s%d, 7' % (T2, T2))
    a('s_add_u32 s%d, s%d, s%d' % (T, T, T2))
    a('s_lshr_b32 s%d, s%d, 1' % (T2, W))
    a('s_lshl_b32 s%d, s%d, 3' % (T2, T2))
    a('s_add_u32 s%d, s%d, s%d' % (T, T, T2))
    a('v_add_u32 v11, s%d, v11' % T)
    a('v_lshlrev_b32 v8, 2, v8')
    srd(a, SG, P_WS, 8192, WS_G)
    a('s_mul_i32 s%d, s%d, %d' % (T, W, A_STRIDE))
    a('s_add_u32 s%d, s%d, %d' % (T, T, CONV_BASE))
    a('v_add_u32 v24, s%d, v237' % T)
    if OPT['ztrig'] >= 0:
        L, Dn = a.newlabel('TW'), a.newlabel('TWD')
        a('s_mov_b32 s11, 0x100000')
        a.label(L)
        a('ds_read_b32 v247, v254 offset:4')
        a('s_waitcnt lgkmcnt(0)')
        a('v_cmp_eq_u32 vcc, 1, v247')
        a('s_cbranch_vccnz %s' % Dn)
        a('s_sleep 2')
        a('s_sub_u32 s11, s11, 1')
        a('s_cbranch_scc0 %s' % L)
        a.label(Dn)
    poll(a, FL, 26, T2, sleep=OPT['zsl'])
    stamp(a, 3)
    ZR, A, ZU = 28, 40, 60
    a('buffer_load_dword v8, v8, %s, 0 offen sc1' % s(SG, 4))
    for mt in range(5):
        for h in range(2):
            a('s_mov_b32 s%d, %s' % (T, hex(65536 * mt + 8192 * h)))
            a('buffer_load_dword v%d, v11, %s, s%d offen sc1' % (ZR + 2 * mt + h, s(SZ, 4), T))
    a('s_mov_b32 s%d, 0xffff0000' % T)
    for mt in range(5):
        a('ds_read_b64 %s, v10 offset:%d' % (v(12 + 2 * mt, 2), 32 * mt))
    L, Dn = a.newlabel('CS'), a.newlabel('CSD')
    a('s_mov_b32 s11, 0x400000')
    a.label(L)
    a('ds_read_b32 v247, v254')
    a('s_waitcnt lgkmcnt(0)')
    a('v_cmp_le_u32 vcc, 8, v247')
    a('s_cbranch_vccnz %s' % Dn)
    a('s_sub_u32 s11, s11, 1')
    a('s_cbranch_scc0 %s' % L)
    a.label(Dn)
    for i in range(10):
        a('v_lshlrev_b32 v%d, 16, v%d' % (A + 2 * i, 12 + i))
        a('v_and_b32 v%d, s%d, v%d' % (A + 2 * i + 1, T, 12 + i))
    a('s_waitcnt vmcnt(10)')
    a('v_mov_b32 v9, v8')
    for i in range(10):
        a('v_pk_mul_f32 %s, %s, v[8:9]' % (v(A + 2 * i, 2), v(A + 2 * i, 2)))
    a('v_sub_f32 v8, 1.0, v8')
    a('v_sub_f32 v9, 1.0, v9')
    a('ds_write_b64 v24, v[8:9] offset:5120')
    for mt in range(5):
        a('s_waitcnt vmcnt(%d)' % (8 - 2 * mt))
        for h in range(2):
            i = 2 * mt + h
            a('v_lshlrev_b32 v%d, 16, v%d' % (ZU, ZR + i))
            a('v_and_b32 v%d, s%d, v%d' % (ZU + 1, T, ZR + i))
            a('v_pk_mul_f32 %s, %s, %s' % (v(A + 2 * i, 2), v(A + 2 * i, 2), v(ZU, 2)))
        a('ds_write_b128 v24, %s offset:%d' % (v(A + 4 * mt, 4), 1024 * mt))
    a('s_waitcnt lgkmcnt(0)')
    stamp_end(a)
    a('s_endpgm')

def conv(a):
    SZ, DO, T, W = 44, CV_DO, CV_T, CV_W
    a('s_setprio %d' % OPT['cprio'])
    for l in cv_f_reads(0, 0): a(l)
    srd(a, SZ, P_WS, SZ_ACT, WS_Z4)
    a('s_lshl_b32 s%d, s%d, 1' % (T, CV_M))
    stamp(a, 7)
    def it(b, nxt):
        a('s_waitcnt lgkmcnt(0)')
        i = 0
        for n in range(8):
            for aa in range(n + 1):
                acc = v(CA + 4 * n, 4)
                a('v_mfma_f32_16x16x32_bf16 %s, %s, %s, %s' % (acc, v(CG[b] + 4 * aa, 4), v(CF[b] + 4 * (n - aa), 4), acc))
                if i in nxt: a(nxt.pop(i))
                i += 1
    def rd(j, b):
        g_, f_ = cv_g_reads(j, b), cv_f_reads(j, b)
        L = []
        for i in range(8): L += [g_[i], f_[2 * i], f_[2 * i + 1]]
        return dict(enumerate(L))
    def flag():
        a('s_waitcnt vmcnt(0)')
        set_flag(a, S_F1)
        a('s_mov_b32 s%d, %s' % (S_F1, hex(OOB)))
        stamp(a, 6)
    a.label('CV_loop')
    it(0, rd(1, 1))
    nx = rd(2, 0)
    for k in range(5):
        nx[26 + k] = 'v_add_u32 v%d, 128, v%d' % (VG + k, VG + k)
    it(1, nx)
    a('s_sub_u32 s%d, s%d, 1' % (T, T))
    a('s_cbranch_scc0 CV_loop')
    it(0, rd(1, 1))
    nx = {}
    for n in range(8):
        nx[(n + 1) * (n + 2) // 2 - 1 + 9] = 'ds_write_b128 v%d, %s offset:%d' % (VXW, v(CA + 4 * n, 4), 1024 * n)
    it(1, nx)
    stamp(a, 8)
    for i in range(4):
        a('s_lshl_b32 s%d, s%d, 16' % (48 + i, CV_D + (i >> 1)) if not (i & 1) else 's_and_b32 s%d, s%d, 0xffff0000' % (48 + i, CV_D + (i >> 1)))
    a('s_nop 4')
    for i in sorted(nx): a(nx[i])
    a('s_waitcnt lgkmcnt(0)')
    a('s_mov_b64 exec, 1')
    a('ds_add_u32 v254, v253')
    a('s_mov_b64 exec, -1')
    L, Dn = a.newlabel('CS'), a.newlabel('CSD')
    a('s_mov_b32 s11, 0x400000')
    a.label(L)
    a('ds_read_b32 v247, v254')
    a('s_waitcnt lgkmcnt(0)')
    a('v_cmp_le_u32 vcc, 4, v247')
    a('s_cbranch_vccnz %s' % Dn)
    a('s_sub_u32 s11, s11, 1')
    a('s_cbranch_scc0 %s' % L)
    a.label(Dn)
    stamp(a, 9)
    a('s_mov_b32 s11, 0xffff0000')
    a('s_cmp_eq_u32 s%d, 1' % CV_M)
    a('s_cbranch_scc1 CV_epiB')
    P, UR, O = 12, 48, 72
    def finish(nch, reg):
        for un in range(nch // 2):
            for t in range(2):
                for hh in range(2):
                    for c in (2 * un, 2 * un + 1):
                        u = UR + 4 * c + 2 * t + hh
                        R = reg(c, t) + 2 * hh
                        a('v_and_b32 v%d, s11, v%d' % (68 + (c & 1), u))
                        a('v_lshlrev_b32 v%d, 16, v%d' % (u, u))
                        a('v_fmac_f32 v%d, s%d, v%d' % (R, 48 + c, 68 + (c & 1)))
                        a('v_fmac_f32 v%d, s%d, v%d' % (R + 1, 48 + c, u))
                    R0, R1 = reg(2 * un, t) + 2 * hh, reg(2 * un + 1, t) + 2 * hh
                    oo = O + 8 * un + 4 * t + 2 * hh
                    a('v_cvt_pk_bf16_f32 v%d, v%d, v%d' % (oo, R0, R1))
                    a('v_cvt_pk_bf16_f32 v%d, v%d, v%d' % (oo + 1, R0 + 1, R1 + 1))
                if un == 1 and t == 0: a('s_add_u32 s%d, s%d, 8192' % (DO, DO))
                a('buffer_store_dwordx4 %s, v237, %s, s%d offen offset:%d sc1' % (v(O + 8 * un + 4 * t, 4), s(SZ, 4), DO, t * 1024))
    def arrive2():
        a('s_mov_b64 exec, 1')
        a('ds_add_u32 v254, v253')
        a('s_mov_b64 exec, -1')
    def ureads(nch):
        for c in range(nch):
            for t in range(2):
                for hh in range(2):
                    a('ds_read_b32 v%d, v%d offset:%d' % (UR + 4 * c + 2 * t + hh, VU, c * CW + 512 * (1 - t) + 64 * (1 - hh)))
    for c in range(2):
        for t in range(2):
            for h in range(2):
                a('ds_read_b128 %s, v%d offset:%d' % (v(P + 16 * c + 8 * t + 4 * h, 4), VXR, (2 * c + h) * 8192 + t * 1024))
    ureads(2)
    a('s_waitcnt lgkmcnt(8)')
    for c in range(2):
        for t in range(2):
            R = P + 16 * c + 8 * t
            a('v_pk_add_f32 %s, %s, %s' % (v(R, 2), v(R, 2), v(R + 4, 2)))
            a('v_pk_add_f32 %s, %s, %s' % (v(R + 2, 2), v(R + 2, 2), v(R + 6, 2)))
    a('s_waitcnt lgkmcnt(0)')
    arrive2()
    finish(2, lambda c, t: P + 16 * c + 8 * t)
    stamp(a, 1)
    a('s_waitcnt vmcnt(0)')
    stamp(a, 2)
    set_flag(a, S_F2)
    a('s_branch K_aterm')
    a.label('CV_epiB')
    for c in range(4):
        for t in range(2):
            a('ds_read_b128 %s, v%d offset:%d' % (v(P + 8 * c + 4 * t, 4), VXR, c * CW + t * 1024))
    ureads(4)
    a('v_lshlrev_b32 v247, %d, v1' % OPT['fsz'])
    a('s_waitcnt lgkmcnt(0)')
    arrive2()
    finish(4, lambda c, t: P + 8 * c + 4 * t)
    stamp(a, 1)
    a('s_waitcnt vmcnt(0)')
    stamp(a, 2)
    a('s_mov_b64 exec, 3')
    a('buffer_store_dwordx2 v[250:251], v247, %s, s%d offen sc1' % (s(SF, 4), S_F2))
    a('s_mov_b64 exec, -1')
    a.label('K_aterm')
    aterm(a)

G2_SW = 72
G2_KB, G2_O, G2_T, G2_T2, G2_LB, G2_RB, G2_CB = 65, 66, 67, 68, 69, 8, 9
G2_ACC, G2_WB, G2_HB = 28, 108, 188
def g2_lds(r):
    return (49152 + r * 20480) if r < 2 else ((r - 2) * 20480)
def g2_ks(p, dst):
    L = ['s_add_u32 s%d, s%d, %d' % (dst, G2_KB, 4 * p),
         's_cmp_ge_u32 s%d, 54' % dst,
         's_cselect_b32 s%d, 54, 0' % G2_T,
         's_sub_u32 s%d, s%d, s%d' % (dst, dst, G2_T)]
    if p == 13:
        L += ['s_cmp_ge_u32 s%d, 2' % S_W, 's_cselect_b32 s%d, 60, s%d' % (dst, dst)]
    return L
def g2_w_items(p, slot, va=237):
    B = G2_WB + 20 * slot
    it = []
    for t in range(5):
        pre = g2_ks(p, G2_O) + ['s_mul_i32 s%d, s%d, 40960' % (G2_O, G2_O)] if t == 0 else []
        it.append(item('buffer_load_dwordx4 %s, v%d, %s, s%d offen offset:%d sc1' % (v(B + 4 * t, 4), va if t < 4 else va + 1, s(G2_SW, 4), G2_O, (t & 3) * 1024), pre, vm=('w', p)))
    return it
def g2_wl_items(p, r):
    it = []
    for t in range(5):
        pre = []
        if t == 0:
            pre = g2_ks(p, G2_O) + ['s_mul_i32 s%d, s%d, 40960' % (G2_O, G2_O), 's_add_u32 m0, s%d, %d' % (G2_LB, g2_lds(r))]
        if t == 4:
            pre = ['s_add_u32 m0, s%d, %d' % (G2_LB, g2_lds(r) + 4096)]
        it.append(item('buffer_load_dwordx4 v%d, %s, s%d offen offset:%d sc1 lds' % (237 if t < 4 else 238, s(G2_SW, 4), G2_O, (t & 3) * 1024), pre, vm=('wl', p)))
    return it
def g2_pre(a):
    RB, CB, T, T2 = G2_RB, G2_CB, G2_T, G2_T2
    a('s_lshl_b32 s%d, s3, 2' % RB)
    a('s_lshr_b32 s%d, s4, 3' % CB)
    a('s_add_u32 s%d, s%d, s%d' % (RB, RB, CB))
    a('s_and_b32 s%d, s4, 7' % CB)
    a('s_mul_i32 s%d, s%d, 5120' % (T, CB))
    a('s_add_u32 s%d, s%d, %s' % (T, T, hex(WS_W2P)))
    srd(a, G2_SW, P_WS, 53 * 40960 + 5120, 's%d' % T)
    if OPT['rot2']:
        a('s_and_b32 s%d, s%d, 3' % (T, RB))
        a('s_mul_i32 s%d, s%d, %d' % (T, T, 13 if OPT['rot2r'] else 0))
        a('s_mul_i32 s%d, s%d, 7' % (T2, CB))
        a('s_add_u32 s%d, s%d, s%d' % (T, T, T2))
        a('s_add_u32 s%d, s%d, s%d' % (T, T, S_W))
        a('s_cmp_ge_u32 s%d, 54' % T)
        a('s_cselect_b32 s%d, 54, 0' % T2)
        a('s_sub_u32 s%d, s%d, s%d' % (G2_KB, T, T2))
    else:
        a('s_mov_b32 s%d, s%d' % (G2_KB, S_W))
    a('s_mul_i32 s%d, s%d, 5120' % (G2_LB, S_W))
    a('v_add_u32 v238, 4096, v237')
    a('s_mul_i32 s%d, s%d, 5' % (T, CB))
    a('s_lshr_b32 s%d, s%d, 2' % (T, T))
    a('s_mul_i32 s%d, s%d, %d' % (T, T, 18 << OPT['fsw']))
    a('s_add_u32 s%d, s%d, %s' % (T, T, hex(F_W)))
    a('s_cmp_eq_u32 s%d, 0' % S_W)
    a('s_cselect_b32 s%d, s%d, %s' % (T, T, hex(OOB)))
    a('v_min_u32 v248, 35, v1')
    a('v_lshl_add_u32 v248, v248, %d, s%d' % (OPT['fsw'], T))

def g2_fh_addr(a):
    T = G2_T
    a('v_min_u32 v247, 13, v1')
    a('v_lshl_add_u32 v248, v247, 2, s%d' % G2_KB)
    a('v_subrev_u32 v247, 54, v248')
    a('v_min_u32 v248, v248, v247')
    a('s_lshl_b32 s%d, s%d, %d' % (T, G2_RB, 6 + OPT['fsh']))
    a('v_lshl_add_u32 v248, v248, %d, s%d' % (OPT['fsh'], T))

def gemm2(a):
    RB, CB, W = G2_RB, G2_CB, S_W
    SHh, SQ, SZ, SG, SO = 56, 52, 44, 60, 48
    O, T, T2 = G2_O, G2_T, G2_T2
    ACC, WB, HB = G2_ACC, G2_WB, G2_HB
    DH = 4
    OH, TH = 70, 71
    g = G1(a)
    FH_LOAD = 'buffer_load_dwordx2 v[26:27], v22, %s, 0 offen sc1' % s(SF, 4)
    FZ_LOAD = 'buffer_load_dwordx2 v[252:253], v25, %s, 0 offen sc1' % s(SF, 4)
    a('v_mov_b32 v22, v248')
    a('s_setprio 0')
    g.emit(item(FH_LOAD, vm='fh'))
    for it in g2_wl_items(6, 2) + g2_wl_items(7, 3): g.emit(it)
    a('v_mov_b32 v2, v237')
    a('v_mov_b32 v3, v238')
    a('s_mul_i32 s%d, s%d, %d' % (T, RB, 54 * 4096))
    if WS_H: a('s_add_u32 s%d, s%d, %s' % (T, T, hex(WS_H)))
    srd(a, SHh, P_WS, 54 * 4096, 's%d' % T)
    for j in range(4):
        a('s_xor_b32 s%d, s%d, %d' % (T, W, j))
        a('s_lshl_b32 s%d, s%d, 10' % (T, T))
        a('v_add_u32 v%d, s%d, v2' % (4 + j, T))
    a('v_add_u32 v24, s%d, v2' % G2_LB)
    a('v_add_u32 v23, %d, v24' % g2_lds(1))
    def late_setup(a):
        a('s_lshl_b32 s%d, s%d, 6' % (T, RB))
        a('s_lshl_b32 s%d, s%d, 4' % (T2, W))
        a('s_add_u32 s%d, s%d, s%d' % (T, T, T2))
        a('s_mul_i32 s%d, s%d, 1280' % (T, T))
        a('s_mul_i32 s%d, s%d, 160' % (T2, CB))
        a('s_add_u32 s%d, s%d, s%d' % (T, T, T2))
        chunk_addrs(a, 12, 10, T)
        lds_q_base(a, T2, W)
        a('v_add_u32 v15, s%d, v2' % T2)
        a('v_lshrrev_b32 v9, 4, v1')
        a('v_and_b32 v10, 15, v1')
        a('v_mul_u32_u24 v10, 160, v10')
        a('v_lshl_add_u32 v10, v9, 3, v10')
        a('v_add_u32 v10, s%d, v10' % T2)
        srd(a, SO, P_OUT, SZ_ACT)
        a('s_mul_i32 s%d, s%d, %d' % (T, W, A_STRIDE))
        a('s_add_u32 s%d, s%d, %d' % (T, T, CONV_BASE))
        a('v_add_u32 v11, s%d, v2' % T)
    stamp(a, 6)
    g.wait(vm=['fh'])
    a('v_cmp_eq_u64 s[76:77], %s, v[26:27]' % NC)
    order = [0, 1, 2, 3, 4, 8, 5, 9, 6, 10, 7, 11, 12, 13]
    slot = [0, 1, 2, 3, 2, 0, 2, 1, 2, 3, 2, 0, 1, 3]
    refill = {0: 8, 1: 9, 2: 4, 3: 10, 4: 5, 5: 11, 6: 6, 7: 12, 8: 7, 9: 13}
    slow = []
    def fh_check(bit):
        S, B = a.newlabel('FHS'), a.newlabel('FHB')
        slow.append((S, B, bit))
        return ['s_bitcmp1_b32 s76, %d' % bit, 's_cbranch_scc0 %s' % S, B + ':']
    def ks_lines(p, dst, tmp):
        L = ['s_add_u32 s%d, s%d, %d' % (dst, G2_KB, 4 * p), 's_sub_u32 s%d, s%d, 54' % (tmp, dst), 's_min_u32 s%d, s%d, s%d' % (dst, dst, tmp)]
        if p == 13: L += [['s_cmp_ge_u32 s%d, 2' % S_W, 's_cselect_b32 s%d, 60, s%d' % (dst, dst)]]
        return L
    def h_prep(r):
        return [fh_check(order[r])] + ks_lines(order[r], OH, TH) + [('s_lshl_b32 s%d, s%d, 12' % (OH, OH)) if not (OPT['xh'] and r >= 4) else 's_mov_b32 s%d, 0x7000000' % OH]
    def h_item(r, t):
        B = HB + 16 * (r % DH)
        return item('buffer_load_dwordx4 %s, v%d, %s, s%d offen%s' % (v(B + 4 * t, 4), 4 + t, s(SHh, 4), OH, '' if OPT['xsc'] else ' sc1'), vm=('h', r, t))
    for r in range(DH):
        for l in h_prep(r): g.emit(item(l))
        if r == 0: stamp(a, 7)
        for t in range(4): g.emit(h_item(r, t))
        if r == 1: late_setup(a)
    ZR = WB + 40
    GQ = WB
    ZU = WB + 20
    MASK = 71
    rbuf = [g2_lds(2), g2_lds(3), g2_lds(0)]
    for r in range(14):
        p = order[r]
        if r in (1, 3, 5, 7, 9, 11, 12, 13): stamp(a, (1, 3, 5, 7, 9, 11, 12, 13).index(r) + 2, 3)
        if r < 8: stamp(a, r + 1, 4)
        if r == 0 and OPT['stamp'] == 4: a('s_mov_b32 s98, s80')
        if r == 0: stamp(a, 1, 3)
        fill = {i: [] for i in range(20)}
        if r + DH < 14:
            for i, l in enumerate(h_prep(r + DH)): fill[min(i, 4) if i < 5 else 4].append(item(l))
            for j in range(4): fill[5 * j + 4].append(h_item(r + DH, j))
        free = [5, 6, 7, 8, 10, 11, 12, 13, 15, 16, 17, 18] if r + DH < 14 else list(range(20))
        extra = []
        if r - 1 in refill:
            pp = refill[r - 1]; Bs = WB + 20 * slot[r - 1]
            if pp >= 8:
                extra += [item(l) for l in ks_lines(pp, O, T)] + [item(('s_mul_i32 s%d, s%d, 40960' % (O, O)) if not OPT['xw'] else 's_mov_b32 s%d, 0x7000000' % O)]
                extra += [item('buffer_load_dwordx4 %s, v%d, %s, s%d offen offset:%d sc1' % (v(Bs + 4 * t, 4), 2 if t < 4 else 3, s(G2_SW, 4), O, (t & 3) * 1024), vm=('w', pp)) for t in range(5)]
            else:
                lb = g2_lds(pp - 4); ad = 24
                if pp == 5: ad, lb = 23, 0
                extra += [item('ds_read_b128 %s, v%d offset:%d' % (v(Bs + 4 * t, 4), ad, lb + t * 1024), lg=('wl', pp), needvm=[('wl', pp)]) for t in range(5)]
        if OPT['arf'] and r in (0, 3):
            extra += [item(FH_LOAD, vm='fh')]
        if OPT['arf'] and r in (3, 5):
            extra = [item('v_cmp_eq_u64 s[76:77], %s, v[26:27]' % NC, needvm=['fh'])] + extra
        if r == OPT['ztrig']:
            extra += [item('ds_write_b32 v254, v253 offset:4', lg='trig')]
        if r == 11:
            for j in range(1, 4):
                extra += [item(['s_xor_b32 s%d, s%d, %d' % (T, W, j), 's_mul_i32 s%d, s%d, 5120' % (T, T), 'v_add_u32 v%d, s%d, v2' % (4 + j, T)])]
        wr = []
        if r == 13:
            wr = ['ds_write_b128 v24, %s offset:%d' % (v(ACC + (j * 5 + mt) * 4, 4), rbuf[j - 1] + mt * 1024) for j in (1, 2, 3) for mt in range(5)]
            for i in range(9, 20): fill[i].append(item(wr[i - 9]))
        assert len(extra) <= len(free), (r, len(extra))
        for i, it in enumerate(extra): fill[free[i]].append(it)
        Bw = WB + 20 * slot[r]; Bh = HB + 16 * (r % DH)
        js = (0, 1, 2, 3) if r < 13 else (1, 2, 3, 0)
        i = 0
        for j in js:
            g.wait(vm=[('h', r, j), ('w', p)], lg=[('wl', p)])
            for mt in range(5):
                acc = v(ACC + (j * 5 + mt) * 4, 4)
                a('v_mfma_f32_16x16x32_bf16 %s, %s, %s, %s' % (acc, v(Bw + 4 * mt, 4), v(Bh + 4 * j, 4), '0' if r == 0 else acc))
                for it in fill[i]: g.emit(it)
                i += 1
    stamp(a, 8)
    for l in wr[11:]: a(l)
    a('s_waitcnt lgkmcnt(0)')
    a('s_barrier')
    stamp(a, 9)
    a('ds_read_b64 v[8:9], v11 offset:5120')
    def rd(m2):
        for j in range(1, 4):
            a('ds_read_b128 %s, v%d offset:%d' % (v(ACC + (j * 5 + m2) * 4, 4), 4 + j, rbuf[j - 1] + m2 * 1024))
        a('ds_read_b128 %s, v11 offset:%d' % (v(GQ + 4 * m2, 4), m2 * 1024))
    for m2 in range(3): rd(m2)
    for mt in range(5):
        if mt + 3 < 5: rd(mt + 3)
        a('s_waitcnt lgkmcnt(%d)' % (4 * min(3, 4 - mt)))
        A0 = ACC + 4 * mt
        for h in range(2):
            a('v_pk_add_f32 %s, %s, %s' % (v(A0 + 2 * h, 2), v(A0 + 2 * h, 2), v(A0 + 20 + 2 * h, 2)))
            a('v_pk_add_f32 %s, %s, %s' % (v(A0 + 40 + 2 * h, 2), v(A0 + 40 + 2 * h, 2), v(A0 + 60 + 2 * h, 2)))
        for h in range(2):
            a('v_pk_add_f32 %s, %s, %s' % (v(A0 + 2 * h, 2), v(A0 + 2 * h, 2), v(A0 + 40 + 2 * h, 2)))
        for h in range(2):
            a('v_pk_fma_f32 %s, %s, v[8:9], %s' % (v(A0 + 2 * h, 2), v(A0 + 2 * h, 2), v(GQ + 4 * mt + 2 * h, 2)))
        a('v_cvt_pk_bf16_f32 v%d, v%d, v%d' % (ZU + 2 * mt, A0, A0 + 1))
        a('v_cvt_pk_bf16_f32 v%d, v%d, v%d' % (ZU + 1 + 2 * mt, A0 + 2, A0 + 3))
    for mt in range(5):
        a('ds_write_b64 v10, %s offset:%d' % (v(ZU + 2 * mt, 2), 32 * mt))
    for i in range(3):
        a('ds_read_b128 %s, v15 offset:%d' % (v(16 + 4 * i, 4), 1024 * i))
    for i in range(3):
        a('s_waitcnt lgkmcnt(%d)' % (2 - i))
        a('buffer_store_dwordx4 %s, v%d, %s, 0 offen' % (v(16 + 4 * i, 4), 12 + i, s(SO, 4)))
    stamp_end(a)
    a('s_endpgm')
    for (S, B, bit) in slow:
        L = a.newlabel('SL')
        a.label(S)
        a('s_mov_b32 s11, 0x20000')
        a.label(L)
        if OPT['stamp'] == 4: a('s_add_u32 s98, s98, 100')
        if bit is None:
            a(FZ_LOAD)
            a('s_waitcnt vmcnt(0)')
            a('v_cmp_eq_u64 vcc, %s, v[252:253]' % NC)
            a('s_cmp_eq_u64 vcc, -1')
        else:
            a(FH_LOAD)
            a('s_waitcnt vmcnt(0)')
            a('v_cmp_eq_u64 s[76:77], %s, v[26:27]' % NC)
            a('s_bitcmp1_b32 s76, %d' % bit)
        a('s_cbranch_scc1 %s' % B)
        a('s_sleep %d' % OPT['fsl'])
        a('s_sub_u32 s11, s11, 1')
        a('s_cbranch_scc0 %s' % L)
        a('s_branch %s' % B)

def kernel(a, name):
    a.raw('.p2align 8')
    a.label(name)
    a('s_cmp_ge_u32 s2, 256')
    a('s_cbranch_scc1 K_exit')
    a('s_load_dwordx16 s[16:31], s[0:1], 0')
    a('s_load_dwordx8 s[32:39], s[0:1], 64')
    a('s_load_dwordx4 s[40:43], s[0:1], 96')
    a('s_memrealtime s[74:75]')
    stamp_begin(a)
    a('v_lshrrev_b32 v1, 6, v0')
    a('s_and_b32 s3, s2, 7')
    a('v_readfirstlane_b32 s%d, v1' % S_W)
    a('v_and_b32 v1, 63, v0')
    a('s_lshr_b32 s4, s2, 3')
    common_pre(a)
    a('s_getreg_b32 s%d, hwreg(HW_REG_XCC_ID)' % S_XCC)
    a('s_add_u32 s%d, s%d, 1' % (S_XCC, S_XCC))
    a('s_cmp_ge_u32 s4, 27')
    a('s_cbranch_scc1 K_prep')
    a('s_mov_b32 s8, s3')
    a('s_mov_b32 s9, s4')
    gemm1_pre(a)
    a('s_waitcnt lgkmcnt(0)')
    g, d = gemm1_head(a)
    a('s_cmp_lt_u32 s%d, 4' % S_W)
    a('s_cbranch_scc1 K_tail_g2')
    gemm1_tail(a, g, d, 'CV')
    a.label('K_conv')
    conv(a)
    a.label('K_prep')
    a('s_mul_i32 s8, s3, 5')
    a('s_add_u32 s8, s8, s4')
    a('s_sub_u32 s8, s8, 27')
    a('s_lshl_b32 s7, s8, 3')
    a('s_add_u32 s7, s7, s%d' % S_W)
    ut_pre(a)
    a('s_waitcnt lgkmcnt(0)')
    ut_loads(a)
    stamp(a, 1)
    flag_srd(a)
    srd(a, 72, P_DBG, 256)
    go_off(a)
    a(GO_LOAD)
    a('s_waitcnt vmcnt(9)')
    stamp(a, 2)
    ut_k(a)
    a('s_mov_b32 s69, 0x20000')
    a.label('K_sp_go')
    a('s_waitcnt vmcnt(0)')
    a('v_cmp_ne_u32 vcc, 0, v250')
    a('s_cbranch_vccnz K_sp_go2')
    a('s_sleep 4')
    a(GO_LOAD)
    a('s_sub_u32 s69, s69, 1')
    a('s_cbranch_scc0 K_sp_go')
    a.label('K_sp_go2')
    fx_publish(a, 0)
    ut_v(a)
    stamp(a, 3)
    a('s_waitcnt vmcnt(0)')
    set_flag(a, S_F2)
    go_sgpr(a)
    a('s_mov_b32 s%d, %s' % (S_F1, hex(OOB)))
    a('s_barrier')
    stamp(a, 5)
    a('s_cmp_lt_u32 s%d, 4' % S_W)
    a('s_cbranch_scc1 K_prep_g2')
    a('s_lshl_b32 s7, s8, 1')
    a('s_add_u32 s7, s7, 240')
    a('s_mov_b32 s%d, 1' % CV_M)
    gp = G1(a)
    cv_pre(a)
    for it in cv_h_items(): gp.emit(it)
    cv_setup1(a)
    for ls in cv_pads():
        for l in ls: a(l)
    poll(a, PF_LOAD, 244, 11, sleep=8)
    cv_u_loads(a)
    a('s_barrier')
    fx = cv_fix()
    for l in fx[0]: a(l)
    a('s_waitcnt lgkmcnt(0)')
    for l in fx[1:]: a(l)
    for l in cv_g_reads(0, 0): a(l)
    a('s_waitcnt vmcnt(0)')
    a('s_branch K_conv')
    a.label('K_prep_g2')
    g2_pre(a)
    a(PF_LOAD)
    a('s_waitcnt vmcnt(0)')
    fw_check(a)
    a('s_barrier')
    for p in range(4):
        for it in g2_w_items(p, p): gp.emit(it)
    for r in range(2):
        for it in g2_wl_items(4 + r, r): gp.emit(it)
    g2_fh_addr(a)
    a('s_branch K_gemm2')
    a.label('K_tail_g2')
    gemm1_tail(a, g, d, 'G2')
    a.label('K_gemm2')
    gemm2(a)
    a.label('K_exit')
    a('s_endpgm')

def main(out):
    hdr = open('cdna_kernels/%s.s.ref' % NAME).read().split('\n')
    head = [l for l in hdr if l.startswith(';') and '@launch' not in l and 'Override' not in l and 'grid=ceil' not in l]
    a = Asm()
    for l in head: a.raw(l)
    a.raw('; @launch grid=(256,1,1) block=(512,1,1) lds=%d' % LDS_TOTAL)
    a.raw('.amdgcn_target "amdgcn-amd-amdhsa--gfx950"')
    a.raw('.text')
    nm = NAME + '_kernel'
    a.raw('.globl %s' % nm)
    a.raw('.type %s,@function' % nm)
    kernel(a, nm)
    a.raw('.section .rodata,"a"')
    a.raw(kernel_desc(nm, 256))
    open(out, 'w').write(a.text())

if __name__ == '__main__':
    out = 'cdna_kernels/%s.s' % NAME
    for arg in sys.argv[1:]:
        if '=' in arg:
            k, val = arg.split('='); OPT[k] = int(val)
        else:
            out = arg
    main(out)
```

```python
import sys, copy
from asmlib import *

NAME = 'gated_mix__ssm_conv_h3__glu_gated_swiglu__prompt'
WS_H = 0
WS_W2P = 0x800000
WS_UT = 0xC00000
WS_Z4 = 0x1000000
WS_G = 0x1400000
WS_F = 0x1500000
F_H, F_U, F_W, F_X, F_Z = 0, 0x40000, 0x50000, 0x58000, 0x60000
F_SIZE = 0xA0000
FS = 7
SZ_ACT = 2048 * 640 * 2
SZ_W = 640 * 1728 * 2
SZ_H = 2048 * 1728 * 2
P_Q, P_K, P_V, P_SK, P_SSMK, P_SSMD, P_BX, P_W1, P_W3, P_W2, P_GW, P_OUT, P_DBG, P_WS = [16 + 2 * i for i in range(14)]
NLOG2E = '0xbfb8aa3b'
OPT = dict(probe=-1, pc=0, pwg=-1, rot2=1, stamp=0, prio=0, cprio=1, cflag=0, touch=0, nodma=0, tp=2, lead=3, rot2r=0, rot1=10, eprio=3, gprio=2, fsl=8, ebar=1, npost=0, allwait=0, fbar=0, zr=10, fwst=7, local=1, wbl2=0, arf=1, xw=0, xh=0, xsc=0, xq=0, zsl=16, fsx=3, fsh=3, fsw=3, fsu=7, fsz=3, ztrig=5, wx=1, xc=0, tsl=8, unit2=0, usl=16, spf=0, npre=30, wst=8)
LDS_TOTAL = 163840
LDS_CNT = LDS_TOTAL - 32
SLOT = [0, 98304, 49152]
LDS_W2S = 147456
LDS_GW = 159744
CONV_BASE = 98304
S_W = 10
SF = 12
S_F1, S_F2 = 5, 6
S_XCC = 77
WS_DBG = 0x2000000
OOB = 0x1000000

def stamp(a, i, mode=1):
    if OPT['probe'] == i + 100 * (mode - 1):
        a('s_memrealtime s[96:97]' if not OPT['pc'] else 's_memtime s[92:93]')
    if OPT['stamp'] == mode:
        a('s_memtime s[%d:%d]' % (80 + 2 * i, 81 + 2 * i))
def stamp_begin(a):
    if OPT['probe'] >= 0:
        a('s_memrealtime s[96:97]')
        a('s_memtime s[94:95]')
        a('s_memtime s[92:93]')
    if OPT['stamp']:
        a('s_memrealtime s[78:79]')
        for i in range(11): a('s_mov_b64 s[%d:%d], 0' % (80 + 2 * i, 81 + 2 * i))
        a('s_memtime s[80:81]')
def stamp_end(a):
    if OPT['probe'] >= 0:
        L = a.newlabel('PRB')
        if OPT['probe'] == 10:
            a('s_waitcnt vmcnt(0)')
            a('s_memrealtime s[96:97]')
        a('s_cmp_lg_u32 s10, 0')
        a('s_cbranch_scc1 %sx' % L)
        if OPT['pwg'] >= 0:
            a('s_cmp_lg_u32 s2, %d' % OPT['pwg'])
            a('s_cbranch_scc1 %sx' % L)
        a('s_waitcnt lgkmcnt(0)')
        a('s_add_u32 s96, s96, 4000')
        if OPT['pc']:
            a('s_sub_u32 s92, s92, s94')
            a('s_lshr_b32 s92, s92, 4')
            a('s_add_u32 s96, s96, s92')
        a.label(L)
        a('s_sleep 1')
        a('s_memrealtime s[98:99]')
        a('s_waitcnt lgkmcnt(0)')
        a('s_sub_u32 s98, s98, s96')
        a('s_cmp_lt_i32 s98, 0')
        a('s_cbranch_scc1 %s' % L)
        a.label(L + 'x')
    if OPT['stamp']:
        a('s_waitcnt vmcnt(0) lgkmcnt(0)')
        a('s_memtime s[100:101]')
        a('s_memrealtime s[76:77]')
        srd(a, 44, P_WS, 0x100000, WS_DBG)
        a('s_lshl_b32 s5, s2, 3')
        a('s_add_u32 s5, s5, s10')
        a('s_lshl_b32 s5, s5, 6')
        a('s_waitcnt lgkmcnt(0)')
        a('v_mov_b32 v0, s78')
        a('v_mov_b32 v1, s76')
        for i in range(11): a('v_mov_b32 v%d, s%d' % (2 + i, 80 + 2 * i))
        a('v_mov_b32 v16, s5')
        a('s_mov_b64 exec, 1')
        for i in range(4):
            a('buffer_store_dwordx4 v[%d:%d], v16, s[44:47], 0 offen offset:%d' % (4 * i, 4 * i + 3, 16 * i))

def capture(a, fn):
    save = a.lines; a.lines = []
    fn()
    out = a.lines; a.lines = save
    return out

class Q:
    def __init__(self): self.q = []
    def push(self, tag, sure=True): self.q.append((tag, sure))
    def need(self, tags):
        idx = [i for i, (t, _) in enumerate(self.q) if t in tags]
        if not idx: return None
        last = max(idx)
        n = sum(1 for (_, sure) in self.q[last + 1:] if sure)
        self.q = self.q[last + 1:]
        return n
    def clear(self): self.q = []

NC = 's[0:1]'
def poll_check(a, loadline, vtmp, sc, sleep=2):
    L, D = a.newlabel('POLL'), a.newlabel('POLLD')
    a('s_mov_b32 s%d, 0x20000' % sc)
    a.label(L)
    a('v_cmp_eq_u64 vcc, %s, %s' % (NC, v(vtmp, 2)))
    a('s_cmp_eq_u64 vcc, -1')
    a('s_cbranch_scc1 %s' % D)
    a('s_sleep %d' % sleep)
    a(loadline)
    a('s_waitcnt vmcnt(0)')
    a('s_sub_u32 s%d, s%d, 1' % (sc, sc))
    a('s_cbranch_scc0 %s' % L)
    a.label(D)
def poll(a, loadline, vtmp, sc, sleep=2):
    a(loadline)
    a('s_waitcnt vmcnt(0)')
    poll_check(a, loadline, vtmp, sc, sleep)

GO_LOAD = 'buffer_load_dwordx2 v[250:251], v252, s[72:75], s11 offen sc1'
PF_LOAD = 'buffer_load_dwordx2 v[244:245], v248, s[%d:%d], 0 offen sc1' % (SF, SF + 3)

def set_flag(a, soff):
    a('s_mov_b64 exec, 1')
    a('buffer_store_dwordx2 v[250:251], v252, %s, s%d offen sc1' % (s(SF, 4), soff))
    a('s_mov_b64 exec, -1')

def fx_publish(a, wave):
    a('v_mov_b32 v240, v250')
    a('v_xor_b32 v241, s%d, v251' % S_XCC)
    a('s_lshl_b32 s11, s3, 5')
    a('s_add_u32 s11, s11, s4')
    a('s_lshl_b32 s11, s11, %d' % OPT['fsx'])
    a('s_add_u32 s11, s11, %s' % hex(F_X))
    a('s_cmp_eq_u32 s%d, %d' % (S_W, wave))
    a('s_cselect_b32 s11, s11, %s' % hex(OOB))
    a('s_mov_b64 exec, 1')
    a('buffer_store_dwordx2 v[240:241], v252, %s, s11 offen sc1' % s(SF, 4))
    a('s_mov_b64 exec, -1')
def fx_load(a):
    a('s_lshr_b32 s11, s%d, 1' % S_W)
    a('s_lshl_b32 s11, s11, 3')
    a('v_and_b32 v249, 7, v1')
    a('v_add_u32 v249, s11, v249')
    a('s_lshl_b32 s11, s3, %d' % (5 + OPT['fsx']))
    a('s_add_u32 s11, s11, %s' % hex(F_X))
    a('v_lshlrev_b32 v249, %d, v249' % OPT['fsx'])
    a('buffer_load_dwordx2 v[242:243], v249, %s, s11 offen sc1' % s(SF, 4))
def fx_eval(a):
    a('v_cmp_eq_u64 vcc, v[240:241], v[242:243]')
    a('s_cmp_eq_u64 vcc, -1')
    a('s_cselect_b32 s%d, %d, 0' % (S_XCC, 1 if OPT['local'] else 0))
def store2(a, line):
    L1, L2 = a.newlabel('SL1'), a.newlabel('SL2')
    a('s_cmp_eq_u32 s%d, 1' % S_XCC)
    a('s_cbranch_scc1 %s' % L1)
    a(line + ' sc1')
    a('s_branch %s' % L2)
    a.label(L1)
    a(line)
    a.label(L2)

def nonce_publish(a):
    L = a.newlabel('NP')
    a('s_or_b32 s11, s2, s%d' % S_W)
    a('s_cmp_lg_u32 s11, 0')
    a('s_cbranch_scc1 %s' % L)
    a('s_or_b32 s74, s74, 1')
    a('v_mov_b32 v250, s74')
    a('v_mov_b32 v251, s75')
    a('v_lshlrev_b32 v249, 7, v1')
    a('s_mov_b64 exec, 3')
    a('global_store_dwordx2 v249, v[250:251], s[%d:%d] sc1' % (P_DBG, P_DBG + 1))
    a('s_mov_b64 exec, -1')
    a.label(L)
def go_off(a):
    a('s_and_b32 s11, s4, 1')
    a('s_lshl_b32 s11, s11, 7')
def go_issue(a):
    srd(a, 72, P_DBG, 256)
    go_off(a)
    a('s_cmp_eq_u32 s%d, 0' % S_W)
    a('s_cselect_b32 s11, s11, %s' % hex(OOB))
    a(GO_LOAD)
def go_check(a):
    L, R, D = a.newlabel('GOC'), a.newlabel('GOR'), a.newlabel('GOD')
    a('s_cmp_lg_u32 s%d, 0' % S_W)
    a('s_cbranch_scc1 %s' % L)
    go_off(a)
    a('s_mov_b32 s69, 0x20000')
    a.label(R)
    a('v_cmp_ne_u32 vcc, 0, v250')
    a('s_cbranch_vccnz %s' % D)
    a('s_sleep 4')
    a(GO_LOAD)
    a('s_waitcnt vmcnt(0)')
    a('s_sub_u32 s69, s69, 1')
    a('s_cbranch_scc0 %s' % R)
    a.label(D)
    a('ds_write_b64 v254, v[250:251] offset:8')
    a('s_waitcnt lgkmcnt(0)')
    a.label(L)
GO_FETCH = 'ds_read_b64 v[250:251], v254 offset:8'
def go_sgpr(a):
    a('v_readfirstlane_b32 s0, v250')
    a('v_readfirstlane_b32 s1, v251')
def fw_check(a):
    D = a.newlabel('PFD')
    a('s_cmp_lg_u32 s%d, 0' % S_W)
    a('s_cbranch_scc1 %s' % D)
    poll_check(a, PF_LOAD, 244, 11, sleep=4)
    a.label(D)

def common_pre(a):
    a('v_mov_b32 v252, 0')
    a('v_mov_b32 v253, 1')
    a('v_mov_b32 v254, %d' % LDS_CNT)
    a('ds_write_b32 v254, v252')
    a('ds_write_b32 v254, v252 offset:4')
    a('ds_write_b32 v254, v252 offset:16')
    a('v_lshlrev_b32 v237, 4, v1')

def flag_srd(a):
    srd(a, SF, P_WS, F_SIZE, WS_F)

G1_FR, G1_ACC = 12, 44
SX, SW1, SW3, SH = 44, 48, 52, 56
OX, OW, LW, HO, GO = 60, 61, 62, 63, 64
GID, U0 = 70, 71

def gemm1_pre(a):
    RB, CB, W = 8, 9, S_W
    a('s_lshl_b32 s%d, s%d, 10' % (LW, W))
    a('v_lshrrev_b32 v13, 3, v1')
    a('s_lshl_b32 s11, s%d, 3' % W)
    a('v_add_u32 v13, s11, v13')
    a('v_bfe_u32 v14, v13, 1, 3')
    a('v_and_b32 v15, 7, v1')
    a('v_xor_b32 v14, v14, v15')
    a('v_lshlrev_b32 v14, 4, v14')
    a('v_mul_u32_u24 v2, 1280, v13')
    a('v_add_u32 v2, v2, v14')
    for i in range(1, 4):
        a('v_add_u32 v%d, %s, v2' % (2 + i, hex(i * 81920)))
    a('v_bfe_u32 v14, v13, 1, 1')
    a('v_lshlrev_b32 v14, 2, v14')
    a('v_xor_b32 v14, v14, v15')
    a('v_lshlrev_b32 v14, 4, v14')
    a('v_mul_u32_u24 v6, 3456, v13')
    a('v_add_u32 v6, v6, v14')
    if OPT['touch']:
        a('v_mul_u32_u24 v16, 205, v1')
        a('v_lshrrev_b32 v16, 11, v16')
        a('v_mul_u32_u24 v17, 10, v16')
        a('v_sub_u32 v17, v1, v17')
        a('s_mul_i32 s11, s%d, 10' % W)
        a('v_add_u32 v17, s11, v17')
        a('v_min_u32 v17, 74, v17')
        a('s_lshr_b32 s11, s4, 2')
        a('s_mul_i32 s11, s11, 43')
        a('v_add_u32 v18, s11, v17')
        a('v_min_u32 v18, 255, v18')
        a('v_mul_u32_u24 v18, 1280, v18')
        a('v_subrev_u32 v19, 43, v17')
        a('v_and_b32 v19, 15, v19')
        a('s_and_b32 s11, s4, 3')
        a('s_lshl_b32 s11, s11, 4')
        a('v_add_u32 v19, s11, v19')
        a('v_mul_u32_u24 v19, 3456, v19')
        a('v_cmp_gt_u32 vcc, 43, v17')
        a('v_mov_b32 v20, %d' % (64 * 3456))
        a('v_mov_b32 v21, 128')
        a('v_cndmask_b32 v242, v20, v21, vcc')
        a('v_cndmask_b32 v18, v19, v18, vcc')
        a('v_mul_u32_u24 v16, v16, v242')
        a('v_add_u32 v18, v18, v16')
    a('s_mul_i32 s%d, s%d, 27' % (GID, RB))
    a('s_add_u32 s%d, s%d, s%d' % (GID, GID, CB))
    a('s_lshr_b32 s65, s%d, 1' % W)
    a('s_and_b32 s66, s%d, 1' % W)
    a('s_lshl_b32 s67, s%d, 2' % RB)
    a('s_add_u32 s67, s67, s65')
    a('s_lshl_b32 s68, s%d, 1' % CB)
    a('s_add_u32 s68, s68, s66')
    a('s_lshl_b32 s%d, s67, 6' % S_F1)
    a('s_add_u32 s%d, s%d, s68' % (S_F1, S_F1))
    a('s_lshl_b32 s%d, s%d, %d' % (S_F1, S_F1, OPT['fsh']))

def touch_lines(lo, n):
    m = ((1 << n) - 1) << lo
    return ['s_mov_b32 exec_lo, %s' % hex(m & 0xffffffff), 's_mov_b32 exec_hi, %s' % hex(m >> 32),
            'global_load_dword v243, v[240:241], off', 's_mov_b64 exec, -1']

def gemm1_post_addr(a):
    W = S_W
    a('s_mul_i32 s%d, s67, 54' % HO)
    a('s_add_u32 s%d, s%d, s68' % (HO, HO))
    a('s_lshl_b32 s%d, s%d, 12' % (HO, HO))
    a('s_lshl_b32 s11, s65, 13')
    a('v_and_b32 v13, 31, v1')
    a('v_lshrrev_b32 v14, 5, v1')
    a('v_bfe_u32 v15, v1, 1, 3')
    a('v_xor_b32 v15, v15, v14')
    a('v_lshlrev_b32 v12, 7, v13')
    a('v_add_u32 v12, s11, v12')
    for kk in range(4):
        a('v_xor_b32 v%d, %d, v15' % (7 + kk, 2 * kk))
        a('v_lshl_add_u32 v%d, v%d, 4, v12' % (7 + kk, 7 + kk))
    a('v_bfe_u32 v11, v1, 2, 2')
    a('v_lshl_add_u32 v11, v14, 3, v11')
    a('v_lshlrev_b32 v11, 7, v11')
    a('v_bfe_u32 v12, v1, 3, 1')
    a('v_xor_b32 v12, s66, v12')
    a('v_lshl_add_u32 v11, v12, 6, v11')
    a('v_bfe_u32 v12, v1, 4, 1')
    a('v_lshl_add_u32 v11, v12, 5, v11')
    a('v_and_b32 v12, 3, v1')
    a('v_lshl_add_u32 v11, v12, 3, v11')
    a('v_add_u32 v11, 0x8000, v11')
    for i in range(5):
        a('v_add_u32 v%d, 0x18000, v%d' % (208 + i, 7 + i))
    a('v_bfe_u32 v12, v1, 4, 1')
    a('v_lshlrev_b32 v12, 10, v12')
    a('v_and_b32 v13, 15, v1')
    a('v_lshl_add_u32 v12, v13, 4, v12')
    a('v_lshl_add_u32 v213, v14, 8, v12')
    a('s_and_b32 s%d, s68, 7' % GO)
    a('s_lshl_b32 s69, s%d, 10' % GO)
    a('s_add_u32 s11, s11, s69')
    a('v_add_u32 v214, s11, v237')
    a('v_add_u32 v215, 0x18000, v214')
    a('s_and_b32 s69, s%d, 1' % GO)
    a('s_lshl_b32 s69, s69, 2')
    a('v_lshrrev_b32 v12, 4, v1')
    a('v_add_u32 v12, s69, v12')
    a('v_and_b32 v13, 7, v1')
    a('v_xor_b32 v12, v12, v13')
    a('v_lshlrev_b32 v216, 4, v12')
    a('v_add_u32 v216, %d, v216' % LDS_GW)
    if OPT['rot1']:
        a('s_lshl_b32 s69, s%d, 7' % KS0)
        a('v_add_u32 v216, s69, v216')
    a('v_mov_b32 v217, 0')
    a('s_lshl_b32 s%d, s%d, 5' % (GO, GO))
    a('s_lshl_b32 s69, s67, 8')
    a('s_add_u32 s%d, s%d, s69' % (GO, GO))
    a('s_cmp_lt_u32 s68, 8')
    a('s_cselect_b32 s%d, s%d, %s' % (GO, GO, hex(OOB)))
    a('v_lshrrev_b32 v12, 5, v1')
    a('v_bfe_u32 v13, v1, 2, 3')
    a('v_lshl_add_u32 v12, v12, 4, v13')
    a('v_lshlrev_b32 v12, 7, v12')
    a('v_and_b32 v13, 3, v1')
    a('v_lshl_add_u32 v12, v13, 3, v12')
    a('s_lshr_b32 s11, s%d, 2' % W)
    a('s_lshl_b32 s11, s11, 12')
    a('s_and_b32 s69, s%d, 3' % W)
    a('s_lshl_b32 s69, s69, 5')
    a('s_add_u32 s11, s11, s69')
    a('s_add_u32 s11, s11, %d' % LDS_W2S)
    a('v_add_u32 v236, s11, v12')

def item(lines, pre=(), vm=None, lg=None, needlg=(), needvm=()):
    if isinstance(lines, str): lines = [lines]
    if isinstance(pre, str): pre = [pre]
    return dict(pre=list(pre), lines=list(lines), vm=vm, lg=lg, needlg=set(needlg), needvm=set(needvm))

KS0 = 28
def g1_dma_items(stage):
    base = SLOT[stage % 3]
    it = []
    for m, S in ((0, SW1), (1, SW3)):
        pre = ['s_add_u32 m0, s%d, %s' % (LW, hex(base + 32768 + m * 8192))]
        if m == 0:
            if OPT['rot1']:
                pre = ['s_add_u32 s29, s%d, %d' % (KS0, stage), 's_cmp_ge_u32 s29, 10', 's_cselect_b32 s%d, 10, 0' % OW,
                       's_sub_u32 s29, s29, s%d' % OW, 's_mul_i32 s%d, s29, %d' % (OW, 64 * 3456)] + pre
            else:
                pre = ['s_mov_b32 s%d, %s' % (OW, hex(stage * 64 * 3456))] + pre
        it.append(item('buffer_load_dwordx4 v6, %s, s%d offen lds' % (s(S, 4), OW), pre, vm=('st', stage)))
    for i in range(4):
        pre = ['s_add_u32 m0, s%d, %s' % (LW, hex(base + i * 8192))]
        if i == 0:
            pre = [('s_lshl_b32 s%d, s29, 7' % OX) if OPT['rot1'] else ('s_movk_i32 s%d, %d' % (OX, stage * 128))] + pre
        it.append(item('buffer_load_dwordx4 v%d, %s, s%d offen lds' % (2 + i, s(SX, 4), OX), pre, vm=('st', stage)))
    if OPT['nodma'] and stage >= 3:
        it = []
    return it

class G1:
    def __init__(self, a):
        self.a = a; self.vq = Q(); self.lq = Q()
    def fork(self):
        g = G1(self.a); g.vq = copy.deepcopy(self.vq); g.lq = copy.deepcopy(self.lq); return g
    def wait(self, vm=(), lg=(), lgall=False):
        parts = []
        n = self.vq.need(set(vm)) if vm else None
        if n is not None: parts.append('vmcnt(%d)' % min(n, 63))
        if lgall:
            if self.lq.q: parts.append('lgkmcnt(0)')
            self.lq.clear()
        else:
            n = self.lq.need(set(lg)) if lg else None
            if n is not None: parts.append('lgkmcnt(%d)' % min(n, 15))
        if parts: self.a('s_waitcnt ' + ' '.join(parts))
    def emit(self, it, with_pre=True):
        a = self.a
        if with_pre and it['pre']:
            for l in it['pre']: a(l)
            if 'm0' in it['pre'][-1]: a('s_nop 0')
        if it['needlg'] or it['needvm']: self.wait(vm=it['needvm'], lg=it['needlg'])
        for l in it['lines']: a(l)
        if it['vm'] is not None: self.vq.push(it['vm'], sure=(it['vm'] != 'w2?'))
        if it['lg'] is not None: self.lq.push(it['lg'])
    def read_items(self, stage, kk):
        base = SLOT[stage % 3]; hi = base >= 98304
        off = base - (98304 if hi else 0)
        b = kk & 1
        B = G1_FR + 16 * b
        xa = (208 if hi else 7) + kk
        wa = 212 if hi else 11
        def w(m, h): return item('ds_read_b64_tr_b16 %s, v%d offset:%d' % (v(B + 8 + 4 * m + 2 * h, 2), wa, off + m * 8192 + kk * 2048 + h * 512), lg=('w', stage, kk, m))
        def x(nt): return item('ds_read_b128 %s, v%d offset:%d' % (v(B + 4 * nt, 4), xa, off + nt * 4096), lg=('x', stage, kk, nt))
        return [w(0, 0), w(0, 1), x(0), x(1), w(1, 0), w(1, 1)]
    def substep(self, sidx, kk, gaps):
        a = self.a
        B = G1_FR + 16 * (kk & 1)
        i = 0
        for m in range(2):
            for nt in range(2):
                g = gaps[i]
                if g and g[0]['pre']:
                    for l in g[0]['pre']: a(l)
                self.wait(lg=[('w', sidx, kk, m), ('x', sidx, kk, nt)])
                acc = v(G1_ACC + (m * 2 + nt) * 16, 16)
                a('v_mfma_f32_32x32x16_bf16 %s, %s, %s, %s' % (acc, v(B + 8 + 4 * m, 4), v(B + 4 * nt, 4), '0' if (sidx == 0 and kk == 0) else acc))
                for k, it in enumerate(g):
                    self.emit(it, with_pre=(k > 0))
                i += 1
    def step(self, sidx, ex, before_barrier=None, needvm=()):
        a = self.a
        a.comment('k-step %d' % sidx)
        if sidx < 9 or OPT['probe'] >= 0: stamp(a, sidx + 1, 2)
        base = SLOT[sidx % 3]; hi = base >= 98304
        for kk in range(4):
            if kk == 3:
                self.wait(vm=[('st', sidx + 1)] + list(needvm), lgall=True)
                if before_barrier: before_barrier(a)
                a('s_barrier')
            if kk < 3: r = self.read_items(sidx, kk + 1)
            elif sidx < 9: r = self.read_items(sidx + 1, 0)
            else: r = []
            e = list(ex.get(kk, []))
            if kk == 0:
                e = [item('ds_read_b128 v[220:223], v%d offset:%d' % (215 if hi else 214, base - (98304 if hi else 0)), lg='gx'),
                     item('ds_read_b128 v[224:227], v216 offset:%d' % (sidx * 128), lg='gx')] + e
            if kk == 2:
                e = e + [item(['v_dot2c_f32_bf16 v217, v%d, v%d' % (220 + i, 224 + i) for i in range(4)], needlg=['gx'])]
            h = (len(e) + 1) // 2
            if r: gaps = [r[0:3], r[3:6], e[:h], e[h:]]
            else:
                n4 = (len(e) + 3) // 4
                gaps = [e[i * n4:(i + 1) * n4] for i in range(4)]
            self.substep(sidx, kk, gaps)

def touch_item(stage):
    if not OPT['touch'] or stage > 9 or stage < OPT['tp']: return []
    lines = []
    if stage == 6:
        lines += ['v_mul_u32_u24 v218, 6, v242', 'v_add_co_u32 v240, vcc, v240, v218', 's_nop 1', 'v_addc_co_u32 v241, vcc, 0, v241, vcc']
    lines += touch_lines(10 * (stage % 6), 10)
    return [item(lines, vm='touch')]

def gemm1_head(a):
    RB, CB, W = 8, 9, S_W
    g = G1(a)
    nonce_publish(a)
    if OPT['rot1']:
        R = OPT['rot1']
        a('s_mul_i32 s11, s%d, %d' % (RB, 3 if R != 3 else 1))
        a('s_add_u32 s11, s11, s%d' % CB)
        a('s_mul_i32 s69, s11, %d' % ((2048 + R - 1) // R))
        a('s_lshr_b32 s69, s69, 11')
        a('s_mul_i32 s69, s69, %d' % R)
        a('s_sub_u32 s%d, s11, s69' % KS0)
        if R != 10: a('s_mul_i32 s%d, s%d, %d' % (KS0, KS0, 10 // R))
    a('s_mul_i32 s11, s%d, %d' % (RB, 256 * 1280))
    srd(a, SX, P_Q, 256 * 1280, 's11')
    a('s_lshl_b32 s11, s%d, 7' % CB)
    a('s_sub_u32 s69, %s, s11' % hex(SZ_W))
    srd(a, SW1, P_W1, 's69', 's11')
    srd(a, SW3, P_W3, 's69', 's11')
    if OPT['touch']:
        a('v_cmp_gt_u32 vcc, 59, v17')
        a('v_mov_b32 v20, s%d' % SW3); a('v_mov_b32 v21, s%d' % SW1)
        a('v_cndmask_b32 v240, v20, v21, vcc')
        a('v_mov_b32 v20, s%d' % (SW3 + 1)); a('v_mov_b32 v21, s%d' % (SW1 + 1))
        a('v_cndmask_b32 v241, v20, v21, vcc')
        a('v_cmp_gt_u32 vcc, 43, v17')
        a('v_mov_b32 v20, s%d' % SX); a('v_mov_b32 v21, s%d' % (SX + 1))
        a('v_cndmask_b32 v240, v240, v20, vcc')
        a('v_cndmask_b32 v241, v241, v21, vcc')
        a('v_add_co_u32 v240, vcc, v240, v18')
        a('s_nop 1')
        a('v_addc_co_u32 v241, vcc, 0, v241, vcc')
        g.emit(item(touch_lines(0, 10 * OPT['tp']), vm='touch'))
    for it in g1_dma_items(0): g.emit(it)
    stamp(a, 1)
    L = a.newlabel('GW')
    a('s_cmp_ge_u32 s%d, 3' % W)
    a('s_cbranch_scc1 %s' % L)
    srd(a, SH, P_GW, 1280)
    a('v_add_u32 v12, s%d, v237' % LW)
    a('v_subrev_u32 v13, 1280, v12')
    a('v_min_u32 v12, v12, v13')
    a('v_subrev_u32 v13, 1280, v12')
    a('v_min_u32 v12, v12, v13')
    a('s_add_u32 m0, s%d, %d' % (LW, LDS_GW))
    a('s_nop 0')
    a('buffer_load_dwordx4 v12, %s, 0 offen lds' % s(SH, 4))
    a.label(L)
    g.vq.push('gw', sure=False)
    gemm1_post_addr(a)
    flag_srd(a)
    srd(a, SH, P_W2, SZ_W)
    a('s_mul_i32 s11, s%d, 3641' % GID)
    a('s_lshr_b32 s11, s11, 16')
    a('s_mul_i32 s69, s11, 18')
    a('s_sub_u32 s69, s%d, s69' % GID)
    a('s_mul_i32 s69, s69, 3')
    a('s_lshr_b32 s72, s%d, 2' % W)
    a('s_add_u32 s69, s69, s72')
    a('s_cmp_ge_u32 s%d, 180' % GID)
    a('s_cselect_b32 s69, 60, s69')
    a('s_mul_i32 s%d, s69, 10' % U0)
    a('s_add_u32 s%d, s%d, s11' % (U0, U0))
    a('s_mul_i32 s69, s69, %d' % (32 * 1280))
    a('s_lshl_b32 s65, s11, 7')
    a('s_add_u32 s65, s65, s69')
    a('s_add_u32 s66, s65, %d' % (64 * 1280))
    a('s_cmp_lt_u32 s%d, 4' % W)
    a('s_cselect_b32 s66, s66, 0x7000000')
    a('s_and_b32 s67, s%d, 3' % W)
    a('s_lshl_b32 s67, s67, 10')
    a('s_add_u32 s67, s67, %d' % (LDS_W2S + 8192))
    a('s_cselect_b32 s67, s67, s67')
    a('v_lshrrev_b32 v12, 3, v1')
    a('s_and_b32 s69, s%d, 3' % W)
    a('s_lshl_b32 s69, s69, 3')
    a('v_add_u32 v12, s69, v12')
    a('v_mul_u32_u24 v12, 1280, v12')
    a('v_and_b32 v13, 7, v1')
    a('v_lshl_add_u32 v219, v13, 4, v12')
    L2 = a.newlabel('W2')
    w2l = [item('buffer_load_dwordx4 v219, %s, s65 offen lds' % s(SH, 4), pre='s_add_u32 m0, s%d, %d' % (LW, LDS_W2S), vm='w2'),
           item(['s_cmp_ge_u32 s%d, 4' % W, 's_cbranch_scc1 %s' % L2, 's_mov_b32 m0, s67', 's_nop 0',
                 'buffer_load_dwordx4 v219, %s, s66 offen lds' % s(SH, 4), L2 + ':'], vm='w2?')]
    a('s_barrier')
    for it in g1_dma_items(1): g.emit(it)
    g.wait(vm=[('st', 0), 'gw'])
    a('s_barrier')
    stamp(a, 2)
    if OPT['prio']:
        L = a.newlabel('PR')
        a('s_cmp_lt_u32 s%d, 4' % W)
        a('s_cbranch_scc1 %s' % L)
        a('s_setprio 1')
        a.label(L)
    for it in g.read_items(0, 0): g.emit(it)
    d = [g1_dma_items(i) for i in range(10)] + [[], [], []]
    ld = OPT['lead']
    t0 = []
    for st_ in range(OPT['tp'], ld): t0 += touch_item(st_)
    w2r = [item('ds_read_b64_tr_b16 v[228:229], v236', lg='w2f'), item('ds_read_b64_tr_b16 v[230:231], v236 offset:1024', lg='w2f'),
           item('ds_read_b64_tr_b16 v[232:233], v236 offset:8192', lg='w2f'), item('ds_read_b64_tr_b16 v[234:235], v236 offset:9216', lg='w2f')]
    w2s = [item('buffer_store_dwordx4 v[228:231], v237, %s, s11 offen sc1' % s(SH, 4),
                pre=['s_lshl_b32 s11, s%d, 2' % U0, 's_and_b32 s69, s%d, 3' % W, 's_add_u32 s11, s11, s69', 's_lshl_b32 s11, s11, 10'], vm='w2s', needlg=['w2f']),
           item('buffer_store_dwordx4 v[232:235], v237, %s, s11 offen sc1' % s(SH, 4),
                pre=['s_add_u32 s11, s11, %d' % (20 * 4096), 's_cmp_lt_u32 s%d, 4' % W, 's_cselect_b32 s11, s11, 0x7000000'], vm='w2s')]
    goi = item(capture_l(a, go_issue), vm='go')
    g.step(0, {0: w2l + [goi] + d[2][0:1], 1: d[2][1:4], 2: d[2][4:6], 3: d[3][0:2]})
    srd(a, SH, P_WS, SZ_W, WS_W2P)
    g.step(1, {0: d[3][2:4], 1: d[3][4:6], 3: [item(GO_FETCH, lg='go')] + w2r + d[4][0:2]}, before_barrier=go_check, needvm=['go', 'w2', 'w2?'])
    fw = item(['s_lshl_b32 s11, s%d, %d' % (GID, OPT['fsw']), 's_add_u32 s11, s11, %s' % hex(F_W), 's_cmp_eq_u32 s%d, 0' % W,
               's_cselect_b32 s11, s11, %s' % hex(OOB)] + capture_l(a, lambda a: set_flag(a, 11)), vm='fw')
    g.step(2, {0: w2s + d[4][2:4], 1: d[4][4:6], 2: [item(capture_l(a, go_sgpr), needlg=['go']), item(capture_l(a, lambda a: fx_publish(a, 1)), vm='fxp')], 3: d[5][0:2]})
    srd(a, SH, P_WS, SZ_H, None if WS_H == 0 else WS_H)
    g.step(3, {0: d[5][2:4], 1: d[5][4:6], 3: [fw] + d[6][0:2]}, needvm=['w2s'])
    g.step(4, {0: d[6][2:4], 1: d[6][4:6], 3: d[7][0:2]})
    return g, d

def capture_l(a, fn):
    return [l.strip() for l in capture(a, lambda: fn(a))]

def gemm1_tail(a, g, d, role):
    g = g.fork()
    pf = [item(PF_LOAD, vm='pf')]
    ex = {s_: {0: d[s_ + 2][2:4], 1: d[s_ + 2][4:6], 2: touch_item(s_ + OPT['lead']), 3: d[s_ + 3][0:2]} for s_ in range(5, 10)}
    bb = {}; nv = {}
    post = []
    def chunks(lines, n):
        k = (len(lines) + n - 1) // n
        return [item(lines[i * k:(i + 1) * k]) for i in range(n) if lines[i * k:(i + 1) * k]]
    if role == 'G2':
        fs = OPT['fwst']
        bb[fs] = fw_check; nv[fs] = ['pf']
        if fs == 5:
            ex[5][0] = [item(capture_l(a, g2_pre))] + pf + ex[5][0]
        else:
            ex[5][2] = ex[5][2] + [item(capture_l(a, g2_pre))]
            ex[fs][0] = pf + ex[fs][0]
        w = []
        for p in range(4): w += g2_w_items(p, p)
        n = OPT['npre']
        slots = [(s_, kk) for s_ in range(OPT['wst'] - 1, 10) for kk in range(4)][3:-1]
        l01 = g2_wl_items(4, 0) + g2_wl_items(5, 1)
        if n > 20:
            rs = [x for x in slots if x < (8, 3)]; ls = [x for x in slots if x >= (8, 3)]
            for i, (s_, kk) in enumerate(rs): ex[s_][kk] = ex[s_][kk] + w[20 * i // len(rs):20 * (i + 1) // len(rs)]
            m = n - 20
            for i, (s_, kk) in enumerate(ls): ex[s_][kk] = ex[s_][kk] + l01[m * i // len(ls):m * (i + 1) // len(ls)]
        else:
            for i, (s_, kk) in enumerate(slots): ex[s_][kk] = ex[s_][kk] + w[n * i // len(slots):n * (i + 1) // len(slots)]
        post = (w + l01)[n:]
        ex[9][3] = [item(capture_l(a, g2_fh_addr))]
    elif role == 'CV':
        ex[5][2] = ex[5][2] + [item(['s_sub_u32 s7, s%d, 192' % GID, 's_add_u32 s7, s7, s%d' % GID, 's_cmp_ge_u32 s%d, 192' % GID, 's_cselect_b32 s7, s7, s%d' % GID, 's_cselect_b32 s%d, 1, 0' % CV_M, 's_mov_b32 s%d, 0' % CV_TG, 's_movk_i32 s%d, 1000' % CV_NX] + capture_l(a, cv_pre)),
                               item(['s_mov_b32 exec_hi, 0', 'buffer_load_dword v246, v246, s[72:75], 0 offen', 's_mov_b64 exec, -1'], vm='touch2')]
        su = chunks(capture_l(a, cv_setup1), 8)
        ex[6][2] = su[0:2]; ex[6][0] = ex[6][0]; ex[7][2] = su[2:4]; ex[9][0] = su[4:6]; ex[9][1] = su[6:8]
        hd = cv_h_items_half()
        LB_ = a.newlabel('HB')
        other = ['s_cmp_eq_u32 s%d, 0' % CV_M, 's_cbranch_scc1 %s' % LB_, 's_andn2_b32 s11, 1, s%d' % S_W, 's_lshl_b32 s11, s11, 1',
                 'v_subrev_u32 v239, s11, v238', 's_mul_i32 s11, s11, %d' % (C_HB // 2), 's_add_u32 s11, s11, s%d' % CV_LB, 's_add_u32 m0, s11, 512', 's_nop 0']
        other += ['buffer_load_dwordx4 v239, s[72:75], 0 offen offset:%d lds' % (i * 1024) for i in range(4)] + [LB_ + ':']
        ex[7][3] = [item(other, vm='w2?')] + hd[0:1]; ex[8][0] = hd[1:2]; ex[8][1] = hd[2:3]; ex[8][2] = hd[3:4]
        ex[8][3] = pf + [item(l, lg='pad') for l in cv_pads()]
        nv[9] = ['cvh']
        fx = cv_fix()
        ex[9][3] = [item(fx[0], lg='fix'), item(capture_l(a, cv_try_u), needvm=['pf']), item(fx[1:], needlg=['fix'], lg='fix2')]
    ex[7][2] = [item(capture_l(a, fx_load), vm='fx')] + ex[7][2]
    ex[9][2] = ex[9][2] + [item(capture_l(a, fx_eval), needvm=['fx'])]
    for s_ in range(5, 10):
        if s_ == 5: stamp(a, 3)
        g.step(s_, ex[s_], before_barrier=bb.get(s_), needvm=nv.get(s_, ()))
    stamp(a, 4)
    if role == 'CV':
        if OPT['eprio']: a('s_setprio %d' % OPT['eprio'])
        for l in cv_g_reads(0, 0): a(l)
    elif OPT['gprio']:
        a('s_setprio %d' % OPT['gprio'])
    for sh in (1, 2):
        a('v_add_f32_dpp v217, v217, v217 quad_perm:%s row_mask:0xf bank_mask:0xf' % ('[1,0,3,2]' if sh == 1 else '[2,3,0,1]'))
        a('s_nop 1')
    a('v_add_f32_dpp v217, v217, v217 row_half_mirror row_mask:0xf bank_mask:0xf')
    a('s_mov_b32 s60, %s' % NLOG2E)
    a('s_mov_b32 s61, %s' % NLOG2E)
    a('v_mul_f32 v217, s60, v217')
    a('v_exp_f32 v217, v217')
    a('v_lshrrev_b32 v218, 3, v1')
    a('v_add_f32 v217, 1.0, v217')
    a('v_rcp_f32 v217, v217')
    a('v_lshlrev_b32 v218, 2, v218')
    srd(a, SX, P_WS, 8192, WS_G)
    a('s_mov_b32 exec_lo, 0x01010101')
    a('s_mov_b32 exec_hi, 0x01010101')
    store2(a, 'buffer_store_dword v217, v218, %s, s%d offen' % (s(SX, 4), GO))
    a('s_mov_b64 exec, -1')
    T = G1_FR
    for nt in range(2):
        for jp in range(2):
            G = G1_ACC + nt * 16 + 8 * jp
            U = G1_ACC + (2 + nt) * 16 + 8 * jp
            for i in range(0, 8, 2):
                a('v_pk_mul_f32 %s, %s, s[60:61]' % (v(T + i, 2), v(G + i, 2)))
            for i in range(0, 8, 2):
                a('v_exp_f32 v%d, v%d' % (T + i, T + i))
                a('v_exp_f32 v%d, v%d' % (T + i + 1, T + i + 1))
                a('v_pk_mul_f32 %s, %s, %s' % (v(G + i, 2), v(G + i, 2), v(U + i, 2)))
            for i in range(0, 8, 2):
                a('v_pk_add_f32 %s, %s, 1.0 op_sel_hi:[1,0]' % (v(T + i, 2), v(T + i, 2)))
            for i in range(8):
                a('v_rcp_f32 v%d, v%d' % (T + i, T + i))
            a('s_nop 0')
            for i in range(0, 8, 2):
                a('v_pk_mul_f32 %s, %s, %s' % (v(G + i, 2), v(G + i, 2), v(T + i, 2)))
            O = T + 16 + 8 * nt + 4 * jp
            for i in range(4):
                a('v_cvt_pk_bf16_f32 v%d, v%d, v%d' % (O + i, G + 2 * i, G + 2 * i + 1))
            store2(a, 'buffer_store_dwordx4 %s, v213, %s, s%d offen offset:%d' % (v(O, 4), s(SH, 4), HO, nt * 2048 + jp * 512))
    a('s_waitcnt vmcnt(0)')
    a('s_mov_b64 exec, 1')
    store2(a, 'buffer_store_dwordx2 v[250:251], v252, %s, s%d offen' % (s(SF, 4), S_F1))
    a('s_mov_b64 exec, -1')
    stamp(a, 5)
    if role == 'CV':
        L = a.newlabel('UOK')
        a('s_cmp_eq_u32 s%d, 1' % CV_T)
        a('s_cbranch_scc1 %s' % L)
        if OPT['fbar']: a('s_barrier')
        poll_check(a, PF_LOAD, 244, 11, sleep=2)
        cv_u_loads(a)
        a('s_waitcnt vmcnt(0)')
        a('s_branch K_conv')
        a.label(L)
        if OPT['fbar']: a('s_barrier')
    else:
        if OPT['fbar']: a('s_barrier')
        for it in post: g.emit(it)

UKR, UVR, UWR, UKU, UWU, UAC = 16, 60, 92, 108, 130, 138
def ut_pre(a):
    a('s_mul_i32 s11, s7, 6554')
    a('s_lshr_b32 s11, s11, 16')
    a('s_mul_i32 s69, s11, 10')
    a('s_sub_u32 s69, s7, s69')
    a('s_lshl_b32 s%d, s69, 5' % S_F2)
    a('s_add_u32 s%d, s%d, s11' % (S_F2, S_F2))
    a('s_lshl_b32 s%d, s%d, %d' % (S_F2, S_F2, OPT['fsu']))
    a('s_add_u32 s%d, s%d, %s' % (S_F2, S_F2, hex(F_U)))
    a('s_lshl_b32 s11, s11, 6')
    a('v_and_b32 v241, 0x38, v1')
    a('v_add_u32 v241, s11, v241')
    a('v_and_b32 v242, 7, v1')
    a('s_lshl_b32 s69, s69, 3')
    a('v_add_u32 v242, s69, v242')
    a('v_mul_u32_u24 v240, 1280, v241')
    a('v_lshl_add_u32 v240, v242, 4, v240')
    a('s_lshl_b32 s64, s69, 15')
    a('s_sub_u32 s11, 1984, s11')
    a('s_lshl_b32 s11, s11, 1')
    a('s_add_u32 s64, s64, s11')
    a('v_subrev_u32 v241, 3840, v240')
    a('v_lshlrev_b32 v242, 6, v242')
def ut_loads(a):
    SA, SB, SC = 44, 48, 52
    srd(a, SA, P_K, SZ_ACT)
    srd(a, SB, P_V, SZ_ACT)
    srd(a, SC, P_SK, 640 * 8)
    a('s_movk_i32 s11, 5120')
    for r in range(8):
        a('buffer_load_dwordx4 %s, v240, %s, %s offen offset:%d' % (v(UKR + 12 + 4 * r, 4), s(SA, 4), '0' if r < 4 else 's11', 1280 * (r & 3)))
    for r in range(3):
        a('buffer_load_dwordx4 %s, v241, %s, 0 offen offset:%d' % (v(UKR + 4 * r, 4), s(SA, 4), 1280 * r))
    for i in range(4):
        a('buffer_load_dwordx4 %s, v242, %s, 0 offen offset:%d' % (v(UWR + 4 * i, 4), s(SC, 4), 16 * i))
    for r in range(8):
        a('buffer_load_dwordx4 %s, v240, %s, %s offen offset:%d' % (v(UVR + 4 * r, 4), s(SB, 4), '0' if r < 4 else 's11', 1280 * (r & 3)))
def ut_k(a):
    MASK = 65
    a('s_mov_b32 s%d, 0xffff0000' % MASK)
    for dw in range(4):
        for r in range(11):
            a('v_lshlrev_b32 v%d, 16, v%d' % (UKU + 2 * r, UKR + 4 * r + dw))
            a('v_and_b32 v%d, s%d, v%d' % (UKU + 2 * r + 1, MASK, UKR + 4 * r + dw))
        for ch in range(2):
            for t in range(4):
                src = UWR + 4 * dw + 2 * ch + (t >> 1)
                if t & 1:
                    a('v_and_b32 v%d, s%d, v%d' % (UWU + 2 * t + ch, MASK, src))
                else:
                    a('v_lshlrev_b32 v%d, 16, v%d' % (UWU + 2 * t + ch, src))
        A = UAC + 16 * dw
        for r in range(8):
            a('v_pk_mul_f32 %s, %s, %s' % (v(A + 2 * r, 2), v(UKU + 2 * r, 2), v(UWU + 6, 2)))
        for t in (2, 1, 0):
            for r in range(8):
                a('v_pk_fma_f32 %s, %s, %s, %s' % (v(A + 2 * r, 2), v(UKU + 2 * (r + 3 - t), 2), v(UWU + 2 * t, 2), v(A + 2 * r, 2)))
def ut_v(a):
    MASK, T = 65, 66
    srd(a, 72, P_WS, SZ_ACT, WS_UT)
    a('v_and_b32 v12, 7, v1')
    a('v_lshrrev_b32 v13, 3, v1')
    a('v_xor_b32 v14, 7, v13')
    a('v_xor_b32 v14, v14, v12')
    a('v_lshlrev_b32 v14, 4, v14')
    a('v_lshl_add_u32 v14, v12, 10, v14')
    a('s_lshl_b32 s%d, s%d, 13' % (T, S_W))
    a('v_add_u32 v14, s%d, v14' % T)
    a('v_add_u32 v15, s%d, v237' % T)
    a('v_lshlrev_b32 v13, 12, v13')
    for dw in range(4):
        A = UAC + 16 * dw
        for r in range(8):
            a('v_lshlrev_b32 v%d, 16, v%d' % (UKU + 2 * r, UVR + 4 * r + dw))
            a('v_and_b32 v%d, s%d, v%d' % (UKU + 2 * r + 1, MASK, UVR + 4 * r + dw))
        for r in range(8):
            a('v_pk_mul_f32 %s, %s, %s' % (v(A + 2 * r, 2), v(A + 2 * r, 2), v(UKU + 2 * r, 2)))
        O = UWR + 8 * (dw & 1)
        for ch in range(2):
            for i in range(4):
                a('v_cvt_pk_bf16_f32 v%d, v%d, v%d' % (O + 4 * ch + i, A + 2 * (7 - 2 * i) + ch, A + 2 * (6 - 2 * i) + ch))
            a('ds_write_b128 v14, %s offset:%d' % (v(O + 4 * ch, 4), (2 * dw + ch) * 128))
    for i in range(8):
        a('ds_read_b128 %s, v15 offset:%d' % (v(UKR + 4 * i, 4), 1024 * i))
    for i in range(8):
        a('v_xor_b32 v%d, %d, v12' % (UKU + i, i))
        a('v_lshl_add_u32 v%d, v%d, 4, v13' % (UKU + i, UKU + i))
    for i in range(8):
        a('s_add_u32 s%d, s64, %d' % (T, 32768 * i))
        a('s_waitcnt lgkmcnt(%d)' % (7 - i))
        a('buffer_store_dwordx4 %s, v%d, s[72:75], s%d offen sc1' % (v(UKR + 4 * i, 4), UKU + i, T))

CW = 13824
C_HA, C_HB, C_U = 0, 4640, 9280
C_EX = 2 * CW
RBC = CONV_BASE
CV_DO, CV_LB, CV_T, CV_T2, CV_W, CV_M = 66, 67, 68, 69, 9, 8
CV_TG, CV_NX = 71, 70
CV_D = 18
CA, CG, CF = 108, [140, 12], [172, 44]
VG, VF, VU, VXW, VXR = 228, 229, 233, 234, 235
def gs_arrive(a):
    a('s_mov_b64 exec, 1')
    a('ds_add_u32 v254, v253')
    a('s_mov_b64 exec, -1')
    a('s_add_u32 s%d, s%d, 4' % (CV_TG, CV_TG))
def gs_wait(a):
    L, Dn = a.newlabel('CS'), a.newlabel('CSD')
    a('s_mov_b32 s11, 0x400000')
    a.label(L)
    a('ds_read_b32 v247, v254')
    a('s_waitcnt lgkmcnt(0)')
    a('v_cmp_le_u32 vcc, s%d, v247' % CV_TG)
    a('s_cbranch_vccnz %s' % Dn)
    a('s_sub_u32 s11, s11, 1')
    a('s_cbranch_scc0 %s' % L)
    a.label(Dn)
def cv_pre(a):
    srd(a, 72, P_SSMK, SZ_ACT)
    a('s_lshl_b32 s11, s7, 2')
    a('s_load_dword s%d, s[%d:%d], s11' % (CV_D, P_SSMD, P_SSMD + 1))
    a('s_or_b32 s11, s11, 4')
    a('s_load_dword s%d, s[%d:%d], s11' % (CV_D + 1, P_SSMD, P_SSMD + 1))
    a('s_and_b32 s%d, s%d, 3' % (CV_W, S_W))
    a('s_xor_b32 s11, s%d, 1' % CV_M)
    a('s_lshr_b32 s%d, s%d, s11' % (CV_T, CV_W))
    a('s_lshl_b32 s%d, s7, 1' % CV_DO)
    a('s_add_u32 s%d, s%d, s%d' % (CV_DO, CV_DO, CV_T))
    a('s_lshl_b32 s%d, s%d, 12' % (CV_DO, CV_DO))
    a('s_mul_i32 s%d, s%d, %d' % (CV_LB, CV_T, CW))
    a('s_add_u32 s%d, s%d, %d' % (CV_LB, CV_LB, RBC))
    a('v_add_u32 v238, s%d, v237' % CV_DO)
    a('v_subrev_u32 v239, 2, v238')
    a('v_lshl_add_u32 v246, v1, 7, s%d' % CV_DO)
    a('s_lshr_b32 s11, s7, 5')
    a('s_lshl_b32 s11, s11, %d' % (5 + OPT['fsu']))
    a('s_add_u32 s11, s11, %s' % hex(F_U))
    a('v_min_u32 v248, 31, v1')
    a('v_lshl_add_u32 v248, v248, %d, s11' % OPT['fsu'])
    a('s_mov_b32 s%d, 0' % CV_T)
def cv_setup1(a):
    W, LB = CV_W, CV_LB
    a('s_mul_i32 s65, s7, 1639')
    a('s_lshr_b32 s65, s65, 16')
    a('s_mul_i32 s%d, s65, 40' % S_F2)
    a('s_sub_u32 s%d, s7, s%d' % (S_F2, S_F2))
    a('s_lshl_b32 s65, s65, 2')
    a('s_add_u32 s65, s65, s%d' % W)
    a('s_lshl_b32 s65, s65, 6')
    a('s_add_u32 s%d, s%d, s65' % (S_F2, S_F2))
    a('s_lshl_b32 s%d, s%d, %d' % (S_F2, S_F2, OPT['fsz']))
    a('s_add_u32 s%d, s%d, %s' % (S_F2, S_F2, hex(F_Z)))
    a('s_andn2_b32 s65, s%d, s%d' % (W, CV_M))
    a('s_and_b32 s65, s65, 1')
    a('s_lshl_b32 s65, s65, 8')
    a('s_add_u32 s65, s65, s%d' % LB)
    a('v_and_b32 v%d, 1, v1' % VG)
    a('v_xor_b32 v%d, 1, v%d' % (VG, VG))
    a('v_mul_u32_u24 v%d, %d, v%d' % (VG, C_HB - C_HA, VG))
    a('v_bfe_u32 v204, v1, 1, 3')
    a('v_lshl_add_u32 v%d, v204, 6, v%d' % (VG, VG))
    a('v_lshrrev_b32 v204, 4, v1')
    a('v_lshl_add_u32 v%d, v204, 4, v%d' % (VG, VG))
    a('s_add_u32 s69, s65, %d' % (C_HA + 64))
    a('v_add_u32 v%d, s69, v%d' % (VG, VG))
    a('v_and_b32 v205, 15, v1')
    a('v_lshlrev_b32 v205, 2, v205')
    a('v_lshlrev_b32 v%d, 4, v204' % VF)
    a('v_sub_u32 v%d, v%d, v205' % (VF, VF))
    a('s_add_u32 s69, s65, %d' % (C_U + 60))
    a('v_add_u32 v%d, s69, v%d' % (VF, VF))
    for i in range(1, 4):
        a('v_add_u32 v%d, %d, v%d' % (VF + i, 1024 * i, VF))
    a('v_lshl_add_u32 v205, v204, 7, v205')
    a('s_lshl_b32 s65, s%d, 10' % W)
    a('s_sub_u32 s65, %d, s65' % (RBC + C_U + 444 + 3072))
    a('v_sub_u32 v%d, s65, v205' % VU)
    a('s_mul_i32 s65, s%d, %d' % (CV_M, CW - 8192))
    a('s_add_u32 s65, s65, 8192')
    a('s_mul_i32 s65, s65, s%d' % W)
    a('s_xor_b32 s69, s%d, 1' % CV_M)
    a('s_mul_i32 s69, s69, %d' % C_EX)
    a('s_add_u32 s69, s69, %d' % RBC)
    a('s_add_u32 s65, s65, s69')
    a('v_add_u32 v%d, s65, v237' % VXW)
    a('s_lshl_b32 s65, s%d, 11' % W)
    a('s_add_u32 s69, s69, s65')
    a('v_add_u32 v%d, s69, v237' % VXR)
    a('s_lshl_b32 s%d, s7, 13' % CV_DO)
    a('s_add_u32 s%d, s%d, s65' % (CV_DO, CV_DO))
    for i in range(16):
        a('v_mov_b64 %s, 0' % v(CA + 2 * i, 2))
def cv_pads():
    return [['v_mov_b64 v[206:207], 0', 'v_lshl_add_u32 v247, v1, 3, s%d' % CV_LB, 'ds_write_b64 v247, v[206:207] offset:%d' % C_HA],
            ['ds_write_b64 v247, v[206:207] offset:%d' % C_HB],
            ['v_lshl_add_u32 v247, v1, 2, s%d' % CV_LB, 'ds_write_b32 v247, v206 offset:%d' % (C_U + 4096)]]
def cv_fix():
    R = CF[0]
    return [['v_mov_b32 v247, s%d' % CV_LB, 'ds_read_b128 %s, v247 offset:%d' % (v(R, 4), C_HA + 512)],
            'v_alignbit_b32 v%d, v%d, v%d, 16' % (R + 7, R + 3, R + 2),
            'v_alignbit_b32 v%d, v%d, v%d, 16' % (R + 6, R + 2, R + 1),
            'v_alignbit_b32 v%d, v%d, v%d, 16' % (R + 5, R + 1, R),
            'v_lshlrev_b32 v%d, 16, v%d' % (R + 4, R),
            'ds_write_b128 v247, %s offset:%d' % (v(R + 4, 4), C_HB + 512)]
def cv_h_items():
    it = []
    for (dst, vo) in ((C_HA + 512, 238), (C_HB + 512, 239)):
        for i in range(4):
            it.append(item('buffer_load_dwordx4 v%d, s[72:75], 0 offen offset:%d lds' % (vo, i * 1024),
                           pre=['s_add_u32 m0, s%d, %d' % (CV_LB, dst)] if i == 0 else [], vm='cvh'))
    return it
def cv_h_items_half():
    pre = ['s_and_b32 s11, s%d, 1' % S_W, 's_lshl_b32 s11, s11, 1', 'v_subrev_u32 v239, s11, v238',
           's_mul_i32 s11, s11, %d' % (C_HB // 2), 's_add_u32 s11, s11, s%d' % CV_LB, 's_add_u32 m0, s11, 512']
    return [item('buffer_load_dwordx4 v239, s[72:75], 0 offen offset:%d lds' % (i * 1024), pre=pre if i == 0 else [], vm='cvh') for i in range(4)]
def cv_u_loads(a):
    srd(a, 48, P_WS, SZ_ACT, WS_UT)
    a('s_add_u32 m0, s%d, %d' % (CV_LB, C_U))
    a('s_nop 0')
    for i in range(4):
        a('buffer_load_dwordx4 v238, s[48:51], 0 offen offset:%d sc1 lds' % (i * 1024))
def cv_try_u(a):
    L = a.newlabel('UT')
    a('v_cmp_eq_u64 vcc, %s, v[244:245]' % NC)
    a('s_cmp_eq_u64 vcc, -1')
    a('s_cbranch_scc0 %s' % L)
    cv_u_loads(a)
    a('s_mov_b32 s%d, 1' % CV_T)
    a.label(L)
def cv_g_reads(j, b):
    return ['ds_read_b128 %s, v%d offset:%d' % (v(CG[b] + 4 * i, 4), VG, 64 * j + 512 * i) for i in range(8)]
def cv_f_reads(j, b):
    L = []
    for i in range(8):
        rb = 7 - i
        o = (512 * (rb & 1) + 64 * j) // 4
        L.append('ds_read2_b32 %s, v%d offset0:%d offset1:%d' % (v(CF[b] + 4 * i, 2), VF + (rb >> 1), o, o + 1))
        L.append('ds_read2_b32 %s, v%d offset0:%d offset1:%d' % (v(CF[b] + 4 * i + 2, 2), VF + (rb >> 1), o + 2, o + 3))
    return L

A_STRIDE = 6144
LDS_Q = [40960, 90112]
def chunk_addrs(a, dst, tmp, sbase):
    for i in range(3):
        a('v_add_u32 v%d, %d, v1' % (tmp, 64 * i))
        a('v_mul_u32_u24 v%d, 205, v%d' % (dst + i, tmp))
        a('v_lshrrev_b32 v%d, 11, v%d' % (dst + i, dst + i))
        a('v_mul_u32_u24 v%d, 1120, v%d' % (dst + i, dst + i))
        a('v_lshl_add_u32 v%d, v%d, 4, v%d' % (dst + i, tmp, dst + i))
        a('v_add_u32 v%d, s%d, v%d' % (dst + i, sbase, dst + i))
    a('v_lshrrev_b32 v%d, 5, v1' % tmp)
    a('v_lshl_add_u32 v%d, v%d, 30, v%d' % (dst + 2, tmp, dst + 2))
def lds_q_base(a, dst, w):
    a('s_lshr_b32 s%d, s%d, 1' % (dst, w))
    a('s_mul_i32 s%d, s%d, %d' % (dst, dst, LDS_Q[1] - LDS_Q[0] - 8192))
    a('s_lshl_b32 s11, s%d, 12' % w)
    a('s_add_u32 s%d, s%d, s11' % (dst, dst))
    a('s_add_u32 s%d, s%d, %d' % (dst, dst, LDS_Q[0]))
def aterm(a):
    W = CV_W
    RB, CB, T, T2 = 65, 66, 67, 68
    SQ, SZ, SG = 52, 44, 60
    if OPT['xc'] == 2: a('s_endpgm')
    a('s_setprio 0')
    a('s_lshl_b32 s%d, s3, 2' % RB)
    a('s_lshr_b32 s%d, s4, 3' % CB)
    a('s_add_u32 s%d, s%d, s%d' % (RB, RB, CB))
    a('s_and_b32 s%d, s4, 7' % CB)
    srd(a, SQ, P_Q, SZ_ACT)
    a('s_lshl_b32 s%d, s%d, 6' % (T, RB))
    a('s_lshl_b32 s%d, s%d, 4' % (T2, W))
    a('s_add_u32 s%d, s%d, s%d' % (T, T, T2))
    a('v_and_b32 v8, 15, v1')
    a('v_add_u32 v8, s%d, v8' % T)
    a('v_lshrrev_b32 v9, 4, v1')
    a('s_mul_i32 s%d, s%d, 1280' % (T, T))
    a('s_mul_i32 s%d, s%d, 160' % (T2, CB))
    a('s_add_u32 s%d, s%d, s%d' % (T, T, T2))
    chunk_addrs(a, 12, 10, T)
    lds_q_base(a, T2, W)
    for i in range(3):
        a('s_add_u32 m0, s%d, %d' % (T2, 1024 * i))
        a('s_nop 0')
        a('buffer_load_dwordx4 v%d, %s, 0 offen lds' % (12 + i, s(SQ, 4)))
    a('v_and_b32 v10, 15, v1')
    a('v_mul_u32_u24 v10, 160, v10')
    a('v_lshl_add_u32 v10, v9, 3, v10')
    a('v_add_u32 v10, s%d, v10' % T2)
    a('s_lshl_b32 s%d, s%d, 2' % (T, CB))
    a('s_lshr_b32 s%d, s%d, 3' % (T2, RB))
    a('s_add_u32 s%d, s%d, s%d' % (T, T, T2))
    a('s_lshl_b32 s%d, s%d, %d' % (T, T, 6 + OPT['fsz']))
    a('s_add_u32 s%d, s%d, %s' % (T, T, hex(F_Z)))
    a('v_lshl_add_u32 v25, v1, %d, s%d' % (OPT['fsz'], T))
    a('s_lshl_b32 s%d, s%d, 5' % (T, RB))
    a('s_add_u32 s%d, s%d, s%d' % (T, T, W))
    a('s_lshl_b32 s%d, s%d, %d' % (T, T, OPT['fsh'] + 1))
    a('v_and_b32 v24, 1, v1')
    a('v_lshl_add_u32 v24, v24, %d, s%d' % (OPT['fsh'], T))
    a('v_cmp_lt_u32 vcc, 39, v1')
    a('v_lshlrev_b32 v11, 14, v9')
    a('v_bfe_u32 v9, v1, 1, 3')
    a('v_cndmask_b32 v25, v25, v24, vcc')
    FL = 'buffer_load_dwordx2 v[26:27], v25, %s, 0 offen sc1' % s(SF, 4)
    a('v_lshl_add_u32 v11, v9, 4, v11')
    a('v_and_b32 v9, 1, v1')
    a('v_lshl_add_u32 v11, v9, 2, v11')
    a('s_mul_i32 s%d, s%d, %d' % (T, CB, 40 * 8192))
    a('s_lshl_b32 s%d, s%d, 8' % (T2, RB))
    a('s_add_u32 s%d, s%d, s%d' % (T, T, T2))
    a('s_and_b32 s%d, s%d, 1' % (T2, W))
    a('s_lshl_b32 s%d, s%d, 7' % (T2, T2))
    a('s_add_u32 s%d, s%d, s%d' % (T, T, T2))
    a('s_lshr_b32 s%d, s%d, 1' % (T2, W))
    a('s_lshl_b32 s%d, s%d, 3' % (T2, T2))
    a('s_add_u32 s%d, s%d, s%d' % (T, T, T2))
    a('v_add_u32 v11, s%d, v11' % T)
    a('v_lshlrev_b32 v8, 2, v8')
    srd(a, SG, P_WS, 8192, WS_G)
    a('s_mul_i32 s%d, s%d, %d' % (T, W, A_STRIDE))
    a('s_add_u32 s%d, s%d, %d' % (T, T, CONV_BASE))
    a('v_add_u32 v24, s%d, v237' % T)
    if OPT['ztrig'] >= 0:
        L, Dn = a.newlabel('TW'), a.newlabel('TWD')
        a('s_mov_b32 s11, 0x100000')
        a.label(L)
        a('ds_read_b32 v247, v254 offset:4')
        a('s_waitcnt lgkmcnt(0)')
        a('v_cmp_eq_u32 vcc, 1, v247')
        a('s_cbranch_vccnz %s' % Dn)
        a('s_sleep %d' % OPT['tsl'])
        a('s_sub_u32 s11, s11, 1')
        a('s_cbranch_scc0 %s' % L)
        a.label(Dn)
    poll(a, FL, 26, T2, sleep=OPT['zsl'])
    stamp(a, 3)
    ZR, A, ZU = 28, 40, 60
    a('buffer_load_dword v8, v8, %s, 0 offen sc1' % s(SG, 4))
    for mt in range(5):
        for h in range(2):
            a('s_mov_b32 s%d, %s' % (T, hex(65536 * mt + 8192 * h)))
            a('buffer_load_dword v%d, v11, %s, s%d offen sc1' % (ZR + 2 * mt + h, s(SZ, 4), T))
    a('s_mov_b32 s%d, 0xffff0000' % T)
    for mt in range(5):
        a('ds_read_b64 %s, v10 offset:%d' % (v(12 + 2 * mt, 2), 32 * mt))
    gs_wait(a)
    for i in range(10):
        a('v_lshlrev_b32 v%d, 16, v%d' % (A + 2 * i, 12 + i))
        a('v_and_b32 v%d, s%d, v%d' % (A + 2 * i + 1, T, 12 + i))
    a('s_waitcnt vmcnt(10)')
    a('v_mov_b32 v9, v8')
    for i in range(10):
        a('v_pk_mul_f32 %s, %s, v[8:9]' % (v(A + 2 * i, 2), v(A + 2 * i, 2)))
    a('v_sub_f32 v8, 1.0, v8')
    a('v_sub_f32 v9, 1.0, v9')
    a('ds_write_b64 v24, v[8:9] offset:5120')
    for mt in range(5):
        a('s_waitcnt vmcnt(%d)' % (8 - 2 * mt))
        for h in range(2):
            i = 2 * mt + h
            a('v_lshlrev_b32 v%d, 16, v%d' % (ZU, ZR + i))
            a('v_and_b32 v%d, s%d, v%d' % (ZU + 1, T, ZR + i))
            a('v_pk_mul_f32 %s, %s, %s' % (v(A + 2 * i, 2), v(A + 2 * i, 2), v(ZU, 2)))
        a('ds_write_b128 v24, %s offset:%d' % (v(A + 4 * mt, 4), 1024 * mt))
    a('s_waitcnt lgkmcnt(0)')
    stamp_end(a)
    a('s_endpgm')

def conv(a):
    SZ, DO, T, W = 44, CV_DO, CV_T, CV_W
    if OPT['xc'] == 1: a('s_endpgm')
    a('s_setprio %d' % OPT['cprio'])
    for l in cv_f_reads(0, 0): a(l)
    srd(a, SZ, P_WS, SZ_ACT, WS_Z4)
    a('s_lshl_b32 s%d, s%d, 1' % (T, CV_M))
    stamp(a, 7)
    def it(b, nxt):
        a('s_waitcnt lgkmcnt(0)')
        i = 0
        for n in range(8):
            for aa in range(n + 1):
                acc = v(CA + 4 * n, 4)
                a('v_mfma_f32_16x16x32_bf16 %s, %s, %s, %s' % (acc, v(CG[b] + 4 * aa, 4), v(CF[b] + 4 * (n - aa), 4), acc))
                if i in nxt: a(nxt.pop(i))
                i += 1
    def rd(j, b):
        g_, f_ = cv_g_reads(j, b), cv_f_reads(j, b)
        L = []
        for i in range(8): L += [g_[i], f_[2 * i], f_[2 * i + 1]]
        return dict(enumerate(L))
    def flag():
        a('s_waitcnt vmcnt(0)')
        set_flag(a, S_F1)
        a('s_mov_b32 s%d, %s' % (S_F1, hex(OOB)))
        stamp(a, 6)
    a.label('CV_loop')
    it(0, rd(1, 1))
    nx = rd(2, 0)
    for k in range(5):
        nx[26 + k] = 'v_add_u32 v%d, 128, v%d' % (VG + k, VG + k)
    it(1, nx)
    a('s_sub_u32 s%d, s%d, 1' % (T, T))
    a('s_cbranch_scc0 CV_loop')
    it(0, rd(1, 1))
    nx = {}
    for n in range(8):
        nx[(n + 1) * (n + 2) // 2 - 1 + 9] = 'ds_write_b128 v%d, %s offset:%d' % (VXW, v(CA + 4 * n, 4), 1024 * n)
    it(1, nx)
    stamp(a, 8)
    for i in range(4):
        a('s_lshl_b32 s%d, s%d, 16' % (48 + i, CV_D + (i >> 1)) if not (i & 1) else 's_and_b32 s%d, s%d, 0xffff0000' % (48 + i, CV_D + (i >> 1)))
    a('s_nop 4')
    for i in sorted(nx): a(nx[i])
    a('s_waitcnt lgkmcnt(0)')
    gs_arrive(a)
    gs_wait(a)
    stamp(a, 9)
    a('s_mov_b32 s11, 0xffff0000')
    a('s_cmp_eq_u32 s%d, 1' % CV_M)
    a('s_cbranch_scc1 CV_epiB')
    P, UR, O = 12, 48, 72
    def finish(nch, reg):
        for un in range(nch // 2):
            for t in range(2):
                for hh in range(2):
                    for c in (2 * un, 2 * un + 1):
                        u = UR + 4 * c + 2 * t + hh
                        R = reg(c, t) + 2 * hh
                        a('v_and_b32 v%d, s11, v%d' % (68 + (c & 1), u))
                        a('v_lshlrev_b32 v%d, 16, v%d' % (u, u))
                        a('v_fmac_f32 v%d, s%d, v%d' % (R, 48 + c, 68 + (c & 1)))
                        a('v_fmac_f32 v%d, s%d, v%d' % (R + 1, 48 + c, u))
                    R0, R1 = reg(2 * un, t) + 2 * hh, reg(2 * un + 1, t) + 2 * hh
                    oo = O + 8 * un + 4 * t + 2 * hh
                    a('v_cvt_pk_bf16_f32 v%d, v%d, v%d' % (oo, R0, R1))
                    a('v_cvt_pk_bf16_f32 v%d, v%d, v%d' % (oo + 1, R0 + 1, R1 + 1))
                if un == 1 and t == 0: a('s_add_u32 s%d, s%d, 8192' % (DO, DO))
                a('buffer_store_dwordx4 %s, v237, %s, s%d offen offset:%d sc1' % (v(O + 8 * un + 4 * t, 4), s(SZ, 4), DO, t * 1024))
    def ureads(nch):
        for c in range(nch):
            for t in range(2):
                for hh in range(2):
                    a('ds_read_b32 v%d, v%d offset:%d' % (UR + 4 * c + 2 * t + hh, VU, c * CW + 512 * (1 - t) + 64 * (1 - hh)))
    for c in range(2):
        for t in range(2):
            for h in range(2):
                a('ds_read_b128 %s, v%d offset:%d' % (v(P + 16 * c + 8 * t + 4 * h, 4), VXR, (2 * c + h) * 8192 + t * 1024))
    ureads(2)
    a('s_waitcnt lgkmcnt(8)')
    for c in range(2):
        for t in range(2):
            R = P + 16 * c + 8 * t
            a('v_pk_add_f32 %s, %s, %s' % (v(R, 2), v(R, 2), v(R + 4, 2)))
            a('v_pk_add_f32 %s, %s, %s' % (v(R + 2, 2), v(R + 2, 2), v(R + 6, 2)))
    a('s_waitcnt lgkmcnt(0)')
    gs_arrive(a)
    finish(2, lambda c, t: P + 16 * c + 8 * t)
    stamp(a, 1)
    a('s_waitcnt vmcnt(0)')
    stamp(a, 2)
    set_flag(a, S_F2)
    a('s_branch K_aterm')
    a.label('CV_epiB')
    for c in range(4):
        for t in range(2):
            a('ds_read_b128 %s, v%d offset:%d' % (v(P + 8 * c + 4 * t, 4), VXR, c * CW + t * 1024))
    ureads(4)
    a('v_lshlrev_b32 v247, %d, v1' % OPT['fsz'])
    a('s_waitcnt lgkmcnt(0)')
    gs_arrive(a)
    finish(4, lambda c, t: P + 8 * c + 4 * t)
    stamp(a, 1)
    a('s_waitcnt vmcnt(0)')
    stamp(a, 2)
    a('s_mov_b64 exec, 3')
    a('buffer_store_dwordx2 v[250:251], v247, %s, s%d offen sc1' % (s(SF, 4), S_F2))
    a('s_mov_b64 exec, -1')
    a('s_cmp_lt_u32 s%d, 320' % CV_NX)
    a('s_cbranch_scc1 K_conv_next')
    a.label('K_aterm')
    aterm(a)

G2_SW = 72
G2_KB, G2_O, G2_T, G2_T2, G2_LB, G2_RB, G2_CB = 65, 66, 67, 68, 69, 8, 9
G2_X = 7
G2_ACC, G2_WB, G2_HB = 28, 108, 188
def g2_lds(r):
    return (49152 + r * 20480) if r < 2 else ((r - 2) * 20480)
def g2_ks(p, dst):
    L = (['s_xor_b32 s%d, s%d, %d' % (dst, G2_X, 4 * p), 's_add_u32 s%d, s%d, s%d' % (dst, dst, G2_KB)] if p < 12 else
         ['s_add_u32 s%d, s%d, %d' % (dst, G2_KB, 4 * p)]) + [
         's_cmp_ge_u32 s%d, 54' % dst,
         's_cselect_b32 s%d, 54, 0' % G2_T,
         's_sub_u32 s%d, s%d, s%d' % (dst, dst, G2_T)]
    if p == 13:
        L += ['s_cmp_ge_u32 s%d, 2' % S_W, 's_cselect_b32 s%d, 60, s%d' % (dst, dst)]
    return L
def g2_w_items(p, slot, va=237):
    B = G2_WB + 20 * slot
    it = []
    for t in range(5):
        pre = g2_ks(p, G2_O) + ['s_mul_i32 s%d, s%d, 40960' % (G2_O, G2_O)] if t == 0 else []
        it.append(item('buffer_load_dwordx4 %s, v%d, %s, s%d offen offset:%d sc1' % (v(B + 4 * t, 4), va if t < 4 else va + 1, s(G2_SW, 4), G2_O, (t & 3) * 1024), pre, vm=('w', p)))
    return it
def g2_wl_items(p, r):
    it = []
    for t in range(5):
        pre = []
        if t == 0:
            pre = g2_ks(p, G2_O) + ['s_mul_i32 s%d, s%d, 40960' % (G2_O, G2_O), 's_add_u32 m0, s%d, %d' % (G2_LB, g2_lds(r))]
        if t == 4:
            pre = ['s_add_u32 m0, s%d, %d' % (G2_LB, g2_lds(r) + 4096)]
        it.append(item('buffer_load_dwordx4 v%d, %s, s%d offen offset:%d sc1 lds' % (237 if t < 4 else 238, s(G2_SW, 4), G2_O, (t & 3) * 1024), pre, vm=('wl', p)))
    return it
def g2_pre(a, allw=False):
    RB, CB, T, T2 = G2_RB, G2_CB, G2_T, G2_T2
    a('s_lshl_b32 s%d, s3, 2' % RB)
    a('s_lshr_b32 s%d, s4, 3' % CB)
    a('s_add_u32 s%d, s%d, s%d' % (RB, RB, CB))
    a('s_and_b32 s%d, s4, 7' % CB)
    a('s_mul_i32 s%d, s%d, 5120' % (T, CB))
    a('s_add_u32 s%d, s%d, %s' % (T, T, hex(WS_W2P)))
    srd(a, G2_SW, P_WS, 53 * 40960 + 5120, 's%d' % T)
    if OPT['rot2']:
        a('s_and_b32 s%d, s%d, 3' % (T, RB))
        a('s_mul_i32 s%d, s%d, %d' % (T, T, 13 if OPT['rot2r'] else 0))
        a('s_mul_i32 s%d, s%d, 7' % (T2, CB))
        a('s_add_u32 s%d, s%d, s%d' % (T, T, T2))
        a('s_add_u32 s%d, s%d, s%d' % (T, T, S_W))
        a('s_cmp_ge_u32 s%d, 54' % T)
        a('s_cselect_b32 s%d, 54, 0' % T2)
        a('s_sub_u32 s%d, s%d, s%d' % (G2_KB, T, T2))
    else:
        a('s_mov_b32 s%d, s%d' % (G2_KB, S_W))
    a('s_and_b32 s%d, s%d, %d' % (G2_X, RB, 3 if OPT['wx'] else 0))
    a('s_lshl_b32 s%d, s%d, 2' % (G2_X, G2_X))
    a('s_mul_i32 s%d, s%d, 5120' % (G2_LB, S_W))
    a('v_add_u32 v238, 4096, v237')
    a('s_mul_i32 s%d, s%d, 5' % (T, CB))
    a('s_lshr_b32 s%d, s%d, 2' % (T, T))
    a('s_mul_i32 s%d, s%d, %d' % (T, T, 18 << OPT['fsw']))
    a('s_add_u32 s%d, s%d, %s' % (T, T, hex(F_W)))
    if not allw:
        a('s_cmp_eq_u32 s%d, 0' % S_W)
        a('s_cselect_b32 s%d, s%d, %s' % (T, T, hex(OOB)))
    a('v_min_u32 v248, 35, v1')
    a('v_lshl_add_u32 v248, v248, %d, s%d' % (OPT['fsw'], T))

def g2_fh_addr(a):
    T = G2_T
    a('v_min_u32 v247, 13, v1')
    a('v_lshlrev_b32 v247, 2, v247')
    a('v_cmp_gt_u32 vcc, 12, v1')
    a('v_xor_b32 v248, s%d, v247' % G2_X)
    a('s_nop 0')
    a('v_cndmask_b32 v248, v247, v248, vcc')
    a('v_add_u32 v248, s%d, v248' % G2_KB)
    a('v_subrev_u32 v247, 54, v248')
    a('v_min_u32 v248, v248, v247')
    a('s_lshl_b32 s%d, s%d, %d' % (T, G2_RB, 6 + OPT['fsh']))
    a('v_lshl_add_u32 v248, v248, %d, s%d' % (OPT['fsh'], T))

def gemm2(a):
    RB, CB, W = G2_RB, G2_CB, S_W
    SHh, SQ, SZ, SG, SO = 56, 52, 44, 60, 48
    O, T, T2 = G2_O, G2_T, G2_T2
    ACC, WB, HB = G2_ACC, G2_WB, G2_HB
    DH = 4
    OH, TH = 70, 71
    g = G1(a)
    FH_LOAD = 'buffer_load_dwordx2 v[26:27], v22, %s, 0 offen sc1' % s(SF, 4)
    FZ_LOAD = 'buffer_load_dwordx2 v[252:253], v25, %s, 0 offen sc1' % s(SF, 4)
    a('v_mov_b32 v22, v248')
    a('s_setprio 0')
    g.emit(item(FH_LOAD, vm='fh'))
    for it in g2_wl_items(6, 2) + g2_wl_items(7, 3): g.emit(it)
    a('v_mov_b32 v2, v237')
    a('v_mov_b32 v3, v238')
    a('s_mul_i32 s%d, s%d, %d' % (T, RB, 54 * 4096))
    if WS_H: a('s_add_u32 s%d, s%d, %s' % (T, T, hex(WS_H)))
    srd(a, SHh, P_WS, 54 * 4096, 's%d' % T)
    for j in range(4):
        a('s_xor_b32 s%d, s%d, %d' % (T, W, j))
        a('s_lshl_b32 s%d, s%d, 10' % (T, T))
        a('v_add_u32 v%d, s%d, v2' % (4 + j, T))
    a('v_add_u32 v24, s%d, v2' % G2_LB)
    a('v_add_u32 v23, %d, v24' % g2_lds(1))
    def late_setup(a):
        a('s_lshl_b32 s%d, s%d, 6' % (T, RB))
        a('s_lshl_b32 s%d, s%d, 4' % (T2, W))
        a('s_add_u32 s%d, s%d, s%d' % (T, T, T2))
        a('s_mul_i32 s%d, s%d, 1280' % (T, T))
        a('s_mul_i32 s%d, s%d, 160' % (T2, CB))
        a('s_add_u32 s%d, s%d, s%d' % (T, T, T2))
        chunk_addrs(a, 12, 10, T)
        lds_q_base(a, T2, W)
        a('v_add_u32 v15, s%d, v2' % T2)
        a('v_lshrrev_b32 v9, 4, v1')
        a('v_and_b32 v10, 15, v1')
        a('v_mul_u32_u24 v10, 160, v10')
        a('v_lshl_add_u32 v10, v9, 3, v10')
        a('v_add_u32 v10, s%d, v10' % T2)
        srd(a, SO, P_OUT, SZ_ACT)
        a('s_mul_i32 s%d, s%d, %d' % (T, W, A_STRIDE))
        a('s_add_u32 s%d, s%d, %d' % (T, T, CONV_BASE))
        a('v_add_u32 v11, s%d, v2' % T)
    stamp(a, 6)
    g.wait(vm=['fh'])
    a('v_cmp_eq_u64 s[76:77], %s, v[26:27]' % NC)
    order = [0, 1, 2, 3, 4, 8, 5, 9, 6, 10, 7, 11, 12, 13]
    slot = [0, 1, 2, 3, 2, 0, 2, 1, 2, 3, 2, 0, 1, 3]
    refill = {0: 8, 1: 9, 2: 4, 3: 10, 4: 5, 5: 11, 6: 6, 7: 12, 8: 7, 9: 13}
    slow = []
    def fh_check(bit):
        S, B = a.newlabel('FHS'), a.newlabel('FHB')
        slow.append((S, B, bit))
        return ['s_bitcmp1_b32 s76, %d' % bit, 's_cbranch_scc0 %s' % S, B + ':']
    def ks_lines(p, dst, tmp):
        L = [['s_xor_b32 s%d, s%d, %d' % (dst, G2_X, 4 * p), 's_add_u32 s%d, s%d, s%d' % (dst, dst, G2_KB)] if p < 12 else 's_add_u32 s%d, s%d, %d' % (dst, G2_KB, 4 * p), 's_sub_u32 s%d, s%d, 54' % (tmp, dst), 's_min_u32 s%d, s%d, s%d' % (dst, dst, tmp)]
        if p == 13: L += [['s_cmp_ge_u32 s%d, 2' % S_W, 's_cselect_b32 s%d, 60, s%d' % (dst, dst)]]
        return L
    def h_prep(r):
        return [fh_check(order[r])] + ks_lines(order[r], OH, TH) + [('s_lshl_b32 s%d, s%d, 12' % (OH, OH)) if not (OPT['xh'] and r >= 4) else 's_mov_b32 s%d, 0x7000000' % OH]
    def h_item(r, t):
        B = HB + 16 * (r % DH)
        return item('buffer_load_dwordx4 %s, v%d, %s, s%d offen%s' % (v(B + 4 * t, 4), 4 + t, s(SHh, 4), OH, '' if OPT['xsc'] else ' sc1'), vm=('h', r, t))
    for r in range(DH):
        for l in h_prep(r): g.emit(item(l))
        if r == 0: stamp(a, 7)
        for t in range(4): g.emit(h_item(r, t))
        if r == 1: late_setup(a)
    ZR = WB + 40
    GQ = WB
    ZU = WB + 20
    MASK = 71
    rbuf = [g2_lds(2), g2_lds(3), g2_lds(0)]
    for r in range(14):
        p = order[r]
        if r in (1, 3, 5, 7, 9, 11, 12, 13): stamp(a, (1, 3, 5, 7, 9, 11, 12, 13).index(r) + 2, 3)
        if r < 8: stamp(a, r + 1, 4)
        if r == 0 and OPT['stamp'] == 4: a('s_mov_b32 s98, s80')
        if r == 0: stamp(a, 1, 3)
        fill = {i: [] for i in range(20)}
        if r + DH < 14:
            for i, l in enumerate(h_prep(r + DH)): fill[min(i, 4) if i < 5 else 4].append(item(l))
            for j in range(4): fill[5 * j + 4].append(h_item(r + DH, j))
        free = [5, 6, 7, 8, 10, 11, 12, 13, 15, 16, 17, 18] if r + DH < 14 else list(range(20))
        extra = []
        if r - 1 in refill:
            pp = refill[r - 1]; Bs = WB + 20 * slot[r - 1]
            if pp >= 8:
                extra += [item(l) for l in ks_lines(pp, O, T)] + [item(('s_mul_i32 s%d, s%d, 40960' % (O, O)) if not OPT['xw'] else 's_mov_b32 s%d, 0x7000000' % O)]
                extra += [item('buffer_load_dwordx4 %s, v%d, %s, s%d offen offset:%d sc1' % (v(Bs + 4 * t, 4), 2 if t < 4 else 3, s(G2_SW, 4), O, (t & 3) * 1024), vm=('w', pp)) for t in range(5)]
            else:
                lb = g2_lds(pp - 4); ad = 24
                if pp == 5: ad, lb = 23, 0
                extra += [item('ds_read_b128 %s, v%d offset:%d' % (v(Bs + 4 * t, 4), ad, lb + t * 1024), lg=('wl', pp), needvm=[('wl', pp)]) for t in range(5)]
        if OPT['arf'] and r in (0, 3):
            extra += [item(FH_LOAD, vm='fh')]
        if OPT['arf'] and r in (3, 5):
            extra = [item('v_cmp_eq_u64 s[76:77], %s, v[26:27]' % NC, needvm=['fh'])] + extra
        if r == OPT['ztrig']:
            extra += [item('ds_write_b32 v254, v253 offset:4', lg='trig')]
        if r == 11:
            for j in range(1, 4):
                extra += [item(['s_xor_b32 s%d, s%d, %d' % (T, W, j), 's_mul_i32 s%d, s%d, 5120' % (T, T), 'v_add_u32 v%d, s%d, v2' % (4 + j, T)])]
        wr = []
        if r == 13:
            wr = ['ds_write_b128 v24, %s offset:%d' % (v(ACC + (j * 5 + mt) * 4, 4), rbuf[j - 1] + mt * 1024) for j in (1, 2, 3) for mt in range(5)]
            for i in range(9, 20): fill[i].append(item(wr[i - 9]))
        assert len(extra) <= len(free), (r, len(extra))
        for i, it in enumerate(extra): fill[free[i]].append(it)
        Bw = WB + 20 * slot[r]; Bh = HB + 16 * (r % DH)
        js = (0, 1, 2, 3) if r < 13 else (1, 2, 3, 0)
        i = 0
        for j in js:
            g.wait(vm=[('h', r, j), ('w', p)], lg=[('wl', p)])
            for mt in range(5):
                acc = v(ACC + (j * 5 + mt) * 4, 4)
                a('v_mfma_f32_16x16x32_bf16 %s, %s, %s, %s' % (acc, v(Bw + 4 * mt, 4), v(Bh + 4 * j, 4), '0' if r == 0 else acc))
                for it in fill[i]: g.emit(it)
                i += 1
    stamp(a, 8)
    for l in wr[11:]: a(l)
    a('s_waitcnt lgkmcnt(0)')
    a('s_barrier')
    stamp(a, 9)
    a('ds_read_b64 v[8:9], v11 offset:5120')
    def rd(m2):
        for j in range(1, 4):
            a('ds_read_b128 %s, v%d offset:%d' % (v(ACC + (j * 5 + m2) * 4, 4), 4 + j, rbuf[j - 1] + m2 * 1024))
        a('ds_read_b128 %s, v11 offset:%d' % (v(GQ + 4 * m2, 4), m2 * 1024))
    for m2 in range(3): rd(m2)
    for mt in range(5):
        if mt + 3 < 5: rd(mt + 3)
        a('s_waitcnt lgkmcnt(%d)' % (4 * min(3, 4 - mt)))
        A0 = ACC + 4 * mt
        for h in range(2):
            a('v_pk_add_f32 %s, %s, %s' % (v(A0 + 2 * h, 2), v(A0 + 2 * h, 2), v(A0 + 20 + 2 * h, 2)))
            a('v_pk_add_f32 %s, %s, %s' % (v(A0 + 40 + 2 * h, 2), v(A0 + 40 + 2 * h, 2), v(A0 + 60 + 2 * h, 2)))
        for h in range(2):
            a('v_pk_add_f32 %s, %s, %s' % (v(A0 + 2 * h, 2), v(A0 + 2 * h, 2), v(A0 + 40 + 2 * h, 2)))
        for h in range(2):
            a('v_pk_fma_f32 %s, %s, v[8:9], %s' % (v(A0 + 2 * h, 2), v(A0 + 2 * h, 2), v(GQ + 4 * mt + 2 * h, 2)))
        a('v_cvt_pk_bf16_f32 v%d, v%d, v%d' % (ZU + 2 * mt, A0, A0 + 1))
        a('v_cvt_pk_bf16_f32 v%d, v%d, v%d' % (ZU + 1 + 2 * mt, A0 + 2, A0 + 3))
    for mt in range(5):
        a('ds_write_b64 v10, %s offset:%d' % (v(ZU + 2 * mt, 2), 32 * mt))
    for i in range(3):
        a('ds_read_b128 %s, v15 offset:%d' % (v(16 + 4 * i, 4), 1024 * i))
    for i in range(3):
        a('s_waitcnt lgkmcnt(%d)' % (2 - i))
        a('buffer_store_dwordx4 %s, v%d, %s, 0 offen' % (v(16 + 4 * i, 4), 12 + i, s(SO, 4)))
    stamp_end(a)
    a('s_endpgm')
    for (S, B, bit) in slow:
        L = a.newlabel('SL')
        a.label(S)
        a('s_mov_b32 s11, 0x20000')
        a.label(L)
        if OPT['stamp'] == 4: a('s_add_u32 s98, s98, 100')
        if bit is None:
            a(FZ_LOAD)
            a('s_waitcnt vmcnt(0)')
            a('v_cmp_eq_u64 vcc, %s, v[252:253]' % NC)
            a('s_cmp_eq_u64 vcc, -1')
        else:
            a(FH_LOAD)
            a('s_waitcnt vmcnt(0)')
            a('v_cmp_eq_u64 s[76:77], %s, v[26:27]' % NC)
            a('s_bitcmp1_b32 s76, %d' % bit)
        a('s_cbranch_scc1 %s' % B)
        a('s_sleep %d' % OPT['fsl'])
        a('s_sub_u32 s11, s11, 1')
        a('s_cbranch_scc0 %s' % L)
        a('s_branch %s' % B)

def kernel(a, name):
    a.raw('.p2align 8')
    a.label(name)
    a('s_cmp_ge_u32 s2, 256')
    a('s_cbranch_scc1 K_exit')
    a('s_load_dwordx16 s[16:31], s[0:1], 0')
    a('s_load_dwordx8 s[32:39], s[0:1], 64')
    a('s_load_dwordx4 s[40:43], s[0:1], 96')
    a('s_memrealtime s[74:75]')
    stamp_begin(a)
    a('v_lshrrev_b32 v1, 6, v0')
    a('s_and_b32 s3, s2, 7')
    a('v_readfirstlane_b32 s%d, v1' % S_W)
    a('v_and_b32 v1, 63, v0')
    a('s_lshr_b32 s4, s2, 3')
    common_pre(a)
    a('s_getreg_b32 s%d, hwreg(HW_REG_XCC_ID)' % S_XCC)
    a('s_add_u32 s%d, s%d, 1' % (S_XCC, S_XCC))
    a('s_cmp_ge_u32 s4, 27')
    a('s_cbranch_scc1 K_prep')
    a('s_mov_b32 s8, s3')
    a('s_mov_b32 s9, s4')
    gemm1_pre(a)
    a('s_waitcnt lgkmcnt(0)')
    g, d = gemm1_head(a)
    a('s_cmp_lt_u32 s%d, 4' % S_W)
    a('s_cbranch_scc1 K_tail_g2')
    gemm1_tail(a, g, d, 'CV')
    a.label('K_conv')
    conv(a)
    a.label('K_prep')
    a('s_mul_i32 s8, s3, 5')
    a('s_add_u32 s8, s8, s4')
    a('s_sub_u32 s8, s8, 27')
    a('s_lshl_b32 s7, s8, 3')
    a('s_add_u32 s7, s7, s%d' % S_W)
    ut_pre(a)
    a('s_waitcnt lgkmcnt(0)')
    ut_loads(a)
    stamp(a, 1)
    flag_srd(a)
    srd(a, 72, P_DBG, 256)
    go_off(a)
    a(GO_LOAD)
    a('s_waitcnt vmcnt(9)')
    stamp(a, 2)
    ut_k(a)
    a('s_mov_b32 s69, 0x20000')
    a.label('K_sp_go')
    a('s_waitcnt vmcnt(0)')
    a('v_cmp_ne_u32 vcc, 0, v250')
    a('s_cbranch_vccnz K_sp_go2')
    a('s_sleep 4')
    a(GO_LOAD)
    a('s_sub_u32 s69, s69, 1')
    a('s_cbranch_scc0 K_sp_go')
    a.label('K_sp_go2')
    fx_publish(a, 0)
    ut_v(a)
    stamp(a, 3)
    go_sgpr(a)
    a('s_cmp_lt_u32 s%d, 4' % S_W)
    a('s_cbranch_scc1 K_prep_g2')
    a('s_lshl_b32 s7, s8, 1')
    a('s_add_u32 s7, s7, 240')
    a('s_movk_i32 s%d, 1000' % CV_NX)
    a('s_mov_b32 s%d, 1' % CV_M)
    a('s_mov_b32 s%d, 0' % CV_TG)
    gp = G1(a)
    cv_pre(a)
    for it in cv_h_items(): gp.emit(it)
    a('s_waitcnt vmcnt(8)')
    set_flag(a, S_F2)
    a('s_barrier')
    stamp(a, 5)
    cv_setup1(a)
    for ls in cv_pads():
        for l in ls: a(l)
    poll(a, PF_LOAD, 244, 11, sleep=OPT['usl'])
    cv_u_loads(a)
    a.label('K_conv_fix')
    fx = cv_fix()
    for l in fx[0]: a(l)
    a('s_waitcnt lgkmcnt(0)')
    for l in fx[1:]: a(l)
    for l in cv_g_reads(0, 0): a(l)
    a('s_waitcnt vmcnt(0)')
    a('s_branch K_conv')
    a.label('K_conv_next')
    a('s_mov_b32 s7, s%d' % CV_NX)
    a('s_mov_b32 s%d, 0' % CV_M)
    cv_pre(a)
    a(PF_LOAD)
    gs_wait(a)
    for it in cv_h_items_half(): gp.emit(it)
    a('s_waitcnt vmcnt(4)')
    poll_check(a, PF_LOAD, 244, 11, sleep=8)
    cv_u_loads(a)
    cv_setup1(a)
    for ls in cv_pads():
        for l in ls: a(l)
    a('s_waitcnt vmcnt(4) lgkmcnt(0)')
    gs_arrive(a)
    gs_wait(a)
    a('s_branch K_conv_fix')
    a.label('K_prep_g2')
    a('s_waitcnt vmcnt(0)')
    set_flag(a, S_F2)
    a('s_barrier')
    stamp(a, 5)
    g2_pre(a, allw=True)
    if OPT['spf']:
        poll(a, PF_LOAD, 244, 11, sleep=32)
        srd(a, 44, P_WS, SZ_W, WS_W2P)
        a('v_min_u32 v12, 39, v1')
        a('v_lshlrev_b32 v12, 7, v12')
        a('s_sub_u32 s48, s4, 27')
        a('s_lshl_b32 s48, s48, 2')
        a('s_add_u32 s48, s48, s%d' % S_W)
        a.label('K_spf')
        a('s_and_b32 s49, s48, 7')
        a('s_lshr_b32 s50, s48, 3')
        a('s_mul_i32 s51, s49, %d' % (7 if OPT['rot2'] else 0))
        a('s_add_u32 s50, s50, s51')
        a('s_sub_u32 s51, s50, 54')
        a('s_min_u32 s50, s50, s51')
        a('s_mul_i32 s50, s50, 40960')
        a('s_mul_i32 s49, s49, 5120')
        a('s_add_u32 s50, s50, s49')
        a('buffer_load_dword v13, v12, s[44:47], s50 offen sc1')
        a('s_add_u32 s48, s48, 20')
        a('s_cmp_lt_u32 s48, 432')
        a('s_cbranch_scc1 K_spf')
        stamp(a, 4)
    else:
        poll(a, PF_LOAD, 244, 11, sleep=16)
    for p in range(4):
        for it in g2_w_items(p, p): gp.emit(it)
    for r in range(2):
        for it in g2_wl_items(4 + r, r): gp.emit(it)
    g2_fh_addr(a)
    a('s_branch K_gemm2')
    a.label('K_tail_g2')
    gemm1_tail(a, g, d, 'G2')
    a.label('K_gemm2')
    gemm2(a)
    a.label('K_exit')
    a('s_endpgm')

def main(out):
    hdr = open('cdna_kernels/%s.s.ref' % NAME).read().split('\n')
    head = [l for l in hdr if l.startswith(';') and '@launch' not in l and 'Override' not in l and 'grid=ceil' not in l]
    a = Asm()
    for l in head: a.raw(l)
    a.raw('; @launch grid=(256,1,1) block=(512,1,1) lds=%d' % LDS_TOTAL)
    a.raw('.amdgcn_target "amdgcn-amd-amdhsa--gfx950"')
    a.raw('.text')
    nm = NAME + '_kernel'
    a.raw('.globl %s' % nm)
    a.raw('.type %s,@function' % nm)
    kernel(a, nm)
    a.raw('.section .rodata,"a"')
    a.raw(kernel_desc(nm, 256))
    open(out, 'w').write(a.text())

if __name__ == '__main__':
    out = 'cdna_kernels/%s.s' % NAME
    for arg in sys.argv[1:]:
        if '=' in arg:
            k, val = arg.split('='); OPT[k] = int(val)
        else:
            out = arg
    main(out)
```

```python
import sys, copy
from asmlib import *

NAME = 'gated_mix__ssm_conv_h3__glu_gated_swiglu__prompt'
WS_H = 0
WS_W2P = 0x800000
WS_UT = 0xC00000
WS_Z4 = 0x1000000
WS_G = 0x1400000
WS_F = 0x1500000
F_H, F_U, F_W, F_X, F_Z = 0, 0x40000, 0x50000, 0x58000, 0x60000
F_SIZE = 0xA0000
FS = 7
SZ_ACT = 2048 * 640 * 2
SZ_W = 640 * 1728 * 2
SZ_H = 2048 * 1728 * 2
P_Q, P_K, P_V, P_SK, P_SSMK, P_SSMD, P_BX, P_W1, P_W3, P_W2, P_GW, P_OUT, P_DBG, P_WS = [16 + 2 * i for i in range(14)]
NLOG2E = '0xbfb8aa3b'
OPT = dict(probe=-1, rotm=5, pc=0, pwg=-1, rot2=1, stamp=0, prio=0, cprio=1, cflag=0, touch=0, nodma=0, tp=2, lead=3, rot2r=0, rot1=10, eprio=3, gprio=3, fsl=8, ebar=1, npost=0, allwait=0, fbar=0, zr=10, fwst=7, local=1, wbl2=0, arf=1, xw=0, xh=0, xsc=0, xq=0, zsl=16, fsx=3, fsh=3, fsw=7, fsu=7, fsz=3, ztrig=5, wx=1, xc=0, tsl=8, unit2=0, usl=4, spf=0, npre=30, wst=8, plan=1, late67=0, aprio=3, t2=1, wsl=16, cpf=0, wide=1, one=1, s0=8, mb=0, lst=0, ost=0)
LDS_TOTAL = 163840
LDS_CNT = LDS_TOTAL - 32
SLOT = [0, 98304, 49152]
LDS_W2S = 147456
LDS_GW = 159744
CONV_BASE = 98304
S_W = 10
SF = 12
S_F1, S_F2 = 5, 6
S_XCC = 77
WS_DBG = 0x2000000
OOB = 0x1000000

def stamp(a, i, mode=1):
    if OPT['probe'] == i + 100 * (mode - 1):
        a('s_memrealtime s[96:97]' if not OPT['pc'] else 's_memtime s[92:93]')
    if OPT['stamp'] == mode:
        a('s_memtime s[%d:%d]' % (80 + 2 * i, 81 + 2 * i))
def stamp_begin(a):
    if OPT['probe'] >= 0:
        a('s_memrealtime s[96:97]')
        a('s_memtime s[94:95]')
        a('s_memtime s[92:93]')
    if OPT['stamp']:
        a('s_memrealtime s[78:79]')
        for i in range(11): a('s_mov_b64 s[%d:%d], 0' % (80 + 2 * i, 81 + 2 * i))
        a('s_memtime s[80:81]')
def stamp_end(a):
    if OPT['probe'] >= 0:
        L = a.newlabel('PRB')
        if OPT['probe'] == 10:
            a('s_waitcnt vmcnt(0)')
            a('s_memrealtime s[96:97]')
        a('s_cmp_lg_u32 s10, 0')
        a('s_cbranch_scc1 %sx' % L)
        if OPT['pwg'] >= 0:
            a('s_cmp_lg_u32 s2, %d' % OPT['pwg'])
            a('s_cbranch_scc1 %sx' % L)
        a('s_waitcnt lgkmcnt(0)')
        a('s_add_u32 s96, s96, 4000')
        if OPT['pc']:
            a('s_sub_u32 s92, s92, s94')
            a('s_lshr_b32 s92, s92, 4')
            a('s_add_u32 s96, s96, s92')
        a.label(L)
        a('s_sleep 1')
        a('s_memrealtime s[98:99]')
        a('s_waitcnt lgkmcnt(0)')
        a('s_sub_u32 s98, s98, s96')
        a('s_cmp_lt_i32 s98, 0')
        a('s_cbranch_scc1 %s' % L)
        a.label(L + 'x')
    if OPT['stamp']:
        a('s_waitcnt vmcnt(0) lgkmcnt(0)')
        a('s_memtime s[100:101]')
        a('s_memrealtime s[76:77]')
        srd(a, 44, P_WS, 0x100000, WS_DBG)
        a('s_lshl_b32 s5, s2, 3')
        a('s_add_u32 s5, s5, s10')
        a('s_lshl_b32 s5, s5, 6')
        a('s_waitcnt lgkmcnt(0)')
        a('v_mov_b32 v0, s78')
        a('v_mov_b32 v1, s76')
        for i in range(11): a('v_mov_b32 v%d, s%d' % (2 + i, 80 + 2 * i))
        a('v_mov_b32 v16, s5')
        a('s_mov_b64 exec, 1')
        for i in range(4):
            a('buffer_store_dwordx4 v[%d:%d], v16, s[44:47], 0 offen offset:%d' % (4 * i, 4 * i + 3, 16 * i))

def capture(a, fn):
    save = a.lines; a.lines = []
    fn()
    out = a.lines; a.lines = save
    return out

class Q:
    def __init__(self): self.q = []
    def push(self, tag, sure=True): self.q.append((tag, sure))
    def need(self, tags):
        idx = [i for i, (t, _) in enumerate(self.q) if t in tags]
        if not idx: return None
        last = max(idx)
        n = sum(1 for (_, sure) in self.q[last + 1:] if sure)
        self.q = self.q[last + 1:]
        return n
    def clear(self): self.q = []

NC = 's[0:1]'
def poll_check(a, loadline, vtmp, sc, sleep=2):
    L, D = a.newlabel('POLL'), a.newlabel('POLLD')
    a('s_mov_b32 s%d, 0x20000' % sc)
    a.label(L)
    a('v_cmp_eq_u64 vcc, %s, %s' % (NC, v(vtmp, 2)))
    a('s_cmp_eq_u64 vcc, -1')
    a('s_cbranch_scc1 %s' % D)
    a('s_sleep %d' % sleep)
    a(loadline)
    a('s_waitcnt vmcnt(0)')
    a('s_sub_u32 s%d, s%d, 1' % (sc, sc))
    a('s_cbranch_scc0 %s' % L)
    a.label(D)
def poll(a, loadline, vtmp, sc, sleep=2):
    a(loadline)
    a('s_waitcnt vmcnt(0)')
    poll_check(a, loadline, vtmp, sc, sleep)

GO_LOAD = 'buffer_load_dwordx2 v[250:251], v252, s[72:75], s11 offen sc1'
PF_LOAD = 'buffer_load_dwordx2 v[244:245], v248, s[%d:%d], 0 offen sc1' % (SF, SF + 3)

def set_flag(a, soff):
    a('s_mov_b64 exec, 1')
    a('buffer_store_dwordx2 v[250:251], v252, %s, s%d offen sc1' % (s(SF, 4), soff))
    a('s_mov_b64 exec, -1')

def fx_publish(a, wave):
    a('v_mov_b32 v240, v250')
    a('v_xor_b32 v241, s%d, v251' % S_XCC)
    a('s_lshl_b32 s11, s3, 5')
    a('s_add_u32 s11, s11, s4')
    a('s_lshl_b32 s11, s11, %d' % OPT['fsx'])
    a('s_add_u32 s11, s11, %s' % hex(F_X))
    a('s_cmp_eq_u32 s%d, %d' % (S_W, wave))
    a('s_cselect_b32 s11, s11, %s' % hex(OOB))
    a('s_mov_b64 exec, 1')
    a('buffer_store_dwordx2 v[240:241], v252, %s, s11 offen sc1' % s(SF, 4))
    a('s_mov_b64 exec, -1')
def fx_load(a):
    a('s_lshr_b32 s11, s%d, 1' % S_W)
    a('s_lshl_b32 s11, s11, 3')
    a('v_and_b32 v249, 7, v1')
    a('v_add_u32 v249, s11, v249')
    a('s_lshl_b32 s11, s3, %d' % (5 + OPT['fsx']))
    a('s_add_u32 s11, s11, %s' % hex(F_X))
    a('v_lshlrev_b32 v249, %d, v249' % OPT['fsx'])
    a('buffer_load_dwordx2 v[242:243], v249, %s, s11 offen sc1' % s(SF, 4))
BIG = 0x7000000
def fx_eval(a):
    a('v_cmp_eq_u64 vcc, v[240:241], v[242:243]')
    a('s_cmp_eq_u64 vcc, %s' % ('-1' if OPT['local'] else '7'))
    for (r, r2) in ((HO, 28), (GO, 29), (S_F1, S_XCC)):
        a('s_cselect_b32 s%d, %s, s%d' % (r2, hex(BIG), r))
        a('s_cselect_b32 s%d, s%d, %s' % (r, r, hex(BIG)))
def store2(a, fmt, r):
    r2 = {HO: 28, GO: 29, S_F1: S_XCC}[r]
    a(fmt % r + (['', ' sc0', ' nt', ' sc0 nt'][OPT['lst']] if r == HO else ''))
    a(fmt % r2 + ' sc1')

def nonce_publish(a):
    L = a.newlabel('NP')
    a('s_or_b32 s11, s2, s%d' % S_W)
    a('s_cmp_lg_u32 s11, 0')
    a('s_cbranch_scc1 %s' % L)
    a('s_or_b32 s74, s74, 1')
    a('v_mov_b32 v250, s74')
    a('v_mov_b32 v251, s75')
    a('v_lshlrev_b32 v249, 7, v1')
    a('s_mov_b64 exec, 3')
    a('global_store_dwordx2 v249, v[250:251], s[%d:%d] sc1' % (P_DBG, P_DBG + 1))
    a('s_mov_b64 exec, -1')
    a.label(L)
def go_off(a):
    a('s_and_b32 s11, s4, 1')
    a('s_lshl_b32 s11, s11, 7')
def go_issue(a):
    srd(a, 72, P_DBG, 256)
    go_off(a)
    a('s_cmp_eq_u32 s%d, 0' % S_W)
    a('s_cselect_b32 s11, s11, %s' % hex(OOB))
    a(GO_LOAD)
def go_check(a):
    L, R, D = a.newlabel('GOC'), a.newlabel('GOR'), a.newlabel('GOD')
    a('s_cmp_lg_u32 s%d, 0' % S_W)
    a('s_cbranch_scc1 %s' % L)
    go_off(a)
    a('s_mov_b32 s69, 0x20000')
    a.label(R)
    a('v_cmp_ne_u32 vcc, 0, v250')
    a('s_cbranch_vccnz %s' % D)
    a('s_sleep 4')
    a(GO_LOAD)
    a('s_waitcnt vmcnt(0)')
    a('s_sub_u32 s69, s69, 1')
    a('s_cbranch_scc0 %s' % R)
    a.label(D)
    a('ds_write_b64 v254, v[250:251] offset:8')
    a('s_waitcnt lgkmcnt(0)')
    a.label(L)
GO_FETCH = 'ds_read_b64 v[250:251], v254 offset:8'
def go_sgpr(a):
    a('v_readfirstlane_b32 s0, v250')
    a('v_readfirstlane_b32 s1, v251')
def fw_check(a):
    D = a.newlabel('PFD')
    a('s_cmp_lg_u32 s%d, 0' % S_W)
    a('s_cbranch_scc1 %s' % D)
    poll_check(a, PF_LOAD, 244, 11, sleep=4)
    a.label(D)

def common_pre(a):
    a('v_mov_b32 v252, 0')
    a('v_mov_b32 v253, 1')
    a('v_mov_b32 v238, 0')
    a('v_mov_b32 v248, 0')
    a('v_mov_b32 v254, %d' % LDS_CNT)
    a('ds_write_b32 v254, v252')
    a('ds_write_b32 v254, v252 offset:4')
    a('ds_write_b32 v254, v252 offset:16')
    a('ds_write_b32 v254, v252 offset:20')
    a('v_lshlrev_b32 v237, 4, v1')
    a('s_cmp_lt_u32 s%d, 4' % S_W)
    a('s_cselect_b32 s11, 16, 0')
    a('v_add_u32 v255, s11, v254')

def flag_srd(a):
    srd(a, SF, P_WS, F_SIZE, WS_F)

G1_FR, G1_ACC = 12, 44
SX, SW1, SW3, SH = 44, 48, 52, 56
OX, OW, LW, HO, GO = 60, 61, 62, 63, 64
GID, U0 = 70, 71

def gemm1_pre(a):
    RB, CB, W = 8, 9, S_W
    a('s_lshl_b32 s%d, s%d, 10' % (LW, W))
    a('v_lshrrev_b32 v13, 3, v1')
    a('s_lshl_b32 s11, s%d, 3' % W)
    a('v_add_u32 v13, s11, v13')
    a('v_bfe_u32 v14, v13, 1, 3')
    a('v_and_b32 v15, 7, v1')
    a('v_xor_b32 v14, v14, v15')
    a('v_lshlrev_b32 v14, 4, v14')
    a('v_mul_u32_u24 v2, 1280, v13')
    a('v_add_u32 v2, v2, v14')
    for i in range(1, 4):
        a('v_add_u32 v%d, %s, v2' % (2 + i, hex(i * 81920)))
    a('v_bfe_u32 v14, v13, 1, 1')
    a('v_lshlrev_b32 v14, 2, v14')
    a('v_xor_b32 v14, v14, v15')
    a('v_lshlrev_b32 v14, 4, v14')
    a('v_mul_u32_u24 v6, 3456, v13')
    a('v_add_u32 v6, v6, v14')
    if OPT['touch']:
        a('v_mul_u32_u24 v16, 205, v1')
        a('v_lshrrev_b32 v16, 11, v16')
        a('v_mul_u32_u24 v17, 10, v16')
        a('v_sub_u32 v17, v1, v17')
        a('s_mul_i32 s11, s%d, 10' % W)
        a('v_add_u32 v17, s11, v17')
        a('v_min_u32 v17, 74, v17')
        a('s_lshr_b32 s11, s4, 2')
        a('s_mul_i32 s11, s11, 43')
        a('v_add_u32 v18, s11, v17')
        a('v_min_u32 v18, 255, v18')
        a('v_mul_u32_u24 v18, 1280, v18')
        a('v_subrev_u32 v19, 43, v17')
        a('v_and_b32 v19, 15, v19')
        a('s_and_b32 s11, s4, 3')
        a('s_lshl_b32 s11, s11, 4')
        a('v_add_u32 v19, s11, v19')
        a('v_mul_u32_u24 v19, 3456, v19')
        a('v_cmp_gt_u32 vcc, 43, v17')
        a('v_mov_b32 v20, %d' % (64 * 3456))
        a('v_mov_b32 v21, 128')
        a('v_cndmask_b32 v242, v20, v21, vcc')
        a('v_cndmask_b32 v18, v19, v18, vcc')
        a('v_mul_u32_u24 v16, v16, v242')
        a('v_add_u32 v18, v18, v16')
    a('s_mul_i32 s%d, s%d, 27' % (GID, RB))
    a('s_add_u32 s%d, s%d, s%d' % (GID, GID, CB))
    a('s_lshr_b32 s65, s%d, 1' % W)
    a('s_and_b32 s66, s%d, 1' % W)
    a('s_lshl_b32 s67, s%d, 2' % RB)
    a('s_add_u32 s67, s67, s65')
    a('s_lshl_b32 s68, s%d, 1' % CB)
    a('s_add_u32 s68, s68, s66')
    a('s_lshl_b32 s%d, s67, 6' % S_F1)
    a('s_add_u32 s%d, s%d, s68' % (S_F1, S_F1))
    a('s_lshl_b32 s%d, s%d, %d' % (S_F1, S_F1, OPT['fsh']))

def touch_lines(lo, n):
    m = ((1 << n) - 1) << lo
    return ['s_mov_b32 exec_lo, %s' % hex(m & 0xffffffff), 's_mov_b32 exec_hi, %s' % hex(m >> 32),
            'global_load_dword v243, v[240:241], off', 's_mov_b64 exec, -1']

def gemm1_post_addr(a):
    W = S_W
    a('s_mul_i32 s%d, s67, 54' % HO)
    a('s_add_u32 s%d, s%d, s68' % (HO, HO))
    a('s_lshl_b32 s%d, s%d, 12' % (HO, HO))
    a('s_lshl_b32 s11, s65, 13')
    a('v_and_b32 v13, 31, v1')
    a('v_lshrrev_b32 v14, 5, v1')
    a('v_bfe_u32 v15, v1, 1, 3')
    a('v_xor_b32 v15, v15, v14')
    a('v_lshlrev_b32 v12, 7, v13')
    a('v_add_u32 v12, s11, v12')
    for kk in range(4):
        a('v_xor_b32 v%d, %d, v15' % (7 + kk, 2 * kk))
        a('v_lshl_add_u32 v%d, v%d, 4, v12' % (7 + kk, 7 + kk))
    a('v_bfe_u32 v11, v1, 2, 2')
    a('v_lshl_add_u32 v11, v14, 3, v11')
    a('v_lshlrev_b32 v11, 7, v11')
    a('v_bfe_u32 v12, v1, 3, 1')
    a('v_xor_b32 v12, s66, v12')
    a('v_lshl_add_u32 v11, v12, 6, v11')
    a('v_bfe_u32 v12, v1, 4, 1')
    a('v_lshl_add_u32 v11, v12, 5, v11')
    a('v_and_b32 v12, 3, v1')
    a('v_lshl_add_u32 v11, v12, 3, v11')
    a('v_add_u32 v11, 0x8000, v11')
    for i in range(5):
        a('v_add_u32 v%d, 0x18000, v%d' % (208 + i, 7 + i))
    a('v_bfe_u32 v12, v1, 4, 1')
    a('v_lshlrev_b32 v12, 10, v12')
    a('v_and_b32 v13, 15, v1')
    a('v_lshl_add_u32 v12, v13, 4, v12')
    a('v_lshl_add_u32 v213, v14, 8, v12')
    a('s_and_b32 s%d, s68, 7' % GO)
    a('s_lshl_b32 s69, s%d, 10' % GO)
    a('s_add_u32 s11, s11, s69')
    a('v_add_u32 v214, s11, v237')
    a('v_add_u32 v215, 0x18000, v214')
    a('s_and_b32 s69, s%d, 1' % GO)
    a('s_lshl_b32 s69, s69, 2')
    a('v_lshrrev_b32 v12, 4, v1')
    a('v_add_u32 v12, s69, v12')
    a('v_and_b32 v13, 7, v1')
    a('v_xor_b32 v12, v12, v13')
    a('v_lshlrev_b32 v216, 4, v12')
    a('v_add_u32 v216, %d, v216' % LDS_GW)
    if OPT['rot1']:
        a('s_lshl_b32 s69, s%d, 7' % KS0)
        a('v_add_u32 v216, s69, v216')
    a('v_mov_b32 v217, 0')
    a('s_lshl_b32 s%d, s%d, 5' % (GO, GO))
    a('s_lshl_b32 s69, s67, 8')
    a('s_add_u32 s%d, s%d, s69' % (GO, GO))
    a('s_cmp_lt_u32 s68, 8')
    a('s_cselect_b32 s%d, s%d, %s' % (GO, GO, hex(OOB)))
    a('v_lshrrev_b32 v12, 5, v1')
    a('v_bfe_u32 v13, v1, 2, 3')
    a('v_lshl_add_u32 v12, v12, 4, v13')
    a('v_lshlrev_b32 v12, 7, v12')
    a('v_and_b32 v13, 3, v1')
    a('v_lshl_add_u32 v12, v13, 3, v12')
    a('s_lshr_b32 s11, s%d, 2' % W)
    a('s_lshl_b32 s11, s11, 12')
    a('s_and_b32 s69, s%d, 3' % W)
    a('s_lshl_b32 s69, s69, 5')
    a('s_add_u32 s11, s11, s69')
    a('s_add_u32 s11, s11, %d' % LDS_W2S)
    a('v_add_u32 v236, s11, v12')

def item(lines, pre=(), vm=None, lg=None, needlg=(), needvm=()):
    if isinstance(lines, str): lines = [lines]
    if isinstance(pre, str): pre = [pre]
    return dict(pre=list(pre), lines=list(lines), vm=vm, lg=lg, needlg=set(needlg), needvm=set(needvm))

KS0 = 28
def g1_dma_items(stage):
    base = SLOT[stage % 3]
    it = []
    for m, S in ((0, SW1), (1, SW3)):
        pre = ['s_add_u32 m0, s%d, %s' % (LW, hex(base + 32768 + m * 8192))]
        if m == 0:
            if OPT['rot1']:
                pre = ['s_add_u32 s29, s%d, %d' % (KS0, stage), 's_cmp_ge_u32 s29, 10', 's_cselect_b32 s%d, 10, 0' % OW,
                       's_sub_u32 s29, s29, s%d' % OW, 's_mul_i32 s%d, s29, %d' % (OW, 64 * 3456)] + pre
            else:
                pre = ['s_mov_b32 s%d, %s' % (OW, hex(stage * 64 * 3456))] + pre
        it.append(item('buffer_load_dwordx4 v6, %s, s%d offen lds' % (s(S, 4), OW), pre, vm=('st', stage)))
    for i in range(4):
        pre = ['s_add_u32 m0, s%d, %s' % (LW, hex(base + i * 8192))]
        if i == 0:
            pre = [('s_lshl_b32 s%d, s29, 7' % OX) if OPT['rot1'] else ('s_movk_i32 s%d, %d' % (OX, stage * 128))] + pre
        it.append(item('buffer_load_dwordx4 v%d, %s, s%d offen lds' % (2 + i, s(SX, 4), OX), pre, vm=('st', stage)))
    if OPT['nodma'] and stage >= 3:
        it = []
    return it

class G1:
    def __init__(self, a):
        self.a = a; self.vq = Q(); self.lq = Q()
    def fork(self):
        g = G1(self.a); g.vq = copy.deepcopy(self.vq); g.lq = copy.deepcopy(self.lq); return g
    def wait(self, vm=(), lg=(), lgall=False):
        parts = []
        n = self.vq.need(set(vm)) if vm else None
        if n is not None: parts.append('vmcnt(%d)' % min(n, 63))
        if lgall:
            if self.lq.q: parts.append('lgkmcnt(0)')
            self.lq.clear()
        else:
            n = self.lq.need(set(lg)) if lg else None
            if n is not None: parts.append('lgkmcnt(%d)' % min(n, 15))
        if parts: self.a('s_waitcnt ' + ' '.join(parts))
    def emit(self, it, with_pre=True):
        a = self.a
        if with_pre and it['pre']:
            for l in it['pre']: a(l)
            if 'm0' in it['pre'][-1]: a('s_nop 0')
        if it['needlg'] or it['needvm']: self.wait(vm=it['needvm'], lg=it['needlg'])
        for l in it['lines']: a(l)
        if it['vm'] is not None: self.vq.push(it['vm'], sure=(it['vm'] != 'w2?'))
        if it['lg'] is not None: self.lq.push(it['lg'])
    def read_items(self, stage, kk):
        base = SLOT[stage % 3]; hi = base >= 98304
        off = base - (98304 if hi else 0)
        b = kk & 1
        B = G1_FR + 16 * b
        xa = (208 if hi else 7) + kk
        wa = 212 if hi else 11
        def w(m, h): return item('ds_read_b64_tr_b16 %s, v%d offset:%d' % (v(B + 8 + 4 * m + 2 * h, 2), wa, off + m * 8192 + kk * 2048 + h * 512), lg=('w', stage, kk, m))
        def x(nt): return item('ds_read_b128 %s, v%d offset:%d' % (v(B + 4 * nt, 4), xa, off + nt * 4096), lg=('x', stage, kk, nt))
        return [w(0, 0), w(0, 1), x(0), x(1), w(1, 0), w(1, 1)]
    def substep(self, sidx, kk, gaps):
        a = self.a
        B = G1_FR + 16 * (kk & 1)
        i = 0
        for m in range(2):
            for nt in range(2):
                g = gaps[i]
                if g and g[0]['pre']:
                    for l in g[0]['pre']: a(l)
                self.wait(lg=[('w', sidx, kk, m), ('x', sidx, kk, nt)])
                acc = v(G1_ACC + (m * 2 + nt) * 16, 16)
                a('v_mfma_f32_32x32x16_bf16 %s, %s, %s, %s' % (acc, v(B + 8 + 4 * m, 4), v(B + 4 * nt, 4), '0' if (sidx == 0 and kk == 0) else acc))
                for k, it in enumerate(g):
                    self.emit(it, with_pre=(k > 0))
                i += 1
    def step(self, sidx, ex, before_barrier=None, needvm=()):
        a = self.a
        a.comment('k-step %d' % sidx)
        if sidx < 9 or OPT['probe'] >= 0: stamp(a, sidx + 1, 2)
        base = SLOT[sidx % 3]; hi = base >= 98304
        for kk in range(4):
            if kk == 3:
                self.wait(vm=[('st', sidx + 1)] + list(needvm), lgall=True)
                if before_barrier: before_barrier(a)
                a('s_barrier')
            if kk < 3: r = self.read_items(sidx, kk + 1)
            elif sidx < 9: r = self.read_items(sidx + 1, 0)
            else: r = []
            e = list(ex.get(kk, []))
            if kk == 0:
                e = [item('ds_read_b128 v[220:223], v%d offset:%d' % (215 if hi else 214, base - (98304 if hi else 0)), lg='gx'),
                     item('ds_read_b128 v[224:227], v216 offset:%d' % (sidx * 128), lg='gx')] + e
            if kk == 2:
                e = e + [item(['v_dot2c_f32_bf16 v217, v%d, v%d' % (220 + i, 224 + i) for i in range(4)], needlg=['gx'])]
            h = (len(e) + 1) // 2
            if r: gaps = [r[0:3], r[3:6], e[:h], e[h:]]
            else:
                n4 = (len(e) + 3) // 4
                gaps = [e[i * n4:(i + 1) * n4] for i in range(4)]
            self.substep(sidx, kk, gaps)

def touch_item(stage):
    if not OPT['touch'] or stage > 9 or stage < OPT['tp']: return []
    lines = []
    if stage == 6:
        lines += ['v_mul_u32_u24 v218, 6, v242', 'v_add_co_u32 v240, vcc, v240, v218', 's_nop 1', 'v_addc_co_u32 v241, vcc, 0, v241, vcc']
    lines += touch_lines(10 * (stage % 6), 10)
    return [item(lines, vm='touch')]

def gemm1_head(a):
    RB, CB, W = 8, 9, S_W
    g = G1(a)
    nonce_publish(a)
    if OPT['rot1']:
        R = OPT['rot1']
        a('s_mul_i32 s11, s%d, %d' % (RB, OPT['rotm']))
        a('s_add_u32 s11, s11, s%d' % CB)
        a('s_mul_i32 s69, s11, %d' % ((2048 + R - 1) // R))
        a('s_lshr_b32 s69, s69, 11')
        a('s_mul_i32 s69, s69, %d' % R)
        a('s_sub_u32 s%d, s11, s69' % KS0)
        if R != 10: a('s_mul_i32 s%d, s%d, %d' % (KS0, KS0, 10 // R))
    a('s_mul_i32 s11, s%d, %d' % (RB, 256 * 1280))
    srd(a, SX, P_Q, 256 * 1280, 's11')
    a('s_lshl_b32 s11, s%d, 7' % CB)
    a('s_sub_u32 s69, %s, s11' % hex(SZ_W))
    srd(a, SW1, P_W1, 's69', 's11')
    srd(a, SW3, P_W3, 's69', 's11')
    if OPT['touch']:
        a('v_cmp_gt_u32 vcc, 59, v17')
        a('v_mov_b32 v20, s%d' % SW3); a('v_mov_b32 v21, s%d' % SW1)
        a('v_cndmask_b32 v240, v20, v21, vcc')
        a('v_mov_b32 v20, s%d' % (SW3 + 1)); a('v_mov_b32 v21, s%d' % (SW1 + 1))
        a('v_cndmask_b32 v241, v20, v21, vcc')
        a('v_cmp_gt_u32 vcc, 43, v17')
        a('v_mov_b32 v20, s%d' % SX); a('v_mov_b32 v21, s%d' % (SX + 1))
        a('v_cndmask_b32 v240, v240, v20, vcc')
        a('v_cndmask_b32 v241, v241, v21, vcc')
        a('v_add_co_u32 v240, vcc, v240, v18')
        a('s_nop 1')
        a('v_addc_co_u32 v241, vcc, 0, v241, vcc')
        g.emit(item(touch_lines(0, 10 * OPT['tp']), vm='touch'))
    for it in g1_dma_items(0): g.emit(it)
    stamp(a, 1)
    L = a.newlabel('GW')
    a('s_cmp_ge_u32 s%d, 3' % W)
    a('s_cbranch_scc1 %s' % L)
    srd(a, SH, P_GW, 1280)
    a('v_add_u32 v12, s%d, v237' % LW)
    a('v_subrev_u32 v13, 1280, v12')
    a('v_min_u32 v12, v12, v13')
    a('v_subrev_u32 v13, 1280, v12')
    a('v_min_u32 v12, v12, v13')
    a('s_add_u32 m0, s%d, %d' % (LW, LDS_GW))
    a('s_nop 0')
    a('buffer_load_dwordx4 v12, %s, 0 offen lds' % s(SH, 4))
    a.label(L)
    g.vq.push('gw', sure=False)
    gemm1_post_addr(a)
    flag_srd(a)
    srd(a, SH, P_W2, SZ_W)
    a('s_mul_i32 s11, s%d, 3641' % GID)
    a('s_lshr_b32 s11, s11, 16')
    a('s_mul_i32 s69, s11, 18')
    a('s_sub_u32 s69, s%d, s69' % GID)
    a('s_mul_i32 s69, s69, 3')
    a('s_lshr_b32 s72, s%d, 2' % W)
    a('s_add_u32 s69, s69, s72')
    a('s_cmp_ge_u32 s%d, 180' % GID)
    a('s_cselect_b32 s69, 60, s69')
    a('s_mul_i32 s%d, s69, 10' % U0)
    a('s_add_u32 s%d, s%d, s11' % (U0, U0))
    a('s_mul_i32 s69, s69, %d' % (32 * 1280))
    a('s_lshl_b32 s65, s11, 7')
    a('s_add_u32 s65, s65, s69')
    a('s_add_u32 s66, s65, %d' % (64 * 1280))
    a('s_cmp_lt_u32 s%d, 4' % W)
    a('s_cselect_b32 s66, s66, 0x7000000')
    a('s_and_b32 s67, s%d, 3' % W)
    a('s_lshl_b32 s67, s67, 10')
    a('s_add_u32 s67, s67, %d' % (LDS_W2S + 8192))
    a('s_cselect_b32 s67, s67, s67')
    a('v_lshrrev_b32 v12, 3, v1')
    a('s_and_b32 s69, s%d, 3' % W)
    a('s_lshl_b32 s69, s69, 3')
    a('v_add_u32 v12, s69, v12')
    a('v_mul_u32_u24 v12, 1280, v12')
    a('v_and_b32 v13, 7, v1')
    a('v_lshl_add_u32 v219, v13, 4, v12')
    L2 = a.newlabel('W2')
    w2l = [item('buffer_load_dwordx4 v219, %s, s65 offen lds' % s(SH, 4), pre='s_add_u32 m0, s%d, %d' % (LW, LDS_W2S), vm='w2'),
           item(['s_cmp_ge_u32 s%d, 4' % W, 's_cbranch_scc1 %s' % L2, 's_mov_b32 m0, s67', 's_nop 0',
                 'buffer_load_dwordx4 v219, %s, s66 offen lds' % s(SH, 4), L2 + ':'], vm='w2?')]
    a('s_barrier')
    for it in g1_dma_items(1): g.emit(it)
    g.wait(vm=[('st', 0), 'gw'])
    a('s_barrier')
    stamp(a, 2)
    if OPT['prio']:
        L = a.newlabel('PR')
        a('s_cmp_lt_u32 s%d, 4' % W)
        a('s_cbranch_scc1 %s' % L)
        a('s_setprio 1')
        a.label(L)
    for it in g.read_items(0, 0): g.emit(it)
    d = [g1_dma_items(i) for i in range(10)] + [[], [], []]
    ld = OPT['lead']
    t0 = []
    for st_ in range(OPT['tp'], ld): t0 += touch_item(st_)
    w2r = [item('ds_read_b64_tr_b16 v[228:229], v236', lg='w2f'), item('ds_read_b64_tr_b16 v[230:231], v236 offset:1024', lg='w2f'),
           item('ds_read_b64_tr_b16 v[232:233], v236 offset:8192', lg='w2f'), item('ds_read_b64_tr_b16 v[234:235], v236 offset:9216', lg='w2f')]
    w2s = [item('buffer_store_dwordx4 v[228:231], v237, %s, s11 offen sc1' % s(SH, 4),
                pre=['s_lshl_b32 s11, s%d, 2' % U0, 's_and_b32 s69, s%d, 3' % W, 's_add_u32 s11, s11, s69', 's_lshl_b32 s11, s11, 10'], vm='w2s', needlg=['w2f']),
           item('buffer_store_dwordx4 v[232:235], v237, %s, s11 offen sc1' % s(SH, 4),
                pre=['s_add_u32 s11, s11, %d' % (20 * 4096), 's_cmp_lt_u32 s%d, 4' % W, 's_cselect_b32 s11, s11, 0x7000000'], vm='w2s')]
    goi = item(capture_l(a, go_issue), vm='go')
    g.step(0, {0: w2l + [goi] + d[2][0:1], 1: d[2][1:4], 2: d[2][4:6], 3: d[3][0:2]})
    srd(a, SH, P_WS, SZ_W, WS_W2P)
    g.step(1, {0: d[3][2:4], 1: d[3][4:6], 3: [item(GO_FETCH, lg='go')] + w2r + d[4][0:2]}, before_barrier=go_check, needvm=['go', 'w2', 'w2?'])
    fw = item(['s_lshl_b32 s11, s%d, %d' % (GID, OPT['fsw']), 's_add_u32 s11, s11, %s' % hex(F_W), 's_cmp_eq_u32 s%d, 0' % W,
               's_cselect_b32 s11, s11, %s' % hex(OOB)] + capture_l(a, lambda a: set_flag(a, 11)), vm='fw')
    g.step(2, {0: w2s + d[4][2:4], 1: d[4][4:6], 2: [item(capture_l(a, go_sgpr), needlg=['go']), item(capture_l(a, lambda a: fx_publish(a, 1)), vm='fxp')], 3: d[5][0:2]})
    srd(a, SH, P_WS, SZ_H, None if WS_H == 0 else WS_H)
    ct = item(['s_getpc_b64 s[72:73]', 'K_pc:', 's_mov_b32 s74, CODE_END-K_pc', 's_mov_b32 s75, 0x00020000',
               's_and_b32 s11, s4, 7', 's_lshl_b32 s11, s11, 3', 's_add_u32 s11, s11, s%d' % W, 's_lshl_b32 s11, s11, 9',
               'v_lshlrev_b32 v249, 7, v1', 's_mov_b64 exec, 15', 'buffer_load_dword v249, v249, s[72:75], s11 offen', 's_mov_b64 exec, -1'], vm='ct')
    g.step(3, {0: d[5][2:4], 1: d[5][4:6], 2: [ct] if OPT['cpf'] else [], 3: [fw] + d[6][0:2]}, needvm=['w2s'])
    g.step(4, {0: d[6][2:4], 1: d[6][4:6], 3: d[7][0:2]})
    return g, d

def capture_l(a, fn):
    return [l.strip() for l in capture(a, lambda: fn(a))]

def gemm1_tail(a, g, d, role):
    g = g.fork()
    pf = [item(PF_LOAD, vm='pf')]
    ex = {s_: {0: d[s_ + 2][2:4], 1: d[s_ + 2][4:6], 2: touch_item(s_ + OPT['lead']), 3: d[s_ + 3][0:2]} for s_ in range(5, 10)}
    bb = {}; nv = {}
    post = []
    def chunks(lines, n):
        k = (len(lines) + n - 1) // n
        return [item(lines[i * k:(i + 1) * k]) for i in range(n) if lines[i * k:(i + 1) * k]]
    if role == 'G2':
        fs = OPT['fwst']
        bb[fs] = fw_check; nv[fs] = ['pf']
        if fs == 5:
            ex[5][0] = [item(capture_l(a, g2_pre))] + pf + ex[5][0]
        else:
            ex[5][2] = ex[5][2] + [item(capture_l(a, g2_pre))]
            ex[fs][0] = pf + ex[fs][0]
        w = []
        for p in range(4): w += g2_w_items(p, p)
        l4 = g2_wl_items(4, 0, O=70)
        if OPT['plan'] == 1:
            pl = [((7, 3), 1, 0), ((8, 0), 1, 0), ((8, 1), 2, 0), ((8, 2), 1, 0), ((8, 3), 3, 1), ((9, 0), 4, 1), ((9, 1), 4, 2), ((9, 2), 4, 1)]
        elif OPT['plan'] == 2:
            pl = [((7, 3), 2, 0), ((8, 0), 2, 0), ((8, 1), 1, 0), ((8, 2), 0, 0), ((8, 3), 3, 2), ((9, 0), 4, 2), ((9, 1), 4, 1), ((9, 2), 4, 0)]
        else:
            pl = [((7, 3), 1, 0), ((8, 0), 1, 0), ((8, 1), 2, 0), ((8, 2), 1, 0), ((8, 3), 0, 1), ((9, 0), 2, 1), ((9, 1), 4, 2), ((9, 2), 4, 1)]
        k = 0; k4 = 0
        for ((s_, kk), n, n4) in pl:
            ex[s_][kk] = ex[s_][kk] + l4[k4:k4 + n4] + w[k:k + n]; k += n; k4 += n4
        post = w[k:]
        ex[9][3] = [item(capture_l(a, g2_fh_addr))]
    elif role == 'CV':
        ex[5][2] = ex[5][2] + [item((['s_mov_b32 s7, s%d' % GID, 's_mov_b32 s%d, 0' % CV_M] if not OPT['mb'] else
                                      ['s_mul_i32 s7, s3, 30', 's_add_u32 s7, s7, s4', 's_sub_u32 s11, s4, 24', 's_max_i32 s11, s11, 0', 's_add_u32 s7, s7, s11',
                                       's_cmp_ge_u32 s4, 24', 's_cselect_b32 s%d, 1, 0' % CV_M])
                                     + ['s_mov_b32 s%d, 0' % CV_TG, 's_mov_b32 s%d, %d' % (CV_RB, CONV_BASE)] + capture_l(a, cv_pre)),
                               ] + ([item(['s_mov_b32 exec_hi, 0', 'buffer_load_dword v246, v246, s[72:75], 0 offen', 's_mov_b64 exec, -1'], vm='touch2')] if OPT['t2'] else [])
        su = chunks(capture_l(a, cv_setup1), 8)
        ex[6][2] = su[0:2]; ex[6][0] = ex[6][0]; ex[7][2] = su[2:4]; ex[9][0] = su[4:6]; ex[9][1] = su[6:8]
        hd = cv_h_items_half()
        LB_ = a.newlabel('HB')
        other = ['s_cmp_eq_u32 s%d, 0' % CV_M, 's_cbranch_scc1 %s' % LB_, 's_andn2_b32 s11, 1, s%d' % S_W, 's_lshl_b32 s11, s11, 1',
                 'v_subrev_u32 v239, s11, v238', 's_mul_i32 s11, s11, %d' % (C_HB // 2), 's_add_u32 s11, s11, s%d' % CV_LB, 's_add_u32 m0, s11, 512', 's_nop 0']
        other += ['buffer_load_dwordx4 v239, s[72:75], 0 offen offset:%d lds' % (i * 1024) for i in range(4)] + [LB_ + ':']
        ex[7][3] = ([item(other, vm='w2?')] if OPT['mb'] else []) + hd[0:1]; ex[8][0] = hd[1:2]; ex[8][1] = hd[2:3]; ex[8][2] = hd[3:4]
        ex[8][3] = pf + [item(l, lg='pad') for l in cv_pads()]
        nv[9] = ['cvh']
        fx = cv_fix()
        ex[9][3] = [item(fx[0], lg='fix'), item(capture_l(a, cv_try_u), needvm=['pf']), item(fx[1:], needlg=['fix'], lg='fix2')]
    ex[7][2] = [item(capture_l(a, fx_load), vm='fx')] + ex[7][2]
    ex[9][2] = ex[9][2] + [item(capture_l(a, fx_eval), needvm=['fx'])]
    for s_ in range(5, 10):
        if s_ == 5: stamp(a, 3)
        g.step(s_, ex[s_], before_barrier=bb.get(s_), needvm=nv.get(s_, ()))
    stamp(a, 4); stamp(a, 1, 5)
    if role == 'CV':
        if OPT['eprio']: a('s_setprio %d' % OPT['eprio'])
        for l in cv_g_reads(0, 0): a(l)
    elif OPT['gprio']:
        a('s_setprio %d' % OPT['gprio'])
    for sh in (1, 2):
        a('v_add_f32_dpp v217, v217, v217 quad_perm:%s row_mask:0xf bank_mask:0xf' % ('[1,0,3,2]' if sh == 1 else '[2,3,0,1]'))
        a('s_nop 1')
    a('v_add_f32_dpp v217, v217, v217 row_half_mirror row_mask:0xf bank_mask:0xf')
    a('s_mov_b32 s60, %s' % NLOG2E)
    a('s_mov_b32 s61, %s' % NLOG2E)
    a('v_mul_f32 v217, s60, v217')
    a('v_exp_f32 v217, v217')
    a('v_lshrrev_b32 v218, 3, v1')
    a('v_add_f32 v217, 1.0, v217')
    a('v_rcp_f32 v217, v217')
    a('v_lshlrev_b32 v218, 2, v218')
    srd(a, SX, P_WS, 8192, WS_G)
    a('s_mov_b32 exec_lo, 0x01010101')
    a('s_mov_b32 exec_hi, 0x01010101')
    store2(a, 'buffer_store_dword v217, v218, %s, s%%d offen' % s(SX, 4), GO)
    a('s_mov_b64 exec, -1')
    T = G1_FR
    G0, U0_ = G1_ACC, G1_ACC + 32
    N = 16
    for i in range(N + 8):
        if i < N: a('v_pk_mul_f32 %s, %s, s[60:61]' % (v(T + 2 * i, 2), v(G0 + 2 * i, 2)))
        j = i - 2
        if 0 <= j < N:
            a('v_exp_f32 v%d, v%d' % (T + 2 * j, T + 2 * j)); a('v_exp_f32 v%d, v%d' % (T + 2 * j + 1, T + 2 * j + 1))
            a('v_pk_mul_f32 %s, %s, %s' % (v(G0 + 2 * j, 2), v(G0 + 2 * j, 2), v(U0_ + 2 * j, 2)))
        j = i - 4
        if 0 <= j < N: a('v_pk_add_f32 %s, %s, 1.0 op_sel_hi:[1,0]' % (v(T + 2 * j, 2), v(T + 2 * j, 2)))
        j = i - 5
        if 0 <= j < N:
            a('v_rcp_f32 v%d, v%d' % (T + 2 * j, T + 2 * j)); a('v_rcp_f32 v%d, v%d' % (T + 2 * j + 1, T + 2 * j + 1))
        j = i - 7
        if 0 <= j < N: a('v_pk_mul_f32 %s, %s, %s' % (v(G0 + 2 * j, 2), v(G0 + 2 * j, 2), v(T + 2 * j, 2)))
        j = i - 8
        if 0 <= j < N:
            a('v_cvt_pk_bf16_f32 v%d, v%d, v%d' % (U0_ + j, G0 + 2 * j, G0 + 2 * j + 1))
            if j & 3 == 3:
                b = j >> 2
                store2(a, 'buffer_store_dwordx4 %s, v213, %s, s%%d offen offset:%d' % (v(U0_ + 4 * b, 4), s(SH, 4), (b >> 1) * 2048 + (b & 1) * 512), HO)
    stamp(a, 2, 5)
    if role == 'G2': g2_setup(a)
    a('s_waitcnt vmcnt(0)')
    stamp(a, 3, 5)
    a('s_mov_b64 exec, 1')
    store2(a, 'buffer_store_dwordx2 v[250:251], v252, %s, s%%d offen' % s(SF, 4), S_F1)
    a('s_mov_b64 exec, -1')
    stamp(a, 5)
    if role == 'CV':
        L = a.newlabel('UOK')
        a('s_cmp_eq_u32 s%d, 1' % CV_T)
        a('s_cbranch_scc1 %s' % L)
        if OPT['fbar']: a('s_barrier')
        poll_check(a, PF_LOAD, 244, 11, sleep=2)
        cv_u_loads(a)
        a('s_waitcnt vmcnt(0)')
        a('s_branch K_conv')
        a.label(L)
        if OPT['fbar']: a('s_barrier')
    else:
        if OPT['fbar']: a('s_barrier')
        for it in post: g.emit(it)

UKR, UVR, UWR, UKU, UWU, UAC = 16, 60, 92, 108, 130, 138
def ut_pre(a):
    a('s_mul_i32 s11, s7, 6554')
    a('s_lshr_b32 s11, s11, 16')
    a('s_mul_i32 s69, s11, 10')
    a('s_sub_u32 s69, s7, s69')
    a('s_lshl_b32 s%d, s69, 5' % S_F2)
    a('s_add_u32 s%d, s%d, s11' % (S_F2, S_F2))
    a('s_lshl_b32 s%d, s%d, %d' % (S_F2, S_F2, OPT['fsu']))
    a('s_add_u32 s%d, s%d, %s' % (S_F2, S_F2, hex(F_U)))
    a('s_lshl_b32 s11, s11, 6')
    a('v_and_b32 v241, 0x38, v1')
    a('v_add_u32 v241, s11, v241')
    a('v_and_b32 v242, 7, v1')
    a('s_lshl_b32 s69, s69, 3')
    a('v_add_u32 v242, s69, v242')
    a('v_mul_u32_u24 v240, 1280, v241')
    a('v_lshl_add_u32 v240, v242, 4, v240')
    a('s_lshl_b32 s64, s69, 15')
    a('s_sub_u32 s11, 1984, s11')
    a('s_lshl_b32 s11, s11, 1')
    a('s_add_u32 s64, s64, s11')
    a('v_subrev_u32 v241, 3840, v240')
    a('v_lshlrev_b32 v242, 6, v242')
def ut_loads(a):
    SA, SB, SC = 44, 48, 52
    srd(a, SA, P_K, SZ_ACT)
    srd(a, SB, P_V, SZ_ACT)
    srd(a, SC, P_SK, 640 * 8)
    a('s_movk_i32 s11, 5120')
    for r in range(8):
        a('buffer_load_dwordx4 %s, v240, %s, %s offen offset:%d' % (v(UKR + 12 + 4 * r, 4), s(SA, 4), '0' if r < 4 else 's11', 1280 * (r & 3)))
    for r in range(3):
        a('buffer_load_dwordx4 %s, v241, %s, 0 offen offset:%d' % (v(UKR + 4 * r, 4), s(SA, 4), 1280 * r))
    for i in range(4):
        a('buffer_load_dwordx4 %s, v242, %s, 0 offen offset:%d' % (v(UWR + 4 * i, 4), s(SC, 4), 16 * i))
    for r in range(8):
        a('buffer_load_dwordx4 %s, v240, %s, %s offen offset:%d' % (v(UVR + 4 * r, 4), s(SB, 4), '0' if r < 4 else 's11', 1280 * (r & 3)))
def ut_k(a):
    MASK = 65
    a('s_mov_b32 s%d, 0xffff0000' % MASK)
    for dw in range(4):
        for r in range(11):
            a('v_lshlrev_b32 v%d, 16, v%d' % (UKU + 2 * r, UKR + 4 * r + dw))
            a('v_and_b32 v%d, s%d, v%d' % (UKU + 2 * r + 1, MASK, UKR + 4 * r + dw))
        for ch in range(2):
            for t in range(4):
                src = UWR + 4 * dw + 2 * ch + (t >> 1)
                if t & 1:
                    a('v_and_b32 v%d, s%d, v%d' % (UWU + 2 * t + ch, MASK, src))
                else:
                    a('v_lshlrev_b32 v%d, 16, v%d' % (UWU + 2 * t + ch, src))
        A = UAC + 16 * dw
        for r in range(8):
            a('v_pk_mul_f32 %s, %s, %s' % (v(A + 2 * r, 2), v(UKU + 2 * r, 2), v(UWU + 6, 2)))
        for t in (2, 1, 0):
            for r in range(8):
                a('v_pk_fma_f32 %s, %s, %s, %s' % (v(A + 2 * r, 2), v(UKU + 2 * (r + 3 - t), 2), v(UWU + 2 * t, 2), v(A + 2 * r, 2)))
def ut_v(a):
    MASK, T = 65, 66
    srd(a, 72, P_WS, SZ_ACT, WS_UT)
    a('v_and_b32 v12, 7, v1')
    a('v_lshrrev_b32 v13, 3, v1')
    a('v_xor_b32 v14, 7, v13')
    a('v_xor_b32 v14, v14, v12')
    a('v_lshlrev_b32 v14, 4, v14')
    a('v_lshl_add_u32 v14, v12, 10, v14')
    a('s_and_b32 s%d, s%d, 4' % (T, S_W))
    a('s_add_u32 s%d, s%d, s%d' % (T, T, S_W))
    a('s_lshl_b32 s%d, s%d, 13' % (T, T))
    a('v_add_u32 v14, s%d, v14' % T)
    a('v_add_u32 v15, s%d, v237' % T)
    a('v_lshlrev_b32 v13, 12, v13')
    for dw in range(4):
        A = UAC + 16 * dw
        for r in range(8):
            a('v_lshlrev_b32 v%d, 16, v%d' % (UKU + 2 * r, UVR + 4 * r + dw))
            a('v_and_b32 v%d, s%d, v%d' % (UKU + 2 * r + 1, MASK, UVR + 4 * r + dw))
        for r in range(8):
            a('v_pk_mul_f32 %s, %s, %s' % (v(A + 2 * r, 2), v(A + 2 * r, 2), v(UKU + 2 * r, 2)))
        O = UWR + 8 * (dw & 1)
        for ch in range(2):
            for i in range(4):
                a('v_cvt_pk_bf16_f32 v%d, v%d, v%d' % (O + 4 * ch + i, A + 2 * (7 - 2 * i) + ch, A + 2 * (6 - 2 * i) + ch))
            a('ds_write_b128 v14, %s offset:%d' % (v(O + 4 * ch, 4), (2 * dw + ch) * 128))
    for i in range(8):
        a('ds_read_b128 %s, v15 offset:%d' % (v(UKR + 4 * i, 4), 1024 * i))
    for i in range(8):
        a('v_xor_b32 v%d, %d, v12' % (UKU + i, i))
        a('v_lshl_add_u32 v%d, v%d, 4, v13' % (UKU + i, UKU + i))
    for i in range(8):
        a('s_add_u32 s%d, s64, %d' % (T, 32768 * i))
        a('s_waitcnt lgkmcnt(%d)' % (7 - i))
        a('buffer_store_dwordx4 %s, v%d, s[72:75], s%d offen sc1' % (v(UKR + 4 * i, 4), UKU + i, T))

CW = 13824
C_HA, C_HB, C_U = 0, 4640, 9280
C_EX = 2 * CW
CV_RB = 20
CV_DO, CV_LB, CV_T, CV_T2, CV_W, CV_M = 66, 67, 68, 69, 9, 8
CV_TG, CV_NX = 71, 70
CV_D = 18
CA, CG, CF = 108, [140, 12], [172, 44]
VG, VF, VU, VXW, VXR = 228, 229, 233, 234, 235
def gs_arrive(a):
    a('s_mov_b64 exec, 1')
    a('ds_add_u32 v255, v253')
    a('s_mov_b64 exec, -1')
    a('s_add_u32 s%d, s%d, 4' % (CV_TG, CV_TG))
def gs_wait(a, sleep=0):
    L, Dn = a.newlabel('CS'), a.newlabel('CSD')
    a('s_mov_b32 s11, 0x400000')
    a.label(L)
    a('ds_read_b32 v247, v255')
    a('s_waitcnt lgkmcnt(0)')
    a('v_cmp_le_u32 vcc, s%d, v247' % CV_TG)
    a('s_cbranch_vccnz %s' % Dn)
    if sleep: a('s_sleep %d' % sleep)
    a('s_sub_u32 s11, s11, 1')
    a('s_cbranch_scc0 %s' % L)
    a.label(Dn)
def cv_pre(a):
    srd(a, 72, P_SSMK, SZ_ACT)
    a('s_lshl_b32 s11, s7, 2')
    a('s_load_dword s%d, s[%d:%d], s11' % (CV_D, P_SSMD, P_SSMD + 1))
    a('s_or_b32 s11, s11, 4')
    a('s_load_dword s%d, s[%d:%d], s11' % (CV_D + 1, P_SSMD, P_SSMD + 1))
    a('s_and_b32 s%d, s%d, 3' % (CV_W, S_W))
    a('s_xor_b32 s11, s%d, 1' % CV_M)
    a('s_lshr_b32 s%d, s%d, s11' % (CV_T, CV_W))
    a('s_lshl_b32 s%d, s7, 1' % CV_DO)
    a('s_add_u32 s%d, s%d, s%d' % (CV_DO, CV_DO, CV_T))
    a('s_lshl_b32 s%d, s%d, 12' % (CV_DO, CV_DO))
    a('s_mul_i32 s%d, s%d, %d' % (CV_LB, CV_T, CW))
    a('s_add_u32 s%d, s%d, s%d' % (CV_LB, CV_LB, CV_RB))
    a('v_add_u32 v238, s%d, v237' % CV_DO)
    a('v_subrev_u32 v239, 2, v238')
    a('v_lshl_add_u32 v246, v1, 7, s%d' % CV_DO)
    a('s_lshr_b32 s11, s7, 5')
    a('s_lshl_b32 s11, s11, %d' % (5 + OPT['fsu']))
    a('s_add_u32 s11, s11, %s' % hex(F_U))
    a('v_min_u32 v248, 31, v1')
    a('v_lshl_add_u32 v248, v248, %d, s11' % OPT['fsu'])
    a('s_mov_b32 s%d, 0' % CV_T)
def cv_setup1(a):
    W, LB = CV_W, CV_LB
    a('s_mul_i32 s65, s7, 1639')
    a('s_lshr_b32 s65, s65, 16')
    a('s_mul_i32 s%d, s65, 40' % S_F2)
    a('s_sub_u32 s%d, s7, s%d' % (S_F2, S_F2))
    a('s_lshl_b32 s65, s65, 2')
    a('s_add_u32 s65, s65, s%d' % W)
    a('s_lshl_b32 s65, s65, 6')
    a('s_add_u32 s%d, s%d, s65' % (S_F2, S_F2))
    a('s_lshl_b32 s%d, s%d, %d' % (S_F2, S_F2, OPT['fsz']))
    a('s_add_u32 s%d, s%d, %s' % (S_F2, S_F2, hex(F_Z)))
    a('s_andn2_b32 s65, s%d, s%d' % (W, CV_M))
    a('s_and_b32 s65, s65, 1')
    a('s_lshl_b32 s65, s65, 8')
    a('s_add_u32 s65, s65, s%d' % LB)
    a('v_and_b32 v%d, 1, v1' % VG)
    a('v_xor_b32 v%d, 1, v%d' % (VG, VG))
    a('v_mul_u32_u24 v%d, %d, v%d' % (VG, C_HB - C_HA, VG))
    a('v_bfe_u32 v204, v1, 1, 3')
    a('v_lshl_add_u32 v%d, v204, 6, v%d' % (VG, VG))
    a('v_lshrrev_b32 v204, 4, v1')
    a('v_lshl_add_u32 v%d, v204, 4, v%d' % (VG, VG))
    a('s_add_u32 s69, s65, %d' % (C_HA + 64))
    a('v_add_u32 v%d, s69, v%d' % (VG, VG))
    a('v_and_b32 v205, 15, v1')
    a('v_lshlrev_b32 v205, 2, v205')
    a('v_lshlrev_b32 v%d, 4, v204' % VF)
    a('v_sub_u32 v%d, v%d, v205' % (VF, VF))
    a('s_add_u32 s69, s65, %d' % (C_U + 60))
    a('v_add_u32 v%d, s69, v%d' % (VF, VF))
    for i in range(1, 4):
        a('v_add_u32 v%d, %d, v%d' % (VF + i, 1024 * i, VF))
    a('v_lshl_add_u32 v205, v204, 7, v205')
    a('s_lshl_b32 s65, s%d, 10' % W)
    a('s_sub_u32 s65, %d, s65' % (C_U + 444 + 3072))
    a('s_add_u32 s65, s65, s%d' % CV_RB)
    a('v_sub_u32 v%d, s65, v205' % VU)
    a('s_mul_i32 s65, s%d, %d' % (CV_M, CW - 8192))
    a('s_add_u32 s65, s65, 8192')
    a('s_mul_i32 s65, s65, s%d' % W)
    a('s_xor_b32 s69, s%d, 1' % CV_M)
    a('s_mul_i32 s69, s69, %d' % C_EX)
    a('s_add_u32 s69, s69, s%d' % CV_RB)
    a('s_add_u32 s65, s65, s69')
    a('v_add_u32 v%d, s65, v237' % VXW)
    a('s_lshl_b32 s65, s%d, 11' % W)
    a('s_add_u32 s69, s69, s65')
    a('v_add_u32 v%d, s69, v237' % VXR)
    a('s_lshl_b32 s%d, s7, 13' % CV_DO)
    a('s_add_u32 s%d, s%d, s65' % (CV_DO, CV_DO))
    for i in range(16):
        a('v_mov_b64 %s, 0' % v(CA + 2 * i, 2))
def cv_pads():
    return [['v_mov_b64 v[206:207], 0', 'v_lshl_add_u32 v247, v1, 3, s%d' % CV_LB, 'ds_write_b64 v247, v[206:207] offset:%d' % C_HA],
            ['ds_write_b64 v247, v[206:207] offset:%d' % C_HB],
            ['v_lshl_add_u32 v247, v1, 2, s%d' % CV_LB, 'ds_write_b32 v247, v206 offset:%d' % (C_U + 4096)]]
def cv_fix():
    R = CF[0]
    return [['v_mov_b32 v247, s%d' % CV_LB, 'ds_read_b128 %s, v247 offset:%d' % (v(R, 4), C_HA + 512)],
            'v_alignbit_b32 v%d, v%d, v%d, 16' % (R + 7, R + 3, R + 2),
            'v_alignbit_b32 v%d, v%d, v%d, 16' % (R + 6, R + 2, R + 1),
            'v_alignbit_b32 v%d, v%d, v%d, 16' % (R + 5, R + 1, R),
            'v_lshlrev_b32 v%d, 16, v%d' % (R + 4, R),
            'ds_write_b128 v247, %s offset:%d' % (v(R + 4, 4), C_HB + 512)]
def cv_h_items():
    it = []
    for (dst, vo) in ((C_HA + 512, 238), (C_HB + 512, 239)):
        for i in range(4):
            it.append(item('buffer_load_dwordx4 v%d, s[72:75], 0 offen offset:%d lds' % (vo, i * 1024),
                           pre=['s_add_u32 m0, s%d, %d' % (CV_LB, dst)] if i == 0 else [], vm='cvh'))
    return it
def cv_h_items_half():
    pre = ['s_and_b32 s11, s%d, 1' % S_W, 's_lshl_b32 s11, s11, 1', 'v_subrev_u32 v239, s11, v238',
           's_mul_i32 s11, s11, %d' % (C_HB // 2), 's_add_u32 s11, s11, s%d' % CV_LB, 's_add_u32 m0, s11, 512']
    return [item('buffer_load_dwordx4 v239, s[72:75], 0 offen offset:%d lds' % (i * 1024), pre=pre if i == 0 else [], vm='cvh') for i in range(4)]
def cv_u_loads(a):
    srd(a, 48, P_WS, SZ_ACT, WS_UT)
    a('s_add_u32 m0, s%d, %d' % (CV_LB, C_U))
    a('s_nop 0')
    for i in range(4):
        a('buffer_load_dwordx4 v238, s[48:51], 0 offen offset:%d sc1 lds' % (i * 1024))
def cv_try_u(a):
    L = a.newlabel('UT')
    a('v_cmp_eq_u64 vcc, %s, v[244:245]' % NC)
    a('s_cmp_eq_u64 vcc, -1')
    a('s_cbranch_scc0 %s' % L)
    cv_u_loads(a)
    a('s_mov_b32 s%d, 1' % CV_T)
    a.label(L)
    if OPT['stamp'] == 9: a('s_add_u32 s96, s%d, 1' % CV_T)
def cv_g_reads(j, b):
    return ['ds_read_b128 %s, v%d offset:%d' % (v(CG[b] + 4 * i, 4), VG, 64 * j + 512 * i) for i in range(8)]
def cv_f_reads(j, b):
    L = []
    for i in range(8):
        rb = 7 - i
        o = (512 * (rb & 1) + 64 * j) // 4
        L.append('ds_read2_b32 %s, v%d offset0:%d offset1:%d' % (v(CF[b] + 4 * i, 2), VF + (rb >> 1), o, o + 1))
        L.append('ds_read2_b32 %s, v%d offset0:%d offset1:%d' % (v(CF[b] + 4 * i + 2, 2), VF + (rb >> 1), o + 2, o + 3))
    return L

A_STRIDE = 6144
LDS_Z = CONV_BASE + 4 * A_STRIDE
LDS_Q = [40960, 90112]
def chunk_addrs(a, dst, tmp, sbase):
    for i in range(3):
        a('v_add_u32 v%d, %d, v1' % (tmp, 64 * i))
        a('v_mul_u32_u24 v%d, 205, v%d' % (dst + i, tmp))
        a('v_lshrrev_b32 v%d, 11, v%d' % (dst + i, dst + i))
        a('v_mul_u32_u24 v%d, 1120, v%d' % (dst + i, dst + i))
        a('v_lshl_add_u32 v%d, v%d, 4, v%d' % (dst + i, tmp, dst + i))
        a('v_add_u32 v%d, s%d, v%d' % (dst + i, sbase, dst + i))
    a('v_lshrrev_b32 v%d, 5, v1' % tmp)
    a('v_lshl_add_u32 v%d, v%d, 30, v%d' % (dst + 2, tmp, dst + 2))
def lds_q_base(a, dst, w):
    a('s_lshr_b32 s%d, s%d, 1' % (dst, w))
    a('s_mul_i32 s%d, s%d, %d' % (dst, dst, LDS_Q[1] - LDS_Q[0] - 8192))
    a('s_lshl_b32 s11, s%d, 12' % w)
    a('s_add_u32 s%d, s%d, s11' % (dst, dst))
    a('s_add_u32 s%d, s%d, %d' % (dst, dst, LDS_Q[0]))
def aterm(a):
    W = CV_W
    RB, CB, T, T2 = 65, 66, 67, 68
    SQ, SZ, SG = 52, 44, 60
    if OPT['xc'] == 2: a('s_endpgm')
    a('s_setprio %d' % OPT['aprio'])
    a('s_lshl_b32 s%d, s3, 2' % RB)
    a('s_lshr_b32 s%d, s4, 3' % CB)
    a('s_add_u32 s%d, s%d, s%d' % (RB, RB, CB))
    a('s_and_b32 s%d, s4, 7' % CB)
    srd(a, SQ, P_Q, SZ_ACT)
    a('s_lshl_b32 s%d, s%d, 6' % (T, RB))
    a('s_lshl_b32 s%d, s%d, 4' % (T2, W))
    a('s_add_u32 s%d, s%d, s%d' % (T, T, T2))
    a('v_and_b32 v8, 15, v1')
    a('v_add_u32 v8, s%d, v8' % T)
    a('v_lshrrev_b32 v9, 4, v1')
    a('s_mul_i32 s%d, s%d, 1280' % (T, T))
    a('s_mul_i32 s%d, s%d, 160' % (T2, CB))
    a('s_add_u32 s%d, s%d, s%d' % (T, T, T2))
    chunk_addrs(a, 12, 10, T)
    a('s_lshl_b32 s%d, s%d, 12' % (T2, W))
    a('s_add_u32 s%d, s%d, %d' % (T2, T2, CONV_BASE + 36864))
    gs_wait(a)
    for i in range(3):
        a('s_add_u32 m0, s%d, %d' % (T2, 1024 * i))
        a('s_nop 0')
        a('buffer_load_dwordx4 v%d, %s, 0 offen lds' % (12 + i, s(SQ, 4)))
    a('v_and_b32 v10, 15, v1')
    a('v_mul_u32_u24 v10, 160, v10')
    a('v_lshl_add_u32 v10, v9, 3, v10')
    a('v_add_u32 v10, s%d, v10' % T2)
    a('s_lshl_b32 s%d, s%d, 5' % (T, RB))
    a('s_add_u32 s%d, s%d, s%d' % (T, T, W))
    a('s_lshl_b32 s%d, s%d, %d' % (T, T, OPT['fsh'] + 1))
    a('v_and_b32 v25, 1, v1')
    a('v_lshl_add_u32 v25, v25, %d, s%d' % (OPT['fsh'], T))
    FL = 'buffer_load_dwordx2 v[26:27], v25, %s, 0 offen sc1' % s(SF, 4)
    a(FL)
    a('v_lshlrev_b32 v8, 2, v8')
    srd(a, SG, P_WS, 8192, WS_G)
    a('s_mul_i32 s%d, s%d, %d' % (T, W, A_STRIDE))
    a('s_add_u32 s%d, s%d, %d' % (T, T, CONV_BASE))
    a('v_add_u32 v24, s%d, v237' % T)
    a('v_and_b32 v11, 15, v1')
    a('v_lshlrev_b32 v11, 4, v11')
    a('v_lshl_add_u32 v11, v9, 13, v11')
    a('s_waitcnt vmcnt(0)')
    poll_check(a, FL, 26, T2, sleep=8)
    a('buffer_load_dword v8, v8, %s, 0 offen sc1' % s(SG, 4))
    A = 40
    for mt in range(5):
        a('ds_read_b64 %s, v10 offset:%d' % (v(12 + 2 * mt, 2), 32 * mt))
    a('s_lshl_b32 s%d, s%d, 2' % (T, CB))
    a('s_lshr_b32 s%d, s%d, 3' % (T2, RB))
    a('s_add_u32 s%d, s%d, s%d' % (T, T, T2))
    a('s_lshl_b32 s%d, s%d, 6' % (T, T))
    a('s_mul_i32 s%d, s%d, 10' % (T2, W))
    a('s_add_u32 s%d, s%d, s%d' % (T, T, T2))
    a('s_lshl_b32 s%d, s%d, %d' % (T, T, OPT['fsz']))
    a('s_add_u32 s%d, s%d, %s' % (T, T, hex(F_Z)))
    a('v_min_u32 v25, 9, v1')
    a('v_lshl_add_u32 v25, v25, %d, s%d' % (OPT['fsz'], T))
    a('s_mul_i32 s%d, s%d, 40' % (CB, CB))
    a('s_add_u32 s%d, s%d, s%d' % (CB, CB, T2))
    a('s_lshl_b32 s%d, s%d, 13' % (CB, CB))
    a('s_lshl_b32 s%d, s%d, 8' % (RB, RB))
    a('s_add_u32 s%d, s%d, s%d' % (CB, CB, RB))
    a('s_lshl_b32 s%d, s%d, 8' % (RB, T2))
    a('s_add_u32 s%d, s%d, %d' % (RB, RB, LDS_Z))
    a('s_mov_b32 s%d, 0xffff0000' % T)
    a('s_waitcnt lgkmcnt(0)')
    for i in range(10):
        a('v_lshlrev_b32 v%d, 16, v%d' % (A + 2 * i, 12 + i))
        a('v_and_b32 v%d, s%d, v%d' % (A + 2 * i + 1, T, 12 + i))
    a('s_waitcnt vmcnt(0)')
    a('v_mov_b32 v9, v8')
    for i in range(10):
        a('v_pk_mul_f32 %s, %s, v[8:9]' % (v(A + 2 * i, 2), v(A + 2 * i, 2)))
    a('v_sub_f32 v8, 1.0, v8')
    a('v_sub_f32 v9, 1.0, v9')
    a('ds_write_b64 v24, v[8:9] offset:5120')
    for mt in range(5):
        a('ds_write_b128 v24, %s offset:%d' % (v(A + 4 * mt, 4), 1024 * mt))
    if OPT['ztrig'] >= 0:
        L, Dn = a.newlabel('TW'), a.newlabel('TWD')
        a('s_mov_b32 s11, 0x100000')
        a.label(L)
        a('ds_read_b32 v247, v254 offset:4')
        a('s_waitcnt lgkmcnt(0)')
        a('v_cmp_eq_u32 vcc, 1, v247')
        a('s_cbranch_vccnz %s' % Dn)
        a('s_sleep %d' % OPT['tsl'])
        a('s_sub_u32 s11, s11, 1')
        a('s_cbranch_scc0 %s' % L)
        a.label(Dn)
    poll(a, FL, 26, T2, sleep=OPT['zsl'])
    stamp(a, 3)
    for i in range(3):
        a('s_add_u32 m0, s%d, %d' % (RB, 1024 * i))
        if i == 2: a('s_mov_b32 exec_hi, 0')
        else: a('s_nop 0')
        a('buffer_load_dwordx4 v11, %s, s%d offen sc1 lds' % (s(SZ, 4), CB))
        if i < 2: a('s_add_u32 s%d, s%d, %d' % (CB, CB, 4 * 8192))
    a('s_mov_b64 exec, -1')
    a('s_waitcnt vmcnt(0) lgkmcnt(0)')
    stamp_end(a)
    a('s_endpgm')

def conv(a):
    SZ, DO, T, W = 44, CV_DO, CV_T, CV_W
    if OPT['xc'] == 1: a('s_endpgm')
    for l in cv_f_reads(0, 0): a(l)
    srd(a, SZ, P_WS, SZ_ACT, WS_Z4)
    a('s_lshl_b32 s%d, s%d, 1' % (T, CV_M))
    stamp(a, 7); stamp(a, 3, 6)
    def it(b, nxt):
        a('s_waitcnt lgkmcnt(0)')
        i = 0
        for n in range(8):
            for aa in range(n + 1):
                acc = v(CA + 4 * n, 4)
                a('v_mfma_f32_16x16x32_bf16 %s, %s, %s, %s' % (acc, v(CG[b] + 4 * aa, 4), v(CF[b] + 4 * (n - aa), 4), acc))
                if i in nxt: a(nxt.pop(i))
                i += 1
    def rd(j, b):
        g_, f_ = cv_g_reads(j, b), cv_f_reads(j, b)
        L = []
        for i in range(8): L += [g_[i], f_[2 * i], f_[2 * i + 1]]
        return dict(enumerate(L))
    def flag():
        a('s_waitcnt vmcnt(0)')
        set_flag(a, S_F1)
        a('s_mov_b32 s%d, %s' % (S_F1, hex(OOB)))
        stamp(a, 6)
    a.label('CV_loop')
    it(0, rd(1, 1))
    nx = rd(2, 0)
    for k in range(5):
        nx[26 + k] = 'v_add_u32 v%d, 128, v%d' % (VG + k, VG + k)
    it(1, nx)
    a('s_sub_u32 s%d, s%d, 1' % (T, T))
    a('s_cbranch_scc0 CV_loop')
    it(0, rd(1, 1))
    nx = {}
    for n in range(8):
        nx[(n + 1) * (n + 2) // 2 - 1 + 9] = 'ds_write_b128 v%d, %s offset:%d' % (VXW, v(CA + 4 * n, 4), 1024 * n)
    it(1, nx)
    stamp(a, 8); stamp(a, 4, 6)
    for i in range(4):
        a('s_lshl_b32 s%d, s%d, 16' % (48 + i, CV_D + (i >> 1)) if not (i & 1) else 's_and_b32 s%d, s%d, 0xffff0000' % (48 + i, CV_D + (i >> 1)))
    a('s_nop 4')
    for i in sorted(nx): a(nx[i])
    a('s_waitcnt lgkmcnt(0)')
    gs_arrive(a)
    gs_wait(a)
    stamp(a, 9)
    a('s_mov_b32 s11, 0xffff0000')
    a('s_cmp_eq_u32 s%d, 1' % CV_M)
    a('s_cbranch_scc1 CV_epiB')
    P, UR, O = 12, 48, 72
    def finish(nch, reg):
        for un in range(nch // 2):
            for t in range(2):
                for hh in range(2):
                    for c in (2 * un, 2 * un + 1):
                        u = UR + 4 * c + 2 * t + hh
                        R = reg(c, t) + 2 * hh
                        a('v_and_b32 v%d, s11, v%d' % (68 + (c & 1), u))
                        a('v_lshlrev_b32 v%d, 16, v%d' % (u, u))
                        a('v_fmac_f32 v%d, s%d, v%d' % (R, 48 + c, 68 + (c & 1)))
                        a('v_fmac_f32 v%d, s%d, v%d' % (R + 1, 48 + c, u))
                    R0, R1 = reg(2 * un, t) + 2 * hh, reg(2 * un + 1, t) + 2 * hh
                    oo = O + 8 * un + 4 * t + 2 * hh
                    a('v_cvt_pk_bf16_f32 v%d, v%d, v%d' % (oo, R0, R1))
                    a('v_cvt_pk_bf16_f32 v%d, v%d, v%d' % (oo + 1, R0 + 1, R1 + 1))
                if un == 1 and t == 0: a('s_add_u32 s%d, s%d, 8192' % (DO, DO))
                a('buffer_store_dwordx4 %s, v237, %s, s%d offen offset:%d sc1' % (v(O + 8 * un + 4 * t, 4), s(SZ, 4), DO, t * 1024))
    def ureads(nch):
        for c in range(nch):
            for t in range(2):
                for hh in range(2):
                    a('ds_read_b32 v%d, v%d offset:%d' % (UR + 4 * c + 2 * t + hh, VU, c * CW + 512 * (1 - t) + 64 * (1 - hh)))
    for c in range(2):
        for t in range(2):
            for h in range(2):
                a('ds_read_b128 %s, v%d offset:%d' % (v(P + 16 * c + 8 * t + 4 * h, 4), VXR, (2 * c + h) * 8192 + t * 1024))
    ureads(2)
    a('s_waitcnt lgkmcnt(8)')
    for c in range(2):
        for t in range(2):
            R = P + 16 * c + 8 * t
            a('v_pk_add_f32 %s, %s, %s' % (v(R, 2), v(R, 2), v(R + 4, 2)))
            a('v_pk_add_f32 %s, %s, %s' % (v(R + 2, 2), v(R + 2, 2), v(R + 6, 2)))
    a('s_waitcnt lgkmcnt(0)')
    gs_arrive(a)
    finish(2, lambda c, t: P + 16 * c + 8 * t)
    a('s_cmp_lt_u32 s%d, 4' % S_W)
    a('s_cbranch_scc1 K_prep_g2b')
    stamp(a, 1)
    a('s_waitcnt vmcnt(0)')
    stamp(a, 2)
    set_flag(a, S_F2)
    a('s_branch K_aterm')
    a.label('CV_epiB')
    for c in range(4):
        for t in range(2):
            a('ds_read_b128 %s, v%d offset:%d' % (v(P + 8 * c + 4 * t, 4), VXR, c * CW + t * 1024))
    ureads(4)
    a('v_lshlrev_b32 v247, %d, v1' % OPT['fsz'])
    a('s_waitcnt lgkmcnt(0)')
    gs_arrive(a)
    finish(4, lambda c, t: P + 8 * c + 4 * t)
    stamp(a, 1)
    a('s_waitcnt vmcnt(0)')
    stamp(a, 2)
    a('s_mov_b64 exec, 3')
    a('buffer_store_dwordx2 v[250:251], v247, %s, s%d offen sc1' % (s(SF, 4), S_F2))
    a('s_mov_b64 exec, -1')
    a.label('K_aterm')
    aterm(a)

G2_SW = 72
G2_KB, G2_O, G2_T, G2_T2, G2_LB, G2_RB, G2_CB = 65, 66, 67, 68, 69, 8, 9
G2_X = 7
G2_ACC, G2_WB, G2_HB = 28, 108, 188
def g2_lds(r):
    return (49152 + r * 20480) if r < 2 else ((r - 2) * 20480)
def g2_ks(p, dst):
    L = (['s_xor_b32 s%d, s%d, %d' % (dst, G2_X, 4 * p), 's_add_u32 s%d, s%d, s%d' % (dst, dst, G2_KB)] if p < 12 else
         ['s_add_u32 s%d, s%d, %d' % (dst, G2_KB, 4 * p)]) + [
         's_cmp_ge_u32 s%d, 54' % dst,
         's_cselect_b32 s%d, 54, 0' % G2_T,
         's_sub_u32 s%d, s%d, s%d' % (dst, dst, G2_T)]
    if p == 13:
        L += ['s_cmp_ge_u32 s%d, 2' % S_W, 's_cselect_b32 s%d, 60, s%d' % (dst, dst)]
    return L
def g2_w_items(p, slot, va=237):
    B = G2_WB + 20 * slot
    it = []
    for t in range(5):
        pre = g2_ks(p, G2_O) + ['s_mul_i32 s%d, s%d, 40960' % (G2_O, G2_O)] if t == 0 else []
        it.append(item('buffer_load_dwordx4 %s, v%d, %s, s%d offen offset:%d sc1' % (v(B + 4 * t, 4), va if t < 4 else va + 1, s(G2_SW, 4), G2_O, (t & 3) * 1024), pre, vm=('w', p)))
    return it
def g2_wl_items(p, r, O=None, va=237):
    O = G2_O if O is None else O
    it = []
    for t in range(5):
        pre = []
        if t == 0:
            pre = g2_ks(p, O) + ['s_mul_i32 s%d, s%d, 40960' % (O, O), 's_add_u32 m0, s%d, %d' % (G2_LB, g2_lds(r))]
        if t == 4:
            pre = ['s_add_u32 m0, s%d, %d' % (G2_LB, g2_lds(r) + 4096)]
        it.append(item('buffer_load_dwordx4 v%d, %s, s%d offen offset:%d sc1 lds' % (va if t < 4 else va + 1, s(G2_SW, 4), O, (t & 3) * 1024), pre, vm=('wl', p)))
    return it
def fw_addr(a):
    a('s_and_b32 s11, s4, 7')
    a('s_mul_i32 s11, s11, 5')
    a('s_lshr_b32 s11, s11, 2')
    a('s_mul_i32 s11, s11, %d' % (18 << OPT['fsw']))
    a('s_add_u32 s11, s11, %s' % hex(F_W))
    a('v_min_u32 v248, 35, v1')
    a('v_lshl_add_u32 v248, v248, %d, s11' % OPT['fsw'])
def g2_pre(a, allw=False):
    RB, CB, T, T2 = G2_RB, G2_CB, G2_T, G2_T2
    a('s_lshl_b32 s%d, s3, 2' % RB)
    a('s_lshr_b32 s%d, s4, 3' % CB)
    a('s_add_u32 s%d, s%d, s%d' % (RB, RB, CB))
    a('s_and_b32 s%d, s4, 7' % CB)
    a('s_mul_i32 s%d, s%d, 5120' % (T, CB))
    a('s_add_u32 s%d, s%d, %s' % (T, T, hex(WS_W2P)))
    srd(a, G2_SW, P_WS, 53 * 40960 + 5120, 's%d' % T)
    if OPT['rot2']:
        a('s_and_b32 s%d, s%d, 3' % (T, RB))
        a('s_mul_i32 s%d, s%d, %d' % (T, T, 13 if OPT['rot2r'] else 0))
        a('s_mul_i32 s%d, s%d, 7' % (T2, CB))
        a('s_add_u32 s%d, s%d, s%d' % (T, T, T2))
        a('s_add_u32 s%d, s%d, s%d' % (T, T, S_W))
        a('s_cmp_ge_u32 s%d, 54' % T)
        a('s_cselect_b32 s%d, 54, 0' % T2)
        a('s_sub_u32 s%d, s%d, s%d' % (G2_KB, T, T2))
    else:
        a('s_mov_b32 s%d, s%d' % (G2_KB, S_W))
    a('s_and_b32 s%d, s%d, %d' % (G2_X, RB, 3 if OPT['wx'] else 0))
    a('s_lshl_b32 s%d, s%d, 2' % (G2_X, G2_X))
    a('s_mul_i32 s%d, s%d, 5120' % (G2_LB, S_W))
    a('v_add_u32 v238, 4096, v237')
    a('s_mul_i32 s%d, s%d, 5' % (T, CB))
    a('s_lshr_b32 s%d, s%d, 2' % (T, T))
    a('s_mul_i32 s%d, s%d, %d' % (T, T, 18 << OPT['fsw']))
    a('s_add_u32 s%d, s%d, %s' % (T, T, hex(F_W)))
    if not allw:
        a('s_cmp_eq_u32 s%d, 0' % S_W)
        a('s_cselect_b32 s%d, s%d, %s' % (T, T, hex(OOB)))
    a('v_min_u32 v248, 35, v1')
    a('v_lshl_add_u32 v248, v248, %d, s%d' % (OPT['fsw'], T))

def g2_fh_addr(a):
    T = G2_T
    a('v_min_u32 v247, 13, v1')
    a('v_lshlrev_b32 v247, 2, v247')
    a('v_cmp_gt_u32 vcc, 12, v1')
    a('v_xor_b32 v248, s%d, v247' % G2_X)
    a('s_nop 0')
    a('v_cndmask_b32 v248, v247, v248, vcc')
    a('v_add_u32 v248, s%d, v248' % G2_KB)
    a('v_subrev_u32 v247, 54, v248')
    a('v_min_u32 v248, v248, v247')
    a('s_lshl_b32 s%d, s%d, %d' % (T, G2_RB, 6 + OPT['fsh']))
    a('v_lshl_add_u32 v248, v248, %d, s%d' % (OPT['fsh'], T))

def g2_setup(a):
    RB, CB, W = G2_RB, G2_CB, S_W
    SHh, SO = 56, 48
    T, T2 = G2_T, G2_T2
    a('v_mov_b32 v22, v248')
    a('v_mov_b32 v2, v237')
    a('v_mov_b32 v3, v238')
    a('s_mul_i32 s%d, s%d, %d' % (T, RB, 54 * 4096))
    if WS_H: a('s_add_u32 s%d, s%d, %s' % (T, T, hex(WS_H)))
    srd(a, SHh, P_WS, 54 * 4096, 's%d' % T)
    for j in range(4):
        a('s_xor_b32 s%d, s%d, %d' % (T, W, j))
        a('s_lshl_b32 s%d, s%d, 10' % (T, T))
        a('v_add_u32 v%d, s%d, v2' % (4 + j, T))
    a('v_add_u32 v24, s%d, v2' % G2_LB)
    a('v_add_u32 v23, %d, v24' % g2_lds(1))
def g2_setup2(a):
    RB, CB, W = G2_RB, G2_CB, S_W
    SHh, SO = 56, 48
    T, T2 = G2_T, G2_T2
    a('s_lshl_b32 s%d, s%d, 6' % (T, RB))
    a('s_lshl_b32 s%d, s%d, 4' % (T2, W))
    a('s_add_u32 s%d, s%d, s%d' % (T, T, T2))
    a('s_mul_i32 s%d, s%d, 1280' % (T, T))
    a('s_mul_i32 s%d, s%d, 160' % (T2, CB))
    a('s_add_u32 s%d, s%d, s%d' % (T, T, T2))
    chunk_addrs(a, 12, 10, T)
    lds_q_base(a, T2, W)
    a('v_add_u32 v15, s%d, v2' % T2)
    a('v_lshrrev_b32 v9, 4, v1')
    a('v_and_b32 v10, 15, v1')
    a('v_mul_u32_u24 v10, 160, v10')
    a('v_lshl_add_u32 v10, v9, 3, v10')
    a('v_add_u32 v10, s%d, v10' % T2)
    srd(a, SO, P_OUT, SZ_ACT)
    a('s_mul_i32 s%d, s%d, %d' % (T, W, A_STRIDE))
    a('s_add_u32 s%d, s%d, %d' % (T, T, CONV_BASE))
    a('v_add_u32 v11, s%d, v2' % T)
    a('v_lshlrev_b32 v25, 9, v9')
    a('v_bfe_u32 v9, v1, 1, 3')
    a('v_lshl_add_u32 v25, v9, 4, v25')
    a('v_and_b32 v9, 1, v1')
    a('v_lshl_add_u32 v25, v9, 2, v25')
    a('s_and_b32 s%d, s%d, 1' % (T, W))
    a('s_lshl_b32 s%d, s%d, 7' % (T, T))
    a('s_lshr_b32 s%d, s%d, 1' % (T2, W))
    a('s_lshl_b32 s%d, s%d, 3' % (T2, T2))
    a('s_add_u32 s%d, s%d, s%d' % (T, T, T2))
    a('s_add_u32 s%d, s%d, %d' % (T, T, LDS_Z))
    a('v_add_u32 v25, s%d, v25' % T)

def gemm2(a):
    RB, CB, W = G2_RB, G2_CB, S_W
    SHh, SQ, SZ, SG, SO = 56, 52, 44, 60, 48
    O, T, T2 = G2_O, G2_T, G2_T2
    ACC, WB, HB = G2_ACC, G2_WB, G2_HB
    DH = 4
    OH, TH = 70, 71
    g = G1(a)
    FH_LOAD = 'buffer_load_dwordx2 v[26:27], v22, %s, 0 offen sc1' % s(SF, 4)
    FZ_LOAD = 'buffer_load_dwordx2 v[252:253], v25, %s, 0 offen sc1' % s(SF, 4)
    stamp(a, 8, 6)
    a('s_setprio 0')
    g.emit(item(FH_LOAD, vm='fh'))
    for it in g2_wl_items(5, 1): g.emit(it)
    if not OPT['late67']:
        for it in g2_wl_items(6, 2) + g2_wl_items(7, 3): g.emit(it)
    g2_setup2(a)
    stamp(a, 6)
    g.wait(vm=['fh'])
    stamp(a, 4, 5)
    a('v_cmp_eq_u64 s[76:77], %s, v[26:27]' % NC)
    a.label('K_gemm2b')
    order = [0, 1, 2, 3, 4, 8, 5, 9, 6, 10, 7, 11, 12, 13]
    slot = [0, 1, 2, 3, 2, 0, 2, 1, 2, 3, 2, 0, 1, 3]
    refill = {0: 8, 1: 9, 2: 4, 3: 10, 4: 5, 5: 11, 6: 6, 7: 12, 8: 7, 9: 13}
    slow = []
    def fh_check(bit):
        S, B = a.newlabel('FHS'), a.newlabel('FHB')
        slow.append((S, B, bit))
        return ['s_bitcmp1_b32 s76, %d' % bit, 's_cbranch_scc0 %s' % S, B + ':']
    def ks_lines(p, dst, tmp):
        L = [['s_xor_b32 s%d, s%d, %d' % (dst, G2_X, 4 * p), 's_add_u32 s%d, s%d, s%d' % (dst, dst, G2_KB)] if p < 12 else 's_add_u32 s%d, s%d, %d' % (dst, G2_KB, 4 * p), 's_sub_u32 s%d, s%d, 54' % (tmp, dst), 's_min_u32 s%d, s%d, s%d' % (dst, dst, tmp)]
        if p == 13: L += [['s_cmp_ge_u32 s%d, 2' % S_W, 's_cselect_b32 s%d, 60, s%d' % (dst, dst)]]
        return L
    def h_prep(r):
        return [fh_check(order[r])] + ks_lines(order[r], OH, TH) + [('s_lshl_b32 s%d, s%d, 12' % (OH, OH)) if not (OPT['xh'] and r >= 4) else 's_mov_b32 s%d, 0x7000000' % OH]
    def h_item(r, t):
        B = HB + 16 * (r % DH)
        return item('buffer_load_dwordx4 %s, v%d, %s, s%d offen%s' % (v(B + 4 * t, 4), 4 + t, s(SHh, 4), OH, [' sc1', '', ' sc0', ' nt'][OPT['xsc']]), vm=('h', r, t))
    for r in range(DH):
        for l in h_prep(r): g.emit(item(l))
        if r == 0: stamp(a, 7)
        stamp(a, 5 + r, 5)
        for t in range(4): g.emit(h_item(r, t))
    ZR = WB + 40
    GQ = WB
    ZU = WB + 20
    MASK = 71
    rbuf = [g2_lds(2), g2_lds(3), g2_lds(0)]
    for r in range(14):
        p = order[r]
        if r in (1, 3, 5, 7, 9, 11, 12, 13): stamp(a, (1, 3, 5, 7, 9, 11, 12, 13).index(r) + 2, 3)
        if r < 8: stamp(a, r + 1, 4)
        if r == 1: stamp(a, 9, 5)
        if r == 0 and OPT['stamp'] == 4: a('s_mov_b32 s98, s80')
        if r == 0: stamp(a, 1, 3)
        fill = {i: [] for i in range(20)}
        if r + DH < 14:
            for i, l in enumerate(h_prep(r + DH)): fill[min(i, 4) if i < 5 else 4].append(item(l))
            for j in range(4): fill[5 * j + 4].append(h_item(r + DH, j))
        free = [5, 6, 7, 8, 10, 11, 12, 13, 15, 16, 17, 18] if r + DH < 14 else list(range(20))
        extra = []
        if r - 1 in refill:
            pp = refill[r - 1]; Bs = WB + 20 * slot[r - 1]
            if pp >= 8:
                extra += [item(l) for l in ks_lines(pp, O, T)] + [item(('s_mul_i32 s%d, s%d, 40960' % (O, O)) if not OPT['xw'] else 's_mov_b32 s%d, 0x7000000' % O)]
                extra += [item('buffer_load_dwordx4 %s, v%d, %s, s%d offen offset:%d sc1' % (v(Bs + 4 * t, 4), 2 if t < 4 else 3, s(G2_SW, 4), O, (t & 3) * 1024), vm=('w', pp)) for t in range(5)]
            else:
                lb = g2_lds(pp - 4); ad = 24
                if pp == 5: ad, lb = 23, 0
                extra += [item('ds_read_b128 %s, v%d offset:%d' % (v(Bs + 4 * t, 4), ad, lb + t * 1024), lg=('wl', pp), needvm=[('wl', pp)]) for t in range(5)]
        if OPT['late67'] and r in (0, 3):
            extra += g2_wl_items(6 if r == 0 else 7, 2 if r == 0 else 3, va=2)
        if OPT['arf'] and r in (0, 3):
            extra += [item(FH_LOAD, vm='fh')]
        if OPT['arf'] and r in (3, 5):
            extra = [item('v_cmp_eq_u64 s[76:77], %s, v[26:27]' % NC, needvm=['fh'])] + extra
        if r == OPT['ztrig']:
            extra += [item('ds_write_b32 v254, v253 offset:4', lg='trig')]
        if r == 11:
            for j in range(1, 4):
                extra += [item(['s_xor_b32 s%d, s%d, %d' % (T, W, j), 's_mul_i32 s%d, s%d, 5120' % (T, T), 'v_add_u32 v%d, s%d, v2' % (4 + j, T)])]
        wr = []
        if r == 13:
            wr = ['ds_write_b128 v24, %s offset:%d' % (v(ACC + (j * 5 + mt) * 4, 4), rbuf[j - 1] + mt * 1024) for j in (1, 2, 3) for mt in range(5)]
            for i in range(9, 20): fill[i].append(item(wr[i - 9]))
        assert len(extra) <= len(free), (r, len(extra))
        for i, it in enumerate(extra): fill[free[i]].append(it)
        Bw = WB + 20 * slot[r]; Bh = HB + 16 * (r % DH)
        js = (0, 1, 2, 3) if r < 13 else (1, 2, 3, 0)
        i = 0
        for j in js:
            g.wait(vm=[('h', r, j), ('w', p)], lg=[('wl', p)])
            for mt in range(5):
                acc = v(ACC + (j * 5 + mt) * 4, 4)
                a('v_mfma_f32_16x16x32_bf16 %s, %s, %s, %s' % (acc, v(Bw + 4 * mt, 4), v(Bh + 4 * j, 4), '0' if r == 0 else acc))
                for it in fill[i]: g.emit(it)
                i += 1
    stamp(a, 8)
    for l in wr[11:]: a(l)
    a('s_waitcnt lgkmcnt(0)')
    a('s_barrier')
    stamp(a, 9)
    a('ds_read_b64 v[8:9], v11 offset:5120')
    a('s_mov_b32 s%d, 0xffff0000' % T)
    ZT = HB
    def rd(m2):
        a('ds_read2st64_b32 %s, v25 offset0:%d offset1:%d' % (v(ZR + 2 * m2, 2), 8 * m2, 8 * m2 + 1))
        a('ds_read_b128 %s, v11 offset:%d' % (v(GQ + 4 * m2, 4), m2 * 1024))
        for j in range(1, 4):
            a('ds_read_b128 %s, v%d offset:%d' % (v(ACC + (j * 5 + m2) * 4, 4), 4 + j, rbuf[j - 1] + m2 * 1024))
    for m2 in range(2): rd(m2)
    for mt in range(5):
        if mt + 2 < 5: rd(mt + 2)
        later = 5 * min(2, 4 - mt)
        a('s_waitcnt lgkmcnt(%d)' % (later + 3))
        A0 = ACC + 4 * mt
        for h in range(2):
            a('v_lshlrev_b32 v%d, 16, v%d' % (ZT + 2 * h, ZR + 2 * mt + h))
            a('v_and_b32 v%d, s%d, v%d' % (ZT + 2 * h + 1, T, ZR + 2 * mt + h))
        for h in range(2):
            a('v_pk_mul_f32 %s, %s, %s' % (v(GQ + 4 * mt + 2 * h, 2), v(GQ + 4 * mt + 2 * h, 2), v(ZT + 2 * h, 2)))
        a('s_waitcnt lgkmcnt(%d)' % later)
        for h in range(2):
            a('v_pk_add_f32 %s, %s, %s' % (v(A0 + 2 * h, 2), v(A0 + 2 * h, 2), v(A0 + 20 + 2 * h, 2)))
            a('v_pk_add_f32 %s, %s, %s' % (v(A0 + 40 + 2 * h, 2), v(A0 + 40 + 2 * h, 2), v(A0 + 60 + 2 * h, 2)))
        for h in range(2):
            a('v_pk_add_f32 %s, %s, %s' % (v(A0 + 2 * h, 2), v(A0 + 2 * h, 2), v(A0 + 40 + 2 * h, 2)))
        for h in range(2):
            a('v_pk_fma_f32 %s, %s, v[8:9], %s' % (v(A0 + 2 * h, 2), v(A0 + 2 * h, 2), v(GQ + 4 * mt + 2 * h, 2)))
        a('v_cvt_pk_bf16_f32 v%d, v%d, v%d' % (ZU + 2 * mt, A0, A0 + 1))
        a('v_cvt_pk_bf16_f32 v%d, v%d, v%d' % (ZU + 1 + 2 * mt, A0 + 2, A0 + 3))
    for mt in range(5):
        a('ds_write_b64 v10, %s offset:%d' % (v(ZU + 2 * mt, 2), 32 * mt))
    for i in range(3):
        a('ds_read_b128 %s, v15 offset:%d' % (v(16 + 4 * i, 4), 1024 * i))
    for i in range(3):
        a('s_waitcnt lgkmcnt(%d)' % (2 - i))
        a('buffer_store_dwordx4 %s, v%d, %s, 0 offen%s' % (v(16 + 4 * i, 4), 12 + i, s(SO, 4), ['', ' sc1', ' nt', ' sc0 sc1'][OPT['ost']]))
    stamp_end(a)
    a('s_endpgm')
    for (S, B, bit) in slow:
        L = a.newlabel('SL')
        a.label(S)
        a('s_mov_b32 s11, 0x20000')
        a.label(L)
        if OPT['stamp'] == 4: a('s_add_u32 s98, s98, 100')
        if bit is None:
            a(FZ_LOAD)
            a('s_waitcnt vmcnt(0)')
            a('v_cmp_eq_u64 vcc, %s, v[252:253]' % NC)
            a('s_cmp_eq_u64 vcc, -1')
        else:
            a(FH_LOAD)
            a('s_waitcnt vmcnt(0)')
            a('v_cmp_eq_u64 s[76:77], %s, v[26:27]' % NC)
            a('s_bitcmp1_b32 s76, %d' % bit)
        a('s_cbranch_scc1 %s' % B)
        a('s_sleep %d' % OPT['fsl'])
        a('s_sub_u32 s11, s11, 1')
        a('s_cbranch_scc0 %s' % L)
        a('s_branch %s' % B)

def kernel(a, name):
    a.raw('.p2align 8')
    a.label(name)
    a('s_cmp_ge_u32 s2, 256')
    a('s_cbranch_scc1 K_exit')
    a('s_load_dwordx16 s[16:31], s[0:1], 0')
    a('s_load_dwordx8 s[32:39], s[0:1], 64')
    a('s_load_dwordx4 s[40:43], s[0:1], 96')
    a('s_memrealtime s[74:75]')
    stamp_begin(a)
    a('v_lshrrev_b32 v1, 6, v0')
    a('s_and_b32 s3, s2, 7')
    a('v_readfirstlane_b32 s%d, v1' % S_W)
    a('v_and_b32 v1, 63, v0')
    a('s_lshr_b32 s4, s2, 3')
    common_pre(a)
    a('s_getreg_b32 s%d, hwreg(HW_REG_XCC_ID)' % S_XCC)
    a('s_add_u32 s%d, s%d, 1' % (S_XCC, S_XCC))
    a('s_cmp_ge_u32 s4, 27')
    a('s_cbranch_scc1 K_prep')
    a('s_mov_b32 s8, s3')
    a('s_mov_b32 s9, s4')
    gemm1_pre(a)
    a('s_waitcnt lgkmcnt(0)')
    g, d = gemm1_head(a)
    a('s_cmp_lt_u32 s%d, 4' % S_W)
    a('s_cbranch_scc1 K_tail_g2')
    gemm1_tail(a, g, d, 'CV')
    a('s_setprio %d' % OPT['cprio'])
    a.label('K_conv')
    conv(a)
    a.label('K_prep')
    a('s_mul_i32 s8, s3, 5')
    a('s_add_u32 s8, s8, s4')
    a('s_sub_u32 s8, s8, 27')
    a('s_and_b32 s9, s%d, 3' % S_W)
    a('s_lshl_b32 s65, s8, 2')
    a('s_add_u32 s65, s65, s9')
    a('s_mul_i32 s7, s8, 10')
    a('s_add_u32 s7, s7, s9')
    a('s_add_u32 s7, s7, 6')
    a('s_cmp_lt_u32 s%d, 4' % S_W)
    a('s_cselect_b32 s66, -128, 32')
    a('s_add_u32 s65, s65, s66')
    a('s_mul_i32 s66, s65, 10923')
    a('s_lshr_b32 s66, s66, 16')
    a('s_lshl_b32 s66, s66, 2')
    a('s_add_u32 s66, s66, s65')
    a('s_cmp_lt_i32 s65, 0')
    a('s_cselect_b32 s7, s7, s66')
    ut_pre(a)
    a('s_waitcnt lgkmcnt(0)')
    a('s_barrier')
    ut_loads(a)
    stamp(a, 1)
    flag_srd(a)
    srd(a, 72, P_DBG, 256)
    go_off(a)
    a(GO_LOAD)
    a('s_waitcnt vmcnt(9)')
    stamp(a, 2)
    ut_k(a)
    a('s_mov_b32 s69, 0x20000')
    a.label('K_sp_go')
    a('s_waitcnt vmcnt(0)')
    a('v_cmp_ne_u32 vcc, 0, v250')
    a('s_cbranch_vccnz K_sp_go2')
    a('s_sleep 4')
    a(GO_LOAD)
    a('s_sub_u32 s69, s69, 1')
    a('s_cbranch_scc0 K_sp_go')
    a.label('K_sp_go2')
    fx_publish(a, 0)
    ut_v(a)
    stamp(a, 3)
    go_sgpr(a)
    a('s_mov_b32 s%d, 0' % CV_TG)
    gp = G1(a)
    a('s_cmp_lt_u32 s%d, 4' % S_W)
    a('s_cbranch_scc1 K_sp_g0')
    a('s_mov_b64 exec, 1')
    a('ds_add_u32 v254, v253 offset:20')
    a('s_mov_b64 exec, -1')
    a('s_lshl_b32 s7, s8, 1')
    a('s_add_u32 s7, s7, 216')
    a('s_mov_b32 s%d, 1' % CV_M)
    a('s_mov_b32 s%d, %d' % (CV_RB, CONV_BASE))
    a('s_setprio 1')
    cv_pre(a)
    a(PF_LOAD)
    for it in cv_h_items(): gp.emit(it)
    a('s_waitcnt vmcnt(9)')
    set_flag(a, S_F2)
    stamp(a, 5)
    a('s_waitcnt vmcnt(9)')
    poll_check(a, PF_LOAD, 244, 11, sleep=OPT['usl'])
    cv_u_loads(a)
    cv_setup1(a)
    for ls in cv_pads():
        for l in ls: a(l)
    a('s_waitcnt vmcnt(4)')
    a.label('K_sp_fix')
    fx = cv_fix()
    for l in fx[0]: a(l)
    a('s_waitcnt lgkmcnt(0)')
    for l in fx[1:]: a(l)
    for l in cv_g_reads(0, 0): a(l)
    a('s_waitcnt vmcnt(0)')
    a('s_branch K_conv')
    a.label('K_sp_g0')
    gs_arrive(a)
    a('s_waitcnt vmcnt(0)')
    set_flag(a, S_F2)
    stamp(a, 5)
    a('s_mov_b32 s%d, %s' % (S_F2, hex(OOB)))
    a('s_add_u32 s7, s8, 296')
    a('s_cmp_ge_u32 s8, 24')
    a('s_cbranch_scc1 K_sp_n')
    a('s_mov_b32 s%d, 0' % CV_M)
    a('s_mov_b32 s%d, 0' % CV_RB)
    a('s_setprio 2')
    cv_pre(a)
    gs_wait(a, 2)
    for it in cv_h_items_half(): gp.emit(it)
    cv_setup1(a)
    for ls in cv_pads():
        for l in ls: a(l)
    a.label('K_sp_p')
    a('s_cmp_gt_u32 s%d, 1' % S_W)
    a('s_cbranch_scc1 K_sp_b')
    a('s_cmp_eq_u32 s%d, 0' % S_W)
    a('s_cbranch_scc1 K_sp_a')
    a('s_mov_b32 s11, 0x100000')
    a.label('K_sp_e')
    a('ds_read_b32 v247, v254 offset:20')
    a('s_waitcnt lgkmcnt(0)')
    a('v_cmp_le_u32 vcc, 4, v247')
    a('s_cbranch_vccnz K_sp_f')
    a('s_sleep 4')
    a('s_sub_u32 s11, s11, 1')
    a('s_cbranch_scc0 K_sp_e')
    a.label('K_sp_f')
    fw_addr(a)
    a.label('K_sp_a')
    poll(a, PF_LOAD, 244, 11, sleep=OPT['usl'])
    a.label('K_sp_b')
    stamp(a, 1, 6)
    a('s_waitcnt vmcnt(0) lgkmcnt(0)')
    gs_arrive(a)
    gs_wait(a, 2)
    stamp(a, 2, 6)
    a('s_cmp_ge_u32 s7, 320')
    a('s_cbranch_scc1 K_prep_g2b')
    cv_u_loads(a)
    a('s_branch K_sp_fix')
    a.label('K_sp_n')
    a('s_cmp_eq_u32 s%d, 1' % S_W)
    a('s_cbranch_scc1 K_sp_p')
    a('s_branch K_sp_b')
    a.label('K_prep_g2b')
    stamp(a, 5, 6)
    a('s_setprio 0')
    g2_pre(a)
    for p in range(2):
        for it in g2_w_items(p, p): gp.emit(it)
    a('s_waitcnt vmcnt(10)')
    set_flag(a, S_F2)
    for p in range(2, 4):
        for it in g2_w_items(p, p): gp.emit(it)
    gs_wait(a)
    stamp(a, 6, 6)
    for r in range(4):
        for it in g2_wl_items(4 + r, r): gp.emit(it)
    g2_fh_addr(a)
    g2_setup(a)
    g2_setup2(a)
    stamp(a, 7, 6)
    a('s_mov_b32 s11, 0x20000')
    a.label('K_sp_d')
    a(PF_LOAD)
    a('s_waitcnt vmcnt(0)')
    a('v_cmp_eq_u64 s[76:77], %s, v[244:245]' % NC)
    a('s_bitcmp1_b32 s76, 0')
    a('s_cbranch_scc1 K_gemm2b')
    a('s_sleep %d' % OPT['s0'])
    a('s_sub_u32 s11, s11, 1')
    a('s_cbranch_scc0 K_sp_d')
    a('s_branch K_gemm2b')
    a.label('K_tail_g2')
    gemm1_tail(a, g, d, 'G2')
    a.label('K_gemm2')
    gemm2(a)
    a.label('K_exit')
    a('s_endpgm')

def main(out):
    hdr = open('cdna_kernels/%s.s.ref' % NAME).read().split('\n')
    head = [l for l in hdr if l.startswith(';') and '@launch' not in l and 'Override' not in l and 'grid=ceil' not in l]
    a = Asm()
    for l in head: a.raw(l)
    a.raw('; @launch grid=(256,1,1) block=(512,1,1) lds=%d' % LDS_TOTAL)
    a.raw('.amdgcn_target "amdgcn-amd-amdhsa--gfx950"')
    a.raw('.text')
    nm = NAME + '_kernel'
    a.raw('.globl %s' % nm)
    a.raw('.type %s,@function' % nm)
    kernel(a, nm)
    a.label('CODE_END')
    a.raw('.section .rodata,"a"')
    a.raw(kernel_desc(nm, 256))
    open(out, 'w').write(a.text())

if __name__ == '__main__':
    out = 'cdna_kernels/%s.s' % NAME
    for arg in sys.argv[1:]:
        if '=' in arg:
            k, val = arg.split('='); OPT[k] = int(val)
        else:
            out = arg
    main(out)
```

```python
import sys, copy
from asmlib import *

NAME = 'gated_mix__ssm_conv_h3__glu_gated_swiglu__prompt'
WS_H = 0
WS_W2P = 0x800000
WS_UT = 0xC00000
WS_Z4 = 0x1000000
WS_G = 0x1400000
WS_F = 0x1500000
F_H, F_U, F_W, F_X, F_Z = 0, 0x40000, 0x50000, 0x58000, 0x60000
F_SIZE = 0xA0000
FS = 7
SZ_ACT = 2048 * 640 * 2
SZ_W = 640 * 1728 * 2
SZ_H = 2048 * 1728 * 2
P_Q, P_K, P_V, P_SK, P_SSMK, P_SSMD, P_BX, P_W1, P_W3, P_W2, P_GW, P_OUT, P_DBG, P_WS = [16 + 2 * i for i in range(14)]
NLOG2E = '0xbfb8aa3b'
OPT = dict(probe=-1, rotm=3, pc=0, pwg=-1, rot2=1, stamp=0, prio=0, cprio=1, cflag=0, touch=0, nodma=0, tp=2, lead=3, rot2r=0, rot1=0, eprio=3, gprio=3, fsl=8, ebar=1, npost=0, allwait=0, fbar=0, zr=10, fwst=7, local=0, wbl2=0, arf=1, xw=0, xh=0, xsc=0, xq=0, zsl=16, fsx=3, fsh=7, fsw=7, fsu=7, fsz=3, ztrig=5, wx=1, xc=0, tsl=8, unit2=0, usl=4, spf=0, npre=30, wst=8, plan=1, late67=0, aprio=3, t2=1, wsl=16, cpf=0, wide=1, one=1, s0=8, mb=0, lst=0, ost=0, ht=0, pw=0, map=1, w2v=0, fwp=6, lprio=2, c1prio=1, wplan=0, tl=4, w2l=0, w2k=2, fwk=3, wd=0)
LDS_TOTAL = 163840
LDS_CNT = LDS_TOTAL - 32
SLOT = [0, 98304, 49152]
LDS_W2S = 147456
LDS_GW = 159744
CONV_BASE = 98304
S_W = 10
SF = 12
S_F1, S_F2 = 5, 6
S_XCC = 77
WS_DBG = 0x2000000
OOB = 0x1000000

def stamp(a, i, mode=1):
    if OPT['probe'] == i + 100 * (mode - 1):
        a('s_memrealtime s[96:97]' if not OPT['pc'] else 's_memtime s[92:93]')
    if OPT['stamp'] == mode:
        a('s_memtime s[%d:%d]' % (80 + 2 * i, 81 + 2 * i))
def stamp7(a, k):
    if OPT['stamp'] == 7:
        a('s_memtime s[%d:%d]' % (82 + 4 * k, 83 + 4 * k))
        a('s_memrealtime s[%d:%d]' % (84 + 4 * k, 85 + 4 * k))
def stamp_begin(a):
    if OPT['probe'] >= 0:
        a('s_memrealtime s[96:97]')
        a('s_memtime s[94:95]')
        a('s_memtime s[92:93]')
    if OPT['stamp']:
        a('s_memrealtime s[78:79]')
        for i in range(11): a('s_mov_b64 s[%d:%d], 0' % (80 + 2 * i, 81 + 2 * i))
        a('s_memtime s[80:81]')
def stamp_end(a):
    if OPT['probe'] >= 0:
        L = a.newlabel('PRB')
        if OPT['probe'] == 10:
            a('s_waitcnt vmcnt(0)')
            a('s_memrealtime s[96:97]')
        a('s_cmp_lg_u32 s10, 0')
        a('s_cbranch_scc1 %sx' % L)
        if OPT['pwg'] >= 0:
            a('s_cmp_lg_u32 s2, %d' % OPT['pwg'])
            a('s_cbranch_scc1 %sx' % L)
        a('s_waitcnt lgkmcnt(0)')
        a('s_add_u32 s96, s96, 4000')
        if OPT['pc']:
            a('s_sub_u32 s92, s92, s94')
            a('s_lshr_b32 s92, s92, 4')
            a('s_add_u32 s96, s96, s92')
        a.label(L)
        a('s_sleep 1')
        a('s_memrealtime s[98:99]')
        a('s_waitcnt lgkmcnt(0)')
        a('s_sub_u32 s98, s98, s96')
        a('s_cmp_lt_i32 s98, 0')
        a('s_cbranch_scc1 %s' % L)
        a.label(L + 'x')
    if OPT['stamp']:
        a('s_waitcnt vmcnt(0) lgkmcnt(0)')
        a('s_memtime s[100:101]')
        a('s_memrealtime s[76:77]')
        srd(a, 44, P_WS, 0x100000, WS_DBG)
        a('s_lshl_b32 s5, s2, 3')
        a('s_add_u32 s5, s5, s10')
        a('s_lshl_b32 s5, s5, 6')
        a('s_waitcnt lgkmcnt(0)')
        a('v_mov_b32 v0, s78')
        a('v_mov_b32 v1, s76')
        for i in range(11): a('v_mov_b32 v%d, s%d' % (2 + i, 80 + 2 * i))
        a('v_mov_b32 v16, s5')
        a('s_mov_b64 exec, 1')
        for i in range(4):
            a('buffer_store_dwordx4 v[%d:%d], v16, s[44:47], 0 offen offset:%d' % (4 * i, 4 * i + 3, 16 * i))

def capture(a, fn):
    save = a.lines; a.lines = []
    fn()
    out = a.lines; a.lines = save
    return out

class Q:
    def __init__(self): self.q = []
    def push(self, tag, sure=True): self.q.append((tag, sure))
    def need(self, tags):
        idx = [i for i, (t, _) in enumerate(self.q) if t in tags]
        if not idx: return None
        last = max(idx)
        n = sum(1 for (_, sure) in self.q[last + 1:] if sure)
        self.q = self.q[last + 1:]
        return n
    def clear(self): self.q = []

NC = 's[0:1]'
def poll_check(a, loadline, vtmp, sc, sleep=2):
    L, D = a.newlabel('POLL'), a.newlabel('POLLD')
    a('s_mov_b32 s%d, 0x20000' % sc)
    a.label(L)
    a('v_cmp_eq_u64 vcc, %s, %s' % (NC, v(vtmp, 2)))
    a('s_cmp_eq_u64 vcc, -1')
    a('s_cbranch_scc1 %s' % D)
    a('s_sleep %d' % sleep)
    a(loadline)
    a('s_waitcnt vmcnt(0)')
    a('s_sub_u32 s%d, s%d, 1' % (sc, sc))
    a('s_cbranch_scc0 %s' % L)
    a.label(D)
def poll(a, loadline, vtmp, sc, sleep=2):
    a(loadline)
    a('s_waitcnt vmcnt(0)')
    poll_check(a, loadline, vtmp, sc, sleep)

GO_LOAD = 'buffer_load_dwordx2 v[250:251], v252, s[72:75], s11 offen sc1'
PF_LOAD = 'buffer_load_dwordx2 v[244:245], v248, s[%d:%d], 0 offen sc1' % (SF, SF + 3)

def set_flag(a, soff):
    a('s_mov_b64 exec, 1')
    a('buffer_store_dwordx2 v[250:251], v252, %s, s%d offen sc1' % (s(SF, 4), soff))
    a('s_mov_b64 exec, -1')

def fx_publish(a, wave):
    a('v_mov_b32 v240, v250')
    a('v_xor_b32 v241, s%d, v251' % S_XCC)
    a('s_lshl_b32 s11, s3, 5')
    a('s_add_u32 s11, s11, s4')
    a('s_lshl_b32 s11, s11, %d' % OPT['fsx'])
    a('s_add_u32 s11, s11, %s' % hex(F_X))
    a('s_cmp_eq_u32 s%d, %d' % (S_W, wave))
    a('s_cselect_b32 s11, s11, %s' % hex(OOB))
    a('s_mov_b64 exec, 1')
    a('buffer_store_dwordx2 v[240:241], v252, %s, s11 offen sc1' % s(SF, 4))
    a('s_mov_b64 exec, -1')
def fx_load(a):
    a('s_lshr_b32 s11, s%d, 1' % S_W)
    a('s_lshl_b32 s11, s11, 3')
    a('v_and_b32 v249, 7, v1')
    a('v_add_u32 v249, s11, v249')
    a('s_lshl_b32 s11, s3, %d' % (5 + OPT['fsx']))
    a('s_add_u32 s11, s11, %s' % hex(F_X))
    a('v_lshlrev_b32 v249, %d, v249' % OPT['fsx'])
    a('buffer_load_dwordx2 v[242:243], v249, %s, s11 offen sc1' % s(SF, 4))
BIG = 0x7000000
def fx_eval(a):
    a('v_cmp_eq_u64 vcc, v[240:241], v[242:243]')
    a('s_cmp_eq_u64 vcc, %s' % ('-1' if OPT['local'] else '7'))
    for (r, r2) in ((HO, 28), (S_F1, S_XCC)):
        a('s_cselect_b32 s%d, %s, s%d' % (r2, hex(BIG), r))
        a('s_cselect_b32 s%d, s%d, %s' % (r, r, hex(BIG)))
def store2(a, fmt, r):
    if not OPT['local']:
        a(fmt % r + ' sc1'); return
    r2 = {HO: 28, GO: 29, S_F1: S_XCC}[r]
    a(fmt % r + (['', ' sc0', ' nt', ' sc0 nt'][OPT['lst']] if r == HO else ''))
    a(fmt % r2 + ' sc1')

def nonce_publish(a):
    L = a.newlabel('NP')
    a('s_or_b32 s11, s2, s%d' % S_W)
    a('s_cmp_lg_u32 s11, 0')
    a('s_cbranch_scc1 %s' % L)
    a('s_or_b32 s74, s74, 1')
    a('v_mov_b32 v250, s74')
    a('v_mov_b32 v251, s75')
    a('v_lshlrev_b32 v249, 7, v1')
    a('s_mov_b64 exec, 3')
    a('global_store_dwordx2 v249, v[250:251], s[%d:%d] sc1' % (P_DBG, P_DBG + 1))
    a('s_mov_b64 exec, -1')
    a.label(L)
def go_off(a):
    a('s_and_b32 s11, s4, 1')
    a('s_lshl_b32 s11, s11, 7')
def go_issue(a):
    srd(a, 72, P_DBG, 256)
    go_off(a)
    a('s_cmp_eq_u32 s%d, 0' % S_W)
    a('s_cselect_b32 s11, s11, %s' % hex(OOB))
    a(GO_LOAD)
def go_check(a):
    L, R, D = a.newlabel('GOC'), a.newlabel('GOR'), a.newlabel('GOD')
    a('s_cmp_lg_u32 s%d, 0' % S_W)
    a('s_cbranch_scc1 %s' % L)
    go_off(a)
    a('s_mov_b32 s69, 0x20000')
    a.label(R)
    a('v_cmp_ne_u32 vcc, 0, v250')
    a('s_cbranch_vccnz %s' % D)
    a('s_sleep 4')
    a(GO_LOAD)
    a('s_waitcnt vmcnt(0)')
    a('s_sub_u32 s69, s69, 1')
    a('s_cbranch_scc0 %s' % R)
    a.label(D)
    a('ds_write_b64 v254, v[250:251] offset:8')
    a('s_waitcnt lgkmcnt(0)')
    a.label(L)
GO_FETCH = 'ds_read_b64 v[250:251], v254 offset:8'
def go_sgpr(a):
    a('v_readfirstlane_b32 s0, v250')
    a('v_readfirstlane_b32 s1, v251')
def fw_check(a):
    D = a.newlabel('PFD')
    a('s_cmp_lg_u32 s%d, 0' % S_W)
    a('s_cbranch_scc1 %s' % D)
    poll_check(a, PF_LOAD, 244, 11, sleep=4)
    a.label(D)

def common_pre(a):
    a('v_mov_b32 v252, 0')
    a('v_mov_b32 v253, 1')
    a('v_mov_b32 v238, 0')
    a('v_mov_b32 v248, 0')
    a('v_mov_b32 v254, %d' % LDS_CNT)
    a('ds_write_b32 v254, v252')
    a('ds_write_b32 v254, v252 offset:4')
    a('ds_write_b32 v254, v252 offset:16')
    a('ds_write_b32 v254, v252 offset:20')
    a('v_lshlrev_b32 v237, 4, v1')
    a('s_cmp_lt_u32 s%d, 4' % S_W)
    a('s_cselect_b32 s11, 16, 0')
    a('v_add_u32 v255, s11, v254')

def flag_srd(a):
    srd(a, SF, P_WS, F_SIZE, WS_F)

SX, SW1, SW3, SH = 44, 48, 52, 56
OX, OW, LW, HO, GO = 60, 61, 62, 63, 64
GID, U0 = 70, 71
KS0 = 28

def item(lines, pre=(), vm=None, lg=None, needlg=(), needvm=()):
    if isinstance(lines, str): lines = [lines]
    if isinstance(pre, str): pre = [pre]
    return dict(pre=list(pre), lines=list(lines), vm=vm, lg=lg, needlg=set(needlg), needvm=set(needvm))

class G1:
    def __init__(self, a):
        self.a = a; self.vq = Q(); self.lq = Q()
    def wait(self, vm=(), lg=(), lgall=False):
        parts = []
        n = self.vq.need(set(vm)) if vm else None
        if n is not None: parts.append('vmcnt(%d)' % min(n, 63))
        if lgall:
            if self.lq.q: parts.append('lgkmcnt(0)')
            self.lq.clear()
        else:
            n = self.lq.need(set(lg)) if lg else None
            if n is not None: parts.append('lgkmcnt(%d)' % min(n, 14))
        if parts: self.a('s_waitcnt ' + ' '.join(parts))
    def emit(self, it, with_pre=True):
        a = self.a
        if with_pre and it['pre']:
            for l in it['pre']: a(l)
            if 'm0' in it['pre'][-1]: a('s_nop 0')
        if it['needlg'] or it['needvm']: self.wait(vm=it['needvm'], lg=it['needlg'])
        for l in it['lines']: a(l)
        if it['vm'] is not None: self.vq.push(it['vm'], sure=not (isinstance(it['vm'], str) and it['vm'].endswith('?')))
        if it['lg'] is not None: self.lq.push(it['lg'])

def capture_l(a, fn):
    return [l.strip() for l in capture(a, lambda: fn(a))]

LS, GS, GS8, SS = 24, 25, 26, 27
def l_pre(a):
    RB, CB, W = 8, 9, S_W
    a('v_lshrrev_b32 v13, 3, v1')
    a('v_and_b32 v15, 7, v1')
    a('s_lshl_b32 s11, s%d, 3' % W)
    a('v_add_u32 v16, s11, v13')
    a('v_bfe_u32 v14, v16, 1, 3')
    a('v_xor_b32 v14, v14, v15')
    a('v_lshlrev_b32 v14, 4, v14')
    a('v_mul_u32_u24 v2, 1280, v16')
    a('v_add_u32 v2, v2, v14')
    a('v_mov_b32 v3, v2')
    L = a.newlabel('LP')
    a('s_cmp_lg_u32 s%d, 2' % W)
    a('s_cbranch_scc1 %s' % L)
    a('v_and_b32 v14, 2, v13')
    a('v_xor_b32 v14, v14, v15')
    a('v_lshlrev_b32 v14, 4, v14')
    a('v_mul_u32_u24 v2, 3456, v13')
    a('v_xor_b32 v16, 64, v14')
    a('v_add_u32 v3, v2, v16')
    a('v_add_u32 v2, v2, v14')
    a.label(L)
    if OPT['rot1']:
        R = OPT['rot1']
        a('s_mul_i32 s11, s%d, %d' % (RB, OPT['rotm']))
        a('s_add_u32 s11, s11, s%d' % CB)
        a('s_mul_i32 s69, s11, %d' % ((2048 + R - 1) // R))
        a('s_lshr_b32 s69, s69, 11')
        a('s_mul_i32 s69, s69, %d' % R)
        a('s_sub_u32 s68, s11, s69')
        if R != 10: a('s_mul_i32 s68, s68, %d' % (10 // R))
    else:
        a('s_mov_b32 s68, 0')
    a('s_mul_i32 s65, s%d, %d' % (RB, 256 * 1280))
    a('s_lshl_b32 s66, s%d, 7' % CB)
    a('s_sub_u32 s67, %s, s66' % hex(SZ_W))
    a('s_lshl_b32 s%d, s%d, 10' % (LW, W))
    a('s_cmp_eq_u32 s%d, 2' % W)
    a('s_cselect_b32 s%d, 0x8000, s%d' % (LW, LW))
    a('s_lshr_b32 s11, s4, 2')
    a('s_mul_i32 s11, s11, 43')
    a('v_add_u32 v48, s11, v1')
    a('v_min_u32 v48, 255, v48')
    a('v_mul_u32_u24 v48, 1280, v48')
    a('s_and_b32 s11, s%d, 3' % RB)
    a('s_lshl_b32 s11, s11, 4')
    a('v_add_u32 v49, s11, v1')
    a('v_mul_u32_u24 v49, 3456, v49')

def l_ks(a, stage):
    a('s_add_u32 s29, s%d, %d' % (KS0, stage))
    a('s_sub_u32 s%d, s29, 10' % OW)
    a('s_min_u32 s29, s29, s%d' % OW)
def l_dma(a, g, stage):
    if OPT['nodma'] and stage >= 3: return
    l_ks(a, stage)
    a('s_mul_i32 s%d, s29, s%d' % (OX, SS))
    a('s_add_u32 m0, s%d, %s' % (LW, hex(SLOT[stage % 3])))
    for i in range(16):
        if i:
            a('s_add_u32 m0, m0, s%d' % LS)
            a('s_add_u32 s%d, s%d, s%d' % (OX, OX, GS8 if i == 8 else GS))
        else: a('s_nop 0')
        a('buffer_load_dwordx4 v%d, %s, s%d offen lds' % (2 + (i & 1), s(SW1 if i < 8 else SW3, 4), OX)); g.vq.push(('st', stage))
def l_touch(a, stage):
    if not OPT['touch'] or stage > 9: return
    l_ks(a, stage)
    a('s_mul_i32 s%d, s29, %d' % (OW, 64 * 3456))
    a('s_lshl_b32 s%d, s29, 7' % OX)
    a('s_mov_b64 exec, 0xffff')
    a('buffer_load_dword v50, v49, %s, s%d offen' % (s(SW1, 4), OW))
    a('buffer_load_dword v50, v49, %s, s%d offen' % (s(SW3, 4), OW))
    a('s_mov_b32 exec_lo, -1')
    a('s_movk_i32 exec_hi, 0x7ff')
    a('buffer_load_dword v50, v48, %s, s%d offen' % (s(SX, 4), OX))
    a('s_mov_b64 exec, -1')

FU_LOAD = 'buffer_load_dwordx2 v[242:243], v241, s[%d:%d], 0 offen sc1' % (SF, SF + 3)
def l_u_loads(a):
    srd(a, SH, P_WS, SZ_ACT, WS_UT)
    for c in range(2):
        a('s_mov_b32 m0, %d' % (CONV_BASE + c * CW + C_U))
        a('s_movk_i32 s11, %d' % (4096 * c))
        for i in range(4):
            a('buffer_load_dwordx4 v36, %s, s11 offen offset:%d sc1 lds' % (s(SH, 4), i * 1024))

def l_common_addr(a):
    RB, CB, W = 8, 9, S_W
    flag_srd(a)
    a('s_lshl_b32 s65, s%d, 2' % CB)
    a('s_add_u32 s65, s65, s%d' % W)
    a('s_and_b32 s65, s65, 31')
    a('s_lshl_b32 s11, s65, 10')
    a('v_add_u32 v4, s11, v237')
    a('v_add_u32 v5, 0x18000, v4')
    a('s_and_b32 s11, s%d, 1' % W)
    a('s_lshl_b32 s11, s11, 2')
    a('v_lshrrev_b32 v12, 4, v1')
    a('v_add_u32 v12, s11, v12')
    a('v_and_b32 v13, 7, v1')
    a('v_xor_b32 v12, v12, v13')
    a('s_lshl_b32 s11, s%d, 7' % KS0)
    a('s_add_u32 s11, s11, %d' % LDS_GW)
    a('v_lshl_add_u32 v6, v12, 4, s11')
    a('v_mov_b32 v7, 0')
    a('s_lshl_b32 s%d, s%d, 5' % (GO, RB))
    a('s_add_u32 s%d, s%d, s65' % (GO, GO))
    a('s_lshr_b32 s%d, s%d, 3' % (S_F1, GO))
    a('s_lshl_b32 s%d, s%d, 6' % (S_F1, S_F1))
    a('s_and_b32 s11, s65, 7')
    a('s_add_u32 s%d, s%d, s11' % (S_F1, S_F1))
    a('s_add_u32 s%d, s%d, 54' % (S_F1, S_F1))
    a('s_lshl_b32 s%d, s%d, %d' % (S_F1, S_F1, OPT['fsh']))
    a('s_lshl_b32 s%d, s%d, 5' % (GO, GO))
    a('s_cmp_lt_u32 s%d, 8' % CB)
    a('s_cselect_b32 s%d, s%d, %s' % (GO, GO, hex(OOB)))
    a('s_cselect_b32 s%d, s%d, %s' % (S_F1, S_F1, hex(OOB)))
    a('s_mul_i32 s%d, s%d, 27' % (GID, RB))
    a('s_add_u32 s%d, s%d, s%d' % (GID, GID, CB))

L_REST = []
def l_steps(a, g, svc):
    W = S_W
    if OPT['lprio']: a('s_setprio %d' % OPT['lprio'])
    w = []
    for p in range(4): w += g2_w_items(p, p)
    fp = OPT['fwp']
    w += g2_wl_items(4, 0) + g2_wl_items(5, 1) + g2_wl_items(6, 2) + g2_wl_items(7, 3)
    cnt = {0: {7: 10, 8: 10, 9: 10}, 1: {7: 5, 8: 10, 9: 10}, 2: {8: 10, 9: 10}, 3: {7: 5, 8: 5, 9: 10}, 4: {8: 5, 9: 10}, 5: {9: 10},
           6: {6: 5, 7: 5, 8: 10, 9: 10}, 7: {7: 5, 8: 15, 9: 10}}[OPT['wd']]
    wsch = {}; pos = 0
    for k in sorted(cnt):
        assert k > fp
        wsch[k] = w[pos:pos + cnt[k]]; pos += cnt[k]
    L_REST[:] = w[pos:]
    for k in range(10):
        a.comment('loader, stage %d ready' % k)
        if k < 9: stamp(a, k + 1, 2)
        if k == 5: stamp(a, 3)
        base = SLOT[k % 3]; hi = base >= 98304
        need = [('st', k + 1)]; bb = None
        if not svc and k + 2 <= 9: l_dma(a, g, k + 2)
        g.emit(item('ds_read_b128 v[12:15], v%d offset:%d' % (5 if hi else 4, base - (98304 if hi else 0)), lg='gx'))
        g.emit(item('ds_read_b128 v[16:19], v6 offset:%d' % (k * 128), lg='gx'))
        if k == 2:
            g.emit(item(GO_FETCH, lg='go'))
        if k == 3:
            go_sgpr(a)
            g2_pre(a, allw=True)
        if svc:
            if k == fp:
                a(PF_LOAD); g.vq.push('pf'); need.append('pf')
                bb = lambda a: poll_check(a, PF_LOAD, 244, 11, sleep=4)
            if k == 0:
                srd(a, 72, P_DBG, 256); go_off(a); a(GO_LOAD); g.vq.push('go')
            if k == 7:
                a(FU_LOAD); g.vq.push('fu')
                for c in range(2):
                    a('s_add_u32 s11, s21, %d' % (4096 * c))
                    a('buffer_load_dwordx4 %s, v252, %s, s11 offen' % (v(40 + 4 * c, 4), s(SH, 4))); g.vq.push('h0')
            n0 = len(a.lines)
            l_touch(a, k + OPT['tl'])
            if len(a.lines) > n0:
                for _ in range(3): g.vq.push('touch')
            if k == OPT['w2l']:
                srd(a, SH, P_W2, SZ_W)
                for i in range(12):
                    a('s_mov_b32 m0, %d' % (LDS_W2S + 1024 * i))
                    if i: a('s_add_u32 s22, s22, %d' % (8 * 1280))
                    else: a('s_nop 0')
                    a('buffer_load_dwordx4 v9, %s, s22 offen lds' % s(SH, 4)); g.vq.push('w2')
            if k == 1:
                need.append('go')
                def bb(a):
                    R, D = a.newlabel('GOR'), a.newlabel('GOD')
                    go_off(a)
                    a('s_mov_b32 s69, 0x20000')
                    a.label(R)
                    a('v_cmp_ne_u32 vcc, 0, v250')
                    a('s_cbranch_vccnz %s' % D)
                    a('s_sleep 4')
                    a(GO_LOAD)
                    a('s_waitcnt vmcnt(0)')
                    a('s_sub_u32 s69, s69, 1')
                    a('s_cbranch_scc0 %s' % R)
                    a.label(D)
                    a('ds_write_b64 v254, v[250:251] offset:8')
                    a('s_waitcnt lgkmcnt(0)')
            if k == OPT['w2k']:
                g.wait(vm=['w2'])
                srd(a, SH, P_WS, SZ_W, WS_W2P)
                for u in range(3):
                    for t in range(4):
                        R = 52 + 16 * u + 4 * t
                        g.emit(item('ds_read_b64_tr_b16 %s, v10 offset:%d' % (v(R, 2), 4096 * u + 32 * t), lg=('w2f', u)))
                        g.emit(item('ds_read_b64_tr_b16 %s, v10 offset:%d' % (v(R + 2, 2), 4096 * u + 32 * t + 2048), lg=('w2f', u)))
                for u in range(3):
                    g.wait(lg=[('w2f', u)])
                    if u: a('s_add_u32 s%d, s%d, 40960' % (U0, U0))
                    for t in range(4):
                        g.emit(item('buffer_store_dwordx4 %s, v237, %s, s%d offen offset:%d sc1' % (v(52 + 16 * u + 4 * t, 4), s(SH, 4), U0, 1024 * t), vm='w2s'))
            if k == OPT['fwk']:
                srd(a, SH, P_SSMK, SZ_ACT)
                g.wait(vm=['w2s'])
                a('s_lshl_b32 s11, s%d, %d' % (GID, OPT['fsw']))
                a('s_add_u32 s11, s11, %s' % hex(F_W))
                set_flag(a, 11); g.vq.push('fw')
            if k == max(5, OPT['fwk']) and OPT['t2']:
                a('v_lshlrev_b32 v38, 7, v1')
                a('buffer_load_dword v38, v38, %s, s21 offen' % s(SH, 4)); g.vq.push('t2')
            if k == 8:
                a('v_mov_b64 v[20:21], 0')
                for c in range(2):
                    for hb in range(2):
                        a('s_mov_b32 m0, %d' % (CONV_BASE + c * CW + hb * C_HB + 512))
                        a('s_movk_i32 s11, %d' % (4096 * c))
                        for i in range(4):
                            a('buffer_load_dwordx4 v%d, %s, s11 offen offset:%d lds' % (36 + hb, s(SH, 4), i * 1024)); g.vq.push('cvh')
                a('v_lshlrev_b32 v22, 3, v1')
                a('v_add_u32 v22, %d, v22' % CONV_BASE)
                a('v_lshlrev_b32 v23, 2, v1')
                a('v_add_u32 v23, %d, v23' % CONV_BASE)
                for c in range(2):
                    g.emit(item('ds_write_b64 v22, v[20:21] offset:%d' % (c * CW), lg='pad'))
                    g.emit(item('ds_write_b64 v22, v[20:21] offset:%d' % (c * CW + C_HB), lg='pad'))
                    g.emit(item('ds_write_b32 v23, v20 offset:%d' % (c * CW + C_U + 4096), lg='pad'))
                g.wait(vm=['fu', 'h0'])
                L = a.newlabel('UT')
                a('s_mov_b32 s21, 0')
                a('v_cmp_eq_u64 vcc, %s, v[242:243]' % NC)
                a('s_cmp_eq_u64 vcc, -1')
                a('s_cbranch_scc0 %s' % L)
                l_u_loads(a)
                a('s_mov_b32 s21, 1')
                a.label(L)
                g.vq.push('u', sure=False)
                for c in range(2):
                    R = 40 + 4 * c
                    a('v_alignbit_b32 v%d, v%d, v%d, 16' % (R + 3, R + 3, R + 2))
                    a('v_alignbit_b32 v%d, v%d, v%d, 16' % (R + 2, R + 2, R + 1))
                    a('v_alignbit_b32 v%d, v%d, v%d, 16' % (R + 1, R + 1, R))
                    a('v_lshlrev_b32 v%d, 16, v%d' % (R, R))
        for it in wsch.get(k, []): g.emit(it)
        g.wait(lg=['gx'])
        for i in range(4):
            a('v_dot2c_f32_bf16 v7, v%d, v%d' % (12 + i, 16 + i))
        g.wait(vm=need, lgall=True)
        if bb: bb(a)
        a('s_barrier')
    stamp(a, 4)
    if svc:
        L = a.newlabel('UOK')
        a('s_cmp_eq_u32 s21, 1')
        a('s_cbranch_scc1 %s' % L)
        poll_check(a, FU_LOAD, 242, 11, sleep=2)
        l_u_loads(a)
        a('s_waitcnt vmcnt(0)')
        a.label(L)
        g.wait(vm=['cvh', 'u'])
        a('v_mov_b32 v22, %d' % CONV_BASE)
        a('v_mov_b32 v23, 4')
        for c in range(2):
            a('ds_write_b128 v22, %s offset:%d' % (v(40 + 4 * c, 4), c * CW + C_HB + 512))
        a('ds_write_b32 v254, v23 offset:20')

def loader(a):
    RB, CB, W = 8, 9, S_W
    nonce_publish(a)
    a('s_mov_b32 s%d, s68' % KS0)
    srd(a, SW1, P_W1, 's67', 's66')
    srd(a, SW3, P_W3, 's67', 's66')
    srd(a, SX, P_Q, 256 * 1280, 's65')
    a('s_cmp_eq_u32 s%d, 3' % W)
    a('s_cbranch_scc1 K_svc')
    g = G1(a)
    a('s_cmp_eq_u32 s%d, 2' % W)
    for i in range(3):
        a('s_cselect_b32 s%d, s%d, s%d' % (SW1 + i, SW1 + i, SX + i))
        a('s_cselect_b32 s%d, s%d, s%d' % (SW3 + i, SW3 + i, SX + i))
    a('s_movk_i32 s%d, 2048' % LS); a('s_cmov_b32 s%d, 1024' % LS)
    a('s_movk_i32 s%d, 20480' % GS); a('s_cmov_b32 s%d, %d' % (GS, 8 * 3456))
    a('s_movk_i32 s%d, 20480' % GS8); a('s_cmov_b32 s%d, %d' % (GS8, -7 * 8 * 3456))
    a('s_movk_i32 s%d, 128' % SS); a('s_cmov_b32 s%d, %d' % (SS, 64 * 3456))
    l_dma(a, g, 0)
    stamp(a, 1)
    l_dma(a, g, 1)
    l_common_addr(a)
    g.wait(vm=[('st', 0)])
    a('s_barrier')
    stamp(a, 2)
    l_steps(a, g, False)
    a('s_branch K_lend')
    a.label('K_svc')
    g = G1(a)
    for st_ in range(OPT['tp']): l_touch(a, st_)
    srd(a, SH, P_GW, 1280)
    for i in range(3):
        a('v_add_u32 v12, %d, v237' % (1024 * i))
        a('v_subrev_u32 v13, 1280, v12')
        a('v_min_u32 v12, v12, v13')
        a('v_subrev_u32 v13, 1280, v12')
        a('s_mov_b32 m0, %d' % (LDS_GW + 1024 * i))
        a('v_min_u32 v12, v12, v13')
        a('buffer_load_dwordx4 v12, %s, 0 offen lds' % s(SH, 4)); g.vq.push('gw')
    for st_ in range(OPT['tp'], OPT['tl']):
        l_touch(a, st_)
        if OPT['touch']:
            for _ in range(3): g.vq.push('touch')
    l_common_addr(a)
    a('s_mul_i32 s11, s%d, 3641' % GID)
    a('s_lshr_b32 s11, s11, 16')
    a('s_mul_i32 s69, s11, 18')
    a('s_sub_u32 s69, s%d, s69' % GID)
    a('s_mul_i32 s69, s69, 3')
    a('s_cmp_ge_u32 s%d, 180' % GID)
    a('s_cselect_b32 s69, 60, s69')
    a('s_mul_i32 s%d, s69, 10' % U0)
    a('s_add_u32 s%d, s%d, s11' % (U0, U0))
    a('s_lshl_b32 s%d, s%d, 12' % (U0, U0))
    a('s_mul_i32 s69, s69, %d' % (32 * 1280))
    a('s_lshl_b32 s22, s11, 7')
    a('s_add_u32 s22, s22, s69')
    a('v_lshrrev_b32 v9, 3, v1')
    a('v_mul_u32_u24 v9, 1280, v9')
    a('v_lshl_add_u32 v9, v13, 4, v9')
    a('v_lshrrev_b32 v10, 2, v1')
    a('v_lshlrev_b32 v10, 7, v10')
    a('v_and_b32 v12, 3, v1')
    a('v_lshl_add_u32 v10, v12, 3, v10')
    a('v_add_u32 v10, %d, v10' % LDS_W2S)
    a('s_lshl_b32 s21, s%d, 13' % GID)
    a('v_add_u32 v36, s21, v237')
    a('v_subrev_u32 v37, 2, v36')
    a('s_lshr_b32 s11, s%d, 5' % GID)
    a('s_lshl_b32 s11, s11, %d' % (5 + OPT['fsu']))
    a('s_add_u32 s11, s11, %s' % hex(F_U))
    a('v_min_u32 v241, 31, v1')
    a('v_lshl_add_u32 v241, v241, %d, s11' % OPT['fsu'])
    g.wait(vm=['gw'])
    a('s_barrier')
    l_steps(a, g, True)
    a.label('K_lend')
    g = G1(a)
    for sh in (1, 2):
        a('v_add_f32_dpp v7, v7, v7 quad_perm:%s row_mask:0xf bank_mask:0xf' % ('[1,0,3,2]' if sh == 1 else '[2,3,0,1]'))
        a('s_nop 1')
    a('v_add_f32_dpp v7, v7, v7 row_half_mirror row_mask:0xf bank_mask:0xf')
    a('v_mul_f32 v7, %s, v7' % NLOG2E)
    a('v_exp_f32 v7, v7')
    a('v_lshrrev_b32 v8, 3, v1')
    a('v_add_f32 v7, 1.0, v7')
    a('v_rcp_f32 v7, v7')
    a('v_lshlrev_b32 v8, 2, v8')
    srd(a, SX, P_WS, 8192, WS_G)
    a('s_mov_b32 exec_lo, 0x01010101')
    a('s_mov_b32 exec_hi, 0x01010101')
    a('buffer_store_dword v7, v8, %s, s%d offen sc1' % (s(SX, 4), GO))
    a('s_mov_b64 exec, -1')
    for it in L_REST: g.emit(it)
    a('s_waitcnt vmcnt(%d)' % len(L_REST))
    set_flag(a, S_F1)
    stamp(a, 5)

C_WF, C_XF, C_ACC = [12, 28], 44, 76
def c_pre(a):
    RB, CB, W = 8, 9, S_W
    a('s_bfe_u32 s65, s%d, 0x10001' % W)
    a('s_and_b32 s66, s%d, 1' % W)
    a('v_and_b32 v13, 15, v1')
    a('v_lshrrev_b32 v14, 4, v1')
    a('v_bfe_u32 v15, v1, 1, 3')
    a('v_xor_b32 v15, v15, v14')
    a('s_lshl_b32 s11, s65, 14')
    a('v_lshl_add_u32 v12, v13, 7, s11')
    a('v_lshl_add_u32 v2, v15, 4, v12')
    a('v_xor_b32 v15, 4, v15')
    a('v_lshl_add_u32 v3, v15, 4, v12')
    a('v_add_u32 v4, 0x18000, v2')
    a('v_add_u32 v5, 0x18000, v3')
    a('v_bfe_u32 v12, v1, 2, 2')
    a('v_lshl_add_u32 v12, v14, 3, v12')
    a('v_lshlrev_b32 v12, 7, v12')
    a('v_and_b32 v13, 3, v1')
    a('v_lshl_add_u32 v12, v13, 3, v12')
    a('v_add_u32 v12, 0x8000, v12')
    a('v_bfe_u32 v13, v1, 3, 2')
    a('s_lshl_b32 s11, s66, 1')
    a('v_xor_b32 v13, s11, v13')
    a('v_lshl_add_u32 v6, v13, 5, v12')
    a('v_xor_b32 v13, 1, v13')
    a('v_lshl_add_u32 v7, v13, 5, v12')
    a('v_add_u32 v8, 0x18000, v6')
    a('v_add_u32 v9, 0x18000, v7')
    a('s_lshl_b32 s67, s%d, 1' % RB)
    a('s_add_u32 s67, s67, s65')
    a('s_lshl_b32 s67, s67, 1')
    a('s_lshl_b32 s68, s%d, 1' % CB)
    a('s_add_u32 s68, s68, s66')
    a('s_lshl_b32 s%d, s67, 6' % S_F1)
    a('s_add_u32 s%d, s%d, s68' % (S_F1, S_F1))
    a('s_lshl_b32 s%d, s%d, %d' % (S_F1, S_F1, OPT['fsh']))
    a('s_mul_i32 s%d, s67, 54' % HO)
    a('s_add_u32 s%d, s%d, s68' % (HO, HO))
    a('s_lshl_b32 s%d, s%d, 12' % (HO, HO))
    a('s_mul_i32 s7, s%d, 27' % RB)
    a('s_add_u32 s7, s7, s%d' % CB)
    a('v_lshlrev_b32 v10, %d, v1' % (6 + OPT['fsh']))
    a('v_add_u32 v11, %d, v237' % (54 * 4096))

def compute(a):
    W = S_W
    g = G1(a)
    flag_srd(a)
    srd(a, SH, P_WS, SZ_H, None if WS_H == 0 else WS_H)
    a('s_mov_b32 s%d, 0' % CV_M)
    a('s_mov_b32 s%d, 0' % CV_TG)
    a('s_mov_b32 s%d, %d' % (CV_RB, CONV_BASE))
    cv_pre(a)
    cv_setup1(a, zero=False)
    a('s_mov_b32 s60, %s' % NLOG2E)
    a('s_mov_b32 s61, %s' % NLOG2E)
    a('s_waitcnt lgkmcnt(0)')
    a('s_setprio %d' % OPT['c1prio'])
    def xr(stage, kk, t):
        base = SLOT[stage % 3]; hi = base >= 98304
        return item('ds_read_b128 %s, v%d offset:%d' % (v(C_XF + 4 * t, 4), (4 if hi else 2) + kk, base - (98304 if hi else 0) + 2048 * t), lg=('x', stage, kk, t))
    def wr(stage, kk, mi, h):
        base = SLOT[stage % 3]; hi = base >= 98304
        return item('ds_read_b64_tr_b16 %s, v%d offset:%d' % (v(C_WF[kk] + 4 * mi + 2 * h, 2), (8 if hi else 6) + (mi & 1),
                    base - (98304 if hi else 0) + (mi >> 1) * 8192 + kk * 4096 + h * 512), lg=('w', stage, kk, mi))
    a('s_barrier')
    stamp(a, 2)
    for mi in range(4):
        g.emit(wr(0, 0, mi, 0)); g.emit(wr(0, 0, mi, 1))
        if mi == 0: g.emit(xr(0, 0, 0))
    for t in range(1, 8): g.emit(xr(0, 0, t))
    for sidx in range(10):
        a.comment('k-step %d' % sidx)
        if sidx < 9: stamp(a, sidx + 1, 2)
        if sidx == 5: stamp(a, 3)
        if sidx in (0, 4, 8): stamp7(a, sidx // 4)
        for kk in range(2):
            ns, nk = (sidx, 1) if kk == 0 else (sidx + 1, 0)
            fill = {i: [] for i in range(32)}
            if ns <= 9:
                for t in range(8): fill[4 * t + 3].append(xr(ns, nk, t))
                o = 0 if kk == 0 else 4
                q = [i for i in range(o, 32) if i % 4 != 3]
                for j in range(8): fill[q[j]].append(wr(ns, nk, j >> 1, j & 1))
            if sidx == 1 and kk == 1: fill[18].append(item(GO_FETCH, lg='go'))
            if sidx == 2 and kk == 0: fill[18].append(item(capture_l(a, go_sgpr), needlg=['go']))
            if OPT['local'] and sidx == 7 and kk == 0:
                fill[17].append(item(['v_mov_b32 v240, v250', 'v_xor_b32 v241, s%d, v251' % S_XCC]))
                fill[18].append(item(['s_bfe_u32 s11, s%d, 0x10001' % W, 's_lshl_b32 s11, s11, 4', 'v_and_b32 v249, 15, v1']))
                fill[21].append(item(['v_add_u32 v249, s11, v249', 's_lshl_b32 s11, s3, %d' % (5 + OPT['fsx']), 's_add_u32 s11, s11, %s' % hex(F_X)]))
                fill[22].append(item(['v_lshlrev_b32 v249, %d, v249' % OPT['fsx'], 'buffer_load_dwordx2 v[242:243], v249, %s, s11 offen sc1' % s(SF, 4)], vm='fx'))
            if OPT['local'] and sidx == 9 and kk == 1:
                fill[8].append(item(capture_l(a, fx_eval), needvm=['fx']))
            i = 0
            for t in range(8):
                for mi in range(4):
                    g.wait(lg=[('w', sidx, kk, mi), ('x', sidx, kk, t)])
                    acc = v(C_ACC + (t * 4 + mi) * 4, 4)
                    a('v_mfma_f32_16x16x32_bf16 %s, %s, %s, %s' % (acc, v(C_WF[kk] + 4 * mi, 4), v(C_XF + 4 * t, 4), '0' if (sidx == 0 and kk == 0) else acc))
                    if kk == 1 and i == 3:
                        g.wait(lgall=True)
                        a('s_barrier')
                    for it in fill[i]: g.emit(it)
                    i += 1
    stamp(a, 4)
    N = 32
    def G(j): return C_ACC + (j >> 2) * 16 + 2 * (j & 3)
    def T(j): return 12 + 2 * (j % 16)
    for i in range(N + 8):
        if i < N: a('v_pk_mul_f32 %s, %s, s[60:61]' % (v(T(i), 2), v(G(i), 2)))
        j = i - 2
        if 0 <= j < N:
            a('v_exp_f32 v%d, v%d' % (T(j), T(j))); a('v_exp_f32 v%d, v%d' % (T(j) + 1, T(j) + 1))
            a('v_pk_mul_f32 %s, %s, %s' % (v(G(j), 2), v(G(j), 2), v(G(j) + 8, 2)))
        j = i - 4
        if 0 <= j < N: a('v_pk_add_f32 %s, %s, 1.0 op_sel_hi:[1,0]' % (v(T(j), 2), v(T(j), 2)))
        j = i - 5
        if 0 <= j < N:
            a('v_rcp_f32 v%d, v%d' % (T(j), T(j))); a('v_rcp_f32 v%d, v%d' % (T(j) + 1, T(j) + 1))
        j = i - 7
        if 0 <= j < N: a('v_pk_mul_f32 %s, %s, %s' % (v(G(j), 2), v(G(j), 2), v(T(j), 2)))
        j = i - 8
        if 0 <= j < N:
            t = j >> 2
            O = C_ACC + t * 16 + 8
            a('v_cvt_pk_bf16_f32 v%d, v%d, v%d' % (O + (j & 3), G(j), G(j) + 1))
            if j & 3 == 3:
                store2(a, 'buffer_store_dwordx4 %s, v%d, %s, s%%d offen offset:%d' % (v(O, 4), 237 if t < 4 else 11, s(SH, 4), (t & 3) * 1024), HO)
    L, Dn = a.newlabel('CR'), a.newlabel('CRD')
    a('ds_read_b32 v247, v254 offset:20')
    for i in range(16):
        a('v_mov_b64 %s, 0' % v(CA + 2 * i, 2))
    a('s_mov_b32 s11, 0x100000')
    a('s_waitcnt lgkmcnt(0)')
    a('v_cmp_eq_u32 vcc, 4, v247')
    a('s_cbranch_vccz %s' % L)
    for l in cv_g_reads(0, 0): a(l)
    def flag():
        a('s_waitcnt vmcnt(0)')
        a('s_mov_b64 exec, 3')
        store2(a, 'buffer_store_dwordx2 v[250:251], v10, %s, s%%d offen' % s(SF, 4), S_F1)
        a('s_mov_b64 exec, -1')
        stamp(a, 5)
    flag()
    a('s_branch K_conv')
    a.label(L)
    flag()
    L2 = a.newlabel('CR2')
    a.label(L2)
    a('ds_read_b32 v247, v254 offset:20')
    a('s_waitcnt lgkmcnt(0)')
    a('v_cmp_eq_u32 vcc, 4, v247')
    a('s_cbranch_vccnz %s' % Dn)
    a('s_sleep 2')
    a('s_sub_u32 s11, s11, 1')
    a('s_cbranch_scc0 %s' % L2)
    a.label(Dn)
    for l in cv_g_reads(0, 0): a(l)

UKR, UVR, UWR, UKU, UWU, UAC = 16, 60, 92, 108, 130, 138
def ut_pre(a):
    a('s_mul_i32 s11, s7, 6554')
    a('s_lshr_b32 s11, s11, 16')
    a('s_mul_i32 s69, s11, 10')
    a('s_sub_u32 s69, s7, s69')
    a('s_lshl_b32 s%d, s69, 5' % S_F2)
    a('s_add_u32 s%d, s%d, s11' % (S_F2, S_F2))
    a('s_lshl_b32 s%d, s%d, %d' % (S_F2, S_F2, OPT['fsu']))
    a('s_add_u32 s%d, s%d, %s' % (S_F2, S_F2, hex(F_U)))
    a('s_lshl_b32 s11, s11, 6')
    a('v_and_b32 v241, 0x38, v1')
    a('v_add_u32 v241, s11, v241')
    a('v_and_b32 v242, 7, v1')
    a('s_lshl_b32 s69, s69, 3')
    a('v_add_u32 v242, s69, v242')
    a('v_mul_u32_u24 v240, 1280, v241')
    a('v_lshl_add_u32 v240, v242, 4, v240')
    a('s_lshl_b32 s64, s69, 15')
    a('s_sub_u32 s11, 1984, s11')
    a('s_lshl_b32 s11, s11, 1')
    a('s_add_u32 s64, s64, s11')
    a('v_subrev_u32 v241, 3840, v240')
    a('v_lshlrev_b32 v242, 6, v242')
def ut_loads(a):
    SA, SB, SC = 44, 48, 52
    srd(a, SA, P_K, SZ_ACT)
    srd(a, SB, P_V, SZ_ACT)
    srd(a, SC, P_SK, 640 * 8)
    a('s_movk_i32 s11, 5120')
    for r in range(8):
        a('buffer_load_dwordx4 %s, v240, %s, %s offen offset:%d' % (v(UKR + 12 + 4 * r, 4), s(SA, 4), '0' if r < 4 else 's11', 1280 * (r & 3)))
    for r in range(3):
        a('buffer_load_dwordx4 %s, v241, %s, 0 offen offset:%d' % (v(UKR + 4 * r, 4), s(SA, 4), 1280 * r))
    for i in range(4):
        a('buffer_load_dwordx4 %s, v242, %s, 0 offen offset:%d' % (v(UWR + 4 * i, 4), s(SC, 4), 16 * i))
    for r in range(8):
        a('buffer_load_dwordx4 %s, v240, %s, %s offen offset:%d' % (v(UVR + 4 * r, 4), s(SB, 4), '0' if r < 4 else 's11', 1280 * (r & 3)))
def ut_k(a):
    MASK = 65
    a('s_mov_b32 s%d, 0xffff0000' % MASK)
    for dw in range(4):
        for r in range(11):
            a('v_lshlrev_b32 v%d, 16, v%d' % (UKU + 2 * r, UKR + 4 * r + dw))
            a('v_and_b32 v%d, s%d, v%d' % (UKU + 2 * r + 1, MASK, UKR + 4 * r + dw))
        for ch in range(2):
            for t in range(4):
                src = UWR + 4 * dw + 2 * ch + (t >> 1)
                if t & 1:
                    a('v_and_b32 v%d, s%d, v%d' % (UWU + 2 * t + ch, MASK, src))
                else:
                    a('v_lshlrev_b32 v%d, 16, v%d' % (UWU + 2 * t + ch, src))
        A = UAC + 16 * dw
        for r in range(8):
            a('v_pk_mul_f32 %s, %s, %s' % (v(A + 2 * r, 2), v(UKU + 2 * r, 2), v(UWU + 6, 2)))
        for t in (2, 1, 0):
            for r in range(8):
                a('v_pk_fma_f32 %s, %s, %s, %s' % (v(A + 2 * r, 2), v(UKU + 2 * (r + 3 - t), 2), v(UWU + 2 * t, 2), v(A + 2 * r, 2)))
def ut_v(a):
    MASK, T = 65, 66
    srd(a, 72, P_WS, SZ_ACT, WS_UT)
    a('v_and_b32 v12, 7, v1')
    a('v_lshrrev_b32 v13, 3, v1')
    a('v_xor_b32 v14, 7, v13')
    a('v_xor_b32 v14, v14, v12')
    a('v_lshlrev_b32 v14, 4, v14')
    a('v_lshl_add_u32 v14, v12, 10, v14')
    a('s_and_b32 s%d, s%d, 4' % (T, S_W))
    a('s_add_u32 s%d, s%d, s%d' % (T, T, S_W))
    a('s_lshl_b32 s%d, s%d, 13' % (T, T))
    a('v_add_u32 v14, s%d, v14' % T)
    a('v_add_u32 v15, s%d, v237' % T)
    a('v_lshlrev_b32 v13, 12, v13')
    for dw in range(4):
        A = UAC + 16 * dw
        for r in range(8):
            a('v_lshlrev_b32 v%d, 16, v%d' % (UKU + 2 * r, UVR + 4 * r + dw))
            a('v_and_b32 v%d, s%d, v%d' % (UKU + 2 * r + 1, MASK, UVR + 4 * r + dw))
        for r in range(8):
            a('v_pk_mul_f32 %s, %s, %s' % (v(A + 2 * r, 2), v(A + 2 * r, 2), v(UKU + 2 * r, 2)))
        O = UWR + 8 * (dw & 1)
        for ch in range(2):
            for i in range(4):
                a('v_cvt_pk_bf16_f32 v%d, v%d, v%d' % (O + 4 * ch + i, A + 2 * (7 - 2 * i) + ch, A + 2 * (6 - 2 * i) + ch))
            a('ds_write_b128 v14, %s offset:%d' % (v(O + 4 * ch, 4), (2 * dw + ch) * 128))
    for i in range(8):
        a('ds_read_b128 %s, v15 offset:%d' % (v(UKR + 4 * i, 4), 1024 * i))
    for i in range(8):
        a('v_xor_b32 v%d, %d, v12' % (UKU + i, i))
        a('v_lshl_add_u32 v%d, v%d, 4, v13' % (UKU + i, UKU + i))
    for i in range(8):
        a('s_add_u32 s%d, s64, %d' % (T, 32768 * i))
        a('s_waitcnt lgkmcnt(%d)' % (7 - i))
        a('buffer_store_dwordx4 %s, v%d, s[72:75], s%d offen sc1' % (v(UKR + 4 * i, 4), UKU + i, T))

CW = 13824
C_HA, C_HB, C_U = 0, 4640, 9280
C_EX = 2 * CW
CV_RB = 20
CV_DO, CV_LB, CV_T, CV_T2, CV_W, CV_M = 66, 67, 68, 69, 9, 8
CV_TG, CV_NX = 71, 70
CV_D = 18
CA, CG, CF = 108, [140, 12], [172, 44]
VG, VF, VU, VXW, VXR = 228, 229, 233, 234, 235
def gs_arrive(a):
    a('s_mov_b64 exec, 1')
    a('ds_add_u32 v255, v253')
    a('s_mov_b64 exec, -1')
    a('s_add_u32 s%d, s%d, 4' % (CV_TG, CV_TG))
def gs_wait(a, sleep=0):
    L, Dn = a.newlabel('CS'), a.newlabel('CSD')
    a('s_mov_b32 s11, 0x400000')
    a.label(L)
    a('ds_read_b32 v247, v255')
    a('s_waitcnt lgkmcnt(0)')
    a('v_cmp_le_u32 vcc, s%d, v247' % CV_TG)
    a('s_cbranch_vccnz %s' % Dn)
    if sleep: a('s_sleep %d' % sleep)
    a('s_sub_u32 s11, s11, 1')
    a('s_cbranch_scc0 %s' % L)
    a.label(Dn)
def cv_pre(a):
    srd(a, 72, P_SSMK, SZ_ACT)
    a('s_lshl_b32 s11, s7, 2')
    a('s_load_dword s%d, s[%d:%d], s11' % (CV_D, P_SSMD, P_SSMD + 1))
    a('s_or_b32 s11, s11, 4')
    a('s_load_dword s%d, s[%d:%d], s11' % (CV_D + 1, P_SSMD, P_SSMD + 1))
    a('s_and_b32 s%d, s%d, 3' % (CV_W, S_W))
    a('s_xor_b32 s11, s%d, 1' % CV_M)
    a('s_lshr_b32 s%d, s%d, s11' % (CV_T, CV_W))
    a('s_lshl_b32 s%d, s7, 1' % CV_DO)
    a('s_add_u32 s%d, s%d, s%d' % (CV_DO, CV_DO, CV_T))
    a('s_lshl_b32 s%d, s%d, 12' % (CV_DO, CV_DO))
    a('s_mul_i32 s%d, s%d, %d' % (CV_LB, CV_T, CW))
    a('s_add_u32 s%d, s%d, s%d' % (CV_LB, CV_LB, CV_RB))
    a('v_add_u32 v238, s%d, v237' % CV_DO)
    a('v_subrev_u32 v239, 2, v238')
    a('v_lshl_add_u32 v246, v1, 7, s%d' % CV_DO)
    a('s_lshr_b32 s11, s7, 5')
    a('s_lshl_b32 s11, s11, %d' % (5 + OPT['fsu']))
    a('s_add_u32 s11, s11, %s' % hex(F_U))
    a('v_min_u32 v248, 31, v1')
    a('v_lshl_add_u32 v248, v248, %d, s11' % OPT['fsu'])
    a('s_mov_b32 s%d, 0' % CV_T)
def cv_setup1(a, zero=True):
    W, LB = CV_W, CV_LB
    a('s_mul_i32 s65, s7, 1639')
    a('s_lshr_b32 s65, s65, 16')
    a('s_mul_i32 s%d, s65, 40' % S_F2)
    a('s_sub_u32 s%d, s7, s%d' % (S_F2, S_F2))
    a('s_lshl_b32 s65, s65, 2')
    a('s_add_u32 s65, s65, s%d' % W)
    a('s_lshl_b32 s65, s65, 6')
    a('s_add_u32 s%d, s%d, s65' % (S_F2, S_F2))
    a('s_lshl_b32 s%d, s%d, %d' % (S_F2, S_F2, OPT['fsz']))
    a('s_add_u32 s%d, s%d, %s' % (S_F2, S_F2, hex(F_Z)))
    a('s_andn2_b32 s65, s%d, s%d' % (W, CV_M))
    a('s_and_b32 s65, s65, 1')
    a('s_lshl_b32 s65, s65, 8')
    a('s_add_u32 s65, s65, s%d' % LB)
    a('v_and_b32 v%d, 1, v1' % VG)
    a('v_xor_b32 v%d, 1, v%d' % (VG, VG))
    a('v_mul_u32_u24 v%d, %d, v%d' % (VG, C_HB - C_HA, VG))
    a('v_bfe_u32 v204, v1, 1, 3')
    a('v_lshl_add_u32 v%d, v204, 6, v%d' % (VG, VG))
    a('v_lshrrev_b32 v204, 4, v1')
    a('v_lshl_add_u32 v%d, v204, 4, v%d' % (VG, VG))
    a('s_add_u32 s69, s65, %d' % (C_HA + 64))
    a('v_add_u32 v%d, s69, v%d' % (VG, VG))
    a('v_and_b32 v205, 15, v1')
    a('v_lshlrev_b32 v205, 2, v205')
    a('v_lshlrev_b32 v%d, 4, v204' % VF)
    a('v_sub_u32 v%d, v%d, v205' % (VF, VF))
    a('s_add_u32 s69, s65, %d' % (C_U + 60))
    a('v_add_u32 v%d, s69, v%d' % (VF, VF))
    for i in range(1, 4):
        a('v_add_u32 v%d, %d, v%d' % (VF + i, 1024 * i, VF))
    a('v_lshl_add_u32 v205, v204, 7, v205')
    a('s_lshl_b32 s65, s%d, 10' % W)
    a('s_sub_u32 s65, %d, s65' % (C_U + 444 + 3072))
    a('s_add_u32 s65, s65, s%d' % CV_RB)
    a('v_sub_u32 v%d, s65, v205' % VU)
    a('s_mul_i32 s65, s%d, %d' % (CV_M, CW - 8192))
    a('s_add_u32 s65, s65, 8192')
    a('s_mul_i32 s65, s65, s%d' % W)
    a('s_xor_b32 s69, s%d, 1' % CV_M)
    a('s_mul_i32 s69, s69, %d' % C_EX)
    a('s_add_u32 s69, s69, s%d' % CV_RB)
    a('s_add_u32 s65, s65, s69')
    a('v_add_u32 v%d, s65, v237' % VXW)
    a('s_lshl_b32 s65, s%d, 11' % W)
    a('s_add_u32 s69, s69, s65')
    a('v_add_u32 v%d, s69, v237' % VXR)
    a('s_lshl_b32 s%d, s7, 13' % CV_DO)
    a('s_add_u32 s%d, s%d, s65' % (CV_DO, CV_DO))
    if zero:
        for i in range(16):
            a('v_mov_b64 %s, 0' % v(CA + 2 * i, 2))
def cv_pads():
    return [['v_mov_b64 v[206:207], 0', 'v_lshl_add_u32 v247, v1, 3, s%d' % CV_LB, 'ds_write_b64 v247, v[206:207] offset:%d' % C_HA],
            ['ds_write_b64 v247, v[206:207] offset:%d' % C_HB],
            ['v_lshl_add_u32 v247, v1, 2, s%d' % CV_LB, 'ds_write_b32 v247, v206 offset:%d' % (C_U + 4096)]]
def cv_fix():
    R = CF[0]
    return [['v_mov_b32 v247, s%d' % CV_LB, 'ds_read_b128 %s, v247 offset:%d' % (v(R, 4), C_HA + 512)],
            'v_alignbit_b32 v%d, v%d, v%d, 16' % (R + 7, R + 3, R + 2),
            'v_alignbit_b32 v%d, v%d, v%d, 16' % (R + 6, R + 2, R + 1),
            'v_alignbit_b32 v%d, v%d, v%d, 16' % (R + 5, R + 1, R),
            'v_lshlrev_b32 v%d, 16, v%d' % (R + 4, R),
            'ds_write_b128 v247, %s offset:%d' % (v(R + 4, 4), C_HB + 512)]
def cv_h_items():
    it = []
    for (dst, vo) in ((C_HA + 512, 238), (C_HB + 512, 239)):
        for i in range(4):
            it.append(item('buffer_load_dwordx4 v%d, s[72:75], 0 offen offset:%d lds' % (vo, i * 1024),
                           pre=['s_add_u32 m0, s%d, %d' % (CV_LB, dst)] if i == 0 else [], vm='cvh'))
    return it
def cv_h_items_half():
    pre = ['s_and_b32 s11, s%d, 1' % S_W, 's_lshl_b32 s11, s11, 1', 'v_subrev_u32 v239, s11, v238',
           's_mul_i32 s11, s11, %d' % (C_HB // 2), 's_add_u32 s11, s11, s%d' % CV_LB, 's_add_u32 m0, s11, 512']
    return [item('buffer_load_dwordx4 v239, s[72:75], 0 offen offset:%d lds' % (i * 1024), pre=pre if i == 0 else [], vm='cvh') for i in range(4)]
def cv_u_loads(a):
    srd(a, 48, P_WS, SZ_ACT, WS_UT)
    a('s_add_u32 m0, s%d, %d' % (CV_LB, C_U))
    a('s_nop 0')
    for i in range(4):
        a('buffer_load_dwordx4 v238, s[48:51], 0 offen offset:%d sc1 lds' % (i * 1024))
def cv_try_u(a):
    L = a.newlabel('UT')
    a('v_cmp_eq_u64 vcc, %s, v[244:245]' % NC)
    a('s_cmp_eq_u64 vcc, -1')
    a('s_cbranch_scc0 %s' % L)
    cv_u_loads(a)
    a('s_mov_b32 s%d, 1' % CV_T)
    a.label(L)
    if OPT['stamp'] == 9: a('s_add_u32 s96, s%d, 1' % CV_T)
def cv_g_reads(j, b):
    return ['ds_read_b128 %s, v%d offset:%d' % (v(CG[b] + 4 * i, 4), VG, 64 * j + 512 * i) for i in range(8)]
def cv_f_reads(j, b):
    L = []
    for i in range(8):
        rb = 7 - i
        o = (512 * (rb & 1) + 64 * j) // 4
        L.append('ds_read2_b32 %s, v%d offset0:%d offset1:%d' % (v(CF[b] + 4 * i, 2), VF + (rb >> 1), o, o + 1))
        L.append('ds_read2_b32 %s, v%d offset0:%d offset1:%d' % (v(CF[b] + 4 * i + 2, 2), VF + (rb >> 1), o + 2, o + 3))
    return L

A_STRIDE = 6144
LDS_Z = CONV_BASE + 4 * A_STRIDE
LDS_Q = [40960, 90112]
def chunk_addrs(a, dst, tmp, sbase):
    for i in range(3):
        a('v_add_u32 v%d, %d, v1' % (tmp, 64 * i))
        a('v_mul_u32_u24 v%d, 205, v%d' % (dst + i, tmp))
        a('v_lshrrev_b32 v%d, 11, v%d' % (dst + i, dst + i))
        a('v_mul_u32_u24 v%d, 1120, v%d' % (dst + i, dst + i))
        a('v_lshl_add_u32 v%d, v%d, 4, v%d' % (dst + i, tmp, dst + i))
        a('v_add_u32 v%d, s%d, v%d' % (dst + i, sbase, dst + i))
    a('v_lshrrev_b32 v%d, 5, v1' % tmp)
    a('v_lshl_add_u32 v%d, v%d, 30, v%d' % (dst + 2, tmp, dst + 2))
def lds_q_base(a, dst, w):
    a('s_lshr_b32 s%d, s%d, 1' % (dst, w))
    a('s_mul_i32 s%d, s%d, %d' % (dst, dst, LDS_Q[1] - LDS_Q[0] - 8192))
    a('s_lshl_b32 s11, s%d, 12' % w)
    a('s_add_u32 s%d, s%d, s11' % (dst, dst))
    a('s_add_u32 s%d, s%d, %d' % (dst, dst, LDS_Q[0]))
def aterm(a):
    W = CV_W
    RB, CB, T, T2 = 65, 66, 67, 68
    SQ, SZ, SG = 52, 44, 60
    if OPT['xc'] == 2: a('s_endpgm')
    a('s_setprio %d' % OPT['aprio'])
    a('s_lshl_b32 s%d, s3, 2' % RB)
    a('s_lshr_b32 s%d, s4, 3' % CB)
    a('s_add_u32 s%d, s%d, s%d' % (RB, RB, CB))
    a('s_and_b32 s%d, s4, 7' % CB)
    srd(a, SQ, P_Q, SZ_ACT)
    a('s_lshl_b32 s%d, s%d, 6' % (T, RB))
    a('s_lshl_b32 s%d, s%d, 4' % (T2, W))
    a('s_add_u32 s%d, s%d, s%d' % (T, T, T2))
    a('v_and_b32 v8, 15, v1')
    a('v_add_u32 v8, s%d, v8' % T)
    a('v_lshrrev_b32 v9, 4, v1')
    a('s_mul_i32 s%d, s%d, 1280' % (T, T))
    a('s_mul_i32 s%d, s%d, 160' % (T2, CB))
    a('s_add_u32 s%d, s%d, s%d' % (T, T, T2))
    chunk_addrs(a, 12, 10, T)
    a('s_lshl_b32 s%d, s%d, 12' % (T2, W))
    a('s_add_u32 s%d, s%d, %d' % (T2, T2, CONV_BASE + 36864))
    gs_wait(a)
    for i in range(3):
        a('s_add_u32 m0, s%d, %d' % (T2, 1024 * i))
        a('s_nop 0')
        a('buffer_load_dwordx4 v%d, %s, 0 offen lds' % (12 + i, s(SQ, 4)))
    a('v_and_b32 v10, 15, v1')
    a('v_mul_u32_u24 v10, 160, v10')
    a('v_lshl_add_u32 v10, v9, 3, v10')
    a('v_add_u32 v10, s%d, v10' % T2)
    a('s_lshl_b32 s%d, s%d, 5' % (T, RB))
    a('s_add_u32 s%d, s%d, s%d' % (T, T, W))
    a('s_add_u32 s%d, s%d, 27' % (T, T))
    a('s_lshl_b32 s%d, s%d, %d' % (T, T, OPT['fsh'] + 1))
    a('v_and_b32 v25, 1, v1')
    a('v_lshl_add_u32 v25, v25, %d, s%d' % (OPT['fsh'], T))
    FL = 'buffer_load_dwordx2 v[26:27], v25, %s, 0 offen sc1' % s(SF, 4)
    a(FL)
    a('v_lshlrev_b32 v8, 2, v8')
    srd(a, SG, P_WS, 8192, WS_G)
    a('s_mul_i32 s%d, s%d, %d' % (T, W, A_STRIDE))
    a('s_add_u32 s%d, s%d, %d' % (T, T, CONV_BASE))
    a('v_add_u32 v24, s%d, v237' % T)
    a('v_and_b32 v11, 15, v1')
    a('v_lshlrev_b32 v11, 4, v11')
    a('v_lshl_add_u32 v11, v9, 13, v11')
    a('s_waitcnt vmcnt(0)')
    poll_check(a, FL, 26, T2, sleep=8)
    a('buffer_load_dword v8, v8, %s, 0 offen sc1' % s(SG, 4))
    A = 40
    for mt in range(5):
        a('ds_read_b64 %s, v10 offset:%d' % (v(12 + 2 * mt, 2), 32 * mt))
    a('s_lshl_b32 s%d, s%d, 2' % (T, CB))
    a('s_lshr_b32 s%d, s%d, 3' % (T2, RB))
    a('s_add_u32 s%d, s%d, s%d' % (T, T, T2))
    a('s_lshl_b32 s%d, s%d, 6' % (T, T))
    a('s_mul_i32 s%d, s%d, 10' % (T2, W))
    a('s_add_u32 s%d, s%d, s%d' % (T, T, T2))
    a('s_lshl_b32 s%d, s%d, %d' % (T, T, OPT['fsz']))
    a('s_add_u32 s%d, s%d, %s' % (T, T, hex(F_Z)))
    a('v_min_u32 v25, 9, v1')
    a('v_lshl_add_u32 v25, v25, %d, s%d' % (OPT['fsz'], T))
    a('s_mul_i32 s%d, s%d, 40' % (CB, CB))
    a('s_add_u32 s%d, s%d, s%d' % (CB, CB, T2))
    a('s_lshl_b32 s%d, s%d, 13' % (CB, CB))
    a('s_lshl_b32 s%d, s%d, 8' % (RB, RB))
    a('s_add_u32 s%d, s%d, s%d' % (CB, CB, RB))
    a('s_lshl_b32 s%d, s%d, 8' % (RB, T2))
    a('s_add_u32 s%d, s%d, %d' % (RB, RB, LDS_Z))
    a('s_mov_b32 s%d, 0xffff0000' % T)
    a('s_waitcnt lgkmcnt(0)')
    for i in range(10):
        a('v_lshlrev_b32 v%d, 16, v%d' % (A + 2 * i, 12 + i))
        a('v_and_b32 v%d, s%d, v%d' % (A + 2 * i + 1, T, 12 + i))
    a('s_waitcnt vmcnt(0)')
    a('v_mov_b32 v9, v8')
    for i in range(10):
        a('v_pk_mul_f32 %s, %s, v[8:9]' % (v(A + 2 * i, 2), v(A + 2 * i, 2)))
    a('v_sub_f32 v8, 1.0, v8')
    a('v_sub_f32 v9, 1.0, v9')
    a('ds_write_b64 v24, v[8:9] offset:5120')
    for mt in range(5):
        a('ds_write_b128 v24, %s offset:%d' % (v(A + 4 * mt, 4), 1024 * mt))
    if OPT['ztrig'] >= 0:
        L, Dn = a.newlabel('TW'), a.newlabel('TWD')
        a('s_mov_b32 s11, 0x100000')
        a.label(L)
        a('ds_read_b32 v247, v254 offset:4')
        a('s_waitcnt lgkmcnt(0)')
        a('v_cmp_eq_u32 vcc, 1, v247')
        a('s_cbranch_vccnz %s' % Dn)
        a('s_sleep %d' % OPT['tsl'])
        a('s_sub_u32 s11, s11, 1')
        a('s_cbranch_scc0 %s' % L)
        a.label(Dn)
    poll(a, FL, 26, T2, sleep=OPT['zsl'])
    stamp(a, 3)
    for i in range(3):
        a('s_add_u32 m0, s%d, %d' % (RB, 1024 * i))
        if i == 2: a('s_mov_b32 exec_hi, 0')
        else: a('s_nop 0')
        a('buffer_load_dwordx4 v11, %s, s%d offen sc1 lds' % (s(SZ, 4), CB))
        if i < 2: a('s_add_u32 s%d, s%d, %d' % (CB, CB, 4 * 8192))
    a('s_mov_b64 exec, -1')
    a('s_waitcnt vmcnt(0) lgkmcnt(0)')
    stamp_end(a)
    a('s_endpgm')

def conv(a):
    SZ, DO, T, W = 44, CV_DO, CV_T, CV_W
    if OPT['xc'] == 1: a('s_endpgm')
    for l in cv_f_reads(0, 0): a(l)
    srd(a, SZ, P_WS, SZ_ACT, WS_Z4)
    a('s_lshl_b32 s%d, s%d, 1' % (T, CV_M))
    stamp(a, 7); stamp(a, 3, 6)
    def it(b, nxt):
        a('s_waitcnt lgkmcnt(0)')
        i = 0
        for n in range(8):
            for aa in range(n + 1):
                acc = v(CA + 4 * n, 4)
                a('v_mfma_f32_16x16x32_bf16 %s, %s, %s, %s' % (acc, v(CG[b] + 4 * aa, 4), v(CF[b] + 4 * (n - aa), 4), acc))
                if i in nxt: a(nxt.pop(i))
                i += 1
    def rd(j, b):
        g_, f_ = cv_g_reads(j, b), cv_f_reads(j, b)
        L = []
        for i in range(8): L += [g_[i], f_[2 * i], f_[2 * i + 1]]
        return dict(enumerate(L))
    def flag():
        a('s_waitcnt vmcnt(0)')
        set_flag(a, S_F1)
        a('s_mov_b32 s%d, %s' % (S_F1, hex(OOB)))
        stamp(a, 6)
    a.label('CV_loop')
    it(0, rd(1, 1))
    nx = rd(2, 0)
    for k in range(5):
        nx[26 + k] = 'v_add_u32 v%d, 128, v%d' % (VG + k, VG + k)
    it(1, nx)
    a('s_sub_u32 s%d, s%d, 1' % (T, T))
    a('s_cbranch_scc0 CV_loop')
    it(0, rd(1, 1))
    nx = {}
    for n in range(8):
        nx[(n + 1) * (n + 2) // 2 - 1 + 9] = 'ds_write_b128 v%d, %s offset:%d' % (VXW, v(CA + 4 * n, 4), 1024 * n)
    it(1, nx)
    stamp(a, 8); stamp(a, 4, 6)
    for i in range(4):
        a('s_lshl_b32 s%d, s%d, 16' % (48 + i, CV_D + (i >> 1)) if not (i & 1) else 's_and_b32 s%d, s%d, 0xffff0000' % (48 + i, CV_D + (i >> 1)))
    a('s_nop 4')
    for i in sorted(nx): a(nx[i])
    a('s_waitcnt lgkmcnt(0)')
    gs_arrive(a)
    gs_wait(a)
    stamp(a, 9)
    a('s_mov_b32 s11, 0xffff0000')
    a('s_cmp_eq_u32 s%d, 1' % CV_M)
    a('s_cbranch_scc1 CV_epiB')
    P, UR, O = 12, 48, 72
    def finish(nch, reg):
        for un in range(nch // 2):
            for t in range(2):
                for hh in range(2):
                    for c in (2 * un, 2 * un + 1):
                        u = UR + 4 * c + 2 * t + hh
                        R = reg(c, t) + 2 * hh
                        a('v_and_b32 v%d, s11, v%d' % (68 + (c & 1), u))
                        a('v_lshlrev_b32 v%d, 16, v%d' % (u, u))
                        a('v_fmac_f32 v%d, s%d, v%d' % (R, 48 + c, 68 + (c & 1)))
                        a('v_fmac_f32 v%d, s%d, v%d' % (R + 1, 48 + c, u))
                    R0, R1 = reg(2 * un, t) + 2 * hh, reg(2 * un + 1, t) + 2 * hh
                    oo = O + 8 * un + 4 * t + 2 * hh
                    a('v_cvt_pk_bf16_f32 v%d, v%d, v%d' % (oo, R0, R1))
                    a('v_cvt_pk_bf16_f32 v%d, v%d, v%d' % (oo + 1, R0 + 1, R1 + 1))
                if un == 1 and t == 0: a('s_add_u32 s%d, s%d, 8192' % (DO, DO))
                a('buffer_store_dwordx4 %s, v237, %s, s%d offen offset:%d sc1' % (v(O + 8 * un + 4 * t, 4), s(SZ, 4), DO, t * 1024))
    def ureads(nch):
        for c in range(nch):
            for t in range(2):
                for hh in range(2):
                    a('ds_read_b32 v%d, v%d offset:%d' % (UR + 4 * c + 2 * t + hh, VU, c * CW + 512 * (1 - t) + 64 * (1 - hh)))
    for c in range(2):
        for t in range(2):
            for h in range(2):
                a('ds_read_b128 %s, v%d offset:%d' % (v(P + 16 * c + 8 * t + 4 * h, 4), VXR, (2 * c + h) * 8192 + t * 1024))
    ureads(2)
    a('s_waitcnt lgkmcnt(8)')
    for c in range(2):
        for t in range(2):
            R = P + 16 * c + 8 * t
            a('v_pk_add_f32 %s, %s, %s' % (v(R, 2), v(R, 2), v(R + 4, 2)))
            a('v_pk_add_f32 %s, %s, %s' % (v(R + 2, 2), v(R + 2, 2), v(R + 6, 2)))
    a('s_waitcnt lgkmcnt(0)')
    gs_arrive(a)
    finish(2, lambda c, t: P + 16 * c + 8 * t)
    a('s_cmp_lt_u32 s%d, 4' % S_W)
    a('s_cbranch_scc1 K_prep_g2b')
    stamp(a, 1)
    a('s_waitcnt vmcnt(0)')
    stamp(a, 2)
    set_flag(a, S_F2)
    a('s_branch K_aterm')
    a.label('CV_epiB')
    for c in range(4):
        for t in range(2):
            a('ds_read_b128 %s, v%d offset:%d' % (v(P + 8 * c + 4 * t, 4), VXR, c * CW + t * 1024))
    ureads(4)
    a('v_lshlrev_b32 v247, %d, v1' % OPT['fsz'])
    a('s_waitcnt lgkmcnt(0)')
    gs_arrive(a)
    finish(4, lambda c, t: P + 8 * c + 4 * t)
    stamp(a, 1)
    a('s_waitcnt vmcnt(0)')
    stamp(a, 2)
    a('s_mov_b64 exec, 3')
    a('buffer_store_dwordx2 v[250:251], v247, %s, s%d offen sc1' % (s(SF, 4), S_F2))
    a('s_mov_b64 exec, -1')
    a.label('K_aterm')
    aterm(a)

G2_SW = 72
G2_KB, G2_O, G2_T, G2_T2, G2_LB, G2_RB, G2_CB = 65, 66, 67, 68, 69, 8, 9
G2_X = 7
G2_ACC, G2_WB, G2_HB = 28, 108, 188
def g2_lds(r):
    return (49152 + r * 20480) if r < 2 else ((r - 2) * 20480)
def g2_ks(p, dst):
    L = (['s_xor_b32 s%d, s%d, %d' % (dst, G2_X, 4 * p), 's_add_u32 s%d, s%d, s%d' % (dst, dst, G2_KB)] if p < 12 else
         ['s_add_u32 s%d, s%d, %d' % (dst, G2_KB, 4 * p)]) + [
         's_cmp_ge_u32 s%d, 54' % dst,
         's_cselect_b32 s%d, 54, 0' % G2_T,
         's_sub_u32 s%d, s%d, s%d' % (dst, dst, G2_T)]
    if p == 13:
        L += ['s_cmp_ge_u32 s%d, 2' % S_W, 's_cselect_b32 s%d, 60, s%d' % (dst, dst)]
    return L
def g2_w_items(p, slot, va=237):
    B = G2_WB + 20 * slot
    it = []
    for t in range(5):
        pre = g2_ks(p, G2_O) + ['s_mul_i32 s%d, s%d, 40960' % (G2_O, G2_O)] if t == 0 else []
        it.append(item('buffer_load_dwordx4 %s, v%d, %s, s%d offen offset:%d sc1' % (v(B + 4 * t, 4), va if t < 4 else va + 1, s(G2_SW, 4), G2_O, (t & 3) * 1024), pre, vm=('w', p)))
    return it
def g2_wl_items(p, r, O=None, va=237):
    O = G2_O if O is None else O
    it = []
    for t in range(5):
        pre = []
        if t == 0:
            pre = g2_ks(p, O) + ['s_mul_i32 s%d, s%d, 40960' % (O, O), 's_add_u32 m0, s%d, %d' % (G2_LB, g2_lds(r))]
        if t == 4:
            pre = ['s_add_u32 m0, s%d, %d' % (G2_LB, g2_lds(r) + 4096)]
        it.append(item('buffer_load_dwordx4 v%d, %s, s%d offen offset:%d sc1 lds' % (va if t < 4 else va + 1, s(G2_SW, 4), O, (t & 3) * 1024), pre, vm=('wl', p)))
    return it
def fw_addr(a):
    a('s_and_b32 s11, s4, 7')
    a('s_mul_i32 s11, s11, 5')
    a('s_lshr_b32 s11, s11, 2')
    a('s_mul_i32 s11, s11, %d' % (18 << OPT['fsw']))
    a('s_add_u32 s11, s11, %s' % hex(F_W))
    a('v_min_u32 v248, 35, v1')
    a('v_lshl_add_u32 v248, v248, %d, s11' % OPT['fsw'])
def g2_pre(a, allw=False):
    RB, CB, T, T2 = G2_RB, G2_CB, G2_T, G2_T2
    a('s_lshl_b32 s%d, s3, 2' % RB)
    a('s_lshr_b32 s%d, s4, 3' % CB)
    a('s_add_u32 s%d, s%d, s%d' % (RB, RB, CB))
    a('s_and_b32 s%d, s4, 7' % CB)
    a('s_mul_i32 s%d, s%d, 5120' % (T, CB))
    a('s_add_u32 s%d, s%d, %s' % (T, T, hex(WS_W2P)))
    srd(a, G2_SW, P_WS, 53 * 40960 + 5120, 's%d' % T)
    if OPT['rot2']:
        a('s_and_b32 s%d, s%d, 3' % (T, RB))
        a('s_mul_i32 s%d, s%d, %d' % (T, T, 13 if OPT['rot2r'] else 0))
        a('s_mul_i32 s%d, s%d, 7' % (T2, CB))
        a('s_add_u32 s%d, s%d, s%d' % (T, T, T2))
        a('s_add_u32 s%d, s%d, s%d' % (T, T, S_W))
        a('s_cmp_ge_u32 s%d, 54' % T)
        a('s_cselect_b32 s%d, 54, 0' % T2)
        a('s_sub_u32 s%d, s%d, s%d' % (G2_KB, T, T2))
    else:
        a('s_mov_b32 s%d, s%d' % (G2_KB, S_W))
    a('s_and_b32 s%d, s%d, %d' % (G2_X, RB, 3 if OPT['wx'] else 0))
    a('s_lshl_b32 s%d, s%d, 2' % (G2_X, G2_X))
    a('s_mul_i32 s%d, s%d, 5120' % (G2_LB, S_W))
    a('v_add_u32 v238, 4096, v237')
    a('s_mul_i32 s%d, s%d, 5' % (T, CB))
    a('s_lshr_b32 s%d, s%d, 2' % (T, T))
    a('s_mul_i32 s%d, s%d, %d' % (T, T, 18 << OPT['fsw']))
    a('s_add_u32 s%d, s%d, %s' % (T, T, hex(F_W)))
    if not allw:
        a('s_cmp_eq_u32 s%d, 0' % S_W)
        a('s_cselect_b32 s%d, s%d, %s' % (T, T, hex(OOB)))
    a('v_min_u32 v248, 35, v1')
    a('v_lshl_add_u32 v248, v248, %d, s%d' % (OPT['fsw'], T))

def g2_fh_addr(a):
    T = G2_T
    a('v_min_u32 v247, 13, v1')
    a('v_lshlrev_b32 v247, 2, v247')
    a('v_cmp_gt_u32 vcc, 12, v1')
    a('v_xor_b32 v248, s%d, v247' % G2_X)
    a('s_nop 0')
    a('v_cndmask_b32 v248, v247, v248, vcc')
    a('v_add_u32 v248, s%d, v248' % G2_KB)
    a('v_subrev_u32 v247, 54, v248')
    a('v_min_u32 v248, v248, v247')
    a('s_lshl_b32 s%d, s%d, %d' % (T, G2_RB, 6 + OPT['fsh']))
    a('v_lshl_add_u32 v248, v248, %d, s%d' % (OPT['fsh'], T))

def g2_setup(a):
    RB, CB, W = G2_RB, G2_CB, S_W
    SHh, SO = 56, 48
    T, T2 = G2_T, G2_T2
    a('v_mov_b32 v22, v248')
    a('v_mov_b32 v2, v237')
    a('v_mov_b32 v3, v238')
    a('s_mul_i32 s%d, s%d, %d' % (T, RB, 54 * 4096))
    if WS_H: a('s_add_u32 s%d, s%d, %s' % (T, T, hex(WS_H)))
    srd(a, SHh, P_WS, 54 * 4096, 's%d' % T)
    for j in range(4):
        a('s_xor_b32 s%d, s%d, %d' % (T, W, j))
        a('s_lshl_b32 s%d, s%d, 10' % (T, T))
        a('v_add_u32 v%d, s%d, v2' % (4 + j, T))
    a('v_add_u32 v24, s%d, v2' % G2_LB)
    a('v_add_u32 v23, %d, v24' % g2_lds(1))
def g2_setup2(a):
    RB, CB, W = G2_RB, G2_CB, S_W
    SHh, SO = 56, 48
    T, T2 = G2_T, G2_T2
    a('s_lshl_b32 s%d, s%d, 6' % (T, RB))
    a('s_lshl_b32 s%d, s%d, 4' % (T2, W))
    a('s_add_u32 s%d, s%d, s%d' % (T, T, T2))
    a('s_mul_i32 s%d, s%d, 1280' % (T, T))
    a('s_mul_i32 s%d, s%d, 160' % (T2, CB))
    a('s_add_u32 s%d, s%d, s%d' % (T, T, T2))
    chunk_addrs(a, 12, 10, T)
    lds_q_base(a, T2, W)
    a('v_add_u32 v15, s%d, v2' % T2)
    a('v_lshrrev_b32 v9, 4, v1')
    a('v_and_b32 v10, 15, v1')
    a('v_mul_u32_u24 v10, 160, v10')
    a('v_lshl_add_u32 v10, v9, 3, v10')
    a('v_add_u32 v10, s%d, v10' % T2)
    srd(a, SO, P_OUT, SZ_ACT)
    a('s_mul_i32 s%d, s%d, %d' % (T, W, A_STRIDE))
    a('s_add_u32 s%d, s%d, %d' % (T, T, CONV_BASE))
    a('v_add_u32 v11, s%d, v2' % T)
    a('v_lshlrev_b32 v25, 9, v9')
    a('v_bfe_u32 v9, v1, 1, 3')
    a('v_lshl_add_u32 v25, v9, 4, v25')
    a('v_and_b32 v9, 1, v1')
    a('v_lshl_add_u32 v25, v9, 2, v25')
    a('s_and_b32 s%d, s%d, 1' % (T, W))
    a('s_lshl_b32 s%d, s%d, 7' % (T, T))
    a('s_lshr_b32 s%d, s%d, 1' % (T2, W))
    a('s_lshl_b32 s%d, s%d, 3' % (T2, T2))
    a('s_add_u32 s%d, s%d, s%d' % (T, T, T2))
    a('s_add_u32 s%d, s%d, %d' % (T, T, LDS_Z))
    a('v_add_u32 v25, s%d, v25' % T)

def gemm2(a):
    RB, CB, W = G2_RB, G2_CB, S_W
    SHh, SQ, SZ, SG, SO = 56, 52, 44, 60, 48
    O, T, T2 = G2_O, G2_T, G2_T2
    ACC, WB, HB = G2_ACC, G2_WB, G2_HB
    DH = 4
    OH, TH = 70, 71
    g = G1(a)
    FH_LOAD = 'buffer_load_dwordx2 v[26:27], v22, %s, 0 offen sc1' % s(SF, 4)
    FZ_LOAD = 'buffer_load_dwordx2 v[252:253], v25, %s, 0 offen sc1' % s(SF, 4)
    a.label('K_gemm2b')
    order = [0, 1, 2, 3, 4, 8, 5, 9, 6, 10, 7, 11, 12, 13]
    slot = [0, 1, 2, 3, 2, 0, 2, 1, 2, 3, 2, 0, 1, 3]
    refill = {0: 8, 1: 9, 2: 4, 3: 10, 4: 5, 5: 11, 6: 6, 7: 12, 8: 7, 9: 13}
    slow = []
    def fh_check(bit):
        S, B = a.newlabel('FHS'), a.newlabel('FHB')
        slow.append((S, B, bit))
        return ['s_bitcmp1_b32 s76, %d' % bit, 's_cbranch_scc0 %s' % S, B + ':']
    def ks_lines(p, dst, tmp):
        L = [['s_xor_b32 s%d, s%d, %d' % (dst, G2_X, 4 * p), 's_add_u32 s%d, s%d, s%d' % (dst, dst, G2_KB)] if p < 12 else 's_add_u32 s%d, s%d, %d' % (dst, G2_KB, 4 * p), 's_sub_u32 s%d, s%d, 54' % (tmp, dst), 's_min_u32 s%d, s%d, s%d' % (dst, dst, tmp)]
        if p == 13: L += [['s_cmp_ge_u32 s%d, 2' % S_W, 's_cselect_b32 s%d, 60, s%d' % (dst, dst)]]
        return L
    def h_prep(r):
        return [fh_check(order[r])] + ks_lines(order[r], OH, TH) + [('s_lshl_b32 s%d, s%d, 12' % (OH, OH)) if not (OPT['xh'] and r >= 4) else 's_mov_b32 s%d, 0x7000000' % OH]
    def h_item(r, t):
        B = HB + 16 * (r % DH)
        return item('buffer_load_dwordx4 %s, v%d, %s, s%d offen%s' % (v(B + 4 * t, 4), 4 + t, s(SHh, 4), OH, [' sc1', '', ' sc0', ' nt'][OPT['xsc']]), vm=('h', r, t))
    for r in range(DH):
        for l in h_prep(r): g.emit(item(l))
        if r == 0: stamp(a, 7)
        stamp(a, 5 + r, 5)
        for t in range(4): g.emit(h_item(r, t))
    ZR = WB + 40
    GQ = WB
    ZU = WB + 20
    MASK = 71
    rbuf = [g2_lds(2), g2_lds(3), g2_lds(0)]
    for r in range(14):
        p = order[r]
        if r in (1, 3, 5, 7, 9, 11, 12, 13): stamp(a, (1, 3, 5, 7, 9, 11, 12, 13).index(r) + 2, 3)
        if r < 8: stamp(a, r + 1, 4)
        if r == 1: stamp(a, 9, 5)
        if r == 3: stamp7(a, 3)
        if r == 0 and OPT['stamp'] == 4: a('s_mov_b32 s98, s80')
        if r == 0: stamp(a, 1, 3)
        fill = {i: [] for i in range(20)}
        if r + DH < 14:
            for i, l in enumerate(h_prep(r + DH)): fill[min(i, 4) if i < 5 else 4].append(item(l))
            for j in range(4): fill[5 * j + 4].append(h_item(r + DH, j))
        free = [5, 6, 7, 8, 10, 11, 12, 13, 15, 16, 17, 18] if r + DH < 14 else list(range(20))
        extra = []
        if r - 1 in refill:
            pp = refill[r - 1]; Bs = WB + 20 * slot[r - 1]
            if pp >= 8:
                extra += [item(l) for l in ks_lines(pp, O, T)] + [item(('s_mul_i32 s%d, s%d, 40960' % (O, O)) if not OPT['xw'] else 's_mov_b32 s%d, 0x7000000' % O)]
                extra += [item('buffer_load_dwordx4 %s, v%d, %s, s%d offen offset:%d sc1' % (v(Bs + 4 * t, 4), 2 if t < 4 else 3, s(G2_SW, 4), O, (t & 3) * 1024), vm=('w', pp)) for t in range(5)]
            else:
                lb = g2_lds(pp - 4); ad = 24
                if pp == 5: ad, lb = 23, 0
                extra += [item('ds_read_b128 %s, v%d offset:%d' % (v(Bs + 4 * t, 4), ad, lb + t * 1024), lg=('wl', pp), needvm=[('wl', pp)]) for t in range(5)]
        if OPT['late67'] and r in (0, 3):
            extra += g2_wl_items(6 if r == 0 else 7, 2 if r == 0 else 3, va=2)
        if OPT['arf'] and r in (0, 3):
            extra += [item(FH_LOAD, vm='fh')]
        if OPT['arf'] and r in (3, 5):
            extra = [item('v_cmp_eq_u64 s[76:77], %s, v[26:27]' % NC, needvm=['fh'])] + extra
        if r == OPT['ztrig']:
            extra += [item('ds_write_b32 v254, v253 offset:4', lg='trig')]
        if r == 11:
            for j in range(1, 4):
                extra += [item(['s_xor_b32 s%d, s%d, %d' % (T, W, j), 's_mul_i32 s%d, s%d, 5120' % (T, T), 'v_add_u32 v%d, s%d, v2' % (4 + j, T)])]
        wr = []
        if r == 13:
            wr = ['ds_write_b128 v24, %s offset:%d' % (v(ACC + (j * 5 + mt) * 4, 4), rbuf[j - 1] + mt * 1024) for j in (1, 2, 3) for mt in range(5)]
            for i in range(9, 20): fill[i].append(item(wr[i - 9]))
        assert len(extra) <= len(free), (r, len(extra))
        for i, it in enumerate(extra): fill[free[i]].append(it)
        Bw = WB + 20 * slot[r]; Bh = HB + 16 * (r % DH)
        js = (0, 1, 2, 3) if r < 13 else (1, 2, 3, 0)
        i = 0
        for j in js:
            g.wait(vm=[('h', r, j), ('w', p)], lg=[('wl', p)])
            for mt in range(5):
                acc = v(ACC + (j * 5 + mt) * 4, 4)
                a('v_mfma_f32_16x16x32_bf16 %s, %s, %s, %s' % (acc, v(Bw + 4 * mt, 4), v(Bh + 4 * j, 4), '0' if r == 0 else acc))
                for it in fill[i]: g.emit(it)
                i += 1
    stamp(a, 8)
    for l in wr[11:]: a(l)
    a('s_waitcnt lgkmcnt(0)')
    a('s_barrier')
    stamp(a, 9)
    a('ds_read_b64 v[8:9], v11 offset:5120')
    a('s_mov_b32 s%d, 0xffff0000' % T)
    ZT = HB
    def rd(m2):
        a('ds_read2st64_b32 %s, v25 offset0:%d offset1:%d' % (v(ZR + 2 * m2, 2), 8 * m2, 8 * m2 + 1))
        a('ds_read_b128 %s, v11 offset:%d' % (v(GQ + 4 * m2, 4), m2 * 1024))
        for j in range(1, 4):
            a('ds_read_b128 %s, v%d offset:%d' % (v(ACC + (j * 5 + m2) * 4, 4), 4 + j, rbuf[j - 1] + m2 * 1024))
    for m2 in range(2): rd(m2)
    for mt in range(5):
        if mt + 2 < 5: rd(mt + 2)
        later = 5 * min(2, 4 - mt)
        a('s_waitcnt lgkmcnt(%d)' % (later + 3))
        A0 = ACC + 4 * mt
        for h in range(2):
            a('v_lshlrev_b32 v%d, 16, v%d' % (ZT + 2 * h, ZR + 2 * mt + h))
            a('v_and_b32 v%d, s%d, v%d' % (ZT + 2 * h + 1, T, ZR + 2 * mt + h))
        for h in range(2):
            a('v_pk_mul_f32 %s, %s, %s' % (v(GQ + 4 * mt + 2 * h, 2), v(GQ + 4 * mt + 2 * h, 2), v(ZT + 2 * h, 2)))
        a('s_waitcnt lgkmcnt(%d)' % later)
        for h in range(2):
            a('v_pk_add_f32 %s, %s, %s' % (v(A0 + 2 * h, 2), v(A0 + 2 * h, 2), v(A0 + 20 + 2 * h, 2)))
            a('v_pk_add_f32 %s, %s, %s' % (v(A0 + 40 + 2 * h, 2), v(A0 + 40 + 2 * h, 2), v(A0 + 60 + 2 * h, 2)))
        for h in range(2):
            a('v_pk_add_f32 %s, %s, %s' % (v(A0 + 2 * h, 2), v(A0 + 2 * h, 2), v(A0 + 40 + 2 * h, 2)))
        for h in range(2):
            a('v_pk_fma_f32 %s, %s, v[8:9], %s' % (v(A0 + 2 * h, 2), v(A0 + 2 * h, 2), v(GQ + 4 * mt + 2 * h, 2)))
        a('v_cvt_pk_bf16_f32 v%d, v%d, v%d' % (ZU + 2 * mt, A0, A0 + 1))
        a('v_cvt_pk_bf16_f32 v%d, v%d, v%d' % (ZU + 1 + 2 * mt, A0 + 2, A0 + 3))
    for mt in range(5):
        a('ds_write_b64 v10, %s offset:%d' % (v(ZU + 2 * mt, 2), 32 * mt))
    for i in range(3):
        a('ds_read_b128 %s, v15 offset:%d' % (v(16 + 4 * i, 4), 1024 * i))
    for i in range(3):
        a('s_waitcnt lgkmcnt(%d)' % (2 - i))
        a('buffer_store_dwordx4 %s, v%d, %s, 0 offen%s' % (v(16 + 4 * i, 4), 12 + i, s(SO, 4), ['', ' sc1', ' nt', ' sc0 sc1'][OPT['ost']]))
    stamp_end(a)
    a('s_endpgm')
    for (S, B, bit) in slow:
        L = a.newlabel('SL')
        a.label(S)
        a('s_mov_b32 s11, 0x20000')
        a.label(L)
        if OPT['stamp'] == 4: a('s_add_u32 s98, s98, 100')
        if bit is None:
            a(FZ_LOAD)
            a('s_waitcnt vmcnt(0)')
            a('v_cmp_eq_u64 vcc, %s, v[252:253]' % NC)
            a('s_cmp_eq_u64 vcc, -1')
        else:
            a(FH_LOAD)
            a('s_waitcnt vmcnt(0)')
            a('v_cmp_eq_u64 s[76:77], %s, v[26:27]' % NC)
            a('s_bitcmp1_b32 s76, %d' % bit)
        a('s_cbranch_scc1 %s' % B)
        a('s_sleep %d' % OPT['fsl'])
        a('s_sub_u32 s11, s11, 1')
        a('s_cbranch_scc0 %s' % L)
        a('s_branch %s' % B)

def kernel(a, name):
    a.raw('.p2align 8')
    a.label(name)
    a('s_cmp_ge_u32 s2, 256')
    a('s_cbranch_scc1 K_exit')
    a('s_load_dwordx16 s[16:31], s[0:1], 0')
    a('s_load_dwordx8 s[32:39], s[0:1], 64')
    a('s_load_dwordx4 s[40:43], s[0:1], 96')
    a('s_memrealtime s[74:75]')
    stamp_begin(a)
    a('v_lshrrev_b32 v1, 6, v0')
    a('s_and_b32 s3, s2, 7')
    a('v_readfirstlane_b32 s%d, v1' % S_W)
    a('v_and_b32 v1, 63, v0')
    a('s_lshr_b32 s4, s2, 3')
    common_pre(a)
    a('s_getreg_b32 s%d, hwreg(HW_REG_XCC_ID)' % S_XCC)
    a('s_add_u32 s%d, s%d, 1' % (S_XCC, S_XCC))
    a('s_cmp_ge_u32 s4, 27')
    a('s_cbranch_scc1 K_prep')
    if OPT['map'] == 0:
        a('s_mov_b32 s8, s3')
        a('s_mov_b32 s9, s4')
    elif OPT['map'] == 1:
        a('s_and_b32 s9, s3, 3')
        a('s_mul_i32 s9, s9, 27')
        a('s_add_u32 s9, s9, s4')
        a('s_and_b32 s8, s3, 4')
        a('s_and_b32 s11, s9, 3')
        a('s_add_u32 s8, s8, s11')
        a('s_lshr_b32 s9, s9, 2')
    else:
        a('s_and_b32 s9, s3, 1')
        a('s_mul_i32 s9, s9, 27')
        a('s_add_u32 s9, s9, s4')
        a('s_and_b32 s8, s3, 6')
        a('s_and_b32 s11, s9, 1')
        a('s_add_u32 s8, s8, s11')
        a('s_lshr_b32 s9, s9, 1')
    a('s_cmp_lt_u32 s%d, 4' % S_W)
    a('s_cbranch_scc0 K_comp')
    l_pre(a)
    a('s_waitcnt lgkmcnt(0)')
    loader(a)
    a('s_branch K_g2wait')
    a.label('K_comp')
    c_pre(a)
    a('s_waitcnt lgkmcnt(0)')
    compute(a)
    a.label('K_conv')
    conv(a)
    a.label('K_prep')
    a('s_mul_i32 s8, s3, 5')
    a('s_add_u32 s8, s8, s4')
    a('s_sub_u32 s8, s8, 27')
    a('s_and_b32 s9, s%d, 3' % S_W)
    a('s_lshl_b32 s65, s8, 2')
    a('s_add_u32 s65, s65, s9')
    a('s_mul_i32 s7, s8, 10')
    a('s_add_u32 s7, s7, s9')
    a('s_add_u32 s7, s7, 6')
    a('s_cmp_lt_u32 s%d, 4' % S_W)
    a('s_cselect_b32 s66, -128, 32')
    a('s_add_u32 s65, s65, s66')
    a('s_mul_i32 s66, s65, 10923')
    a('s_lshr_b32 s66, s66, 16')
    a('s_lshl_b32 s66, s66, 2')
    a('s_add_u32 s66, s66, s65')
    a('s_cmp_lt_i32 s65, 0')
    a('s_cselect_b32 s7, s7, s66')
    ut_pre(a)
    a('s_waitcnt lgkmcnt(0)')
    a('s_barrier')
    ut_loads(a)
    stamp(a, 1)
    flag_srd(a)
    srd(a, 72, P_DBG, 256)
    go_off(a)
    a(GO_LOAD)
    a('s_waitcnt vmcnt(9)')
    stamp(a, 2)
    ut_k(a)
    a('s_mov_b32 s69, 0x20000')
    a.label('K_sp_go')
    a('s_waitcnt vmcnt(0)')
    a('v_cmp_ne_u32 vcc, 0, v250')
    a('s_cbranch_vccnz K_sp_go2')
    a('s_sleep 4')
    a(GO_LOAD)
    a('s_sub_u32 s69, s69, 1')
    a('s_cbranch_scc0 K_sp_go')
    a.label('K_sp_go2')
    if OPT['local']: fx_publish(a, 0)
    ut_v(a)
    stamp(a, 3)
    go_sgpr(a)
    a('s_mov_b32 s%d, 0' % CV_TG)
    gp = G1(a)
    a('s_cmp_lt_u32 s%d, 4' % S_W)
    a('s_cbranch_scc1 K_sp_g0')
    a('s_mov_b64 exec, 1')
    a('ds_add_u32 v254, v253 offset:20')
    a('s_mov_b64 exec, -1')
    a('s_lshl_b32 s7, s8, 1')
    a('s_add_u32 s7, s7, 216')
    a('s_mov_b32 s%d, 1' % CV_M)
    a('s_mov_b32 s%d, %d' % (CV_RB, CONV_BASE))
    a('s_setprio 1')
    cv_pre(a)
    a(PF_LOAD)
    for it in cv_h_items(): gp.emit(it)
    a('s_waitcnt vmcnt(9)')
    set_flag(a, S_F2)
    stamp(a, 5)
    a('s_waitcnt vmcnt(9)')
    poll_check(a, PF_LOAD, 244, 11, sleep=OPT['usl'])
    cv_u_loads(a)
    cv_setup1(a)
    for ls in cv_pads():
        for l in ls: a(l)
    a('s_waitcnt vmcnt(4)')
    a.label('K_sp_fix')
    fx = cv_fix()
    for l in fx[0]: a(l)
    a('s_waitcnt lgkmcnt(0)')
    for l in fx[1:]: a(l)
    for l in cv_g_reads(0, 0): a(l)
    a('s_waitcnt vmcnt(0)')
    a('s_branch K_conv')
    a.label('K_sp_g0')
    gs_arrive(a)
    a('s_waitcnt vmcnt(0)')
    set_flag(a, S_F2)
    stamp(a, 5)
    a('s_mov_b32 s%d, %s' % (S_F2, hex(OOB)))
    a('s_add_u32 s7, s8, 296')
    a('s_cmp_ge_u32 s8, 24')
    a('s_cbranch_scc1 K_sp_n')
    a('s_mov_b32 s%d, 0' % CV_M)
    a('s_mov_b32 s%d, 0' % CV_RB)
    a('s_setprio 2')
    cv_pre(a)
    gs_wait(a, 2)
    for it in cv_h_items_half(): gp.emit(it)
    cv_setup1(a)
    for ls in cv_pads():
        for l in ls: a(l)
    a.label('K_sp_p')
    a('s_cmp_gt_u32 s%d, 1' % S_W)
    a('s_cbranch_scc1 K_sp_b')
    a('s_cmp_eq_u32 s%d, 0' % S_W)
    a('s_cbranch_scc1 K_sp_a')
    a('s_mov_b32 s11, 0x100000')
    a.label('K_sp_e')
    a('ds_read_b32 v247, v254 offset:20')
    a('s_waitcnt lgkmcnt(0)')
    a('v_cmp_le_u32 vcc, 4, v247')
    a('s_cbranch_vccnz K_sp_f')
    a('s_sleep 4')
    a('s_sub_u32 s11, s11, 1')
    a('s_cbranch_scc0 K_sp_e')
    a.label('K_sp_f')
    fw_addr(a)
    a.label('K_sp_a')
    poll(a, PF_LOAD, 244, 11, sleep=OPT['usl'])
    a.label('K_sp_b')
    stamp(a, 1, 6)
    a('s_waitcnt vmcnt(0) lgkmcnt(0)')
    gs_arrive(a)
    gs_wait(a, 2)
    stamp(a, 2, 6)
    a('s_cmp_ge_u32 s7, 320')
    a('s_cbranch_scc1 K_prep_g2b')
    cv_u_loads(a)
    a('s_branch K_sp_fix')
    a.label('K_sp_n')
    a('s_cmp_eq_u32 s%d, 1' % S_W)
    a('s_cbranch_scc1 K_sp_p')
    a('s_branch K_sp_b')
    a.label('K_prep_g2b')
    stamp(a, 5, 6)
    a('s_setprio 0')
    g2_pre(a)
    for p in range(2):
        for it in g2_w_items(p, p): gp.emit(it)
    a('s_waitcnt vmcnt(10)')
    set_flag(a, S_F2)
    for p in range(2, 4):
        for it in g2_w_items(p, p): gp.emit(it)
    gs_wait(a)
    stamp(a, 6, 6)
    for r in range(4):
        for it in g2_wl_items(4 + r, r): gp.emit(it)
    a.label('K_g2wait')
    a('s_setprio 0')
    g2_fh_addr(a)
    g2_setup(a)
    g2_setup2(a)
    stamp(a, 7, 6); stamp(a, 6)
    a('s_mov_b32 s11, 0x20000')
    a.label('K_sp_d')
    a(PF_LOAD)
    a('s_waitcnt vmcnt(0)')
    a('v_cmp_eq_u64 s[76:77], %s, v[244:245]' % NC)
    a('s_bitcmp1_b32 s76, 0')
    a('s_cbranch_scc1 K_gemm2b')
    a('s_sleep %d' % OPT['s0'])
    a('s_sub_u32 s11, s11, 1')
    a('s_cbranch_scc0 K_sp_d')
    gemm2(a)
    a.label('K_exit')
    a('s_endpgm')

def main(out):
    hdr = open('cdna_kernels/%s.s.ref' % NAME).read().split('\n')
    head = [l for l in hdr if l.startswith(';') and '@launch' not in l and 'Override' not in l and 'grid=ceil' not in l]
    a = Asm()
    for l in head: a.raw(l)
    a.raw('; @launch grid=(256,1,1) block=(512,1,1) lds=%d' % LDS_TOTAL)
    a.raw('.amdgcn_target "amdgcn-amd-amdhsa--gfx950"')
    a.raw('.text')
    nm = NAME + '_kernel'
    a.raw('.globl %s' % nm)
    a.raw('.type %s,@function' % nm)
    kernel(a, nm)
    a.label('CODE_END')
    a.raw('.section .rodata,"a"')
    a.raw(kernel_desc(nm, 256))
    open(out, 'w').write(a.text())

if __name__ == '__main__':
    out = 'cdna_kernels/%s.s' % NAME
    for arg in sys.argv[1:]:
        if '=' in arg:
            k, val = arg.split('='); OPT[k] = int(val)
        else:
            out = arg
    main(out)
```

```python
import sys, copy, re
from asmlib import *

NAME = 'gated_mix__ssm_conv_h3__glu_gated_swiglu__prompt'
WS_H = 0
WS_W2P = 0x800000
WS_UT = 0xC00000
WS_Z4 = 0x1000000
WS_G = 0x1400000
WS_F = 0x1500000
F_H, F_U, F_W, F_X, F_Z = 0, 0x40000, 0x50000, 0x58000, 0x60000
F_SIZE = 0xA0000
FS = 7
SZ_ACT = 2048 * 640 * 2
SZ_W = 640 * 1728 * 2
SZ_H = 2048 * 1728 * 2
P_Q, P_K, P_V, P_SK, P_SSMK, P_SSMD, P_BX, P_W1, P_W3, P_W2, P_GW, P_OUT, P_DBG, P_WS = [16 + 2 * i for i in range(14)]
NLOG2E = '0xbfb8aa3b'
OPT = dict(probe=-1, rotm=3, pc=0, pwg=-1, rot2=0, stamp=0, prio=0, cprio=1, cflag=0, touch=0, nodma=0, tp=2, lead=3, rot2r=0, rot1=10, eprio=3, gprio=3, fsl=2, ebar=1, npost=0, allwait=0, fbar=0, zr=10, fwst=7, local=0, wbl2=0, arf=1, xw=0, xh=0, xsc=0, xq=0, zsl=16, fsx=3, fsh=7, fsw=7, fsu=7, fsz=3, ztrig=5, wx=1, xc=0, tsl=8, unit2=0, usl=4, spf=0, npre=30, wst=8, plan=1, late67=0, aprio=3, t2=0, wsl=16, cpf=0, wide=1, one=1, s0=2, mb=0, lst=0, ost=0, ht=0, pw=0, map=1, w2v=0, fwp=6, lprio=2, c1prio=1, wplan=0, tl=4, w2l=0, w2k=2, fwk=3, wd=8, epn=6, cfl=0, wt=0, nb10=1, p0=2, p1=1, gsl=0, cord=1, epk=1, gdot=0)
LDS_TOTAL = 163840
LDS_CNT = LDS_TOTAL - 32
SLOT = [0, 98304, 49152]
LDS_W2S = 147456
LDS_GW = 159744
CONV_BASE = 98304
S_W = 10
SF = 12
S_F1, S_F2 = 5, 6
S_XCC = 77
WS_DBG = 0x2000000
OOB = 0x1000000

def stamp(a, i, mode=1):
    if OPT['probe'] == i + 100 * (mode - 1):
        a('s_memrealtime s[96:97]' if not OPT['pc'] else 's_memtime s[92:93]')
    if OPT['stamp'] == mode:
        a('s_memtime s[%d:%d]' % (80 + 2 * i, 81 + 2 * i))
def stamp7(a, k):
    if OPT['stamp'] == 7:
        a('s_memtime s[%d:%d]' % (82 + 4 * k, 83 + 4 * k))
        a('s_memrealtime s[%d:%d]' % (84 + 4 * k, 85 + 4 * k))
def stamp_begin(a):
    if OPT['probe'] >= 0:
        a('s_memrealtime s[96:97]')
        a('s_memtime s[94:95]')
        a('s_memtime s[92:93]')
    if OPT['stamp']:
        a('s_memrealtime s[78:79]')
        for i in range(11): a('s_mov_b64 s[%d:%d], 0' % (80 + 2 * i, 81 + 2 * i))
        a('s_memtime s[80:81]')
def stamp_end(a):
    if OPT['probe'] >= 0:
        L = a.newlabel('PRB')
        if OPT['probe'] == 10:
            a('s_waitcnt vmcnt(0)')
            a('s_memrealtime s[96:97]')
        a('s_cmp_lg_u32 s10, 0')
        a('s_cbranch_scc1 %sx' % L)
        if OPT['pwg'] >= 0:
            a('s_cmp_lg_u32 s2, %d' % OPT['pwg'])
            a('s_cbranch_scc1 %sx' % L)
        a('s_waitcnt lgkmcnt(0)')
        a('s_add_u32 s96, s96, 4000')
        if OPT['pc']:
            a('s_sub_u32 s92, s92, s94')
            a('s_lshr_b32 s92, s92, 4')
            a('s_add_u32 s96, s96, s92')
        a.label(L)
        a('s_sleep 1')
        a('s_memrealtime s[98:99]')
        a('s_waitcnt lgkmcnt(0)')
        a('s_sub_u32 s98, s98, s96')
        a('s_cmp_lt_i32 s98, 0')
        a('s_cbranch_scc1 %s' % L)
        a.label(L + 'x')
    if OPT['stamp']:
        a('s_waitcnt vmcnt(0) lgkmcnt(0)')
        a('s_memtime s[100:101]')
        a('s_memrealtime s[76:77]')
        srd(a, 44, P_WS, 0x100000, WS_DBG)
        a('s_lshl_b32 s5, s2, 3')
        a('s_add_u32 s5, s5, s10')
        a('s_lshl_b32 s5, s5, 6')
        a('s_waitcnt lgkmcnt(0)')
        a('v_mov_b32 v0, s78')
        a('v_mov_b32 v1, s76')
        for i in range(11): a('v_mov_b32 v%d, s%d' % (2 + i, 80 + 2 * i))
        a('v_mov_b32 v16, s5')
        a('s_mov_b64 exec, 1')
        for i in range(4):
            a('buffer_store_dwordx4 v[%d:%d], v16, s[44:47], 0 offen offset:%d' % (4 * i, 4 * i + 3, 16 * i))

def capture(a, fn):
    save = a.lines; a.lines = []
    fn()
    out = a.lines; a.lines = save
    return out

class Q:
    def __init__(self): self.q = []
    def push(self, tag, sure=True): self.q.append((tag, sure))
    def need(self, tags):
        idx = [i for i, (t, _) in enumerate(self.q) if t in tags]
        if not idx: return None
        last = max(idx)
        n = sum(1 for (_, sure) in self.q[last + 1:] if sure)
        self.q = self.q[last + 1:]
        return n
    def clear(self): self.q = []

NC = 's[0:1]'
def poll_check(a, loadline, vtmp, sc, sleep=2):
    L, D = a.newlabel('POLL'), a.newlabel('POLLD')
    a('s_mov_b32 s%d, 0x4000' % sc)
    a.label(L)
    a('v_cmp_eq_u64 vcc, %s, %s' % (NC, v(vtmp, 2)))
    a('s_cmp_eq_u64 vcc, -1')
    a('s_cbranch_scc1 %s' % D)
    a('s_sleep %d' % sleep)
    a(loadline)
    a('s_waitcnt vmcnt(0)')
    a('s_sub_u32 s%d, s%d, 1' % (sc, sc))
    a('s_cbranch_scc0 %s' % L)
    a.label(D)
def poll(a, loadline, vtmp, sc, sleep=2):
    a(loadline)
    a('s_waitcnt vmcnt(0)')
    poll_check(a, loadline, vtmp, sc, sleep)

GO_LOAD = 'buffer_load_dwordx2 v[250:251], v252, s[72:75], s11 offen sc1'
PF_LOAD = 'buffer_load_dwordx2 v[244:245], v248, s[%d:%d], 0 offen sc1' % (SF, SF + 3)

def set_flag(a, soff):
    a('s_mov_b64 exec, 1')
    a('buffer_store_dwordx2 v[250:251], v252, %s, s%d offen sc1' % (s(SF, 4), soff))
    a('s_mov_b64 exec, -1')

def fx_publish(a, wave):
    a('v_mov_b32 v240, v250')
    a('v_xor_b32 v241, s%d, v251' % S_XCC)
    a('s_lshl_b32 s11, s3, 5')
    a('s_add_u32 s11, s11, s4')
    a('s_lshl_b32 s11, s11, %d' % OPT['fsx'])
    a('s_add_u32 s11, s11, %s' % hex(F_X))
    a('s_cmp_eq_u32 s%d, %d' % (S_W, wave))
    a('s_cselect_b32 s11, s11, %s' % hex(OOB))
    a('s_mov_b64 exec, 1')
    a('buffer_store_dwordx2 v[240:241], v252, %s, s11 offen sc1' % s(SF, 4))
    a('s_mov_b64 exec, -1')
def fx_load(a):
    a('s_lshr_b32 s11, s%d, 1' % S_W)
    a('s_lshl_b32 s11, s11, 3')
    a('v_and_b32 v249, 7, v1')
    a('v_add_u32 v249, s11, v249')
    a('s_lshl_b32 s11, s3, %d' % (5 + OPT['fsx']))
    a('s_add_u32 s11, s11, %s' % hex(F_X))
    a('v_lshlrev_b32 v249, %d, v249' % OPT['fsx'])
    a('buffer_load_dwordx2 v[242:243], v249, %s, s11 offen sc1' % s(SF, 4))
BIG = 0x7000000
def fx_eval(a):
    a('v_cmp_eq_u64 vcc, v[240:241], v[242:243]')
    a('s_cmp_eq_u64 vcc, %s' % ('-1' if OPT['local'] else '7'))
    for (r, r2) in ((HO, 28), (S_F1, S_XCC)):
        a('s_cselect_b32 s%d, %s, s%d' % (r2, hex(BIG), r))
        a('s_cselect_b32 s%d, s%d, %s' % (r, r, hex(BIG)))
def store2(a, fmt, r):
    if not OPT['local']:
        a(fmt % r + ' sc1'); return
    r2 = {HO: 28, GO: 29, S_F1: S_XCC}[r]
    a(fmt % r + (['', ' sc0', ' nt', ' sc0 nt'][OPT['lst']] if r == HO else ''))
    a(fmt % r2 + ' sc1')

def nonce_publish(a):
    L = a.newlabel('NP')
    a('s_or_b32 s11, s2, s%d' % S_W)
    a('s_cmp_lg_u32 s11, 0')
    a('s_cbranch_scc1 %s' % L)
    a('s_or_b32 s74, s74, 1')
    a('v_mov_b32 v250, s74')
    a('v_mov_b32 v251, s75')
    a('v_lshlrev_b32 v249, 7, v1')
    a('s_mov_b64 exec, 3')
    a('global_store_dwordx2 v249, v[250:251], s[%d:%d] sc1' % (P_DBG, P_DBG + 1))
    a('s_mov_b64 exec, -1')
    a.label(L)
def go_off(a):
    a('s_and_b32 s11, s4, 1')
    a('s_lshl_b32 s11, s11, 7')
def go_issue(a):
    srd(a, 72, P_DBG, 256)
    go_off(a)
    a('s_cmp_eq_u32 s%d, 0' % S_W)
    a('s_cselect_b32 s11, s11, %s' % hex(OOB))
    a(GO_LOAD)
def go_check(a):
    L, R, D = a.newlabel('GOC'), a.newlabel('GOR'), a.newlabel('GOD')
    a('s_cmp_lg_u32 s%d, 0' % S_W)
    a('s_cbranch_scc1 %s' % L)
    go_off(a)
    a('s_mov_b32 s69, 0x4000')
    a.label(R)
    a('v_cmp_ne_u32 vcc, 0, v250')
    a('s_cbranch_vccnz %s' % D)
    a('s_sleep 4')
    a(GO_LOAD)
    a('s_waitcnt vmcnt(0)')
    a('s_sub_u32 s69, s69, 1')
    a('s_cbranch_scc0 %s' % R)
    a.label(D)
    a('ds_write_b64 v254, v[250:251] offset:8')
    a('s_waitcnt lgkmcnt(0)')
    a.label(L)
GO_FETCH = 'ds_read_b64 v[250:251], v254 offset:8'
def go_sgpr(a):
    a('v_readfirstlane_b32 s0, v250')
    a('v_readfirstlane_b32 s1, v251')
def fw_check(a):
    D = a.newlabel('PFD')
    a('s_cmp_lg_u32 s%d, 0' % S_W)
    a('s_cbranch_scc1 %s' % D)
    poll_check(a, PF_LOAD, 244, 11, sleep=4)
    a.label(D)

def common_pre(a):
    a('v_mov_b32 v252, 0')
    a('v_mov_b32 v253, 1')
    a('v_mov_b32 v238, 0')
    a('v_mov_b32 v10, 0')
    a('s_mov_b32 s%d, %s' % (S_F1, hex(OOB)))
    a('v_mov_b32 v248, 0')
    a('v_mov_b32 v254, %d' % LDS_CNT)
    a('ds_write_b32 v254, v252')
    a('ds_write_b32 v254, v252 offset:4')
    a('ds_write_b32 v254, v252 offset:16')
    a('ds_write_b32 v254, v252 offset:20')
    a('ds_write_b32 v254, v252 offset:24')
    a('v_lshlrev_b32 v237, 4, v1')
    a('s_cmp_lt_u32 s%d, 4' % S_W)
    a('s_cselect_b32 s11, 16, 0')
    a('v_add_u32 v255, s11, v254')

def flag_srd(a):
    srd(a, SF, P_WS, F_SIZE, WS_F)

SX, SW1, SW3, SH = 44, 48, 52, 56
OX, OW, LW, HO, GO = 60, 61, 62, 63, 64
GID, U0 = 70, 71
KS0 = 28

def item(lines, pre=(), vm=None, lg=None, needlg=(), needvm=()):
    if isinstance(lines, str): lines = [lines]
    if isinstance(pre, str): pre = [pre]
    return dict(pre=list(pre), lines=list(lines), vm=vm, lg=lg, needlg=set(needlg), needvm=set(needvm))

class G1:
    def __init__(self, a):
        self.a = a; self.vq = Q(); self.lq = Q()
    def wait(self, vm=(), lg=(), lgall=False):
        parts = []
        n = self.vq.need(set(vm)) if vm else None
        if n is not None: parts.append('vmcnt(%d)' % min(n, 63))
        if lgall:
            if self.lq.q: parts.append('lgkmcnt(0)')
            self.lq.clear()
        else:
            n = self.lq.need(set(lg)) if lg else None
            if n is not None: parts.append('lgkmcnt(%d)' % min(n, 14))
        if parts: self.a('s_waitcnt ' + ' '.join(parts))
    def emit(self, it, with_pre=True):
        a = self.a
        if with_pre and it['pre']:
            for l in it['pre']: a(l)
            if 'm0' in it['pre'][-1]: a('s_nop 0')
        if it['needlg'] or it['needvm']: self.wait(vm=it['needvm'], lg=it['needlg'])
        for l in it['lines']: a(l)
        if it['vm'] is not None: self.vq.push(it['vm'], sure=not (isinstance(it['vm'], str) and it['vm'].endswith('?')))
        if it['lg'] is not None: self.lq.push(it['lg'])

def capture_l(a, fn):
    return [l.strip() for l in capture(a, lambda: fn(a))]

LS, GS, GS8, SS = 24, 25, 26, 27
def l_pre(a):
    RB, CB, W = 8, 9, S_W
    a('v_lshrrev_b32 v13, 3, v1')
    a('v_and_b32 v15, 7, v1')
    a('s_lshl_b32 s11, s%d, 3' % W)
    a('v_add_u32 v16, s11, v13')
    a('v_bfe_u32 v14, v16, 1, 3')
    a('v_xor_b32 v14, v14, v15')
    a('v_lshlrev_b32 v14, 4, v14')
    a('v_mul_u32_u24 v2, 1280, v16')
    a('v_add_u32 v2, v2, v14')
    a('v_mov_b32 v3, v2')
    L = a.newlabel('LP')
    a('s_cmp_lg_u32 s%d, 2' % W)
    a('s_cbranch_scc1 %s' % L)
    a('v_and_b32 v14, 2, v13')
    a('v_xor_b32 v14, v14, v15')
    a('v_lshlrev_b32 v14, 4, v14')
    a('v_mul_u32_u24 v2, 3456, v13')
    a('v_xor_b32 v16, 64, v14')
    a('v_add_u32 v3, v2, v16')
    a('v_add_u32 v2, v2, v14')
    a.label(L)
    if OPT['rot1']:
        R = OPT['rot1']
        a('s_mul_i32 s11, s%d, %d' % (RB, OPT['rotm']))
        a('s_add_u32 s11, s11, s%d' % CB)
        a('s_mul_i32 s69, s11, %d' % ((2048 + R - 1) // R))
        a('s_lshr_b32 s69, s69, 11')
        a('s_mul_i32 s69, s69, %d' % R)
        a('s_sub_u32 s68, s11, s69')
        if R != 10: a('s_mul_i32 s68, s68, %d' % (10 // R))
    else:
        a('s_mov_b32 s68, 0')
    a('s_mul_i32 s65, s%d, %d' % (RB, 256 * 1280))
    a('s_lshl_b32 s66, s%d, 7' % CB)
    a('s_sub_u32 s67, %s, s66' % hex(SZ_W))
    a('s_lshl_b32 s%d, s%d, 10' % (LW, W))
    a('s_cmp_eq_u32 s%d, 2' % W)
    a('s_cselect_b32 s%d, 0x8000, s%d' % (LW, LW))
    a('s_lshr_b32 s11, s4, 2')
    a('s_mul_i32 s11, s11, 43')
    a('v_add_u32 v48, s11, v1')
    a('v_min_u32 v48, 255, v48')
    a('v_mul_u32_u24 v48, 1280, v48')
    a('s_and_b32 s11, s%d, 3' % RB)
    a('s_lshl_b32 s11, s11, 4')
    a('v_add_u32 v49, s11, v1')
    a('v_mul_u32_u24 v49, 3456, v49')

def l_ks(a, stage):
    a('s_add_u32 s29, s%d, %d' % (KS0, stage))
    a('s_sub_u32 s%d, s29, 10' % OW)
    a('s_min_u32 s29, s29, s%d' % OW)
def l_dma(a, g, stage):
    if OPT['nodma'] and stage >= 3: return
    l_ks(a, stage)
    a('s_mul_i32 s%d, s29, s%d' % (OX, SS))
    a('s_add_u32 m0, s%d, %s' % (LW, hex(SLOT[stage % 3])))
    for i in range(16):
        if i:
            a('s_add_u32 m0, m0, s%d' % LS)
            a('s_add_u32 s%d, s%d, s%d' % (OX, OX, GS8 if i == 8 else GS))
        else: a('s_nop 0')
        a('buffer_load_dwordx4 v%d, %s, s%d offen lds' % (2 + (i & 1), s(SW1 if i < 8 else SW3, 4), OX)); g.vq.push(('st', stage))
def l_touch(a, stage):
    if not OPT['touch'] or stage > 9: return
    l_ks(a, stage)
    a('s_mul_i32 s%d, s29, %d' % (OW, 64 * 3456))
    a('s_lshl_b32 s%d, s29, 7' % OX)
    a('s_mov_b64 exec, 0xffff')
    a('buffer_load_dword v50, v49, %s, s%d offen' % (s(SW1, 4), OW))
    a('buffer_load_dword v50, v49, %s, s%d offen' % (s(SW3, 4), OW))
    a('s_mov_b32 exec_lo, -1')
    a('s_movk_i32 exec_hi, 0x7ff')
    a('buffer_load_dword v50, v48, %s, s%d offen' % (s(SX, 4), OX))
    a('s_mov_b64 exec, -1')

FU_LOAD = 'buffer_load_dwordx2 v[242:243], v241, s[%d:%d], 0 offen sc1' % (SF, SF + 3)
def l_u_loads(a):
    srd(a, SH, P_WS, SZ_ACT, WS_UT)
    for c in range(2):
        a('s_mov_b32 m0, %d' % (CONV_BASE + c * CW + C_U))
        a('s_movk_i32 s11, %d' % (4096 * c))
        for i in range(4):
            a('buffer_load_dwordx4 v36, %s, s11 offen offset:%d sc1 lds' % (s(SH, 4), i * 1024))

def l_common_addr(a):
    RB, CB, W = 8, 9, S_W
    flag_srd(a)
    a('s_lshl_b32 s65, s%d, 2' % CB)
    a('s_add_u32 s65, s65, s%d' % W)
    a('s_and_b32 s65, s65, 31')
    a('s_lshl_b32 s11, s65, 10')
    a('v_add_u32 v4, s11, v237')
    a('v_add_u32 v5, 0x18000, v4')
    a('s_and_b32 s11, s%d, 1' % W)
    a('s_lshl_b32 s11, s11, 2')
    a('v_lshrrev_b32 v12, 4, v1')
    a('v_add_u32 v12, s11, v12')
    a('v_and_b32 v13, 7, v1')
    a('v_xor_b32 v12, v12, v13')
    a('s_lshl_b32 s11, s%d, 7' % KS0)
    a('s_add_u32 s11, s11, %d' % LDS_GW)
    a('v_lshl_add_u32 v6, v12, 4, s11')
    a('v_mov_b32 v7, 0')
    a('s_lshl_b32 s%d, s%d, 5' % (GO, RB))
    a('s_add_u32 s%d, s%d, s65' % (GO, GO))
    a('s_lshr_b32 s%d, s%d, 3' % (S_F1, GO))
    a('s_lshl_b32 s%d, s%d, 6' % (S_F1, S_F1))
    a('s_and_b32 s11, s65, 7')
    a('s_add_u32 s%d, s%d, s11' % (S_F1, S_F1))
    a('s_add_u32 s%d, s%d, 54' % (S_F1, S_F1))
    a('s_lshl_b32 s%d, s%d, %d' % (S_F1, S_F1, OPT['fsh']))
    a('s_lshl_b32 s%d, s%d, 5' % (GO, GO))
    a('s_cmp_lt_u32 s%d, 8' % CB)
    a('s_cselect_b32 s%d, s%d, %s' % (GO, GO, hex(OOB)))
    a('s_cselect_b32 s%d, s%d, %s' % (S_F1, S_F1, hex(OOB)))
    a('s_mul_i32 s%d, s%d, 27' % (GID, RB))
    a('s_add_u32 s%d, s%d, s%d' % (GID, GID, CB))

L_REST = []
def l_steps(a, g, svc):
    W = S_W
    if OPT['lprio']: a('s_setprio %d' % OPT['lprio'])
    w = []
    for p in range(4): w += g2_w_items(p, p)
    fp = OPT['fwp']
    w += g2_wl_items(4, 0) + g2_wl_items(5, 1) + g2_wl_items(6, 2) + g2_wl_items(7, 3)
    cnt = {0: {7: 10, 8: 10, 9: 10}, 1: {7: 5, 8: 10, 9: 10}, 2: {8: 10, 9: 10}, 3: {7: 5, 8: 5, 9: 10}, 4: {8: 5, 9: 10}, 5: {9: 10},
           6: {6: 5, 7: 5, 8: 10, 9: 10}, 7: {7: 5, 8: 15, 9: 10}, 8: {9: 30}, 9: {8: 10, 9: 20}, 10: {8: 5, 9: 25}}[OPT['wd']]
    wsch = {}; pos = 0
    for k in sorted(cnt):
        assert k > fp
        wsch[k] = w[pos:pos + cnt[k]]; pos += cnt[k]
    L_REST[:] = w[pos:]
    for k in range(10):
        a.comment('loader, stage %d ready' % k)
        if k < 9: stamp(a, k + 1, 2)
        if k == 5: stamp(a, 3)
        if k in (0, 4, 9): stamp7(a, (0, 4, 9).index(k))
        base = SLOT[k % 3]; hi = base >= 98304
        need = [('st', k + 1)]; bb = None
        if not svc and k + 2 <= 9: l_dma(a, g, k + 2)
        g.emit(item('ds_read_b128 v[12:15], v%d offset:%d' % (5 if hi else 4, base - (98304 if hi else 0)), lg='gx'))
        g.emit(item('ds_read_b128 v[16:19], v6 offset:%d' % (k * 128), lg='gx'))
        if k == 2:
            g.emit(item(GO_FETCH, lg='go'))
        if k == 3:
            go_sgpr(a)
            g2_pre(a, allw=True)
        if svc:
            if k == fp:
                a(PF_LOAD); g.vq.push('pf'); need.append('pf')
                bb = lambda a: poll_check(a, PF_LOAD, 244, 11, sleep=4)
            if k == 0:
                srd(a, 72, P_DBG, 256); go_off(a); a(GO_LOAD); g.vq.push('go')
            if k == 7:
                a(FU_LOAD); g.vq.push('fu')
                for c in range(2):
                    a('s_add_u32 s11, s21, %d' % (4096 * c))
                    a('buffer_load_dwordx4 %s, v252, %s, s11 offen' % (v(40 + 4 * c, 4), s(SH, 4))); g.vq.push('h0')
            n0 = len(a.lines)
            l_touch(a, k + OPT['tl'])
            if len(a.lines) > n0:
                for _ in range(3): g.vq.push('touch')
            if OPT['wt'] and k > fp:
                n = OPT['wt']
                if k == fp + 1:
                    a('v_min_u32 v51, 39, v1')
                    a('v_lshlrev_b32 v51, 7, v51')
                    a('s_and_b32 s23, s%d, 3' % G2_RB)
                    a('s_add_u32 s23, s23, s%d' % G2_KB)
                    a('s_add_u32 s23, s23, 51')
                for p in range(n * (k - fp - 1), min(14, n * (k - fp))):
                    a('s_add_u32 s11, s23, %d' % (4 * p))
                    for _ in range(2):
                        a('s_sub_u32 s29, s11, 54')
                        a('s_min_u32 s11, s11, s29')
                    a('s_mul_i32 s11, s11, 40960')
                    a('buffer_load_dword v50, v51, %s, s11 offen sc1' % s(G2_SW, 4)); g.vq.push('touch')
            if k == OPT['w2l']:
                srd(a, SH, P_W2, SZ_W)
                for i in range(12):
                    a('s_mov_b32 m0, %d' % (LDS_W2S + 1024 * i))
                    if i: a('s_add_u32 s22, s22, %d' % (8 * 1280))
                    else: a('s_nop 0')
                    a('buffer_load_dwordx4 v9, %s, s22 offen lds' % s(SH, 4)); g.vq.push('w2')
            if k == 1:
                need.append('go')
                def bb(a):
                    R, D = a.newlabel('GOR'), a.newlabel('GOD')
                    go_off(a)
                    a('s_mov_b32 s69, 0x4000')
                    a.label(R)
                    a('v_cmp_ne_u32 vcc, 0, v250')
                    a('s_cbranch_vccnz %s' % D)
                    a('s_sleep 4')
                    a(GO_LOAD)
                    a('s_waitcnt vmcnt(0)')
                    a('s_sub_u32 s69, s69, 1')
                    a('s_cbranch_scc0 %s' % R)
                    a.label(D)
                    a('ds_write_b64 v254, v[250:251] offset:8')
                    a('s_waitcnt lgkmcnt(0)')
            if k == OPT['w2k']:
                g.wait(vm=['w2'])
                srd(a, SH, P_WS, SZ_W, WS_W2P)
                for u in range(3):
                    for t in range(4):
                        R = 52 + 16 * u + 4 * t
                        g.emit(item('ds_read_b64_tr_b16 %s, v10 offset:%d' % (v(R, 2), 4096 * u + 32 * t), lg=('w2f', u)))
                        g.emit(item('ds_read_b64_tr_b16 %s, v10 offset:%d' % (v(R + 2, 2), 4096 * u + 32 * t + 2048), lg=('w2f', u)))
                for u in range(3):
                    g.wait(lg=[('w2f', u)])
                    if u: a('s_add_u32 s%d, s%d, 40960' % (U0, U0))
                    for t in range(4):
                        g.emit(item('buffer_store_dwordx4 %s, v237, %s, s%d offen offset:%d sc1' % (v(52 + 16 * u + 4 * t, 4), s(SH, 4), U0, 1024 * t), vm='w2s'))
            if k == OPT['fwk']:
                srd(a, SH, P_SSMK, SZ_ACT)
                g.wait(vm=['w2s'])
                a('s_lshl_b32 s11, s%d, %d' % (GID, OPT['fsw']))
                a('s_add_u32 s11, s11, %s' % hex(F_W))
                set_flag(a, 11); g.vq.push('fw')
            if k == max(5, OPT['fwk']) and OPT['t2']:
                a('v_lshlrev_b32 v38, 7, v1')
                a('buffer_load_dword v38, v38, %s, s21 offen' % s(SH, 4)); g.vq.push('t2')
            if k == 8:
                a('v_mov_b64 v[20:21], 0')
                for c in range(2):
                    for hb in range(2):
                        a('s_mov_b32 m0, %d' % (CONV_BASE + c * CW + hb * C_HB + 512))
                        a('s_movk_i32 s11, %d' % (4096 * c))
                        for i in range(4):
                            a('buffer_load_dwordx4 v%d, %s, s11 offen offset:%d lds' % (36 + hb, s(SH, 4), i * 1024)); g.vq.push('cvh')
                a('v_lshlrev_b32 v22, 3, v1')
                a('v_add_u32 v22, %d, v22' % CONV_BASE)
                a('v_lshlrev_b32 v23, 2, v1')
                a('v_add_u32 v23, %d, v23' % CONV_BASE)
                for c in range(2):
                    g.emit(item('ds_write_b64 v22, v[20:21] offset:%d' % (c * CW), lg='pad'))
                    g.emit(item('ds_write_b64 v22, v[20:21] offset:%d' % (c * CW + C_HB), lg='pad'))
                    g.emit(item('ds_write_b32 v23, v20 offset:%d' % (c * CW + C_U + 4096), lg='pad'))
                g.wait(vm=['fu', 'h0'])
                L = a.newlabel('UT')
                a('s_mov_b32 s21, 0')
                a('v_cmp_eq_u64 vcc, %s, v[242:243]' % NC)
                a('s_cmp_eq_u64 vcc, -1')
                a('s_cbranch_scc0 %s' % L)
                l_u_loads(a)
                a('s_mov_b32 s21, 1')
                a.label(L)
                g.vq.push('u', sure=False)
                for c in range(2):
                    R = 40 + 4 * c
                    a('v_alignbit_b32 v%d, v%d, v%d, 16' % (R + 3, R + 3, R + 2))
                    a('v_alignbit_b32 v%d, v%d, v%d, 16' % (R + 2, R + 2, R + 1))
                    a('v_alignbit_b32 v%d, v%d, v%d, 16' % (R + 1, R + 1, R))
                    a('v_lshlrev_b32 v%d, 16, v%d' % (R, R))
        for it in wsch.get(k, []): g.emit(it)
        g.wait(lg=['gx'])
        for i in range(4):
            if OPT['gdot']:
                a('v_dot2c_f32_bf16 v7, v%d, v%d' % (12 + i, 16 + i))
            else:
                a('v_lshlrev_b32 v100, 16, v%d' % (12 + i))
                a('v_lshlrev_b32 v101, 16, v%d' % (16 + i))
                a('v_and_b32 v102, 0xffff0000, v%d' % (12 + i))
                a('v_and_b32 v103, 0xffff0000, v%d' % (16 + i))
                a('v_fmac_f32 v7, v100, v101')
                a('v_fmac_f32 v7, v102, v103')
        g.wait(vm=need, lgall=True)
        if bb: bb(a)
        if k < 9 or not OPT['nb10']: a('s_barrier')
    stamp(a, 4)
    if svc:
        L = a.newlabel('UOK')
        a('s_cmp_eq_u32 s21, 1')
        a('s_cbranch_scc1 %s' % L)
        poll_check(a, FU_LOAD, 242, 11, sleep=2)
        l_u_loads(a)
        a('s_waitcnt vmcnt(0)')
        a.label(L)
        g.wait(vm=['cvh', 'u'])
        a('v_mov_b32 v22, %d' % CONV_BASE)
        a('v_mov_b32 v23, 4')
        for c in range(2):
            a('ds_write_b128 v22, %s offset:%d' % (v(40 + 4 * c, 4), c * CW + C_HB + 512))
        a('ds_write_b32 v254, v23 offset:20')

def loader(a):
    RB, CB, W = 8, 9, S_W
    nonce_publish(a)
    a('s_mov_b32 s%d, s68' % KS0)
    srd(a, SW1, P_W1, 's67', 's66')
    srd(a, SW3, P_W3, 's67', 's66')
    srd(a, SX, P_Q, 256 * 1280, 's65')
    a('s_cmp_eq_u32 s%d, 3' % W)
    a('s_cbranch_scc1 K_svc')
    g = G1(a)
    a('s_cmp_eq_u32 s%d, 2' % W)
    for i in range(3):
        a('s_cselect_b32 s%d, s%d, s%d' % (SW1 + i, SW1 + i, SX + i))
        a('s_cselect_b32 s%d, s%d, s%d' % (SW3 + i, SW3 + i, SX + i))
    a('s_movk_i32 s%d, 2048' % LS); a('s_cmov_b32 s%d, 1024' % LS)
    a('s_movk_i32 s%d, 20480' % GS); a('s_cmov_b32 s%d, %d' % (GS, 8 * 3456))
    a('s_movk_i32 s%d, 20480' % GS8); a('s_cmov_b32 s%d, %d' % (GS8, -7 * 8 * 3456))
    a('s_movk_i32 s%d, 128' % SS); a('s_cmov_b32 s%d, %d' % (SS, 64 * 3456))
    l_dma(a, g, 0)
    stamp(a, 1)
    l_dma(a, g, 1)
    l_common_addr(a)
    g.wait(vm=[('st', 0)])
    a('s_barrier')
    stamp(a, 2)
    l_steps(a, g, False)
    a('s_branch K_lend')
    a.label('K_svc')
    g = G1(a)
    if OPT['cpf']:
        a('s_getpc_b64 s[72:73]')
        a.label('K_pc')
        a('s_sub_u32 s72, s72, K_pc-K_code0')
        a('s_subb_u32 s73, s73, 0')
        a('s_mov_b32 s74, CODE_END-K_code0')
        a('s_mov_b32 s75, 0x00020000')
        a('s_mul_i32 s11, s4, 52')
        a('s_lshr_b32 s11, s11, 8')
        a('s_mul_i32 s11, s11, 5')
        a('s_sub_u32 s11, s4, s11')
        a('s_lshl_b32 s11, s11, 13')
        a('v_lshlrev_b32 v50, 7, v1')
        a('buffer_load_dword v50, v50, s[72:75], s11 offen')
    for st_ in range(OPT['tp']): l_touch(a, st_)
    srd(a, SH, P_GW, 1280)
    for i in range(3):
        a('v_add_u32 v12, %d, v237' % (1024 * i))
        a('v_subrev_u32 v13, 1280, v12')
        a('v_min_u32 v12, v12, v13')
        a('v_subrev_u32 v13, 1280, v12')
        a('s_mov_b32 m0, %d' % (LDS_GW + 1024 * i))
        a('v_min_u32 v12, v12, v13')
        a('buffer_load_dwordx4 v12, %s, 0 offen lds' % s(SH, 4)); g.vq.push('gw')
    for st_ in range(OPT['tp'], OPT['tl']):
        l_touch(a, st_)
        if OPT['touch']:
            for _ in range(3): g.vq.push('touch')
    l_common_addr(a)
    a('s_mul_i32 s11, s%d, 3641' % GID)
    a('s_lshr_b32 s11, s11, 16')
    a('s_mul_i32 s69, s11, 18')
    a('s_sub_u32 s69, s%d, s69' % GID)
    a('s_mul_i32 s69, s69, 3')
    a('s_cmp_ge_u32 s%d, 180' % GID)
    a('s_cselect_b32 s69, 60, s69')
    a('s_mul_i32 s%d, s69, 10' % U0)
    a('s_add_u32 s%d, s%d, s11' % (U0, U0))
    a('s_lshl_b32 s%d, s%d, 12' % (U0, U0))
    a('s_mul_i32 s69, s69, %d' % (32 * 1280))
    a('s_lshl_b32 s22, s11, 7')
    a('s_add_u32 s22, s22, s69')
    a('v_lshrrev_b32 v9, 3, v1')
    a('v_mul_u32_u24 v9, 1280, v9')
    a('v_lshl_add_u32 v9, v13, 4, v9')
    a('v_lshrrev_b32 v10, 2, v1')
    a('v_lshlrev_b32 v10, 7, v10')
    a('v_and_b32 v12, 3, v1')
    a('v_lshl_add_u32 v10, v12, 3, v10')
    a('v_add_u32 v10, %d, v10' % LDS_W2S)
    a('s_lshl_b32 s21, s%d, 13' % GID)
    a('v_add_u32 v36, s21, v237')
    a('v_subrev_u32 v37, 2, v36')
    a('s_lshr_b32 s11, s%d, 5' % GID)
    a('s_lshl_b32 s11, s11, %d' % (5 + OPT['fsu']))
    a('s_add_u32 s11, s11, %s' % hex(F_U))
    a('v_min_u32 v241, 31, v1')
    a('v_lshl_add_u32 v241, v241, %d, s11' % OPT['fsu'])
    g.wait(vm=['gw'])
    a('s_barrier')
    l_steps(a, g, True)
    a.label('K_lend')
    g = G1(a)
    for sh in (1, 2):
        a('v_add_f32_dpp v7, v7, v7 quad_perm:%s row_mask:0xf bank_mask:0xf' % ('[1,0,3,2]' if sh == 1 else '[2,3,0,1]'))
        a('s_nop 1')
    a('v_add_f32_dpp v7, v7, v7 row_half_mirror row_mask:0xf bank_mask:0xf')
    a('v_mul_f32 v7, %s, v7' % NLOG2E)
    a('v_exp_f32 v7, v7')
    a('v_lshrrev_b32 v8, 3, v1')
    a('v_add_f32 v7, 1.0, v7')
    a('v_rcp_f32 v7, v7')
    a('v_lshlrev_b32 v8, 2, v8')
    srd(a, SX, P_WS, 8192, WS_G)
    a('s_mov_b32 exec_lo, 0x01010101')
    a('s_mov_b32 exec_hi, 0x01010101')
    a('buffer_store_dword v7, v8, %s, s%d offen sc1' % (s(SX, 4), GO))
    a('s_mov_b64 exec, -1')
    if OPT['nb10']:
        a('s_mov_b64 exec, 1')
        a('ds_add_u32 v254, v253 offset:24')
        a('s_mov_b64 exec, -1')
        for it in L_REST[:-10]: g.emit(it)
        L, Dn = a.newlabel('SA'), a.newlabel('SAD')
        a('s_mov_b32 s11, 0x40000')
        a.label(L)
        a('ds_read_b32 v247, v254 offset:24')
        a('s_waitcnt lgkmcnt(0)')
        a('v_cmp_eq_u32 vcc, 8, v247')
        a('s_cbranch_vccnz %s' % Dn)
        a('s_sleep 2')
        a('s_sub_u32 s11, s11, 1')
        a('s_cbranch_scc0 %s' % L)
        a.label(Dn)
        for it in L_REST[-10:]: g.emit(it)
    else:
        for it in L_REST: g.emit(it)
    a('s_waitcnt vmcnt(%d)' % len(L_REST))
    set_flag(a, S_F1)
    stamp(a, 5)

C_WF, C_XF, C_ACC = [12, 28], 44, 76
def c_pre(a):
    RB, CB, W = 8, 9, S_W
    a('s_bfe_u32 s65, s%d, 0x10001' % W)
    a('s_and_b32 s66, s%d, 1' % W)
    a('v_and_b32 v13, 15, v1')
    a('v_lshrrev_b32 v14, 4, v1')
    a('v_bfe_u32 v15, v1, 1, 3')
    a('v_xor_b32 v15, v15, v14')
    a('s_lshl_b32 s11, s65, 14')
    a('v_lshl_add_u32 v12, v13, 7, s11')
    a('v_lshl_add_u32 v2, v15, 4, v12')
    a('v_xor_b32 v15, 4, v15')
    a('v_lshl_add_u32 v3, v15, 4, v12')
    a('v_add_u32 v4, 0x18000, v2')
    a('v_add_u32 v5, 0x18000, v3')
    a('v_bfe_u32 v12, v1, 2, 2')
    a('v_lshl_add_u32 v12, v14, 3, v12')
    a('v_lshlrev_b32 v12, 7, v12')
    a('v_and_b32 v13, 3, v1')
    a('v_lshl_add_u32 v12, v13, 3, v12')
    a('v_add_u32 v12, 0x8000, v12')
    a('v_bfe_u32 v13, v1, 3, 2')
    a('s_lshl_b32 s11, s66, 1')
    a('v_xor_b32 v13, s11, v13')
    a('v_lshl_add_u32 v6, v13, 5, v12')
    a('v_xor_b32 v13, 1, v13')
    a('v_lshl_add_u32 v7, v13, 5, v12')
    a('v_add_u32 v8, 0x18000, v6')
    a('v_add_u32 v9, 0x18000, v7')
    a('s_lshl_b32 s67, s%d, 1' % RB)
    a('s_add_u32 s67, s67, s65')
    a('s_lshl_b32 s67, s67, 1')
    a('s_lshl_b32 s68, s%d, 1' % CB)
    a('s_add_u32 s68, s68, s66')
    a('s_lshl_b32 s%d, s67, 6' % S_F1)
    a('s_add_u32 s%d, s%d, s68' % (S_F1, S_F1))
    a('s_lshl_b32 s%d, s%d, %d' % (S_F1, S_F1, OPT['fsh']))
    a('s_mul_i32 s%d, s67, 54' % HO)
    a('s_add_u32 s%d, s%d, s68' % (HO, HO))
    a('s_lshl_b32 s%d, s%d, 12' % (HO, HO))
    a('s_mul_i32 s7, s%d, 27' % RB)
    a('s_add_u32 s7, s7, s%d' % CB)
    a('v_lshlrev_b32 v10, %d, v1' % (6 + OPT['fsh']))
    a('v_add_u32 v11, %d, v237' % (54 * 4096))

def compute(a):
    W = S_W
    g = G1(a)
    flag_srd(a)
    srd(a, SH, P_WS, SZ_H, None if WS_H == 0 else WS_H)
    a('s_mov_b32 s%d, 0' % CV_M)
    a('s_mov_b32 s%d, 0' % CV_TG)
    a('s_mov_b32 s%d, %d' % (CV_RB, CONV_BASE))
    cv_pre(a)
    cv_setup1(a, zero=False)
    a('s_mov_b32 s60, %s' % NLOG2E)
    a('s_mov_b32 s61, %s' % NLOG2E)
    a('s_waitcnt lgkmcnt(0)')
    a('s_setprio %d' % OPT['c1prio'])
    def xr(stage, kk, t):
        base = SLOT[stage % 3]; hi = base >= 98304
        return item('ds_read_b128 %s, v%d offset:%d' % (v(C_XF + 4 * t, 4), (4 if hi else 2) + kk, base - (98304 if hi else 0) + 2048 * t), lg=('x', stage, kk, t))
    def wr(stage, kk, mi, h):
        base = SLOT[stage % 3]; hi = base >= 98304
        return item('ds_read_b64_tr_b16 %s, v%d offset:%d' % (v(C_WF[kk] + 4 * mi + 2 * h, 2), (8 if hi else 6) + (mi & 1),
                    base - (98304 if hi else 0) + (mi >> 1) * 8192 + kk * 4096 + h * 512), lg=('w', stage, kk, mi))
    a('s_barrier')
    stamp(a, 2)
    for mi in range(4):
        g.emit(wr(0, 0, mi, 0)); g.emit(wr(0, 0, mi, 1))
        if mi == 0: g.emit(xr(0, 0, 0))
    for t in range(1, 8): g.emit(xr(0, 0, t))
    LAST = [(0, 0), (1, 0), (2, 0), (0, 1), (1, 1), (2, 1)] + [(t, kk) for t in range(3, 8) for kk in range(2)]
    def xr9(u):
        t, kk = LAST[u]
        return item('ds_read_b128 %s, v%d offset:%d' % (v(C_XF + 4 * (u % 8), 4), 2 + kk, 2048 * t), lg=('x9', u))
    for sidx in range(9):
        a.comment('k-step %d' % sidx)
        stamp(a, sidx + 1, 2)
        if sidx == 5: stamp(a, 3)
        if sidx in (0, 4, 8): stamp7(a, sidx // 4)
        for kk in range(2):
            ns, nk = (sidx, 1) if kk == 0 else (sidx + 1, 0)
            fill = {i: [] for i in range(32)}
            for t in range(8): fill[4 * t + 3].append(xr(ns, nk, t) if ns < 9 else xr9(t))
            o = 0 if kk == 0 else 4
            q = [i for i in range(o, 32) if i % 4 != 3]
            for j in range(8): fill[q[j]].append(wr(ns, nk, j >> 1, j & 1))
            if sidx == 1 and kk == 1: fill[18].append(item(GO_FETCH, lg='go'))
            if sidx == 2 and kk == 0: fill[18].append(item(capture_l(a, go_sgpr), needlg=['go']))
            i = 0
            for t in range(8):
                for mi in range(4):
                    g.wait(lg=[('w', sidx, kk, mi), ('x', sidx, kk, t)])
                    acc = v(C_ACC + (t * 4 + mi) * 4, 4)
                    a('v_mfma_f32_16x16x32_bf16 %s, %s, %s, %s' % (acc, v(C_WF[kk] + 4 * mi, 4), v(C_XF + 4 * t, 4), '0' if (sidx == 0 and kk == 0) else acc))
                    if kk == 1 and i == 3:
                        g.wait(lgall=True)
                        a('s_barrier')
                    for it in fill[i]: g.emit(it)
                    i += 1
    a('s_setprio 3')
    N = 32
    def G(j): return C_ACC + (j >> 2) * 16 + 2 * (j & 3)
    def T(j): return 204 + 2 * (j % 12)
    ep = []
    for i in range(N + 8):
        tn = min(i, N - 1) >> 2
        if i < N: ep.append((tn, 'v_pk_mul_f32 %s, %s, s[60:61]' % (v(T(i), 2), v(G(i), 2))))
        j = i - 2
        if 0 <= j < N:
            ep.append((tn, 'v_exp_f32 v%d, v%d' % (T(j), T(j)))); ep.append((tn, 'v_exp_f32 v%d, v%d' % (T(j) + 1, T(j) + 1)))
            ep.append((tn, 'v_pk_mul_f32 %s, %s, %s' % (v(G(j), 2), v(G(j), 2), v(G(j) + 8, 2))))
        j = i - 4
        if 0 <= j < N: ep.append((tn, 'v_pk_add_f32 %s, %s, 1.0 op_sel_hi:[1,0]' % (v(T(j), 2), v(T(j), 2))))
        j = i - 5
        if 0 <= j < N:
            ep.append((tn, 'v_rcp_f32 v%d, v%d' % (T(j), T(j)))); ep.append((tn, 'v_rcp_f32 v%d, v%d' % (T(j) + 1, T(j) + 1)))
        j = i - 7
        if 0 <= j < N: ep.append((tn, 'v_pk_mul_f32 %s, %s, %s' % (v(G(j), 2), v(G(j), 2), v(T(j), 2))))
        j = i - 8
        if 0 <= j < N:
            t = j >> 2
            O = C_ACC + t * 16 + 8
            ep.append((tn, 'v_cvt_pk_bf16_f32 v%d, v%d, v%d' % (O + (j & 3), G(j), G(j) + 1)))
            if j & 3 == 3:
                ep.append((tn, 'buffer_store_dwordx4 %s, v%d, %s, s%d offen offset:%d sc1' % (v(O, 4), 237 if t < 4 else 11, s(SH, 4), HO, (t & 3) * 1024)))
    def expand(l):
        m = re.match(r'v_pk_(mul|add)_f32 v\[(\d+):\d+\], v\[(\d+):\d+\], (.*)', l)
        if not m: return [l]
        op, d, x, y = m.group(1), int(m.group(2)), int(m.group(3)), m.group(4)
        out = []
        for k in range(2):
            if y.startswith('s['): yy = 's60'
            elif y.startswith('1.0'): yy = '1.0'
            else: yy = 'v%d' % (int(re.match(r'v\[(\d+)', y).group(1)) + k)
            out.append('v_%s_f32 v%d, %s, v%d' % (op, d + k, yy, x + k))
        return out
    done_at = {}
    def icount(): return sum(1 for l in a.lines if not l.strip().startswith(';') and not l.strip().endswith(':'))
    wq = [wr(9, 1, j >> 1, j & 1) for j in range(8)]
    for u, (t, kk) in enumerate(LAST):
        for mi in range(4):
            g.wait(lg=[('w', 9, kk, mi), ('x9', u)])
            acc = v(C_ACC + (t * 4 + mi) * 4, 4)
            a('v_mfma_f32_16x16x32_bf16 %s, %s, %s, %s' % (acc, v(C_WF[kk] + 4 * mi, 4), v(C_XF + 4 * (u % 8), 4), acc))
            if kk == 1 and mi == 3: done_at[t] = icount()
            if wq and mi < 3:
                g.emit(wq.pop(0))
                if wq and u == 0: g.emit(wq.pop(0))
            if mi == 3 and u + 8 < 16: g.emit(xr9(u + 8))
            if u == 8 and mi == 3:
                g.wait(lgall=True)
                if OPT['nb10']:
                    a('s_mov_b64 exec, 1')
                    g.emit(item('ds_add_u32 v254, v253 offset:24', lg='cnt'))
                    a('s_mov_b64 exec, -1')
                else: a('s_barrier')
                stamp(a, 4)
            n = 0
            while ep and n < OPT['epn'] and ep[0][0] in done_at and icount() - done_at[ep[0][0]] >= 9:
                ls = expand(ep.pop(0)[1])
                for l in ls: a(l)
                n += len(ls)
    while ep:
        while icount() - done_at[ep[0][0]] < 9: a('s_nop 0')
        l = ep.pop(0)[1]
        for l2 in ([l] if OPT['epk'] else expand(l)): a(l2)
    stamp(a, 6)
    L, Dn = a.newlabel('CR'), a.newlabel('CRD')
    a('ds_read_b32 v247, v254 offset:20')
    for i in range(16):
        a('v_mov_b64 %s, 0' % v(CA + 2 * i, 2))
    a('s_mov_b32 s11, 0x40000')
    a('s_waitcnt lgkmcnt(0)')
    a('v_cmp_eq_u32 vcc, 4, v247')
    a('s_cbranch_vccz %s' % L)
    for l in cv_g_reads(0, 0): a(l)
    def flag():
        a('s_waitcnt vmcnt(0)')
        a('s_mov_b64 exec, 3')
        store2(a, 'buffer_store_dwordx2 v[250:251], v10, %s, s%%d offen' % s(SF, 4), S_F1)
        a('s_mov_b64 exec, -1')
        stamp(a, 5)
    if not OPT['cfl']: flag()
    a('s_setprio %d' % OPT['cprio'])
    a('s_branch K_conv')
    a.label(L)
    flag()
    a('s_setprio %d' % OPT['cprio'])
    L2 = a.newlabel('CR2')
    a.label(L2)
    a('ds_read_b32 v247, v254 offset:20')
    a('s_waitcnt lgkmcnt(0)')
    a('v_cmp_eq_u32 vcc, 4, v247')
    a('s_cbranch_vccnz %s' % Dn)
    a('s_sleep 2')
    a('s_sub_u32 s11, s11, 1')
    a('s_cbranch_scc0 %s' % L2)
    a.label(Dn)
    for l in cv_g_reads(0, 0): a(l)

UKR, UVR, UWR, UKU, UWU, UAC = 16, 60, 92, 108, 130, 138
def ut_pre(a):
    a('s_mul_i32 s11, s7, 6554')
    a('s_lshr_b32 s11, s11, 16')
    a('s_mul_i32 s69, s11, 10')
    a('s_sub_u32 s69, s7, s69')
    a('s_lshl_b32 s%d, s69, 5' % S_F2)
    a('s_add_u32 s%d, s%d, s11' % (S_F2, S_F2))
    a('s_lshl_b32 s%d, s%d, %d' % (S_F2, S_F2, OPT['fsu']))
    a('s_add_u32 s%d, s%d, %s' % (S_F2, S_F2, hex(F_U)))
    a('s_lshl_b32 s11, s11, 6')
    a('v_and_b32 v241, 0x38, v1')
    a('v_add_u32 v241, s11, v241')
    a('v_and_b32 v242, 7, v1')
    a('s_lshl_b32 s69, s69, 3')
    a('v_add_u32 v242, s69, v242')
    a('v_mul_u32_u24 v240, 1280, v241')
    a('v_lshl_add_u32 v240, v242, 4, v240')
    a('s_lshl_b32 s64, s69, 15')
    a('s_sub_u32 s11, 1984, s11')
    a('s_lshl_b32 s11, s11, 1')
    a('s_add_u32 s64, s64, s11')
    a('v_subrev_u32 v241, 3840, v240')
    a('v_lshlrev_b32 v242, 6, v242')
def ut_loads(a):
    SA, SB, SC = 44, 48, 52
    srd(a, SA, P_K, SZ_ACT)
    srd(a, SB, P_V, SZ_ACT)
    srd(a, SC, P_SK, 640 * 8)
    a('s_movk_i32 s11, 5120')
    for r in range(8):
        a('buffer_load_dwordx4 %s, v240, %s, %s offen offset:%d' % (v(UKR + 12 + 4 * r, 4), s(SA, 4), '0' if r < 4 else 's11', 1280 * (r & 3)))
    for r in range(3):
        a('buffer_load_dwordx4 %s, v241, %s, 0 offen offset:%d' % (v(UKR + 4 * r, 4), s(SA, 4), 1280 * r))
    for i in range(4):
        a('buffer_load_dwordx4 %s, v242, %s, 0 offen offset:%d' % (v(UWR + 4 * i, 4), s(SC, 4), 16 * i))
    for r in range(8):
        a('buffer_load_dwordx4 %s, v240, %s, %s offen offset:%d' % (v(UVR + 4 * r, 4), s(SB, 4), '0' if r < 4 else 's11', 1280 * (r & 3)))
def ut_k(a):
    MASK = 65
    a('s_mov_b32 s%d, 0xffff0000' % MASK)
    for dw in range(4):
        for r in range(11):
            a('v_lshlrev_b32 v%d, 16, v%d' % (UKU + 2 * r, UKR + 4 * r + dw))
            a('v_and_b32 v%d, s%d, v%d' % (UKU + 2 * r + 1, MASK, UKR + 4 * r + dw))
        for ch in range(2):
            for t in range(4):
                src = UWR + 4 * dw + 2 * ch + (t >> 1)
                if t & 1:
                    a('v_and_b32 v%d, s%d, v%d' % (UWU + 2 * t + ch, MASK, src))
                else:
                    a('v_lshlrev_b32 v%d, 16, v%d' % (UWU + 2 * t + ch, src))
        A = UAC + 16 * dw
        for r in range(8):
            a('v_pk_mul_f32 %s, %s, %s' % (v(A + 2 * r, 2), v(UKU + 2 * r, 2), v(UWU + 6, 2)))
        for t in (2, 1, 0):
            for r in range(8):
                a('v_pk_fma_f32 %s, %s, %s, %s' % (v(A + 2 * r, 2), v(UKU + 2 * (r + 3 - t), 2), v(UWU + 2 * t, 2), v(A + 2 * r, 2)))
def ut_v(a):
    MASK, T = 65, 66
    srd(a, 72, P_WS, SZ_ACT, WS_UT)
    a('v_and_b32 v12, 7, v1')
    a('v_lshrrev_b32 v13, 3, v1')
    a('v_xor_b32 v14, 7, v13')
    a('v_xor_b32 v14, v14, v12')
    a('v_lshlrev_b32 v14, 4, v14')
    a('v_lshl_add_u32 v14, v12, 10, v14')
    a('s_and_b32 s%d, s%d, 4' % (T, S_W))
    a('s_add_u32 s%d, s%d, s%d' % (T, T, S_W))
    a('s_lshl_b32 s%d, s%d, 13' % (T, T))
    a('v_add_u32 v14, s%d, v14' % T)
    a('v_add_u32 v15, s%d, v237' % T)
    a('v_lshlrev_b32 v13, 12, v13')
    for dw in range(4):
        A = UAC + 16 * dw
        for r in range(8):
            a('v_lshlrev_b32 v%d, 16, v%d' % (UKU + 2 * r, UVR + 4 * r + dw))
            a('v_and_b32 v%d, s%d, v%d' % (UKU + 2 * r + 1, MASK, UVR + 4 * r + dw))
        for r in range(8):
            a('v_pk_mul_f32 %s, %s, %s' % (v(A + 2 * r, 2), v(A + 2 * r, 2), v(UKU + 2 * r, 2)))
        O = UWR + 8 * (dw & 1)
        for ch in range(2):
            for i in range(4):
                a('v_cvt_pk_bf16_f32 v%d, v%d, v%d' % (O + 4 * ch + i, A + 2 * (7 - 2 * i) + ch, A + 2 * (6 - 2 * i) + ch))
            a('ds_write_b128 v14, %s offset:%d' % (v(O + 4 * ch, 4), (2 * dw + ch) * 128))
    for i in range(8):
        a('ds_read_b128 %s, v15 offset:%d' % (v(UKR + 4 * i, 4), 1024 * i))
    for i in range(8):
        a('v_xor_b32 v%d, %d, v12' % (UKU + i, i))
        a('v_lshl_add_u32 v%d, v%d, 4, v13' % (UKU + i, UKU + i))
    for i in range(8):
        a('s_add_u32 s%d, s64, %d' % (T, 32768 * i))
        a('s_waitcnt lgkmcnt(%d)' % (7 - i))
        a('buffer_store_dwordx4 %s, v%d, s[72:75], s%d offen sc1' % (v(UKR + 4 * i, 4), UKU + i, T))

CW = 13824
C_HA, C_HB, C_U = 0, 4640, 9280
C_EX = 2 * CW
CV_RB = 20
CV_DO, CV_LB, CV_T, CV_T2, CV_W, CV_M = 66, 67, 68, 69, 9, 8
CV_TG, CV_NX = 71, 70
CV_D = 18
CA, CG, CF = 108, [140, 12], [172, 44]
VG, VF, VU, VXW, VXR = 228, 229, 233, 234, 235
def gs_arrive(a):
    a('s_mov_b64 exec, 1')
    a('ds_add_u32 v255, v253')
    a('s_mov_b64 exec, -1')
    a('s_add_u32 s%d, s%d, 4' % (CV_TG, CV_TG))
def gs_wait(a, sleep=0):
    L, Dn = a.newlabel('CS'), a.newlabel('CSD')
    a('s_mov_b32 s11, 0x40000')
    a.label(L)
    a('ds_read_b32 v247, v255')
    a('s_waitcnt lgkmcnt(0)')
    a('v_cmp_le_u32 vcc, s%d, v247' % CV_TG)
    a('s_cbranch_vccnz %s' % Dn)
    if sleep: a('s_sleep %d' % sleep)
    a('s_sub_u32 s11, s11, 1')
    a('s_cbranch_scc0 %s' % L)
    a.label(Dn)
def cv_pre(a):
    srd(a, 72, P_SSMK, SZ_ACT)
    a('s_lshl_b32 s11, s7, 2')
    a('s_load_dword s%d, s[%d:%d], s11' % (CV_D, P_SSMD, P_SSMD + 1))
    a('s_or_b32 s11, s11, 4')
    a('s_load_dword s%d, s[%d:%d], s11' % (CV_D + 1, P_SSMD, P_SSMD + 1))
    a('s_and_b32 s%d, s%d, 3' % (CV_W, S_W))
    a('s_xor_b32 s11, s%d, 1' % CV_M)
    a('s_lshr_b32 s%d, s%d, s11' % (CV_T, CV_W))
    a('s_lshl_b32 s%d, s7, 1' % CV_DO)
    a('s_add_u32 s%d, s%d, s%d' % (CV_DO, CV_DO, CV_T))
    a('s_lshl_b32 s%d, s%d, 12' % (CV_DO, CV_DO))
    a('s_mul_i32 s%d, s%d, %d' % (CV_LB, CV_T, CW))
    a('s_add_u32 s%d, s%d, s%d' % (CV_LB, CV_LB, CV_RB))
    a('v_add_u32 v238, s%d, v237' % CV_DO)
    a('v_subrev_u32 v239, 2, v238')
    a('v_lshl_add_u32 v246, v1, 7, s%d' % CV_DO)
    a('s_lshr_b32 s11, s7, 5')
    a('s_lshl_b32 s11, s11, %d' % (5 + OPT['fsu']))
    a('s_add_u32 s11, s11, %s' % hex(F_U))
    a('v_min_u32 v248, 31, v1')
    a('v_lshl_add_u32 v248, v248, %d, s11' % OPT['fsu'])
    a('s_mov_b32 s%d, 0' % CV_T)
def cv_setup1(a, zero=True):
    W, LB = CV_W, CV_LB
    a('s_mul_i32 s65, s7, 1639')
    a('s_lshr_b32 s65, s65, 16')
    a('s_mul_i32 s%d, s65, 40' % S_F2)
    a('s_sub_u32 s%d, s7, s%d' % (S_F2, S_F2))
    a('s_lshl_b32 s65, s65, 2')
    a('s_add_u32 s65, s65, s%d' % W)
    a('s_lshl_b32 s65, s65, 6')
    a('s_add_u32 s%d, s%d, s65' % (S_F2, S_F2))
    a('s_lshl_b32 s%d, s%d, %d' % (S_F2, S_F2, OPT['fsz']))
    a('s_add_u32 s%d, s%d, %s' % (S_F2, S_F2, hex(F_Z)))
    a('s_andn2_b32 s65, s%d, s%d' % (W, CV_M))
    a('s_and_b32 s65, s65, 1')
    a('s_lshl_b32 s65, s65, 8')
    a('s_add_u32 s65, s65, s%d' % LB)
    a('v_and_b32 v%d, 1, v1' % VG)
    a('v_xor_b32 v%d, 1, v%d' % (VG, VG))
    a('v_mul_u32_u24 v%d, %d, v%d' % (VG, C_HB - C_HA, VG))
    a('v_bfe_u32 v204, v1, 1, 3')
    a('v_lshl_add_u32 v%d, v204, 6, v%d' % (VG, VG))
    a('v_lshrrev_b32 v204, 4, v1')
    a('v_lshl_add_u32 v%d, v204, 4, v%d' % (VG, VG))
    a('s_add_u32 s69, s65, %d' % (C_HA + 64))
    a('v_add_u32 v%d, s69, v%d' % (VG, VG))
    a('v_and_b32 v205, 15, v1')
    a('v_lshlrev_b32 v205, 2, v205')
    a('v_lshlrev_b32 v%d, 4, v204' % VF)
    a('v_sub_u32 v%d, v%d, v205' % (VF, VF))
    a('s_add_u32 s69, s65, %d' % (C_U + 60))
    a('v_add_u32 v%d, s69, v%d' % (VF, VF))
    for i in range(1, 4):
        a('v_add_u32 v%d, %d, v%d' % (VF + i, 1024 * i, VF))
    a('v_lshl_add_u32 v205, v204, 7, v205')
    a('s_lshl_b32 s65, s%d, 10' % W)
    a('s_sub_u32 s65, %d, s65' % (C_U + 444 + 3072))
    a('s_add_u32 s65, s65, s%d' % CV_RB)
    a('v_sub_u32 v%d, s65, v205' % VU)
    a('s_mul_i32 s65, s%d, %d' % (CV_M, CW - 8192))
    a('s_add_u32 s65, s65, 8192')
    a('s_mul_i32 s65, s65, s%d' % W)
    a('s_xor_b32 s69, s%d, 1' % CV_M)
    a('s_mul_i32 s69, s69, %d' % C_EX)
    a('s_add_u32 s69, s69, s%d' % CV_RB)
    a('s_add_u32 s65, s65, s69')
    a('v_add_u32 v%d, s65, v237' % VXW)
    a('s_lshl_b32 s65, s%d, 11' % W)
    a('s_add_u32 s69, s69, s65')
    a('v_add_u32 v%d, s69, v237' % VXR)
    a('s_lshl_b32 s%d, s7, 13' % CV_DO)
    a('s_add_u32 s%d, s%d, s65' % (CV_DO, CV_DO))
    if zero:
        for i in range(16):
            a('v_mov_b64 %s, 0' % v(CA + 2 * i, 2))
def cv_pads():
    return [['v_mov_b64 v[206:207], 0', 'v_lshl_add_u32 v247, v1, 3, s%d' % CV_LB, 'ds_write_b64 v247, v[206:207] offset:%d' % C_HA],
            ['ds_write_b64 v247, v[206:207] offset:%d' % C_HB],
            ['v_lshl_add_u32 v247, v1, 2, s%d' % CV_LB, 'ds_write_b32 v247, v206 offset:%d' % (C_U + 4096)]]
def cv_fix():
    R = CF[0]
    return [['v_mov_b32 v247, s%d' % CV_LB, 'ds_read_b128 %s, v247 offset:%d' % (v(R, 4), C_HA + 512)],
            'v_alignbit_b32 v%d, v%d, v%d, 16' % (R + 7, R + 3, R + 2),
            'v_alignbit_b32 v%d, v%d, v%d, 16' % (R + 6, R + 2, R + 1),
            'v_alignbit_b32 v%d, v%d, v%d, 16' % (R + 5, R + 1, R),
            'v_lshlrev_b32 v%d, 16, v%d' % (R + 4, R),
            'ds_write_b128 v247, %s offset:%d' % (v(R + 4, 4), C_HB + 512)]
def cv_h_items():
    it = []
    for (dst, vo) in ((C_HA + 512, 238), (C_HB + 512, 239)):
        for i in range(4):
            it.append(item('buffer_load_dwordx4 v%d, s[72:75], 0 offen offset:%d lds' % (vo, i * 1024),
                           pre=['s_add_u32 m0, s%d, %d' % (CV_LB, dst)] if i == 0 else [], vm='cvh'))
    return it
def cv_h_items_half():
    pre = ['s_and_b32 s11, s%d, 1' % S_W, 's_lshl_b32 s11, s11, 1', 'v_subrev_u32 v239, s11, v238',
           's_mul_i32 s11, s11, %d' % (C_HB // 2), 's_add_u32 s11, s11, s%d' % CV_LB, 's_add_u32 m0, s11, 512']
    return [item('buffer_load_dwordx4 v239, s[72:75], 0 offen offset:%d lds' % (i * 1024), pre=pre if i == 0 else [], vm='cvh') for i in range(4)]
def cv_u_loads(a):
    srd(a, 48, P_WS, SZ_ACT, WS_UT)
    a('s_add_u32 m0, s%d, %d' % (CV_LB, C_U))
    a('s_nop 0')
    for i in range(4):
        a('buffer_load_dwordx4 v238, s[48:51], 0 offen offset:%d sc1 lds' % (i * 1024))
def cv_try_u(a):
    L = a.newlabel('UT')
    a('v_cmp_eq_u64 vcc, %s, v[244:245]' % NC)
    a('s_cmp_eq_u64 vcc, -1')
    a('s_cbranch_scc0 %s' % L)
    cv_u_loads(a)
    a('s_mov_b32 s%d, 1' % CV_T)
    a.label(L)
    if OPT['stamp'] == 9: a('s_add_u32 s96, s%d, 1' % CV_T)
def cv_g_reads(j, b):
    return ['ds_read_b128 %s, v%d offset:%d' % (v(CG[b] + 4 * i, 4), VG, 64 * j + 512 * i) for i in range(8)]
def cv_f_reads(j, b):
    L = []
    for i in range(8):
        rb = 7 - i
        o = (512 * (rb & 1) + 64 * j) // 4
        L.append('ds_read2_b32 %s, v%d offset0:%d offset1:%d' % (v(CF[b] + 4 * i, 2), VF + (rb >> 1), o, o + 1))
        L.append('ds_read2_b32 %s, v%d offset0:%d offset1:%d' % (v(CF[b] + 4 * i + 2, 2), VF + (rb >> 1), o + 2, o + 3))
    return L

A_STRIDE = 6144
LDS_Z = CONV_BASE + 4 * A_STRIDE
LDS_Q = [40960, 90112]
def chunk_addrs(a, dst, tmp, sbase):
    for i in range(3):
        a('v_add_u32 v%d, %d, v1' % (tmp, 64 * i))
        a('v_mul_u32_u24 v%d, 205, v%d' % (dst + i, tmp))
        a('v_lshrrev_b32 v%d, 11, v%d' % (dst + i, dst + i))
        a('v_mul_u32_u24 v%d, 1120, v%d' % (dst + i, dst + i))
        a('v_lshl_add_u32 v%d, v%d, 4, v%d' % (dst + i, tmp, dst + i))
        a('v_add_u32 v%d, s%d, v%d' % (dst + i, sbase, dst + i))
    a('v_lshrrev_b32 v%d, 5, v1' % tmp)
    a('v_lshl_add_u32 v%d, v%d, 30, v%d' % (dst + 2, tmp, dst + 2))
def lds_q_base(a, dst, w):
    a('s_lshr_b32 s%d, s%d, 1' % (dst, w))
    a('s_mul_i32 s%d, s%d, %d' % (dst, dst, LDS_Q[1] - LDS_Q[0] - 8192))
    a('s_lshl_b32 s11, s%d, 12' % w)
    a('s_add_u32 s%d, s%d, s11' % (dst, dst))
    a('s_add_u32 s%d, s%d, %d' % (dst, dst, LDS_Q[0]))
def aterm(a):
    W = CV_W
    RB, CB, T, T2 = 65, 66, 67, 68
    SQ, SZ, SG = 52, 44, 60
    if OPT['xc'] == 2: a('s_endpgm')
    a('s_setprio %d' % OPT['aprio'])
    a('s_lshl_b32 s%d, s3, 2' % RB)
    a('s_lshr_b32 s%d, s4, 3' % CB)
    a('s_add_u32 s%d, s%d, s%d' % (RB, RB, CB))
    a('s_and_b32 s%d, s4, 7' % CB)
    srd(a, SQ, P_Q, SZ_ACT)
    a('s_lshl_b32 s%d, s%d, 6' % (T, RB))
    a('s_lshl_b32 s%d, s%d, 4' % (T2, W))
    a('s_add_u32 s%d, s%d, s%d' % (T, T, T2))
    a('v_and_b32 v8, 15, v1')
    a('v_add_u32 v8, s%d, v8' % T)
    a('v_lshrrev_b32 v9, 4, v1')
    a('s_mul_i32 s%d, s%d, 1280' % (T, T))
    a('s_mul_i32 s%d, s%d, 160' % (T2, CB))
    a('s_add_u32 s%d, s%d, s%d' % (T, T, T2))
    chunk_addrs(a, 12, 10, T)
    a('s_lshl_b32 s%d, s%d, 12' % (T2, W))
    a('s_add_u32 s%d, s%d, %d' % (T2, T2, CONV_BASE + 36864))
    gs_wait(a)
    for i in range(3):
        a('s_add_u32 m0, s%d, %d' % (T2, 1024 * i))
        a('s_nop 0')
        a('buffer_load_dwordx4 v%d, %s, 0 offen lds' % (12 + i, s(SQ, 4)))
    a('v_and_b32 v10, 15, v1')
    a('v_mul_u32_u24 v10, 160, v10')
    a('v_lshl_add_u32 v10, v9, 3, v10')
    a('v_add_u32 v10, s%d, v10' % T2)
    a('s_lshl_b32 s%d, s%d, 5' % (T, RB))
    a('s_add_u32 s%d, s%d, s%d' % (T, T, W))
    a('s_add_u32 s%d, s%d, 27' % (T, T))
    a('s_lshl_b32 s%d, s%d, %d' % (T, T, OPT['fsh'] + 1))
    a('v_and_b32 v25, 1, v1')
    a('v_lshl_add_u32 v25, v25, %d, s%d' % (OPT['fsh'], T))
    FL = 'buffer_load_dwordx2 v[26:27], v25, %s, 0 offen sc1' % s(SF, 4)
    a(FL)
    a('v_lshlrev_b32 v8, 2, v8')
    srd(a, SG, P_WS, 8192, WS_G)
    a('s_mul_i32 s%d, s%d, %d' % (T, W, A_STRIDE))
    a('s_add_u32 s%d, s%d, %d' % (T, T, CONV_BASE))
    a('v_add_u32 v24, s%d, v237' % T)
    a('v_and_b32 v11, 15, v1')
    a('v_lshlrev_b32 v11, 4, v11')
    a('v_lshl_add_u32 v11, v9, 13, v11')
    a('s_waitcnt vmcnt(0)')
    poll_check(a, FL, 26, T2, sleep=8)
    a('buffer_load_dword v8, v8, %s, 0 offen sc1' % s(SG, 4))
    A = 40
    for mt in range(5):
        a('ds_read_b64 %s, v10 offset:%d' % (v(12 + 2 * mt, 2), 32 * mt))
    a('s_lshl_b32 s%d, s%d, 2' % (T, CB))
    a('s_lshr_b32 s%d, s%d, 3' % (T2, RB))
    a('s_add_u32 s%d, s%d, s%d' % (T, T, T2))
    a('s_lshl_b32 s%d, s%d, 6' % (T, T))
    a('s_mul_i32 s%d, s%d, 10' % (T2, W))
    a('s_add_u32 s%d, s%d, s%d' % (T, T, T2))
    a('s_lshl_b32 s%d, s%d, %d' % (T, T, OPT['fsz']))
    a('s_add_u32 s%d, s%d, %s' % (T, T, hex(F_Z)))
    a('v_min_u32 v25, 9, v1')
    a('v_lshl_add_u32 v25, v25, %d, s%d' % (OPT['fsz'], T))
    a('s_mul_i32 s%d, s%d, 40' % (CB, CB))
    a('s_add_u32 s%d, s%d, s%d' % (CB, CB, T2))
    a('s_lshl_b32 s%d, s%d, 13' % (CB, CB))
    a('s_lshl_b32 s%d, s%d, 8' % (RB, RB))
    a('s_add_u32 s%d, s%d, s%d' % (CB, CB, RB))
    a('s_lshl_b32 s%d, s%d, 8' % (RB, T2))
    a('s_add_u32 s%d, s%d, %d' % (RB, RB, LDS_Z))
    a('s_mov_b32 s%d, 0xffff0000' % T)
    a('s_waitcnt lgkmcnt(0)')
    for i in range(10):
        a('v_lshlrev_b32 v%d, 16, v%d' % (A + 2 * i, 12 + i))
        a('v_and_b32 v%d, s%d, v%d' % (A + 2 * i + 1, T, 12 + i))
    a('s_waitcnt vmcnt(0)')
    a('v_mov_b32 v9, v8')
    for i in range(20):
        a('v_mul_f32 v%d, v8, v%d' % (A + i, A + i))
    a('v_sub_f32 v8, 1.0, v8')
    a('v_sub_f32 v9, 1.0, v9')
    a('ds_write_b64 v24, v[8:9] offset:5120')
    for mt in range(5):
        a('ds_write_b128 v24, %s offset:%d' % (v(A + 4 * mt, 4), 1024 * mt))
    if OPT['ztrig'] >= 0:
        L, Dn = a.newlabel('TW'), a.newlabel('TWD')
        a('s_mov_b32 s11, 0x40000')
        a.label(L)
        a('ds_read_b32 v247, v254 offset:4')
        a('s_waitcnt lgkmcnt(0)')
        a('v_cmp_eq_u32 vcc, 1, v247')
        a('s_cbranch_vccnz %s' % Dn)
        a('s_sleep %d' % OPT['tsl'])
        a('s_sub_u32 s11, s11, 1')
        a('s_cbranch_scc0 %s' % L)
        a.label(Dn)
    poll(a, FL, 26, T2, sleep=OPT['zsl'])
    stamp(a, 3)
    for i in range(3):
        a('s_add_u32 m0, s%d, %d' % (RB, 1024 * i))
        if i == 2: a('s_mov_b32 exec_hi, 0')
        else: a('s_nop 0')
        a('buffer_load_dwordx4 v11, %s, s%d offen sc1 lds' % (s(SZ, 4), CB))
        if i < 2: a('s_add_u32 s%d, s%d, %d' % (CB, CB, 4 * 8192))
    a('s_mov_b64 exec, -1')
    a('s_waitcnt vmcnt(0) lgkmcnt(0)')
    stamp_end(a)
    a('s_endpgm')

def conv(a):
    SZ, DO, T, W = 44, CV_DO, CV_T, CV_W
    if OPT['xc'] == 1: a('s_endpgm')
    for l in cv_f_reads(0, 0): a(l)
    srd(a, SZ, P_WS, SZ_ACT, WS_Z4)
    a('s_lshl_b32 s%d, s%d, 1' % (T, CV_M))
    stamp(a, 7); stamp(a, 3, 6)
    if OPT['cord']:
        SEQ = [(n, aa) for aa in range(8) for n in range(aa, 8)]
        SEQ[-3], SEQ[-2] = SEQ[-2], SEQ[-3]
        SEQ[-4], SEQ[-5] = SEQ[-5], SEQ[-4]
    else:
        SEQ = [(n, aa) for n in range(8) for aa in range(n + 1)]
    def it(b, nxt):
        a('s_waitcnt lgkmcnt(0)')
        i = 0
        for (n, aa) in SEQ:
            acc = v(CA + 4 * n, 4)
            a('v_mfma_f32_16x16x32_bf16 %s, %s, %s, %s' % (acc, v(CG[b] + 4 * aa, 4), v(CF[b] + 4 * (n - aa), 4), acc))
            if i in nxt: a(nxt.pop(i))
            i += 1
    def rd(j, b):
        g_, f_ = cv_g_reads(j, b), cv_f_reads(j, b)
        L = []
        for i in range(8): L += [g_[i], f_[2 * i], f_[2 * i + 1]]
        return dict(enumerate(L))
    def flag():
        a('s_waitcnt vmcnt(0)')
        set_flag(a, S_F1)
        a('s_mov_b32 s%d, %s' % (S_F1, hex(OOB)))
        stamp(a, 6)
    a.label('CV_loop')
    it(0, rd(1, 1))
    if OPT['cfl']:
        a('s_waitcnt vmcnt(0)')
        a('s_mov_b64 exec, 3')
        a('buffer_store_dwordx2 v[250:251], v10, %s, s%d offen sc1' % (s(SF, 4), S_F1))
        a('s_mov_b64 exec, -1')
        stamp(a, 5)
    nx = rd(2, 0)
    for k in range(5):
        nx[26 + k] = 'v_add_u32 v%d, 128, v%d' % (VG + k, VG + k)
    it(1, nx)
    a('s_sub_u32 s%d, s%d, 1' % (T, T))
    a('s_cbranch_scc0 CV_loop')
    it(0, rd(1, 1))
    nx = {}
    for n in range(8):
        nx[max(i for i, e in enumerate(SEQ) if e[0] == n) + 9] = 'ds_write_b128 v%d, %s offset:%d' % (VXW, v(CA + 4 * n, 4), 1024 * n)
    it(1, nx)
    stamp(a, 8); stamp(a, 4, 6)
    for i in range(4):
        a('s_lshl_b32 s%d, s%d, 16' % (48 + i, CV_D + (i >> 1)) if not (i & 1) else 's_and_b32 s%d, s%d, 0xffff0000' % (48 + i, CV_D + (i >> 1)))
    a('s_nop 4')
    for i in sorted(nx): a(nx[i])
    a('s_waitcnt lgkmcnt(0)')
    gs_arrive(a)
    stamp(a, 8, 6)
    gs_wait(a, OPT['gsl'])
    stamp(a, 9); stamp(a, 9, 6); stamp(a, 9, 8)
    a('s_mov_b32 s11, 0xffff0000')
    a('s_cmp_eq_u32 s%d, 1' % CV_M)
    a('s_cbranch_scc1 CV_epiB')
    P, UR, O = 12, 48, 72
    def finish(nch, reg):
        for un in range(nch // 2):
            for t in range(2):
                for hh in range(2):
                    for c in (2 * un, 2 * un + 1):
                        u = UR + 4 * c + 2 * t + hh
                        R = reg(c, t) + 2 * hh
                        a('v_and_b32 v%d, s11, v%d' % (68 + (c & 1), u))
                        a('v_lshlrev_b32 v%d, 16, v%d' % (u, u))
                        a('v_fmac_f32 v%d, s%d, v%d' % (R, 48 + c, 68 + (c & 1)))
                        a('v_fmac_f32 v%d, s%d, v%d' % (R + 1, 48 + c, u))
                    R0, R1 = reg(2 * un, t) + 2 * hh, reg(2 * un + 1, t) + 2 * hh
                    oo = O + 8 * un + 4 * t + 2 * hh
                    a('v_cvt_pk_bf16_f32 v%d, v%d, v%d' % (oo, R0, R1))
                    a('v_cvt_pk_bf16_f32 v%d, v%d, v%d' % (oo + 1, R0 + 1, R1 + 1))
                if un == 1 and t == 0: a('s_add_u32 s%d, s%d, 8192' % (DO, DO))
                if nch == 2: stamp(a, 5 + t, 8)
                a('buffer_store_dwordx4 %s, v237, %s, s%d offen offset:%d sc1' % (v(O + 8 * un + 4 * t, 4), s(SZ, 4), DO, t * 1024))
    def ureads(nch):
        for c in range(nch):
            for t in range(2):
                for hh in range(2):
                    a('ds_read_b32 v%d, v%d offset:%d' % (UR + 4 * c + 2 * t + hh, VU, c * CW + 512 * (1 - t) + 64 * (1 - hh)))
    for c in range(2):
        for t in range(2):
            for h in range(2):
                a('ds_read_b128 %s, v%d offset:%d' % (v(P + 16 * c + 8 * t + 4 * h, 4), VXR, (2 * c + h) * 8192 + t * 1024))
    ureads(2)
    stamp(a, 1, 8)
    a('s_waitcnt lgkmcnt(8)')
    stamp(a, 2, 8)
    for c in range(2):
        for t in range(2):
            R = P + 16 * c + 8 * t
            for i in range(4): a('v_add_f32 v%d, v%d, v%d' % (R + i, R + i, R + 4 + i))
    stamp(a, 3, 8)
    a('s_waitcnt lgkmcnt(0)')
    stamp(a, 4, 8)
    gs_arrive(a)
    finish(2, lambda c, t: P + 16 * c + 8 * t)
    stamp(a, 7, 8)
    a('s_cmp_lt_u32 s%d, 4' % S_W)
    a('s_cbranch_scc1 K_prep_g2b')
    stamp(a, 1)
    a('s_waitcnt vmcnt(0)')
    stamp(a, 2)
    set_flag(a, S_F2)
    a('s_branch K_aterm')
    a.label('CV_epiB')
    for c in range(4):
        for t in range(2):
            a('ds_read_b128 %s, v%d offset:%d' % (v(P + 8 * c + 4 * t, 4), VXR, c * CW + t * 1024))
    ureads(4)
    a('v_lshlrev_b32 v247, %d, v1' % OPT['fsz'])
    a('s_waitcnt lgkmcnt(0)')
    gs_arrive(a)
    finish(4, lambda c, t: P + 8 * c + 4 * t)
    stamp(a, 1)
    a('s_waitcnt vmcnt(0)')
    stamp(a, 2)
    a('s_mov_b64 exec, 3')
    a('buffer_store_dwordx2 v[250:251], v247, %s, s%d offen sc1' % (s(SF, 4), S_F2))
    a('s_mov_b64 exec, -1')
    a.label('K_aterm')
    aterm(a)

G2_SW = 72
G2_KB, G2_O, G2_T, G2_T2, G2_LB, G2_RB, G2_CB = 65, 66, 67, 68, 69, 8, 9
G2_X = 7
G2_ACC, G2_WB, G2_HB = 28, 108, 188
def g2_lds(r):
    return (49152 + r * 20480) if r < 2 else ((r - 2) * 20480)
def g2_ks(p, dst):
    L = (['s_xor_b32 s%d, s%d, %d' % (dst, G2_X, 4 * p), 's_add_u32 s%d, s%d, s%d' % (dst, dst, G2_KB)] if p < 12 else
         ['s_add_u32 s%d, s%d, %d' % (dst, G2_KB, 4 * p)]) + [
         's_cmp_ge_u32 s%d, 54' % dst,
         's_cselect_b32 s%d, 54, 0' % G2_T,
         's_sub_u32 s%d, s%d, s%d' % (dst, dst, G2_T)]
    if p == 13:
        L += ['s_cmp_ge_u32 s%d, 2' % S_W, 's_cselect_b32 s%d, 60, s%d' % (dst, dst)]
    return L
def g2_w_items(p, slot, va=237):
    B = G2_WB + 20 * slot
    it = []
    for t in range(5):
        pre = g2_ks(p, G2_O) + ['s_mul_i32 s%d, s%d, 40960' % (G2_O, G2_O)] if t == 0 else []
        it.append(item('buffer_load_dwordx4 %s, v%d, %s, s%d offen offset:%d sc1' % (v(B + 4 * t, 4), va if t < 4 else va + 1, s(G2_SW, 4), G2_O, (t & 3) * 1024), pre, vm=('w', p)))
    return it
def g2_wl_items(p, r, O=None, va=237):
    O = G2_O if O is None else O
    it = []
    for t in range(5):
        pre = []
        if t == 0:
            pre = g2_ks(p, O) + ['s_mul_i32 s%d, s%d, 40960' % (O, O), 's_add_u32 m0, s%d, %d' % (G2_LB, g2_lds(r))]
        if t == 4:
            pre = ['s_add_u32 m0, s%d, %d' % (G2_LB, g2_lds(r) + 4096)]
        it.append(item('buffer_load_dwordx4 v%d, %s, s%d offen offset:%d sc1 lds' % (va if t < 4 else va + 1, s(G2_SW, 4), O, (t & 3) * 1024), pre, vm=('wl', p)))
    return it
def fw_addr(a):
    a('s_and_b32 s11, s4, 7')
    a('s_mul_i32 s11, s11, 5')
    a('s_lshr_b32 s11, s11, 2')
    a('s_mul_i32 s11, s11, %d' % (18 << OPT['fsw']))
    a('s_add_u32 s11, s11, %s' % hex(F_W))
    a('v_min_u32 v248, 35, v1')
    a('v_lshl_add_u32 v248, v248, %d, s11' % OPT['fsw'])
def g2_pre(a, allw=False):
    RB, CB, T, T2 = G2_RB, G2_CB, G2_T, G2_T2
    a('s_lshl_b32 s%d, s3, 2' % RB)
    a('s_lshr_b32 s%d, s4, 3' % CB)
    a('s_add_u32 s%d, s%d, s%d' % (RB, RB, CB))
    a('s_and_b32 s%d, s4, 7' % CB)
    a('s_mul_i32 s%d, s%d, 5120' % (T, CB))
    a('s_add_u32 s%d, s%d, %s' % (T, T, hex(WS_W2P)))
    srd(a, G2_SW, P_WS, 53 * 40960 + 5120, 's%d' % T)
    if OPT['rot2']:
        a('s_and_b32 s%d, s%d, 3' % (T, RB))
        a('s_mul_i32 s%d, s%d, %d' % (T, T, 13 if OPT['rot2r'] else 0))
        a('s_mul_i32 s%d, s%d, 7' % (T2, CB))
        a('s_add_u32 s%d, s%d, s%d' % (T, T, T2))
        a('s_add_u32 s%d, s%d, s%d' % (T, T, S_W))
        a('s_cmp_ge_u32 s%d, 54' % T)
        a('s_cselect_b32 s%d, 54, 0' % T2)
        a('s_sub_u32 s%d, s%d, s%d' % (G2_KB, T, T2))
    else:
        a('s_mov_b32 s%d, s%d' % (G2_KB, S_W))
    a('s_and_b32 s%d, s%d, %d' % (G2_X, RB, 3 if OPT['wx'] else 0))
    a('s_lshl_b32 s%d, s%d, 2' % (G2_X, G2_X))
    a('s_mul_i32 s%d, s%d, 5120' % (G2_LB, S_W))
    a('v_add_u32 v238, 4096, v237')
    a('s_mul_i32 s%d, s%d, 5' % (T, CB))
    a('s_lshr_b32 s%d, s%d, 2' % (T, T))
    a('s_mul_i32 s%d, s%d, %d' % (T, T, 18 << OPT['fsw']))
    a('s_add_u32 s%d, s%d, %s' % (T, T, hex(F_W)))
    if not allw:
        a('s_cmp_eq_u32 s%d, 0' % S_W)
        a('s_cselect_b32 s%d, s%d, %s' % (T, T, hex(OOB)))
    a('v_min_u32 v248, 35, v1')
    a('v_lshl_add_u32 v248, v248, %d, s%d' % (OPT['fsw'], T))

def g2_fh_addr(a):
    T = G2_T
    a('v_min_u32 v247, 13, v1')
    a('v_lshlrev_b32 v247, 2, v247')
    a('v_cmp_gt_u32 vcc, 12, v1')
    a('v_xor_b32 v248, s%d, v247' % G2_X)
    a('s_nop 0')
    a('v_cndmask_b32 v248, v247, v248, vcc')
    a('v_add_u32 v248, s%d, v248' % G2_KB)
    a('v_subrev_u32 v247, 54, v248')
    a('v_min_u32 v248, v248, v247')
    a('s_lshl_b32 s%d, s%d, %d' % (T, G2_RB, 6 + OPT['fsh']))
    a('v_lshl_add_u32 v248, v248, %d, s%d' % (OPT['fsh'], T))

def g2_setup(a):
    RB, CB, W = G2_RB, G2_CB, S_W
    SHh, SO = 56, 48
    T, T2 = G2_T, G2_T2
    a('v_mov_b32 v22, v248')
    a('v_mov_b32 v2, v237')
    a('v_mov_b32 v3, v238')
    a('s_mul_i32 s%d, s%d, %d' % (T, RB, 54 * 4096))
    if WS_H: a('s_add_u32 s%d, s%d, %s' % (T, T, hex(WS_H)))
    srd(a, SHh, P_WS, 54 * 4096, 's%d' % T)
    for j in range(4):
        a('s_xor_b32 s%d, s%d, %d' % (T, W, j))
        a('s_lshl_b32 s%d, s%d, 10' % (T, T))
        a('v_add_u32 v%d, s%d, v2' % (4 + j, T))
    a('v_add_u32 v24, s%d, v2' % G2_LB)
    a('v_add_u32 v23, %d, v24' % g2_lds(1))
def g2_setup2(a):
    RB, CB, W = G2_RB, G2_CB, S_W
    SHh, SO = 56, 48
    T, T2 = G2_T, G2_T2
    a('s_lshl_b32 s%d, s%d, 6' % (T, RB))
    a('s_lshl_b32 s%d, s%d, 4' % (T2, W))
    a('s_add_u32 s%d, s%d, s%d' % (T, T, T2))
    a('s_mul_i32 s%d, s%d, 1280' % (T, T))
    a('s_mul_i32 s%d, s%d, 160' % (T2, CB))
    a('s_add_u32 s%d, s%d, s%d' % (T, T, T2))
    chunk_addrs(a, 12, 10, T)
    lds_q_base(a, T2, W)
    a('v_add_u32 v15, s%d, v2' % T2)
    a('v_lshrrev_b32 v9, 4, v1')
    a('v_and_b32 v10, 15, v1')
    a('v_mul_u32_u24 v10, 160, v10')
    a('v_lshl_add_u32 v10, v9, 3, v10')
    a('v_add_u32 v10, s%d, v10' % T2)
    srd(a, SO, P_OUT, SZ_ACT)
    a('s_mul_i32 s%d, s%d, %d' % (T, W, A_STRIDE))
    a('s_add_u32 s%d, s%d, %d' % (T, T, CONV_BASE))
    a('v_add_u32 v11, s%d, v2' % T)
    a('v_lshlrev_b32 v25, 9, v9')
    a('v_bfe_u32 v9, v1, 1, 3')
    a('v_lshl_add_u32 v25, v9, 4, v25')
    a('v_and_b32 v9, 1, v1')
    a('v_lshl_add_u32 v25, v9, 2, v25')
    a('s_and_b32 s%d, s%d, 1' % (T, W))
    a('s_lshl_b32 s%d, s%d, 7' % (T, T))
    a('s_lshr_b32 s%d, s%d, 1' % (T2, W))
    a('s_lshl_b32 s%d, s%d, 3' % (T2, T2))
    a('s_add_u32 s%d, s%d, s%d' % (T, T, T2))
    a('s_add_u32 s%d, s%d, %d' % (T, T, LDS_Z))
    a('v_add_u32 v25, s%d, v25' % T)

def gemm2(a):
    RB, CB, W = G2_RB, G2_CB, S_W
    SHh, SQ, SZ, SG, SO = 56, 52, 44, 60, 48
    O, T, T2 = G2_O, G2_T, G2_T2
    ACC, WB, HB = G2_ACC, G2_WB, G2_HB
    DH = 4
    OH, TH = 70, 71
    g = G1(a)
    FH_LOAD = 'buffer_load_dwordx2 v[26:27], v22, %s, 0 offen sc1' % s(SF, 4)
    FZ_LOAD = 'buffer_load_dwordx2 v[252:253], v25, %s, 0 offen sc1' % s(SF, 4)
    a.label('K_gemm2b')
    order = [0, 1, 2, 3, 4, 8, 5, 9, 6, 10, 7, 11, 12, 13]
    slot = [0, 1, 2, 3, 2, 0, 2, 1, 2, 3, 2, 0, 1, 3]
    refill = {0: 8, 1: 9, 2: 4, 3: 10, 4: 5, 5: 11, 6: 6, 7: 12, 8: 7, 9: 13}
    slow = []
    def fh_check(bit):
        S, B = a.newlabel('FHS'), a.newlabel('FHB')
        slow.append((S, B, bit))
        return ['s_bitcmp1_b32 s76, %d' % bit, 's_cbranch_scc0 %s' % S, B + ':']
    def ks_lines(p, dst, tmp):
        L = [['s_xor_b32 s%d, s%d, %d' % (dst, G2_X, 4 * p), 's_add_u32 s%d, s%d, s%d' % (dst, dst, G2_KB)] if p < 12 else 's_add_u32 s%d, s%d, %d' % (dst, G2_KB, 4 * p), 's_sub_u32 s%d, s%d, 54' % (tmp, dst), 's_min_u32 s%d, s%d, s%d' % (dst, dst, tmp)]
        if p == 13: L += [['s_cmp_ge_u32 s%d, 2' % S_W, 's_cselect_b32 s%d, 60, s%d' % (dst, dst)]]
        return L
    def h_prep(r):
        return [fh_check(order[r])] + ks_lines(order[r], OH, TH) + [('s_lshl_b32 s%d, s%d, 12' % (OH, OH)) if not (OPT['xh'] and r >= 4) else 's_mov_b32 s%d, 0x7000000' % OH]
    def h_item(r, t):
        B = HB + 16 * (r % DH)
        return item('buffer_load_dwordx4 %s, v%d, %s, s%d offen%s' % (v(B + 4 * t, 4), 4 + t, s(SHh, 4), OH, [' sc1', '', ' sc0', ' nt'][OPT['xsc']]), vm=('h', r, t))
    for r in range(DH):
        for l in h_prep(r): g.emit(item(l))
        if r == 0: stamp(a, 7)
        stamp(a, 5 + r, 5)
        for t in range(4): g.emit(h_item(r, t))
    ZR = WB + 40
    GQ = WB
    ZU = WB + 20
    MASK = 71
    rbuf = [g2_lds(2), g2_lds(3), g2_lds(0)]
    for r in range(14):
        p = order[r]
        if r in (1, 3, 5, 7, 9, 11, 12, 13): stamp(a, (1, 3, 5, 7, 9, 11, 12, 13).index(r) + 2, 3)
        if r < 8: stamp(a, r + 1, 4)
        if r == 1: stamp(a, 9, 5)
        if r == 0: stamp7(a, 3)
        if r == 0 and OPT['stamp'] == 4: a('s_mov_b32 s98, s80')
        if r == 0: stamp(a, 1, 3)
        fill = {i: [] for i in range(20)}
        if r + DH < 14:
            for i, l in enumerate(h_prep(r + DH)): fill[min(i, 4) if i < 5 else 4].append(item(l))
            for j in range(4): fill[5 * j + 4].append(h_item(r + DH, j))
        free = [5, 6, 7, 8, 10, 11, 12, 13, 15, 16, 17, 18] if r + DH < 14 else list(range(20))
        extra = []
        if r - 1 in refill:
            pp = refill[r - 1]; Bs = WB + 20 * slot[r - 1]
            if pp >= 8:
                extra += [item(l) for l in ks_lines(pp, O, T)] + [item(('s_mul_i32 s%d, s%d, 40960' % (O, O)) if not OPT['xw'] else 's_mov_b32 s%d, 0x7000000' % O)]
                extra += [item('buffer_load_dwordx4 %s, v%d, %s, s%d offen offset:%d sc1' % (v(Bs + 4 * t, 4), 2 if t < 4 else 3, s(G2_SW, 4), O, (t & 3) * 1024), vm=('w', pp)) for t in range(5)]
            else:
                lb = g2_lds(pp - 4); ad = 24
                if pp == 5: ad, lb = 23, 0
                extra += [item('ds_read_b128 %s, v%d offset:%d' % (v(Bs + 4 * t, 4), ad, lb + t * 1024), lg=('wl', pp), needvm=[('wl', pp)]) for t in range(5)]
        if OPT['late67'] and r in (0, 3):
            extra += g2_wl_items(6 if r == 0 else 7, 2 if r == 0 else 3, va=2)
        if OPT['arf'] and r in (0, 3):
            extra += [item(FH_LOAD, vm='fh')]
        if OPT['arf'] and r in (3, 5):
            extra = [item('v_cmp_eq_u64 s[76:77], %s, v[26:27]' % NC, needvm=['fh'])] + extra
        if r == OPT['ztrig']:
            extra += [item('ds_write_b32 v254, v253 offset:4', lg='trig')]
        if r == 11:
            for j in range(1, 4):
                extra += [item(['s_xor_b32 s%d, s%d, %d' % (T, W, j), 's_mul_i32 s%d, s%d, 5120' % (T, T), 'v_add_u32 v%d, s%d, v2' % (4 + j, T)])]
        wr = []
        if r == 13:
            wr = ['ds_write_b128 v24, %s offset:%d' % (v(ACC + (j * 5 + mt) * 4, 4), rbuf[j - 1] + mt * 1024) for j in (1, 2, 3) for mt in range(5)]
            for i in range(9, 20): fill[i].append(item(wr[i - 9]))
        assert len(extra) <= len(free), (r, len(extra))
        for i, it in enumerate(extra): fill[free[i]].append(it)
        Bw = WB + 20 * slot[r]; Bh = HB + 16 * (r % DH)
        js = (0, 1, 2, 3) if r < 13 else (1, 2, 3, 0)
        i = 0
        for j in js:
            g.wait(vm=[('h', r, j), ('w', p)], lg=[('wl', p)])
            for mt in range(5):
                acc = v(ACC + (j * 5 + mt) * 4, 4)
                a('v_mfma_f32_16x16x32_bf16 %s, %s, %s, %s' % (acc, v(Bw + 4 * mt, 4), v(Bh + 4 * j, 4), '0' if r == 0 else acc))
                for it in fill[i]: g.emit(it)
                i += 1
    stamp(a, 8)
    for l in wr[11:]: a(l)
    a('s_waitcnt lgkmcnt(0)')
    a('s_barrier')
    stamp(a, 9)
    a('ds_read_b64 v[8:9], v11 offset:5120')
    a('s_mov_b32 s%d, 0xffff0000' % T)
    ZT = HB
    def rd(m2):
        a('ds_read2st64_b32 %s, v25 offset0:%d offset1:%d' % (v(ZR + 2 * m2, 2), 8 * m2, 8 * m2 + 1))
        a('ds_read_b128 %s, v11 offset:%d' % (v(GQ + 4 * m2, 4), m2 * 1024))
        for j in range(1, 4):
            a('ds_read_b128 %s, v%d offset:%d' % (v(ACC + (j * 5 + m2) * 4, 4), 4 + j, rbuf[j - 1] + m2 * 1024))
    for m2 in range(2): rd(m2)
    for mt in range(5):
        if mt + 2 < 5: rd(mt + 2)
        later = 5 * min(2, 4 - mt)
        a('s_waitcnt lgkmcnt(%d)' % (later + 3))
        A0 = ACC + 4 * mt
        for h in range(2):
            a('v_lshlrev_b32 v%d, 16, v%d' % (ZT + 2 * h, ZR + 2 * mt + h))
            a('v_and_b32 v%d, s%d, v%d' % (ZT + 2 * h + 1, T, ZR + 2 * mt + h))
        for h in range(2):
            a('v_pk_mul_f32 %s, %s, %s' % (v(GQ + 4 * mt + 2 * h, 2), v(GQ + 4 * mt + 2 * h, 2), v(ZT + 2 * h, 2)))
        a('s_waitcnt lgkmcnt(%d)' % later)
        for h in range(2):
            a('v_pk_add_f32 %s, %s, %s' % (v(A0 + 2 * h, 2), v(A0 + 2 * h, 2), v(A0 + 20 + 2 * h, 2)))
            a('v_pk_add_f32 %s, %s, %s' % (v(A0 + 40 + 2 * h, 2), v(A0 + 40 + 2 * h, 2), v(A0 + 60 + 2 * h, 2)))
        for h in range(2):
            a('v_pk_add_f32 %s, %s, %s' % (v(A0 + 2 * h, 2), v(A0 + 2 * h, 2), v(A0 + 40 + 2 * h, 2)))
        for h in range(2):
            a('v_pk_fma_f32 %s, %s, v[8:9], %s' % (v(A0 + 2 * h, 2), v(A0 + 2 * h, 2), v(GQ + 4 * mt + 2 * h, 2)))
        a('v_cvt_pk_bf16_f32 v%d, v%d, v%d' % (ZU + 2 * mt, A0, A0 + 1))
        a('v_cvt_pk_bf16_f32 v%d, v%d, v%d' % (ZU + 1 + 2 * mt, A0 + 2, A0 + 3))
    for mt in range(5):
        a('ds_write_b64 v10, %s offset:%d' % (v(ZU + 2 * mt, 2), 32 * mt))
    for i in range(3):
        a('ds_read_b128 %s, v15 offset:%d' % (v(16 + 4 * i, 4), 1024 * i))
    for i in range(3):
        a('s_waitcnt lgkmcnt(%d)' % (2 - i))
        a('buffer_store_dwordx4 %s, v%d, %s, 0 offen%s' % (v(16 + 4 * i, 4), 12 + i, s(SO, 4), ['', ' sc1', ' nt', ' sc0 sc1'][OPT['ost']]))
    stamp_end(a)
    a('s_endpgm')
    for (S, B, bit) in slow:
        L = a.newlabel('SL')
        a.label(S)
        a('s_mov_b32 s11, 0x4000')
        a.label(L)
        if OPT['stamp'] == 4: a('s_add_u32 s98, s98, 100')
        if bit is None:
            a(FZ_LOAD)
            a('s_waitcnt vmcnt(0)')
            a('v_cmp_eq_u64 vcc, %s, v[252:253]' % NC)
            a('s_cmp_eq_u64 vcc, -1')
        else:
            a(FH_LOAD)
            a('s_waitcnt vmcnt(0)')
            a('v_cmp_eq_u64 s[76:77], %s, v[26:27]' % NC)
            a('s_bitcmp1_b32 s76, %d' % bit)
        a('s_cbranch_scc1 %s' % B)
        a('s_sleep %d' % OPT['fsl'])
        a('s_sub_u32 s11, s11, 1')
        a('s_cbranch_scc0 %s' % L)
        a('s_branch %s' % B)

def kernel(a, name):
    a.raw('.p2align 8')
    a.label(name)
    a.label('K_code0')
    a('s_cmp_ge_u32 s2, 256')
    a('s_cbranch_scc1 K_exit')
    a('s_load_dwordx16 s[16:31], s[0:1], 0')
    a('s_load_dwordx8 s[32:39], s[0:1], 64')
    a('s_load_dwordx4 s[40:43], s[0:1], 96')
    a('s_memrealtime s[74:75]')
    stamp_begin(a)
    a('v_lshrrev_b32 v1, 6, v0')
    a('s_and_b32 s3, s2, 7')
    a('v_readfirstlane_b32 s%d, v1' % S_W)
    a('v_and_b32 v1, 63, v0')
    a('s_lshr_b32 s4, s2, 3')
    common_pre(a)
    a('s_getreg_b32 s%d, hwreg(HW_REG_XCC_ID)' % S_XCC)
    a('s_add_u32 s%d, s%d, 1' % (S_XCC, S_XCC))
    a('s_cmp_ge_u32 s4, 27')
    a('s_cbranch_scc1 K_prep')
    if OPT['map'] == 0:
        a('s_mov_b32 s8, s3')
        a('s_mov_b32 s9, s4')
    elif OPT['map'] == 1:
        a('s_and_b32 s9, s3, 3')
        a('s_mul_i32 s9, s9, 27')
        a('s_add_u32 s9, s9, s4')
        a('s_and_b32 s8, s3, 4')
        a('s_and_b32 s11, s9, 3')
        a('s_add_u32 s8, s8, s11')
        a('s_lshr_b32 s9, s9, 2')
    else:
        a('s_and_b32 s9, s3, 1')
        a('s_mul_i32 s9, s9, 27')
        a('s_add_u32 s9, s9, s4')
        a('s_and_b32 s8, s3, 6')
        a('s_and_b32 s11, s9, 1')
        a('s_add_u32 s8, s8, s11')
        a('s_lshr_b32 s9, s9, 1')
    a('s_cmp_lt_u32 s%d, 4' % S_W)
    a('s_cbranch_scc0 K_comp')
    l_pre(a)
    a('s_waitcnt lgkmcnt(0)')
    loader(a)
    a('s_branch K_g2wait')
    a.label('K_comp')
    c_pre(a)
    a('s_waitcnt lgkmcnt(0)')
    compute(a)
    a.label('K_conv')
    conv(a)
    a.label('K_prep')
    a('s_mul_i32 s8, s3, 5')
    a('s_add_u32 s8, s8, s4')
    a('s_sub_u32 s8, s8, 27')
    a('s_and_b32 s9, s%d, 3' % S_W)
    a('s_lshl_b32 s65, s8, 2')
    a('s_add_u32 s65, s65, s9')
    a('s_mul_i32 s7, s8, 10')
    a('s_add_u32 s7, s7, s9')
    a('s_add_u32 s7, s7, 6')
    a('s_cmp_lt_u32 s%d, 4' % S_W)
    a('s_cselect_b32 s66, -128, 32')
    a('s_add_u32 s65, s65, s66')
    a('s_mul_i32 s66, s65, 10923')
    a('s_lshr_b32 s66, s66, 16')
    a('s_lshl_b32 s66, s66, 2')
    a('s_add_u32 s66, s66, s65')
    a('s_cmp_lt_i32 s65, 0')
    a('s_cselect_b32 s7, s7, s66')
    ut_pre(a)
    a('s_waitcnt lgkmcnt(0)')
    a('s_barrier')
    ut_loads(a)
    stamp(a, 1)
    flag_srd(a)
    srd(a, 72, P_DBG, 256)
    go_off(a)
    a(GO_LOAD)
    a('s_waitcnt vmcnt(9)')
    stamp(a, 2)
    ut_k(a)
    a('s_mov_b32 s69, 0x4000')
    a.label('K_sp_go')
    a('s_waitcnt vmcnt(0)')
    a('v_cmp_ne_u32 vcc, 0, v250')
    a('s_cbranch_vccnz K_sp_go2')
    a('s_sleep 4')
    a(GO_LOAD)
    a('s_sub_u32 s69, s69, 1')
    a('s_cbranch_scc0 K_sp_go')
    a.label('K_sp_go2')
    if OPT['local']: fx_publish(a, 0)
    ut_v(a)
    stamp(a, 3)
    go_sgpr(a)
    a('s_mov_b32 s%d, 0' % CV_TG)
    gp = G1(a)
    a('s_cmp_lt_u32 s%d, 4' % S_W)
    a('s_cbranch_scc1 K_sp_g0')
    a('s_mov_b64 exec, 1')
    a('ds_add_u32 v254, v253 offset:20')
    a('s_mov_b64 exec, -1')
    a('s_lshl_b32 s7, s8, 1')
    a('s_add_u32 s7, s7, 216')
    a('s_mov_b32 s%d, 1' % CV_M)
    a('s_mov_b32 s%d, %d' % (CV_RB, CONV_BASE))
    a('s_setprio %d' % OPT['p1'])
    cv_pre(a)
    a(PF_LOAD)
    for it in cv_h_items(): gp.emit(it)
    a('s_waitcnt vmcnt(9)')
    set_flag(a, S_F2)
    stamp(a, 5)
    a('s_waitcnt vmcnt(9)')
    poll_check(a, PF_LOAD, 244, 11, sleep=OPT['usl'])
    cv_u_loads(a)
    cv_setup1(a)
    for ls in cv_pads():
        for l in ls: a(l)
    a('s_waitcnt vmcnt(4)')
    a.label('K_sp_fix')
    fx = cv_fix()
    for l in fx[0]: a(l)
    a('s_waitcnt lgkmcnt(0)')
    for l in fx[1:]: a(l)
    for l in cv_g_reads(0, 0): a(l)
    a('s_waitcnt vmcnt(0)')
    a('s_branch K_conv')
    a.label('K_sp_g0')
    gs_arrive(a)
    a('s_waitcnt vmcnt(0)')
    set_flag(a, S_F2)
    stamp(a, 5)
    a('s_mov_b32 s%d, %s' % (S_F2, hex(OOB)))
    a('s_add_u32 s7, s8, 296')
    a('s_cmp_ge_u32 s8, 24')
    a('s_cbranch_scc1 K_sp_n')
    a('s_mov_b32 s%d, 0' % CV_M)
    a('s_mov_b32 s%d, 0' % CV_RB)
    a('s_setprio %d' % OPT['p0'])
    cv_pre(a)
    gs_wait(a, 2)
    for it in cv_h_items_half(): gp.emit(it)
    cv_setup1(a)
    for ls in cv_pads():
        for l in ls: a(l)
    a.label('K_sp_p')
    a('s_cmp_gt_u32 s%d, 1' % S_W)
    a('s_cbranch_scc1 K_sp_b')
    a('s_cmp_eq_u32 s%d, 0' % S_W)
    a('s_cbranch_scc1 K_sp_a')
    a('s_mov_b32 s11, 0x40000')
    a.label('K_sp_e')
    a('ds_read_b32 v247, v254 offset:20')
    a('s_waitcnt lgkmcnt(0)')
    a('v_cmp_le_u32 vcc, 4, v247')
    a('s_cbranch_vccnz K_sp_f')
    a('s_sleep 4')
    a('s_sub_u32 s11, s11, 1')
    a('s_cbranch_scc0 K_sp_e')
    a.label('K_sp_f')
    fw_addr(a)
    a.label('K_sp_a')
    poll(a, PF_LOAD, 244, 11, sleep=OPT['usl'])
    a.label('K_sp_b')
    stamp(a, 1, 6)
    a('s_waitcnt vmcnt(0) lgkmcnt(0)')
    gs_arrive(a)
    gs_wait(a, 2)
    stamp(a, 2, 6)
    a('s_cmp_ge_u32 s7, 320')
    a('s_cbranch_scc1 K_prep_g2b')
    cv_u_loads(a)
    a('s_branch K_sp_fix')
    a.label('K_sp_n')
    a('s_cmp_eq_u32 s%d, 1' % S_W)
    a('s_cbranch_scc1 K_sp_p')
    a('s_branch K_sp_b')
    a.label('K_prep_g2b')
    stamp(a, 5, 6)
    a('s_setprio 0')
    g2_pre(a)
    for p in range(2):
        for it in g2_w_items(p, p): gp.emit(it)
    a('s_waitcnt vmcnt(10)')
    set_flag(a, S_F2)
    for p in range(2, 4):
        for it in g2_w_items(p, p): gp.emit(it)
    gs_wait(a)
    stamp(a, 6, 6)
    for r in range(4):
        for it in g2_wl_items(4 + r, r): gp.emit(it)
    a.label('K_g2wait')
    a('s_setprio 0')
    g2_fh_addr(a)
    g2_setup(a)
    g2_setup2(a)
    stamp(a, 7, 6); stamp(a, 6)
    a('s_mov_b32 s11, 0x4000')
    a.label('K_sp_d')
    a(PF_LOAD)
    a('s_waitcnt vmcnt(0)')
    a('v_cmp_eq_u64 s[76:77], %s, v[244:245]' % NC)
    a('s_bitcmp1_b32 s76, 0')
    a('s_cbranch_scc1 K_gemm2b')
    a('s_sleep %d' % OPT['s0'])
    a('s_sub_u32 s11, s11, 1')
    a('s_cbranch_scc0 K_sp_d')
    gemm2(a)
    a.label('K_exit')
    a('s_endpgm')

def main(out):
    hdr = open('cdna_kernels/%s.s.ref' % NAME).read().split('\n')
    head = [l for l in hdr if l.startswith(';') and '@launch' not in l and 'Override' not in l and 'grid=ceil' not in l]
    a = Asm()
    for l in head: a.raw(l)
    a.raw('; @launch grid=(256,1,1) block=(512,1,1) lds=%d' % LDS_TOTAL)
    a.raw('.amdgcn_target "amdgcn-amd-amdhsa--gfx950"')
    a.raw('.text')
    nm = NAME + '_kernel'
    a.raw('.globl %s' % nm)
    a.raw('.type %s,@function' % nm)
    kernel(a, nm)
    a.label('CODE_END')
    a.raw('.section .rodata,"a"')
    a.raw(kernel_desc(nm, 256))
    open(out, 'w').write(a.text())

if __name__ == '__main__':
    out = 'cdna_kernels/%s.s' % NAME
    for arg in sys.argv[1:]:
        if '=' in arg:
            k, val = arg.split('='); OPT[k] = int(val)
        else:
            out = arg
    main(out)
```
